```python
import torch

def _softmax(x, axis=-1):
    return torch.softmax(x, dim=axis)
def _gelu(x):
    return torch.nn.functional.gelu(x, approximate="tanh")
def _silu(x):
    return torch.nn.functional.silu(x)
def _sigmoid(x):
    return torch.sigmoid(x)
def _layernorm(x, axis=-1, eps=1e-5):
    m = x.mean(dim=axis, keepdim=True)
    v = x.var(dim=axis, keepdim=True, unbiased=False)
    return (x - m) / torch.sqrt(v + eps)
def _scatter_add(tgt, idx, src, axis=0):
    return tgt.clone().index_add_(axis, idx, src)
def _segment_sum(src, seg, n):
    out = torch.zeros((n,) + src.shape[1:], dtype=src.dtype)
    return out.index_add_(0, seg, src)
def _pad(x, pw):
    flat = tuple(v for pair in reversed(pw) for v in pair)
    return torch.nn.functional.pad(x, flat)

kernel_name = 'gated_mix__linear_kernel_hedgehog__ssm_conv_s5__prompt'

def setup_inputs():

    _w = (lambda a: (lambda t: t.to(torch.bfloat16) if t.is_floating_point() else t)(torch.as_tensor(a)))
    def _A_setup():
        B, S, D, H = 1, 2048, 512, 32
        Dh = D // H
        return {
            "x": _w((lambda *s: torch.randn(*s, dtype=torch.bfloat16) * 0.05)(B, S, D)),
            "wqkv": _w((lambda *s: torch.randn(*s, dtype=torch.bfloat16) * 1.6)(D, 3 * D)),
            "w_phi": _w((lambda *s: torch.randn(*s, dtype=torch.bfloat16) * 1.6)(H, Dh, Dh) * (Dh ** -0.5)),
            "wo": _w((lambda *s: torch.randn(*s, dtype=torch.bfloat16) * 0.05)(D, D)),
        }
    _A_in = _A_setup()

    def _B_setup():
        B, S, D = 1, 2048, 512
        P = D
        Lambda_re = -0.5 * (lambda _x: torch.exp(torch.as_tensor(_x)))((lambda *s: torch.randn(*s, dtype=torch.bfloat16) * 0.8)(P))
        Lambda_im = (lambda *s: torch.randn(*s, dtype=torch.bfloat16) * 0.8)(P) * 1.0
        B_re = (lambda *s: torch.randn(*s, dtype=torch.bfloat16) * 0.8)(P, D) * (D ** -0.5)
        B_im = (lambda *s: torch.randn(*s, dtype=torch.bfloat16) * 0.8)(P, D) * (D ** -0.5)
        C_re = (lambda *s: torch.randn(*s, dtype=torch.bfloat16) * 0.8)(D, P) * (P ** -0.5)
        C_im = (lambda *s: torch.randn(*s, dtype=torch.bfloat16) * 0.8)(D, P) * (P ** -0.5)
        log_dt = (lambda *s: torch.randn(*s, dtype=torch.bfloat16) * 0.8)(P) * 0.3 - 2.0
        Dskip = (lambda *s: torch.randn(*s, dtype=torch.bfloat16) * 0.8)(D)
        return {
            "x": _w((lambda *s: torch.randn(*s, dtype=torch.bfloat16) * 0.05)(B, S, D)),
            "Lambda_re": _w(Lambda_re),
            "Lambda_im": _w(Lambda_im),
            "B_re": _w(B_re),
            "B_im": _w(B_im),
            "C_re": _w(C_re),
            "C_im": _w(C_im),
            "log_dt": _w(log_dt),
            "Dskip": _w(Dskip),
        }
    _B_in = _B_setup()

    return {
        "A_x": _A_in["x"],
        "A_wqkv": _A_in["wqkv"],
        "A_w_phi": _A_in["w_phi"],
        "A_wo": _A_in["wo"],
        "B_x": _B_in["x"],
        "B_Lambda_re": _B_in["Lambda_re"],
        "B_Lambda_im": _B_in["Lambda_im"],
        "B_B_re": _B_in["B_re"],
        "B_B_im": _B_in["B_im"],
        "B_C_re": _B_in["C_re"],
        "B_C_im": _B_in["C_im"],
        "B_log_dt": _B_in["log_dt"],
        "B_Dskip": _B_in["Dskip"],
        "gate_w": _w((lambda *s: torch.randn(*s, dtype=torch.bfloat16) * 0.05)(512) * 16.0),
    }

def reference(A_x, A_wqkv, A_w_phi, A_wo, B_x, B_Lambda_re, B_Lambda_im, B_B_re, B_B_im, B_C_re, B_C_im, B_log_dt, B_Dskip, gate_w):
    def _A_ref(x, wqkv, w_phi, wo):
        B, S, D = x.shape
        H = 32; Dh = D // H
        qkv = (lambda x, *d: x.permute(*d))((x @ wqkv).reshape(B, S, 3, H, Dh), 2, 0, 3, 1, 4)
        q, k, v = qkv[0], qkv[1], qkv[2]
        pq = torch.einsum("bhsd,hdf->bhsf", q, w_phi)
        pk = torch.einsum("bhsd,hdf->bhsf", k, w_phi)
        phi_q = torch.concatenate([_softmax(pq, axis=-1), _softmax(-pq, axis=-1)], axis=-1)
        phi_k = torch.concatenate([_softmax(pk, axis=-1), _softmax(-pk, axis=-1)], axis=-1)
        kv = torch.einsum("bhsf,bhsd->bhfd", phi_k, v)
        z  = torch.einsum("bhsf->bhf", phi_k)
        num = torch.einsum("bhqf,bhfd->bhqd", phi_q, kv)
        den = torch.einsum("bhqf,bhf->bhq", phi_q, z)[..., None] + 1e-6
        o = num / den
        return (lambda x, *d: x.permute(*d))(o, 0, 2, 1, 3).reshape(B, S, D) @ wo

    def _B_ref(x, Lambda_re, Lambda_im, B_re, B_im, C_re, C_im, log_dt, Dskip):
        Bsz, L, H = x.shape
        Lam = Lambda_re + 1j * Lambda_im
        Bmat = B_re + 1j * B_im
        Cmat = C_re + 1j * C_im
        dt = torch.exp(log_dt)
        Lam_bar = torch.exp(dt * Lam)
        B_bar = ((Lam_bar - 1.0) / Lam)[:, None] * Bmat
        Bu = torch.einsum("bld,pd->blp", x + 0j, B_bar)
        h = torch.zeros_like(Bu[:, 0, :])
        hs = []
        for t in range(L):
            h = Lam_bar[None, :] * h + Bu[:, t, :]
            hs.append(h)
        hseq = torch.stack(hs, 1)
        y = 2.0 * torch.einsum("blp,dp->bld", hseq, Cmat).real + x * Dskip[None, None, :]
        return y

    x = A_x
    g = _sigmoid((x * gate_w).sum(-1, keepdims=True))
    a = _A_ref(x, A_wqkv, A_w_phi, A_wo)
    b = _B_ref(x, B_Lambda_re, B_Lambda_im, B_B_re, B_B_im, B_C_re, B_C_im, B_log_dt, B_Dskip)
    return g * a + (1 - g) * b
```

```python
import re

TRANS = ("v_exp_f32", "v_log_f32", "v_rcp_f32", "v_rsq_f32", "v_sqrt_f32", "v_sin_f32", "v_cos_f32")

def split_ops(s):
    out, depth, cur = [], 0, ""
    for ch in s:
        if ch in "[(":
            depth += 1
        if ch in "])":
            depth -= 1
        if ch == "," and depth == 0:
            out.append(cur.strip()); cur = ""
        else:
            cur += ch
    if cur.strip():
        out.append(cur.strip())
    return out

REG_RE = re.compile(r"^(?:-|\|)?(?:abs\()?-?([vas])(?:(\d+)|\[(\d+):(\d+)\])\)?\|?$")

def regs_of(op):
    op = op.strip()
    if op in ("vcc", "exec", "m0", "scc"):
        return [(op, 0)]
    if op in ("vcc_lo", "vcc_hi"):
        return [("vcc", 0)]
    if op in ("exec_lo", "exec_hi"):
        return [("exec", 0)]
    m = REG_RE.match(op)
    if not m:
        return []
    t = m.group(1)
    if m.group(2) is not None:
        return [(t, int(m.group(2)))]
    return [(t, i) for i in range(int(m.group(3)), int(m.group(4)) + 1)]

class I:
    def __init__(self, text, tok=None, pseudo=None, arg=None):
        self.text = text; self.tok = tok; self.pseudo = pseudo; self.arg = arg
        self.reads = set(); self.writes = set()
        self.kind = "pseudo" if pseudo else None
        self.dpp = self.perml = self.rdlane = self.opseld = self.wide_store = self.ldsdma = self.dot = False
        self.passes = 0
        self.A = self.B = self.C = self.D = frozenset()
        self.data = frozenset()
        if not pseudo:
            self.parse()

    def parse(self):
        t = self.text.split(";")[0].strip()
        if t.endswith(":"):
            self.kind = "label"; return
        if t.startswith("."):
            self.kind = "directive"; return
        parts = t.split(None, 1)
        op = parts[0]; self.op = op
        rest = parts[1] if len(parts) > 1 else ""
        ops = split_ops(rest)
        mods = ""
        if ops:
            lp = ops[-1].split(None, 1)
            if len(lp) > 1:
                ops[-1] = lp[0]; mods = lp[1]
        self.mods = mods
        R = [regs_of(o) for o in ops]
        def rd(idx):
            for i in idx:
                if i < len(R): self.reads.update(R[i])
        def wr(idx):
            for i in idx:
                if i < len(R): self.writes.update(R[i])
        n = len(ops)
        if op.startswith("v_mfma"):
            self.kind = "mfma"
            self.passes = 8 if "32x32x16" in op else 4 if "16x16x32" in op else None
            assert self.passes, op
            self.D = frozenset(R[0]); self.A = frozenset(R[1]); self.B = frozenset(R[2]); self.C = frozenset(R[3])
            wr([0]); rd([1, 2, 3])
        elif op.startswith("v_"):
            self.kind = "trans" if op.replace("_e32", "").replace("_e64", "") in TRANS else "valu"
            if "permlane" in op and "swap" in op:
                self.perml = True; wr([0, 1]); rd([0, 1])
            elif op.startswith(("v_add_co", "v_sub_co", "v_addc_co", "v_subb_co", "v_subrev_co")):
                wr([0, 1]); rd(range(2, n))
            else:
                wr([0]); rd(range(1, n))
            if op.startswith(("v_fmac", "v_dot2c", "v_pk_fmac", "v_writelane")):
                rd([0])
            if op.startswith(("v_readfirstlane", "v_readlane")):
                self.rdlane = True
            if op.startswith("v_dot"):
                self.dot = True
            if re.search(r"row_|quad_perm|wave_|bcast", mods):
                self.dpp = True; rd([0])
            if "dst_sel" in mods and "dst_sel:DWORD" not in mods:
                self.opseld = True; rd([0])
        elif op.startswith("ds_"):
            self.kind = "ds"
            if op.startswith("ds_read") or op.startswith("ds_bpermute") or op.startswith("ds_swizzle"):
                wr([0]); rd(range(1, n))
            else:
                rd(range(n))
        elif op.startswith("buffer_") or op.startswith("global_"):
            self.kind = "vmem"
            allm = " " + mods + " "
            if op.startswith("buffer_load") and " lds " in allm:
                self.ldsdma = True; rd(range(n)); self.reads.add(("m0", 0))
            elif "_load" in op:
                wr([0]); rd(range(1, n))
                if "d16" in op: self.d16 = True
            elif "_store" in op:
                rd(range(n))
                di = 0 if op.startswith("buffer_") else 1
                self.data = frozenset(R[di])
                self.wide_store = op.endswith(("x3", "x4"))
            else:
                raise ValueError(op)
        elif op.startswith(("s_load", "s_memrealtime", "s_memtime")):
            self.kind = "smem"; wr([0]); rd(range(1, n))
        elif op in ("s_waitcnt", "s_barrier", "s_endpgm", "s_setprio", "s_nop") or op.startswith(("s_branch", "s_cbranch")):
            self.kind = "sopp"
        elif op.startswith("s_"):
            self.kind = "salu"
            if op.startswith(("s_cmp", "s_bitcmp")):
                rd(range(n))
            else:
                wr([0]); rd(range(1, n))
        else:
            raise ValueError("unknown op " + op)

def isv(rs):
    return {r for r in rs if r[0] in "va"}
def iss(rs):
    return {r for r in rs if r[0] in ("s", "vcc")}

def hazard(p, c):
    need = 0
    pk, ck = p.kind, c.kind
    pval = pk in ("valu", "trans"); cval = ck in ("valu", "trans")
    if pval:
        wv = isv(p.writes); ws = iss(p.writes)
        if ck == "mfma" and wv & c.reads: need = max(need, 2)
        if cval:
            if ws & c.reads: need = max(need, 4 if c.op.startswith(("v_readlane", "v_writelane")) else 2)
            if wv & c.reads:
                if c.dpp or c.perml: need = max(need, 2)
                if c.rdlane: need = max(need, 1)
                if pk == "trans" and ck != "trans": need = max(need, 1)
            if p.opseld and wv & (c.reads | c.writes): need = max(need, 1)
            if p.dot and wv & (c.reads | c.writes):
                if not (c.dot and c.op == p.op): need = max(need, 3)
                else: need = max(need, 3)
        if ck == "vmem" and ws & c.reads: need = max(need, 5)
        if p.dot and ck in ("vmem", "ds", "mfma") and wv & (c.reads | c.writes): need = max(need, 3)
    if pk == "mfma":
        big, ovl, war = (12, 10, 7) if p.passes == 8 else (8, 6, 3)
        if ck == "mfma":
            if p.D & c.C and not (p.D == c.C and p.passes == c.passes): need = max(need, ovl)
            if p.D & (c.A | c.B): need = max(need, big)
            if p.D & c.D and not (p.D == c.C and p.passes == c.passes): need = max(need, big)
        elif ck in ("valu", "trans", "vmem", "ds"):
            if p.D & (c.reads | c.writes): need = max(need, big)
            if cval and p.C & c.writes: need = max(need, war)
            if ck in ("vmem", "ds") and p.C & c.writes: need = max(need, war)
    if pk == "salu" and ("m0", 0) in p.writes and c.ldsdma: need = max(need, 1)
    if pk == "vmem" and p.wide_store and p.data & c.writes:
        need = max(need, 2 if cval else 1)
    return need

class Prog:
    def __init__(self):
        self.ins = []
    def __call__(self, text, tok=None):
        for line in text.strip().split("\n"):
            line = line.strip()
            if not line or line.startswith(";"): continue
            self.ins.append(I(line, tok=tok))
        return self
    def waitvm(self, tok):
        self.ins.append(I("", pseudo="waitvm", arg=tok))
    def waitlg(self, tok):
        self.ins.append(I("", pseudo="waitlg", arg=tok))
    def mark(self, name):
        self.ins.append(I("", pseudo="mark", arg=name))
    def extend(self, other):
        self.ins.extend(other.ins if isinstance(other, Prog) else other)

def weave(main, side, every=1, start=0, pred=None, per=1):
    out = []; si = 0; cnt = 0
    side = side.ins if isinstance(side, Prog) else side
    main = main.ins if isinstance(main, Prog) else main
    for m in main:
        out.append(m)
        if pred is None or pred(m):
            cnt += 1
            if cnt > start and (cnt - start) % every == 0:
                k = per
                while k > 0 and si < len(side):
                    out.append(side[si])
                    if side[si].kind != "pseudo": k -= 1
                    si += 1
    out.extend(side[si:])
    p = Prog(); p.ins = out
    return p

def finalize(ins, stats=None):
    out = []
    hist = []
    st = 0
    vm_seq = 0; vm_done = 0; lg_seq = 0; lg_done = 0
    smem_out = False
    pend_vm = {}; pend_lg = {}; pend_sm = set()
    vm_tok = {}; lg_tok = {}
    nnop = 0
    def emit_wait(vm_t, lg_t, lg0):
        nonlocal vm_done, lg_done, smem_out, st
        parts = []
        if vm_t > vm_done:
            n = min(vm_seq - vm_t, 63); parts.append(f"vmcnt({n})"); vm_done = vm_seq - n
        if lg0 or lg_t > lg_done:
            if lg0 or smem_out:
                n = 0; smem_out = False; pend_sm.clear()
            else:
                n = min(lg_seq - lg_t, 15)
            parts.append(f"lgkmcnt({n})"); lg_done = lg_seq - n
        if parts:
            out.append("    s_waitcnt " + " ".join(parts)); st += 1
    for c in ins:
        if c.kind == "pseudo":
            if c.pseudo == "waitvm":
                t = vm_seq if c.arg is None else vm_tok[c.arg]
                emit_wait(t, 0, False)
            elif c.pseudo == "waitlg":
                if c.arg is None:
                    if lg_seq > lg_done or smem_out: emit_wait(0, lg_seq, True)
                else:
                    emit_wait(0, lg_tok[c.arg], False)
            elif c.pseudo == "mark":
                out.append(f"    ; ---- {c.arg}")
            continue
        if c.kind in ("label", "directive"):
            out.append(c.text); continue
        vm_t = 0; lg_t = 0; lg0 = False
        for r in c.reads | c.writes:
            if r in pend_vm:
                same = c.kind == "vmem" and r in c.writes and r not in c.reads
                if not same: vm_t = max(vm_t, pend_vm[r])
            if r in pend_lg:
                same = c.kind == "ds" and r in c.writes and r not in c.reads
                if not same: lg_t = max(lg_t, pend_lg[r])
            if r in pend_sm: lg0 = True
        emit_wait(vm_t, lg_t, lg0)
        need = 0
        for p, pst in hist:
            d = st - pst - 1
            h = hazard(p, c)
            if h > d: need = max(need, h - d)
        if need:
            nnop += need
            out.append(f"    s_nop {need-1}"); st += need
        out.append("    " + c.text)
        if c.text.startswith("s_waitcnt"):
            m = re.search(r"vmcnt\((\d+)\)", c.text)
            if m: vm_done = max(vm_done, vm_seq - int(m.group(1)))
            m = re.search(r"lgkmcnt\((\d+)\)", c.text)
            if m and int(m.group(1)) == 0:
                lg_done = lg_seq; smem_out = False; pend_sm.clear()
        hist.append((c, st))
        if c.text.startswith("s_nop"):
            st += int(c.text.split()[1], 0) + 1
        else:
            st += 1
        hist = [(p, s) for p, s in hist if st - s <= 21]
        if c.kind == "vmem":
            vm_seq += 1
            for r in c.writes: pend_vm[r] = vm_seq
            if c.tok: vm_tok[c.tok] = vm_seq
        elif c.kind == "ds":
            lg_seq += 1
            for r in c.writes: pend_lg[r] = lg_seq
            if c.tok: lg_tok[c.tok] = lg_seq
        elif c.kind == "smem":
            smem_out = True
            pend_sm.update(c.writes)
        pend_vm = {r: s for r, s in pend_vm.items() if s > vm_done}
        pend_lg = {r: s for r, s in pend_lg.items() if s > lg_done}
    if stats is not None:
        stats["nops"] = nnop
    return out
```

```python
import sys
sys.path.insert(0, "dev")
from asmlib import Prog, weave, finalize, I

OPT = dict(dbg=0, stamps=0, depth=3, stop=99, spin=4096)
for a in sys.argv[2:]:
    k, v = a.split("="); OPT[k] = int(v, 0)
DBG = OPT["dbg"]; STAMPS = OPT["stamps"]; D = OPT["depth"]
KN = "gated_mix__linear_kernel_hedgehog__ssm_conv_s5__prompt_kernel"

RB = 98304; S1 = 32768; S2 = 65536; TAB = S2 + 5120; XCH = RB
W_EPOCH = 0; W_G = 0x1000; W_E = 0x4000; W_FH = 0x24000; W_FO = 0x28000; W_KVP = 0x30000; W_ZP = 0x130000
W_H = 0x200000; W_O = 0x600000; W_DBG = 0x1000000; W_ST = 0x900000
P_WPHI = "s[8:9]"; P_LRE = "s[14:15]"; P_LIM = "s[16:17]"; P_LDT = "s[26:27]"; P_DSK = "s[28:29]"; P_GW = "s[30:31]"
SRD_X, SRD_W, SRD_B, SRD_CR, SRD_CI, SRD_WO, SRD_WS, SRD_OUT = [f"s[{i}:{i+3}]" for i in range(40, 72, 4)]
sXo = [f"s{72+j}" for j in range(8)]; sWo = [f"s{80+j}" for j in range(8)]
sRB, sCG, sW, sTAG, sRT, sCT, sRG, sT0, sT1, sFF, sT2, sSPIN = [f"s{i}" for i in range(88, 100)]
sM1, sM2, sM3 = "s[4:5]", "s[6:7]", "s[10:11]"
sHI = "s[12:13]"
sCgC = [f"s{18+c}" for c in range(4)]; sCgW = [f"s{22+c}" for c in range(4)]
sRING, sPW, sHM, sL2E = "s34", "s35", "s32", "s[38:39]"
sFFFF = "s33"; sT3 = "s3"
def v(i, n=1): return f"v{i}" if n == 1 else f"v[{i}:{i+n-1}]"
def a(i, n=1): return f"a{i}" if n == 1 else f"a[{i}:{i+n-1}]"
vL, vHI, vT = 1, 2, 3
vX = [4, 5, 6, 7]; vB = [8, 9]; vW, vWq = 10, 11
vXf = [12, 13, 14, 15]; vXf2 = [16, 17, 18, 19]; vBf = [20, 21, 22, 23]; vTRkv, vTRq = 24, 25
vC = [26, 27, 28, 29]; vWO = [30, 31, 32, 33]; vCf = [34, 35]; vWOf = [36, 37]
vLAM, vL8, vL16p, vL32, vMU, vMU2, vCOEF = 38, 40, 42, 44, 46, 48, 50
vA1, vA2 = 52, 56
vTAG, vL16, vT2, vDBG = 60, 61, 62, 63
vU_RE, vU_IM = 64, 80
vKT, vVV, vQT = 96, 112, 128
vFR = 144
vPHQ = 176
vWOFR = 192
vALR, vALI, vBER, vBEI = 4, 6, 12, 14
vALR0, vALI0 = 188, 190
aXF = 128
aCF = 0

main = Prog(); slow = Prog()
E = main
dbg_slot = [0]; dbg_names = []
def dump(name, regs, p=None):
    if not DBG: return
    p = p or main
    for r in regs:
        p(f"s_mov_b32 {sT3}, {W_DBG + dbg_slot[0]*262144}")
        p(f"buffer_store_dword {r}, {v(vDBG)}, {SRD_WS}, {sT3} offen")
        dbg_slot[0] += 1
    dbg_names.append((name, dbg_slot[0] - len(regs), len(regs)))
nst = [0]
def stamp(p=None):
    if not STAMPS: return
    p = p or main
    k = nst[0]; nst[0] += 1
    p(f"s_memrealtime s[100:101]")
    p(f"v_mov_b32 {v(vT2)}, s100")
    p(f"v_writelane_b32 {v(vDBG)}, s100, {k}")

def spin(name, reload_fn, check_fn):
    check_fn(main)
    main(f"s_cbranch_vccnz L_slow_{name}")
    main(f"L_back_{name}:")
    slow(f"L_slow_{name}:")
    slow(f"s_mov_b32 {sSPIN}, {OPT['spin']}")
    slow(f"L_loop_{name}:")
    slow("s_nop 4")
    reload_fn(slow)
    slow("s_waitcnt vmcnt(0)")
    check_fn(slow)
    slow("s_nop 4")
    slow(f"s_cbranch_vccz L_back_{name}")
    slow(f"s_sub_u32 {sSPIN}, {sSPIN}, 1")
    slow(f"s_cbranch_scc0 L_loop_{name}")
    slow(f"s_branch L_back_{name}")

def cmul_add(p, d, x, lam, y):
    p(f"v_fma_f32 {v(d)}, {v(lam)}, {v(x)}, {v(y)}")
    p(f"v_fma_f32 {v(d+1)}, {v(lam)}, {v(x+1)}, {v(y+1)}")
    p(f"v_fma_f32 {v(d)}, -{v(lam+1)}, {v(x+1)}, {v(d)}")
    p(f"v_fma_f32 {v(d+1)}, {v(lam+1)}, {v(x)}, {v(d+1)}")
def cmul(p, d, x, y):
    p(f"v_mul_f32 {v(d)}, {v(x)}, {v(y)}")
    p(f"v_mul_f32 {v(d+1)}, {v(x)}, {v(y+1)}")
    p(f"v_fma_f32 {v(d)}, -{v(x+1)}, {v(y+1)}, {v(d)}")
    p(f"v_fma_f32 {v(d+1)}, {v(x+1)}, {v(y)}, {v(d+1)}")
def csq(p, d, x):
    cmul(p, d, x, x)
LO = "op_sel:[0,0,0] op_sel_hi:[1,0,1]"; HI = "op_sel:[0,1,0] op_sel_hi:[1,1,1]"
LO2 = "op_sel:[0,0] op_sel_hi:[1,0]"; HI2 = "op_sel:[0,1] op_sel_hi:[1,1]"
NEG1 = "neg_lo:[0,1,0] neg_hi:[0,1,0]"

E("s_cmp_ge_u32 s2, 256")
E("s_cbranch_scc1 L_end")
E("s_load_dwordx16 s[4:19], s[0:1], 0")
E("s_load_dwordx16 s[20:35], s[0:1], 64")
E("s_load_dwordx2 s[36:37], s[0:1], 128")
if STAMPS: E(f"v_mov_b32 {v(vDBG)}, 0")
stamp()
E(f"""
s_and_b32 {sT0}, s2, 7
s_lshr_b32 {sT1}, s2, 3
v_lshrrev_b32 {v(vT)}, 6, v0
v_and_b32 {v(vL)}, 63, v0
s_and_b32 {sRB}, {sT0}, 1
v_readfirstlane_b32 {sW}, {v(vT)}
s_lshl_b32 {sRT}, {sRB}, 4
s_lshl_b32 {sRB}, {sRB}, 3
s_and_b32 {sCT}, {sT1}, 7
s_or_b32 {sRB}, {sRB}, {sCT}
s_lshr_b32 {sCG}, {sT0}, 1
s_lshl_b32 {sCG}, {sCG}, 2
s_lshr_b32 {sT1}, {sT1}, 3
s_or_b32 {sCG}, {sCG}, {sT1}
s_or_b32 {sRT}, {sRT}, {sCG}
s_lshl_b32 {sRG}, {sRB}, 2
s_or_b32 {sRG}, {sRG}, {sW}
s_lshl_b32 {sT0}, {sCG}, 1
s_add_u32 {sT0}, {sT0}, {sRB}
v_lshlrev_b32 {v(vL16)}, 4, {v(vL)}
v_lshrrev_b32 {v(vHI)}, 5, {v(vL)}
""")
for j in range(8):
    E(f"s_add_u32 {sT2}, {sT0}, {j}")
    E(f"s_and_b32 {sT2}, {sT2}, 7")
    E(f"s_lshl_b32 {sXo[j]}, {sT2}, 7")
    E(f"s_mul_i32 {sWo[j]}, {sT2}, 196608")
E(f"""
v_lshrrev_b32 {v(vT)}, 4, {v(vL)}
v_and_b32 {v(vT2)}, 7, {v(vL)}
v_xor_b32 {v(vT2)}, {v(vT2)}, {v(vT)}
v_lshlrev_b32 {v(vT2)}, 4, {v(vT2)}
v_and_b32 {v(vX[0])}, 1, {v(vT)}
v_and_b32 {v(vX[1])}, 8, {v(vL)}
v_or_b32 {v(vX[0])}, {v(vX[0])}, {v(vX[1])}
v_lshl_or_b32 {v(vX[0])}, {v(vHI)}, 4, {v(vX[0])}
s_lshl_b32 {sT2}, {sRG}, 5
v_add_u32 {v(vX[0])}, {sT2}, {v(vX[0])}
v_lshl_or_b32 {v(vX[0])}, {v(vX[0])}, 10, {v(vT2)}
v_xor_b32 {v(vX[1])}, 64, {v(vX[0])}
v_add_u32 {v(vX[1])}, 1024, {v(vX[1])}
v_add_u32 {v(vX[2])}, 2048, {v(vX[0])}
v_add_u32 {v(vX[3])}, 2048, {v(vX[1])}
""")
E(f"""
s_and_b32 {sT2}, {sW}, 1
s_lshl_b32 {sT2}, {sT2}, 4
s_lshl_b32 {sT3}, {sCG}, 5
s_add_u32 {sT2}, {sT2}, {sT3}
v_lshrrev_b32 {v(vB[0])}, 3, {v(vL)}
v_add_u32 {v(vB[0])}, {sT2}, {v(vB[0])}
v_lshl_or_b32 {v(vB[0])}, {v(vB[0])}, 10, {v(vT2)}
v_xor_b32 {v(vB[1])}, 64, {v(vB[0])}
v_add_u32 {v(vB[1])}, 7168, {v(vB[1])}
s_lshl_b32 {sRING}, {sW}, 12
""")
def srd(dst, lo, size):
    b = int(dst[2:].split(":")[0])
    E(f"s_mov_b32 s{b}, s{lo}")
    E(f"s_and_b32 s{b+1}, s{lo+1}, 0xffff")
    E(f"s_mov_b32 s{b+2}, {size}")
    E(f"s_mov_b32 s{b+3}, 0x20000")
srd(SRD_X, 4, 2097152)
E(f"s_cmp_lt_u32 {sW}, 2")
E("s_cselect_b32 s48, s18, s20")
E("s_cselect_b32 s49, s19, s21")
E("s_and_b32 s49, s49, 0xffff")
E("s_mov_b32 s50, 524288")
E("s_mov_b32 s51, 0x20000")
vGX0, vGX1, vGW = 64, 68, 72
E(f"""
s_lshl_b32 {sT2}, {sRG}, 5
s_lshl_b32 {sT3}, {sCG}, 1
s_add_u32 {sT2}, {sT2}, {sT3}
s_lshl_b32 {sT2}, {sT2}, 10
buffer_load_dwordx4 {v(vGX0,4)}, {v(vL16)}, {SRD_X}, {sT2} offen
buffer_load_dwordx4 {v(vGX1,4)}, {v(vL16)}, {SRD_X}, {sT2} offen offset:1024
global_load_dwordx4 {v(vGW,4)}, {v(vL16)}, {P_GW}
s_load_dword {sTAG}, s[36:37], {W_EPOCH}
""")
def dma_xb(p, j):
    slot = j if j < 6 else j - 6
    p(f"s_add_u32 m0, {sRING}, {slot*16384}")
    for q in range(4):
        p(f"buffer_load_dwordx4 {v(vX[q])}, {SRD_X}, {sXo[j]} offen offset:{q*1024} lds")
    p(f"s_lshr_b32 {sT3}, {sRING}, 1")
    p(f"s_add_u32 m0, {sT3}, {RB + j*8192}")
    for q in range(2):
        p(f"buffer_load_dwordx4 {v(vB[q])}, {SRD_B}, {sXo[j]} offen offset:{q*1024} lds", tok=f"xb{j}")
def dma_wpair(p, pr):
    for jj in range(2):
        j = 2*pr + jj
        p(f"s_add_u32 m0, {sRING}, {(2+pr)*16384 + jj*2048}")
        p(f"buffer_load_dwordx4 {v(vW)}, {SRD_W}, {sWo[j]} offen lds")
        p(f"buffer_load_dwordx4 {v(vW)}, {SRD_W}, {sWo[j]} offen offset:1024 lds", tok=f"w{pr}")
def dma_wq(p):
    for j in range(8):
        p(f"s_add_u32 m0, {sRING}, {(j>>2)*16384 + (j&3)*1024}")
        p(f"buffer_load_dwordx4 {v(vWq)}, {SRD_W}, {sWo[j]} offen lds", tok="wq")
dma_xb(E, 0)
vPR, vPI, vPD = 100, 101, 102
E(f"""
v_and_b32 {v(vT)}, 31, {v(vL)}
s_lshl_b32 {sT2}, {sCG}, 6
v_lshl_add_u32 {v(vT)}, {v(vT)}, 1, {sT2}
global_load_ushort {v(vPR)}, {v(vT)}, {P_LRE}
global_load_ushort {v(vPI)}, {v(vT)}, {P_LIM}
global_load_ushort {v(vPD)}, {v(vT)}, {P_LDT}
""")
E(f"""
v_bfe_u32 {v(vT)}, {v(vL)}, 3, 2
v_and_b32 {v(vT2)}, 3, {v(vL)}
v_lshl_add_u32 {v(vT)}, {v(vT)}, 2, {v(vT2)}
v_lshlrev_b32 {v(vT)}, 1, {v(vT)}
v_lshl_or_b32 {v(vT)}, {v(vHI)}, 7, {v(vT)}
v_bfe_u32 {v(vT2)}, {v(vL)}, 2, 1
v_lshl_or_b32 {v(vT)}, {v(vT2)}, 9, {v(vT)}
s_lshl_b32 {sT2}, {sCG}, 10
v_add_u32 {v(vT)}, {sT2}, {v(vT)}
""")
for e in range(8):
    E(f"global_load_ushort {v(112 + e)}, {v(vT)}, {P_WPHI} offset:{(e&3)*32 + (e>>2)*256}")
for j in range(1, D):
    dma_xb(E, j)
srd(SRD_W, 6, 1572864); srd(SRD_CR, 22, 524288); srd(SRD_CI, 24, 524288); srd(SRD_WO, 10, 524288)
srd(SRD_WS, 36, 0x10000000); srd(SRD_OUT, 32, 4194304)
E(f"""
s_lshl_b32 {sPW}, {sW}, 14
s_add_u32 {sPW}, {sPW}, {RB}
s_mov_b32 {sHM}, 0xffff0000
s_mov_b32 {sFFFF}, 0xffff
s_mov_b32 {sFF}, 0xff
s_mov_b32 s38, 0x3fb8aa3b
s_mov_b32 s39, 0x3fb8aa3b
s_cmp_ge_u32 {sW}, 1
s_cselect_b64 {sM1}, -1, 0
s_cmp_ge_u32 {sW}, 2
s_cselect_b64 {sM2}, -1, 0
s_cmp_ge_u32 {sW}, 3
s_cselect_b64 {sM3}, -1, 0
s_mov_b32 s12, 0
s_mov_b32 s13, -1
s_and_b32 {sT2}, {sCG}, 3
s_add_u32 {sT2}, {sT2}, {sCT}
""")
for c in range(4):
    E(f"s_add_u32 {sT1}, {sT2}, {c}")
    E(f"s_and_b32 {sT1}, {sT1}, 3")
    E(f"s_lshl_b32 {sT0}, {sW}, 2")
    E(f"s_or_b32 {sT1}, {sT1}, {sT0}")
    E(f"s_lshl_b32 {sCgC[c]}, {sT1}, 6")
    E(f"s_lshl_b32 {sCgW[c]}, {sT1}, 15")
if DBG:
    E(f"s_lshl_b32 {sT2}, s2, 10")
    E(f"v_lshl_add_u32 {v(vDBG)}, v0, 2, {sT2}")
E(f"""
v_lshrrev_b32 {v(vT)}, 2, {v(vL)}
s_lshl_b32 {sT2}, {sW}, 4
v_add_u32 {v(vT)}, {sT2}, {v(vT)}
v_mul_u32_u24 {v(vWq)}, 3072, {v(vT)}
v_and_b32 {v(vT2)}, 3, {v(vL)}
s_lshl_b32 {sT2}, {sCG}, 6
v_lshl_add_u32 {v(vT2)}, {v(vT2)}, 4, {sT2}
v_add_u32 {v(vWq)}, {v(vWq)}, {v(vT2)}
v_add_u32 {v(vW)}, 1024, {v(vWq)}
""")
E(f"""
v_bfe_u32 {v(vT)}, {v(vL)}, 1, 3
v_xor_b32 {v(vT)}, {v(vT)}, {v(vHI)}
v_lshlrev_b32 {v(vT)}, 4, {v(vT)}
v_and_b32 {v(vT2)}, 31, {v(vL)}
v_lshl_or_b32 {v(vT)}, {v(vT2)}, 7, {v(vT)}
""")
for k in range(4):
    E(f"v_xor_b32 {v(vT2)}, {k*32}, {v(vT)}")
    E(f"v_add_u32 {v(vBf[k])}, {RB}, {v(vT2)}")
    E(f"v_add_u32 {v(vXf[k])}, {sRING}, {v(vT2)}")
    E(f"v_add_u32 {v(vXf2[k])}, 65536, {v(vXf[k])}")
E(f"""
v_bfe_u32 {v(vT)}, {v(vL)}, 2, 2
v_lshl_or_b32 {v(vT)}, {v(vHI)}, 3, {v(vT)}
v_lshlrev_b32 {v(vTRq)}, 6, {v(vT)}
v_bfe_u32 {v(vT2)}, {v(vL)}, 4, 1
v_lshl_or_b32 {v(vTRq)}, {v(vT2)}, 5, {v(vTRq)}
v_and_b32 {v(vT2)}, 3, {v(vL)}
v_lshl_or_b32 {v(vTRq)}, {v(vT2)}, 3, {v(vTRq)}
v_add_u32 {v(vTRkv)}, 32768, {v(vTRq)}
""")
sPWa, sPWb = "s0", "s1"
E(f"""
v_lshrrev_b32 {v(vT)}, 4, {v(vL)}
v_and_b32 {v(vT2)}, 3, {v(vL)}
v_xor_b32 {v(vT2)}, {v(vT2)}, {v(vT)}
v_lshlrev_b32 {v(vT2)}, 4, {v(vT2)}
v_lshrrev_b32 {v(vT)}, 2, {v(vL)}
s_lshl_b32 {sT2}, {sCT}, 6
v_add_u32 {v(vT)}, {sT2}, {v(vT)}
v_lshl_or_b32 {v(vC[0])}, {v(vT)}, 10, {v(vT2)}
v_add_u32 {v(vC[1])}, 15360, {v(vC[0])}
v_add_u32 {v(vC[2])}, 32768, {v(vC[0])}
v_add_u32 {v(vC[3])}, 32768, {v(vC[1])}
s_and_b32 {sT0}, {sW}, 1
s_lshl_b32 {sT1}, {sT0}, 11
s_add_u32 {sPWa}, {sPW}, {sT1}
s_xor_b32 {sT1}, {sT1}, 2048
s_add_u32 {sPWb}, {sPW}, {sT1}
""")
E(f"""
v_bfe_u32 {v(vT)}, {v(vL)}, 2, 2
v_xor_b32 {v(vT)}, {v(vT)}, {v(vHI)}
v_lshlrev_b32 {v(vT)}, 4, {v(vT)}
v_and_b32 {v(vT2)}, 31, {v(vL)}
v_lshl_or_b32 {v(vT)}, {v(vT2)}, 6, {v(vT)}
v_add_u32 {v(vCf[0])}, {sPW}, {v(vT)}
v_xor_b32 {v(vT)}, 32, {v(vT)}
v_add_u32 {v(vCf[1])}, {sPW}, {v(vT)}
""")
E(f"""
v_bfe_u32 {v(vT)}, {v(vL)}, 4, 1
v_xor_b32 {v(vT)}, {sT0}, {v(vT)}
v_lshlrev_b32 {v(vT)}, 2, {v(vT)}
v_and_b32 {v(vT2)}, 7, {v(vL)}
v_xor_b32 {v(vT)}, {v(vT)}, {v(vT2)}
s_lshl_b32 {sT2}, {sCT}, 7
v_lshl_add_u32 {v(vT)}, {v(vT)}, 4, {sT2}
v_lshrrev_b32 {v(vT2)}, 3, {v(vL)}
v_lshl_add_u32 {v(vWO[0])}, {v(vT2)}, 10, {v(vT)}
v_add_u32 {v(vWO[1])}, 7168, {v(vWO[0])}
v_add_u32 {v(vWO[2])}, 14336, {v(vWO[0])}
v_add_u32 {v(vWO[3])}, 21504, {v(vWO[0])}
""")
E(f"""
v_bfe_u32 {v(vT)}, {v(vL)}, 2, 2
v_lshl_or_b32 {v(vT)}, {v(vHI)}, 4, {v(vT)}
v_lshlrev_b32 {v(vT)}, 7, {v(vT)}
v_bfe_u32 {v(vT2)}, {v(vL)}, 3, 1
v_lshl_or_b32 {v(vT)}, {v(vT2)}, 6, {v(vT)}
v_bfe_u32 {v(vT2)}, {v(vL)}, 4, 1
v_lshl_or_b32 {v(vT)}, {v(vT2)}, 5, {v(vT)}
v_and_b32 {v(vT2)}, 3, {v(vL)}
v_lshl_or_b32 {v(vT)}, {v(vT2)}, 3, {v(vT)}
v_add_u32 {v(vWOf[0])}, {sPW}, {v(vT)}
v_xor_b32 {v(vT)}, 64, {v(vT)}
v_add_u32 {v(vWOf[1])}, {sPW}, {v(vT)}
""")
E(f"s_add_u32 {sTAG}, {sTAG}, 1")
E(f"v_mov_b32 {v(vTAG)}, {sTAG}")
stamp()
gW, gP, gR = 76, 84, 92
gS0, gS1 = 96, 98
for i in range(4):
    E(f"v_lshlrev_b32 {v(gW+2*i)}, 16, {v(vGW+i)}")
    E(f"v_and_b32 {v(gW+2*i+1)}, {sHM}, {v(vGW+i)}")
for row, src, dst in ((0, vGX0, gS0), (1, vGX1, gS1)):
    for i in range(4):
        E(f"v_lshlrev_b32 {v(gP+2*i)}, 16, {v(src+i)}")
        E(f"v_and_b32 {v(gP+2*i+1)}, {sHM}, {v(src+i)}")
    for i in range(4):
        E(f"v_pk_mul_f32 {v(gP+2*i,2)}, {v(gP+2*i,2)}, {v(gW+2*i,2)}")
    for i in range(4):
        E(f"v_cvt_pk_bf16_f32 {v(gR+i)}, {v(gP+2*i)}, {v(gP+2*i+1)}")
    for i in range(4):
        E(f"v_lshlrev_b32 {v(gP+2*i)}, 16, {v(gR+i)}")
        E(f"v_and_b32 {v(gP+2*i+1)}, {sHM}, {v(gR+i)}")
    E(f"v_pk_add_f32 {v(gP,2)}, {v(gP,2)}, {v(gP+2,2)}")
    E(f"v_pk_add_f32 {v(gP+4,2)}, {v(gP+4,2)}, {v(gP+6,2)}")
    E(f"v_pk_add_f32 {v(gP,2)}, {v(gP,2)}, {v(gP+4,2)}")
    E(f"v_add_f32 {v(dst)}, {v(gP)}, {v(gP+1)}")
E(f"""
v_permlane32_swap_b32 {v(gS0)}, {v(gS1)}
v_add_f32 {v(gS0)}, {v(gS0)}, {v(gS1)}
v_mov_b32 {v(gS1)}, {v(gS0)}
v_permlane16_swap_b32 {v(gS0)}, {v(gS1)}
v_add_f32 {v(gS0)}, {v(gS0)}, {v(gS1)}
""")
for r in (8, 4, 2, 1):
    E(f"v_add_f32_dpp {v(gS0)}, {v(gS0)}, {v(gS0)} row_ror:{r} row_mask:0xf bank_mask:0xf")
E(f"""
v_cvt_pk_bf16_f32 {v(gS0)}, {v(gS0)}, {v(gS0)}
v_and_b32 {v(gS0)}, {sHM}, {v(gS0)}
v_mul_f32 {v(gS0)}, 0xbfb8aa3b, {v(gS0)}
v_exp_f32 {v(gS0)}, {v(gS0)}
v_add_f32 {v(gS0)}, 1.0, {v(gS0)}
v_rcp_f32 {v(gS0)}, {v(gS0)}
v_cvt_pk_bf16_f32 {v(gS0)}, {v(gS0)}, {v(gS0)}
v_bfi_b32 {v(gS0)}, {sFFFF}, {v(vTAG)}, {v(gS0)}
v_lshlrev_b32 {v(gS1)}, 2, {v(vHI)}
s_lshl_b32 {sT2}, {sRG}, 7
s_lshl_b32 {sT3}, {sCG}, 3
s_add_u32 {sT2}, {sT2}, {sT3}
s_add_u32 {sT2}, {sT2}, {W_G}
s_mov_b32 exec_lo, 1
s_mov_b32 exec_hi, 1
buffer_store_dword {v(gS0)}, {v(gS1)}, {SRD_WS}, {sT2} offen sc1
s_mov_b64 exec, -1
""")
t0, t1, t2, t3 = 104, 106, 108, 110
E(f"""
v_lshlrev_b32 {v(vPR)}, 16, {v(vPR)}
v_lshlrev_b32 {v(vPI)}, 16, {v(vPI)}
v_lshlrev_b32 {v(vPD)}, 16, {v(vPD)}
v_mul_f32 {v(vPD)}, s38, {v(vPD)}
v_exp_f32 {v(vPD)}, {v(vPD)}
v_cvt_pk_bf16_f32 {v(vPD)}, {v(vPD)}, {v(vPD)}
v_and_b32 {v(vPD)}, {sHM}, {v(vPD)}
v_mul_f32 {v(t0)}, {v(vPD)}, {v(vPR)}
v_mul_f32 {v(t0+1)}, {v(vPD)}, {v(vPI)}
v_mul_f32 {v(t0)}, s38, {v(t0)}
v_mul_f32 {v(t0+1)}, 0.15915494, {v(t0+1)}
v_exp_f32 {v(t0)}, {v(t0)}
v_cos_f32 {v(t1)}, {v(t0+1)}
v_sin_f32 {v(t1+1)}, {v(t0+1)}
v_mul_f32 {v(vLAM)}, {v(t0)}, {v(t1)}
v_mul_f32 {v(vLAM+1)}, {v(t0)}, {v(t1+1)}
v_mul_f32 {v(t0)}, {v(vPR)}, {v(vPR)}
v_fma_f32 {v(t0)}, {v(vPI)}, {v(vPI)}, {v(t0)}
v_rcp_f32 {v(t0)}, {v(t0)}
v_add_f32 {v(t1)}, -1.0, {v(vLAM)}
v_mul_f32 {v(t2)}, {v(t1)}, {v(vPR)}
v_fma_f32 {v(t2)}, {v(vLAM+1)}, {v(vPI)}, {v(t2)}
v_mul_f32 {v(t2+1)}, {v(vLAM+1)}, {v(vPR)}
v_fma_f32 {v(t2+1)}, -{v(t1)}, {v(vPI)}, {v(t2+1)}
v_mul_f32 {v(vCOEF)}, {v(t2)}, {v(t0)}
v_mul_f32 {v(vCOEF+1)}, {v(t2+1)}, {v(t0)}
""")
csq(E, t0, vLAM); csq(E, t1, t0); csq(E, vL8, t1); csq(E, vL16p, vL8); csq(E, vL32, vL16p)
csq(E, t0, vL32)
cmul(E, t1, t0, vL32)
csq(E, vMU, t0); csq(E, vMU2, vMU)
E(f"""
v_cndmask_b32 {v(t2)}, 1.0, {v(vL32)}, {sM1}
v_cndmask_b32 {v(t2+1)}, 0, {v(vL32+1)}, {sM1}
v_cndmask_b32 {v(t2)}, {v(t2)}, {v(t0)}, {sM2}
v_cndmask_b32 {v(t2+1)}, {v(t2+1)}, {v(t0+1)}, {sM2}
v_cndmask_b32 {v(t2)}, {v(t2)}, {v(t1)}, {sM3}
v_cndmask_b32 {v(t2+1)}, {v(t2+1)}, {v(t1+1)}, {sM3}
""")
cmul(E, t3, t2, vL16p)
E(f"v_cndmask_b32 {v(t2)}, {v(t2)}, {v(t3)}, {sHI}")
E(f"v_cndmask_b32 {v(t2+1)}, {v(t2+1)}, {v(t3+1)}, {sHI}")
cmul(E, t3, t2, vL8)
E(f"""
v_mov_b32 {v(vALR0)}, {v(t2)}
v_mov_b32 {v(vALR0+1)}, {v(t3)}
v_mov_b32 {v(vALI0)}, {v(t2+1)}
v_mov_b32 {v(vALI0+1)}, {v(t3+1)}
""")
E("s_mov_b32 s100, 0xf0f0f0f0")
E("s_mov_b32 s101, 0xf0f0f0f0")
for i in range(4):
    E(f"v_lshl_or_b32 {v(vA1+i)}, {v(112+2*i+1)}, 16, {v(112+2*i)}")
for i in range(4):
    E(f"v_cndmask_b32 {v(vA2+i)}, 0, {v(vA1+i)}, s[100:101]")
    E(f"v_cndmask_b32 {v(vA1+i)}, {v(vA1+i)}, 0, s[100:101]")
dump("lam", [v(vLAM), v(vLAM+1), v(vCOEF), v(vCOEF+1), v(vMU2), v(vMU2+1)])
stamp()

vBB = vWOFR
def group(p, g):
    if g < 8: dma_xb(p, g)
    elif g < 11: dma_wpair(p, g - 8)
for j in range(8):
    E.mark(f"U chunk {j}")
    E.waitvm(f"xb{j}")
    E("s_barrier")
    slot = j if j < 6 else j - 6
    for k in range(4):
        xa = (vXf2[k], (slot-4)*16384) if slot >= 4 else (vXf[k], slot*16384)
        E(f"ds_read_b128 {a(aXF + 16*j + 4*k, 4)}, {v(xa[0])} offset:{xa[1]}")
        E(f"ds_read_b128 {v(vBB + 8*k, 4)}, {v(vBf[k])} offset:{j*8192}")
        E(f"ds_read_b128 {v(vBB + 8*k + 4, 4)}, {v(vBf[k])} offset:{j*8192 + 4096}")
    mm = Prog()
    for k in range(4):
        c_re = "0" if (j == 0 and k == 0) else v(vU_RE, 16)
        c_im = "0" if (j == 0 and k == 0) else v(vU_IM, 16)
        mm(f"v_mfma_f32_32x32x16_bf16 {v(vU_RE,16)}, {a(aXF + 16*j + 4*k, 4)}, {v(vBB + 8*k, 4)}, {c_re}")
        mm(f"v_mfma_f32_32x32x16_bf16 {v(vU_IM,16)}, {a(aXF + 16*j + 4*k, 4)}, {v(vBB + 8*k + 4, 4)}, {c_im}")
    sd = Prog(); group(sd, j + D)
    E.extend(weave(mm, sd, every=1, per=2))
stamp()
for g in range(8 + D, 11): group(E, g)
dma_wpair(E, 3)
dma_wq(E)
dump("U", [v(vU_RE+i) for i in range(32)])

E.mark("scan 1")
tA, tB, tC, tD = 192, 194, 196, 198
for m in range(8):
    r, i = vU_RE + 2*m, vU_IM + 2*m
    E(f"v_pk_mul_f32 {v(tA,2)}, {v(r,2)}, {v(vCOEF,2)} {HI2}")
    E(f"v_pk_mul_f32 {v(r,2)}, {v(r,2)}, {v(vCOEF,2)} {LO2}")
    E(f"v_pk_fma_f32 {v(r,2)}, {v(i,2)}, {v(vCOEF,2)}, {v(r,2)} {HI} {NEG1}")
    E(f"v_pk_fma_f32 {v(i,2)}, {v(i,2)}, {v(vCOEF,2)}, {v(tA,2)} {LO}")
er, ei = vU_RE, vU_IM
pp = [(tA, tB), (tC, tD)]
for m in range(1, 8):
    nr, ni = pp[m & 1]
    E(f"v_pk_fma_f32 {v(nr,2)}, {v(er,2)}, {v(vLAM,2)}, {v(vU_RE+2*m,2)} {LO}")
    E(f"v_pk_fma_f32 {v(ni,2)}, {v(ei,2)}, {v(vLAM,2)}, {v(vU_IM+2*m,2)} {LO}")
    E(f"v_pk_fma_f32 {v(nr,2)}, {v(ei,2)}, {v(vLAM,2)}, {v(nr,2)} {HI} {NEG1}")
    E(f"v_pk_fma_f32 {v(ni,2)}, {v(er,2)}, {v(vLAM,2)}, {v(ni,2)} {HI}")
    er, ei = nr, ni
eA, e16, e16h, e32 = 200, 202, 204, 206
vXW, vXR = 16, 17
E(f"""
v_mov_b32 {v(eA)}, {v(er)}
v_mov_b32 {v(eA+1)}, {v(ei)}
v_fma_f32 {v(e16)}, {v(vL8)}, {v(er)}, {v(er+1)}
v_fma_f32 {v(e16+1)}, {v(vL8)}, {v(ei)}, {v(ei+1)}
v_fma_f32 {v(e16)}, -{v(vL8+1)}, {v(ei)}, {v(e16)}
v_fma_f32 {v(e16+1)}, {v(vL8+1)}, {v(er)}, {v(e16+1)}
v_and_b32 {v(vT)}, 31, {v(vL)}
v_lshlrev_b32 {v(vT)}, 3, {v(vT)}
v_mov_b32 {v(e16h)}, {v(e16)}
v_mov_b32 {v(e16h+1)}, {v(e16+1)}
v_add_u32 {v(vXR)}, {XCH}, {v(vT)}
s_lshl_b32 {sT2}, {sW}, 8
v_permlane32_swap_b32 {v(e16)}, {v(e16h)}
v_permlane32_swap_b32 {v(e16+1)}, {v(e16h+1)}
v_add_u32 {v(vXW)}, {sT2}, {v(vXR)}
""")
cmul_add(E, e32, e16, vL16p, e16h)
E(f"ds_write_b64 {v(vXW)}, {v(e32,2)}")
E.waitlg(None)
E.waitvm("w0")
E("s_barrier")
eW = [208, 210, 212, 214]
for w in range(4):
    E(f"ds_read_b64 {v(eW[w],2)}, {v(vXR)} offset:{w*256}")
def b2_pos(s): return (s + 1) & 3
def b2_dma(p, s):
    pos = b2_pos(s) * 4096
    if s < 8:
        c, m = s >> 1, s & 1
        srd_ = SRD_CI if m else SRD_CR
        for h, base in ((0, sPWa), (1, sPWb)):
            p(f"s_add_u32 m0, {base}, {pos}")
            for q in range(2):
                p(f"buffer_load_dwordx4 {v(vC[2*h+q])}, {srd_}, {sCgC[c]} offen offset:{q*1024} lds", tok=f"b2_{s}")
    else:
        c = s - 8
        p(f"s_add_u32 m0, {sPW}, {pos}")
        for q in range(4):
            p(f"buffer_load_dwordx4 {v(vWO[q])}, {SRD_WO}, {sCgW[c]} offen offset:{q*1024} lds", tok=f"b2_{s}")
def b2_read(p, s):
    pos = b2_pos(s) * 4096
    p.waitvm(f"b2_{s}")
    if s < 8:
        c, m = s >> 1, s & 1
        for kk in range(2):
            for nb in range(2):
                p(f"ds_read_b128 {a(aCF + ((c*4 + 2*m + kk)*2 + nb)*4, 4)}, {v(vCf[kk])} offset:{pos + nb*2048}", tok=f"b2r_{s}")
    else:
        c = s - 8
        for b in range(2):
            for nb in range(2):
                for rd in range(2):
                    p(f"ds_read_b64_tr_b16 {v(vWOFR + ((c*2+b)*2+nb)*4 + 2*rd, 2)}, {v(vWOf[nb])} offset:{pos + (8*b + 4*rd)*128}", tok=f"b2r_{s}")
def b2_next(p, s):
    if s + 4 < 12:
        p.waitlg(f"b2r_{s}")
        b2_dma(p, s + 4)
for s in range(3): b2_dma(E, s)
p2, p3, e128 = 216, 218, 220
cmul_add(E, p2, eW[0], vL32, eW[1])
cmul_add(E, p3, p2, vL32, eW[2])
cmul_add(E, e128, p3, vL32, eW[3])
E(f"""
v_cndmask_b32 {v(e128)}, {v(e128)}, 0, {sHI}
v_cndmask_b32 {v(e128+1)}, {v(e128+1)}, 0, {sHI}
v_lshl_or_b32 {v(vT2)}, {v(vHI)}, 12, {v(vT)}
v_bfi_b32 {v(e128)}, {sFF}, {v(vTAG)}, {v(e128)}
s_lshl_b32 {sT2}, {sCG}, 13
s_lshl_b32 {sT3}, {sRB}, 8
s_sub_u32 {sT2}, {sT2}, {sT3}
s_add_u32 {sT2}, {sT2}, {W_E + 15*256}
buffer_store_dwordx2 {v(e128,2)}, {v(vT2)}, {SRD_WS}, {sT2} offen sc1
""")
pw, pb = 222, 224
E(f"""
v_cndmask_b32 {v(pw)}, 0, {v(eW[0])}, {sM1}
v_cndmask_b32 {v(pw+1)}, 0, {v(eW[0]+1)}, {sM1}
v_cndmask_b32 {v(pw)}, {v(pw)}, {v(p2)}, {sM2}
v_cndmask_b32 {v(pw+1)}, {v(pw+1)}, {v(p2+1)}, {sM2}
v_cndmask_b32 {v(pw)}, {v(pw)}, {v(p3)}, {sM3}
v_cndmask_b32 {v(pw+1)}, {v(pw+1)}, {v(p3+1)}, {sM3}
""")
cmul_add(E, pb, pw, vL16p, e16)
E(f"v_cndmask_b32 {v(pw)}, {v(pw)}, {v(pb)}, {sHI}")
E(f"v_cndmask_b32 {v(pw+1)}, {v(pw+1)}, {v(pb+1)}, {sHI}")
cmul_add(E, pb, pw, vL8, eA)
E(f"""
v_mov_b32 {v(vBER)}, {v(pw)}
v_mov_b32 {v(vBER+1)}, {v(pb)}
v_mov_b32 {v(vBEI)}, {v(pw+1)}
v_mov_b32 {v(vBEI+1)}, {v(pb+1)}
v_mov_b32 {v(vALR)}, {v(vALR0)}
v_mov_b32 {v(vALR+1)}, {v(vALR0+1)}
v_mov_b32 {v(vALI)}, {v(vALI0)}
v_mov_b32 {v(vALI+1)}, {v(vALI0+1)}
""")
vEL = 18
sEL = "s36"
E(f"v_lshl_or_b32 {v(vEL)}, {v(vHI)}, 8, {v(vT)}")
E(f"s_add_u32 {sEL}, {sT2}, 256")
stamp()

E.mark("kv pass")
def kv_reads(p, n):
    j, k = n >> 2, n & 3
    for m in range(2):
        for rd in range(2):
            off = (j >> 1)*16384 + k*4096 + (j & 1)*2048 + m*1024 + rd*256
            p(f"ds_read_b64_tr_b16 {v(vFR + (n&3)*8 + 4*m + 2*rd, 2)}, {v(vTRkv)} offset:{off}")
AH = 3
vEQ = 224
def e_loads(p):
    for k in range(8):
        p(f"buffer_load_dwordx2 {v(vEQ+2*k,2)}, {v(vEL)}, {SRD_WS}, {sEL} offen offset:{512*k} sc1")
for n in range(AH): kv_reads(E, n)
for n in range(32):
    xf = a(aXF + 4*n, 4)
    fr = vFR + (n & 3)*8
    E(f"v_mfma_f32_32x32x16_bf16 {v(vKT,16)}, {v(fr,4)}, {xf}, {'0' if n == 0 else v(vKT,16)}")
    nn = n + AH
    if nn < 32 and nn % 8 == 0:
        E.waitvm(f"w{nn//8}")
        E("s_barrier")
    E(f"v_mfma_f32_32x32x16_bf16 {v(vVV,16)}, {xf}, {v(fr+4,4)}, {'0' if n == 0 else v(vVV,16)}")
    if nn < 32: kv_reads(E, nn)
    if n == 6: b2_dma(E, 3)
    if n == 16: b2_read(E, 0)
    if n == 18: b2_next(E, 0)
    if n == 22: b2_read(E, 1)
    if n == 24: b2_next(E, 1)
    if n == 28: e_loads(E)
dump("kT", [v(vKT+i) for i in range(16)])
dump("v", [v(vVV+i) for i in range(16)])
stamp()

def softmax(p, src, dst, ap, am, mn):
    for i in range(8):
        p(f"v_cvt_pk_bf16_f32 {v(am+i)}, {v(src+2*i)}, {v(src+2*i+1)}")
    p(f"v_mfma_f32_32x32x16_bf16 {v(ap,16)}, {v(vA1,4)}, {v(am,4)}, 0")
    p(f"v_mfma_f32_32x32x16_bf16 {v(ap,16)}, {v(vA2,4)}, {v(am+4,4)}, {v(ap,16)}")
    p.mark("softmax body")
    for i in range(8):
        p(f"v_cvt_pk_bf16_f32 {v(am+i)}, {v(ap+2*i)}, {v(ap+2*i+1)}")
    for i in range(8):
        p(f"v_lshlrev_b32 {v(src+2*i)}, 16, {v(am+i)}")
        p(f"v_and_b32 {v(src+2*i+1)}, {sHM}, {v(am+i)}")
    p(f"v_max3_f32 {v(mn)}, {v(src)}, {v(src+1)}, {v(src+2)}")
    p(f"v_min3_f32 {v(mn+1)}, {v(src)}, {v(src+1)}, {v(src+2)}")
    for i in range(3, 15, 2):
        p(f"v_max3_f32 {v(mn)}, {v(mn)}, {v(src+i)}, {v(src+i+1)}")
        p(f"v_min3_f32 {v(mn+1)}, {v(mn+1)}, {v(src+i)}, {v(src+i+1)}")
    p(f"v_max_f32 {v(mn)}, {v(mn)}, {v(src+15)}")
    p(f"v_min_f32 {v(mn+1)}, {v(mn+1)}, {v(src+15)}")
    p(f"v_pk_mul_f32 {v(mn,2)}, {v(mn,2)}, {sL2E} neg_lo:[1,0]")
    for i in range(8):
        p(f"v_pk_fma_f32 {v(ap+2*i,2)}, {v(src+2*i,2)}, {sL2E}, {v(mn,2)} op_sel:[0,0,0] op_sel_hi:[1,1,0]")
        p(f"v_pk_fma_f32 {v(am+2*i,2)}, {v(src+2*i,2)}, {sL2E}, {v(mn,2)} op_sel:[0,0,1] op_sel_hi:[1,1,1] neg_lo:[1,0,0] neg_hi:[1,0,0]")
    for i in range(16):
        p(f"v_exp_f32 {v(ap+i)}, {v(ap+i)}")
        p(f"v_exp_f32 {v(am+i)}, {v(am+i)}")
    for i in range(4):
        p(f"v_pk_add_f32 {v(src+2*i,2)}, {v(ap+4*i,2)}, {v(ap+4*i+2,2)}")
        p(f"v_pk_add_f32 {v(src+8+2*i,2)}, {v(am+4*i,2)}, {v(am+4*i+2,2)}")
    for b in (0, 8):
        p(f"v_pk_add_f32 {v(src+b,2)}, {v(src+b,2)}, {v(src+b+2,2)}")
        p(f"v_pk_add_f32 {v(src+b+4,2)}, {v(src+b+4,2)}, {v(src+b+6,2)}")
    for b in (0, 8):
        p(f"v_pk_add_f32 {v(src+b,2)}, {v(src+b,2)}, {v(src+b+4,2)}")
    p(f"v_add_f32 {v(mn)}, {v(src)}, {v(src+1)}")
    p(f"v_add_f32 {v(mn+1)}, {v(src+8)}, {v(src+9)}")
    p(f"v_rcp_f32 {v(mn)}, {v(mn)}")
    p(f"v_rcp_f32 {v(mn+1)}, {v(mn+1)}")
    for i in range(8):
        p(f"v_pk_mul_f32 {v(ap+2*i,2)}, {v(ap+2*i,2)}, {v(mn,2)} {LO2}")
        p(f"v_pk_mul_f32 {v(am+2*i,2)}, {v(am+2*i,2)}, {v(mn,2)} {HI2}")
    for i in range(8):
        p(f"v_cvt_pk_bf16_f32 {v(dst+i)}, {v(ap+2*i)}, {v(ap+2*i+1)}")
    for i in range(8):
        p(f"v_cvt_pk_bf16_f32 {v(dst+8+i)}, {v(am+2*i)}, {v(am+2*i+1)}")

E.mark("softmax k")
vPhW, vVW, vPhR, vVR = 19, 20, 21, 22
E(f"""
s_lshl_b32 {sT2}, {sW}, 13
s_add_u32 {sT2}, {sT2}, {S1}
v_mul_u32_u24 {v(vT)}, 80, {v(vL)}
v_add_u32 {v(vPhW)}, {sT2}, {v(vT)}
s_add_u32 {sT2}, {sT2}, 5120
v_add_u32 {v(vVW)}, {sT2}, {v(vL16)}
""")
vVP = vFR
for i in range(8):
    E(f"v_cvt_pk_bf16_f32 {v(vVP+i)}, {v(vVV+2*i)}, {v(vVV+2*i+1)}")
E(f"ds_write_b128 {v(vVW)}, {v(vVP,4)}")
E(f"ds_write_b128 {v(vVW)}, {v(vVP+4,4)} offset:1024")
E(f"""
v_bfe_u32 {v(vT)}, {v(vL)}, 2, 3
v_lshl_or_b32 {v(vT)}, {v(vHI)}, 4, {v(vT)}
v_mul_u32_u24 {v(vT)}, 80, {v(vT)}
v_and_b32 {v(vT2)}, 3, {v(vL)}
v_lshl_add_u32 {v(vT)}, {v(vT2)}, 3, {v(vT)}
s_and_b32 {sT0}, {sW}, 1
s_lshr_b32 {sT1}, {sW}, 1
s_mul_i32 {sT2}, {sT0}, 2560
s_lshl_b32 {sT3}, {sT1}, 5
s_add_u32 {sT2}, {sT2}, {sT3}
s_add_u32 {sT2}, {sT2}, {S1}
v_add_u32 {v(vPhR)}, {sT2}, {v(vT)}
v_and_b32 {v(vT)}, 15, {v(vL)}
v_bfe_u32 {v(vT2)}, {v(vL)}, 4, 1
v_lshl_or_b32 {v(vT)}, {v(vT2)}, 5, {v(vT)}
v_lshlrev_b32 {v(vT)}, 4, {v(vT)}
v_lshl_or_b32 {v(vT)}, {v(vHI)}, 10, {v(vT)}
s_lshl_b32 {sT2}, {sT0}, 8
s_add_u32 {sT2}, {sT2}, {S1 + 5120}
v_add_u32 {v(vVR)}, {sT2}, {v(vT)}
""")
vPHK = 152
softmax(E, vKT, vPHK, vVV, vQT, 168)
dump("phik", [v(vPHK+i) for i in range(16)])
for q in range(4):
    E(f"ds_write_b128 {v(vPhW)}, {v(vPHK+4*q,4)} offset:{16*q}")
b2_read(E, 2)
E.waitlg(None)
E.waitvm("wq")
E("s_barrier")
vKA, vKB, vONE, vKD, vZD = 96, 112, 172, 128, 132
for sw in range(4):
    for rd in range(2):
        E(f"ds_read_b64_tr_b16 {v(vKA + 4*sw + 2*rd, 2)}, {v(vPhR)} offset:{sw*8192 + rd*640}")
    E(f"ds_read_b128 {v(vKB + 4*sw, 4)}, {v(vVR)} offset:{sw*8192}")
for i in range(4):
    E(f"v_mov_b32 {v(vONE+i)}, 0x3f803f80")
b2_dma(E, 6)
for sw in range(4):
    E(f"v_mfma_f32_16x16x32_bf16 {v(vKD,4)}, {v(vKA+4*sw,4)}, {v(vKB+4*sw,4)}, {'0' if sw == 0 else v(vKD,4)}")
    E(f"v_mfma_f32_16x16x32_bf16 {v(vZD,4)}, {v(vKA+4*sw,4)}, {v(vONE,4)}, {'0' if sw == 0 else v(vZD,4)}")
sKV, sZP = "s37", "s9"
E(f"""
s_lshl_b32 {sT2}, {sCG}, 2
s_add_u32 {sT2}, {sT2}, {sW}
s_lshl_b32 {sKV}, {sT2}, 14
s_add_u32 {sKV}, {sKV}, {W_KVP}
s_lshl_b32 {sZP}, {sT2}, 10
s_add_u32 {sZP}, {sZP}, {W_ZP}
s_lshl_b32 {sT2}, {sRB}, 10
s_add_u32 {sT2}, {sT2}, {sKV}
s_lshl_b32 {sT3}, {sRB}, 6
s_add_u32 {sT3}, {sT3}, {sZP}
v_and_b32 {v(vT)}, 0x30, {v(vL)}
v_bfi_b32 {v(vKD)}, {sFF}, {v(vTAG)}, {v(vKD)}
v_bfi_b32 {v(vZD)}, {sFF}, {v(vTAG)}, {v(vZD)}
buffer_store_dwordx4 {v(vKD,4)}, {v(vL16)}, {SRD_WS}, {sT2} offen sc1
s_mov_b32 exec_lo, 0x10001
s_mov_b32 exec_hi, 0x10001
buffer_store_dwordx4 {v(vZD,4)}, {v(vT)}, {SRD_WS}, {sT3} offen sc1
s_mov_b64 exec, -1
""")
stamp()

E.mark("q pass")
def q_reads(p, n):
    j, k = n >> 2, n & 3
    for rd in range(2):
        off = (j >> 2)*16384 + k*4096 + (j & 3)*1024 + rd*256
        p(f"ds_read_b64_tr_b16 {v(vFR + (n&7)*4 + 2*rd, 2)}, {v(vTRq)} offset:{off}")
vQT2 = 176
AHQ = 5
for n in range(AHQ): q_reads(E, n)
for n in range(32):
    E(f"v_mfma_f32_32x32x16_bf16 {v(vQT2,16)}, {v(vFR + (n&7)*4,4)}, {a(aXF + 4*n, 4)}, {'0' if n == 0 else v(vQT2,16)}")
    if n + AHQ < 32: q_reads(E, n + AHQ)
    if n == 2: b2_read(E, 3)
    if n == 5: b2_next(E, 3)
    if n == 12: b2_read(E, 4)
    if n == 15: b2_next(E, 4)
    if n == 22: b2_read(E, 5)
    if n == 25: b2_next(E, 5)
dump("qT", [v(vQT2+i) for i in range(16)])
stamp()

E.mark("scan 2")
vGA = 96
vGZ = 160
def gather_loads(p):
    p(f"s_mov_b32 {sT2}, {sKV}")
    for r in range(16):
        p(f"buffer_load_dwordx4 {v(vGA+4*r,4)}, {v(vL16)}, {SRD_WS}, {sT2} offen offset:{(r&3)*1024} sc1")
        if r & 3 == 3 and r < 15: p(f"s_add_u32 {sT2}, {sT2}, 4096")
    p(f"buffer_load_dwordx4 {v(vGZ,4)}, {v(vL16)}, {SRD_WS}, {sZP} offen sc1")
def e_check(p):
    p(f"v_xor_b32 {v(vT)}, {v(vTAG)}, {v(vEQ)}")
    for k in range(1, 8):
        p(f"v_bitop3_b32 {v(vT)}, {v(vEQ+2*k)}, {v(vTAG)}, {v(vT)} bitop3:0xbe")
    p(f"v_and_b32 {v(vT)}, {sFF}, {v(vT)}")
    p(f"v_cmp_ne_u32 vcc, 0, {v(vT)}")
b2_read(E, 6)
spin("e", e_loads, e_check)
b2_next(E, 6)
gather_loads(E)
hq = [240, 242]
cur = vEQ + 14
for k in range(6, -1, -1):
    cmul_add(E, vEQ + 2*k, cur, vMU2, vEQ + 2*k)
    cur = vEQ + 2*k
E(f"""
v_mov_b32 {v(hq[0])}, {v(cur)}
v_mov_b32 {v(hq[0]+1)}, {v(cur+1)}
v_permlane32_swap_b32 {v(cur)}, {v(hq[0])}
v_permlane32_swap_b32 {v(cur+1)}, {v(hq[0]+1)}
""")
cmul_add(E, cur, hq[0], vMU, cur)
E(f"""
v_pk_fma_f32 {v(vBER,2)}, {v(vALR,2)}, {v(cur,2)}, {v(vBER,2)} {LO}
v_pk_fma_f32 {v(vBEI,2)}, {v(vALI,2)}, {v(cur,2)}, {v(vBEI,2)} {LO}
v_pk_fma_f32 {v(vBER,2)}, {v(vALI,2)}, {v(cur,2)}, {v(vBER,2)} {HI} {NEG1}
v_pk_fma_f32 {v(vBEI,2)}, {v(vALR,2)}, {v(cur,2)}, {v(vBEI,2)} {HI}
""")
hr, hi_ = vBER, vBEI
for m in range(8):
    r, i = vU_RE + 2*m, vU_IM + 2*m
    E(f"v_pk_fma_f32 {v(r,2)}, {v(hr,2)}, {v(vLAM,2)}, {v(r,2)} {LO}")
    E(f"v_pk_fma_f32 {v(i,2)}, {v(hi_,2)}, {v(vLAM,2)}, {v(i,2)} {LO}")
    E(f"v_pk_fma_f32 {v(r,2)}, {v(hi_,2)}, {v(vLAM,2)}, {v(r,2)} {HI} {NEG1}")
    E(f"v_pk_fma_f32 {v(i,2)}, {v(hr,2)}, {v(vLAM,2)}, {v(i,2)} {HI}")
    hr, hi_ = r, i
dump("h", [v(vU_RE+i) for i in range(32)])
vHP = 224
vHW, vHR = 19, 20
E(f"""
s_lshl_b32 {sT2}, {sW}, 13
s_add_u32 {sT2}, {sT2}, {S2}
v_and_b32 {v(vT)}, 31, {v(vL)}
v_mul_u32_u24 {v(vT)}, 80, {v(vT)}
v_lshl_add_u32 {v(vT)}, {v(vHI)}, 5, {v(vT)}
v_add_u32 {v(vHW)}, {sT2}, {v(vT)}
v_bfe_u32 {v(vT)}, {v(vL)}, 2, 2
v_lshl_or_b32 {v(vT)}, {v(vHI)}, 3, {v(vT)}
v_mul_u32_u24 {v(vT)}, 80, {v(vT)}
v_and_b32 {v(vT2)}, 63, {v(vTRq)}
v_add3_u32 {v(vHR)}, {sT2}, {v(vT)}, {v(vT2)}
""")
for par in range(2):
    for i in range(4):
        E(f"v_cvt_pk_bf16_f32 {v(vHP + 4*par + i)}, {v(vU_RE + 4*i + par)}, {v(vU_RE + 4*i + 2 + par)}")
E(f"ds_write_b128 {v(vHW)}, {v(vHP,4)}")
E(f"ds_write_b128 {v(vHW)}, {v(vHP+4,4)} offset:16")
for par in range(2):
    for i in range(4):
        E(f"v_cvt_pk_bf16_f32 {v(vHP + 8 + 4*par + i)}, -{v(vU_IM + 4*i + par)}, -{v(vU_IM + 4*i + 2 + par)}")
E(f"ds_write_b128 {v(vHW)}, {v(vHP+8,4)} offset:2560")
E(f"ds_write_b128 {v(vHW)}, {v(vHP+12,4)} offset:2576")
vHF = 240
for k in range(4):
    for rd in range(2):
        E(f"ds_read_b64_tr_b16 {v(vHF + 4*k + 2*rd, 2)}, {v(vHR)} offset:{(16*k + 4*rd)*80}")
sFL = "s8"
E(f"""
s_lshr_b32 {sT2}, {sRG}, 3
s_lshl_b32 {sT2}, {sT2}, 19
s_lshl_b32 {sT3}, {sCG}, 15
s_add_u32 {sT2}, {sT2}, {sT3}
s_and_b32 {sT3}, {sRG}, 7
s_lshl_b32 {sT3}, {sT3}, 12
s_add_u32 {sT2}, {sT2}, {sT3}
s_add_u32 {sT2}, {sT2}, {W_H}
""")
for k in range(4):
    E(f"buffer_store_dwordx4 {v(vHF+4*k,4)}, {v(vL16)}, {SRD_WS}, {sT2} offen offset:{k*1024} sc1")
E(f"""
s_lshr_b32 {sFL}, {sRG}, 1
s_lshl_b32 {sFL}, {sFL}, 2
s_lshr_b32 {sT3}, {sCG}, 2
s_add_u32 {sFL}, {sFL}, {sT3}
s_lshl_b32 {sFL}, {sFL}, 7
s_and_b32 {sT3}, {sRG}, 1
s_lshl_b32 {sT3}, {sT3}, 4
s_add_u32 {sFL}, {sFL}, {sT3}
s_and_b32 {sT3}, {sCG}, 3
s_lshl_b32 {sT3}, {sT3}, 2
s_add_u32 {sFL}, {sFL}, {sT3}
""")
stamp()
E.mark("softmax q")
vPQ = 224
softmax(E, vQT2, vPQ, vU_RE, vU_IM, 164)
dump("phiq", [v(vPQ+i) for i in range(16)])
def flag_store(base):
    E.waitvm(None)
    E(f"""
    v_mov_b32 {v(vT)}, {base}
    s_mov_b64 exec, 1
    buffer_store_dword {v(vTAG)}, {v(vT)}, {SRD_WS}, {sFL} offen sc1
    s_mov_b64 exec, -1
    """)
flag_store(W_FH)
stamp()

E.mark("gather sum")
b2_read(E, 7)
vFLG, vFLA = 21, 22
sFP = "s14"
E(f"""
s_lshl_b32 {sFP}, {sRT}, 2
s_add_u32 {sFP}, {sFP}, {sW}
s_lshl_b32 {sFP}, {sFP}, 7
v_and_b32 {v(vT)}, 7, {v(vL)}
v_lshlrev_b32 {v(vT)}, 2, {v(vT)}
v_add_u32 {v(vFLA)}, {W_FH}, {v(vT)}
""")
def g_check(p):
    p(f"v_xor_b32 {v(vT)}, {v(vTAG)}, {v(vGZ)}")
    for r in range(16):
        p(f"v_bitop3_b32 {v(vT)}, {v(vGA+4*r)}, {v(vTAG)}, {v(vT)} bitop3:0xbe")
    p(f"v_and_b32 {v(vT)}, {sFF}, {v(vT)}")
    p(f"v_cmp_ne_u32 vcc, 0, {v(vT)}")
spin("kv", gather_loads, g_check)
b2_next(E, 7)
st = 32
while st >= 4:
    for b in range(0, st, 4):
        for h in range(2):
            E(f"v_pk_add_f32 {v(vGA+b+2*h,2)}, {v(vGA+b+2*h,2)}, {v(vGA+b+st+2*h,2)}")
    st //= 2
vTW, vTZ, vTN, vTD = 19, 20, 100, 101
E(f"""
v_permlane32_swap_b32 {v(vGZ)}, {v(vGZ+1)}
v_permlane32_swap_b32 {v(vGZ+2)}, {v(vGZ+3)}
v_cvt_pk_bf16_f32 {v(vGA)}, {v(vGA)}, {v(vGA+1)}
v_cvt_pk_bf16_f32 {v(vGA+1)}, {v(vGA+2)}, {v(vGA+3)}
v_add_f32 {v(vGZ)}, {v(vGZ)}, {v(vGZ+1)}
v_add_f32 {v(vGZ+2)}, {v(vGZ+2)}, {v(vGZ+3)}
s_and_b32 {sT0}, {sW}, 1
s_lshr_b32 {sT1}, {sW}, 1
s_mul_i32 {sT2}, {sT0}, 1280
s_lshl_b32 {sT3}, {sT1}, 5
s_add_u32 {sT2}, {sT2}, {sT3}
s_add_u32 {sT2}, {sT2}, {TAB}
v_permlane16_swap_b32 {v(vGZ)}, {v(vGZ+2)}
v_and_b32 {v(vT)}, 15, {v(vL)}
v_mul_u32_u24 {v(vT)}, 80, {v(vT)}
v_lshrrev_b32 {v(vT2)}, 4, {v(vL)}
v_lshl_add_u32 {v(vT)}, {v(vT2)}, 3, {v(vT)}
v_add_u32 {v(vTW)}, {sT2}, {v(vT)}
v_add_f32 {v(vGZ)}, {v(vGZ)}, {v(vGZ+2)}
ds_write_b64 {v(vTW)}, {v(vGA,2)}
s_mul_i32 {sT2}, {sT0}, 80
s_add_u32 {sT2}, {sT2}, {sT3}
s_add_u32 {sT2}, {sT2}, {TAB + 32*80}
v_add_f32_dpp {v(vGZ)}, {v(vGZ)}, {v(vGZ)} row_ror:8 row_mask:0xf bank_mask:0xf
v_and_b32 {v(vT)}, 3, {v(vL)}
v_lshlrev_b32 {v(vT)}, 3, {v(vT)}
v_bfe_u32 {v(vT2)}, {v(vL)}, 4, 1
v_add_f32_dpp {v(vGZ)}, {v(vGZ)}, {v(vGZ)} row_ror:4 row_mask:0xf bank_mask:0xf
v_lshl_or_b32 {v(vT)}, {v(vT2)}, 2, {v(vT)}
v_lshl_or_b32 {v(vT)}, {v(vHI)}, 1, {v(vT)}
v_add_u32 {v(vTZ)}, {sT2}, {v(vT)}
v_cvt_pk_bf16_f32 {v(vGZ)}, {v(vGZ)}, {v(vGZ)}
v_mov_b32 {v(vGZ+1)}, 0
v_and_b32 {v(vT)}, 15, {v(vL)}
v_lshlrev_b32 {v(vT)}, 2, {v(vT)}
v_add_u32 {v(vT)}, {TAB + 34*80}, {v(vT)}
ds_write_b16 {v(vTZ)}, {v(vGZ)}
ds_write_b32 {v(vT)}, {v(vGZ+1)}
""")
E(f"""
v_bfe_u32 {v(vT)}, {v(vL)}, 3, 2
v_and_b32 {v(vT2)}, 3, {v(vL)}
v_lshl_add_u32 {v(vT)}, {v(vT)}, 2, {v(vT2)}
v_lshl_add_u32 {v(vT)}, {v(vHI)}, 4, {v(vT)}
v_mul_u32_u24 {v(vT)}, 80, {v(vT)}
v_add_u32 {v(vTN)}, {TAB}, {v(vT)}
v_mul_u32_u24 {v(vT)}, 80, {v(vHI)}
v_add_u32 {v(vTD)}, {TAB + 32*80}, {v(vT)}
v_mov_b32 {v(vT)}, {TAB + 34*80}
s_mov_b32 s100, 0xf0f0f0f0
s_mov_b32 s101, 0x0f0f0f0f
v_cndmask_b32 {v(vTN)}, {v(vTN)}, {v(vT)}, s[100:101]
v_cndmask_b32 {v(vTD)}, {v(vTD)}, {v(vT)}, s[100:101]
""")
E.waitlg(None)
E("s_barrier")
vTA, vTB, vNUM, vDEN = 104, 120, 136, 152
for s_ in range(4):
    E(f"ds_read_b128 {v(vTB+4*s_,4)}, {v(vTD)} offset:{16*s_}")
for s_ in range(4):
    E(f"ds_read_b128 {v(vTA+4*s_,4)}, {v(vTN)} offset:{16*s_}")
E(f"buffer_load_dword {v(vFLG)}, {v(vFLA)}, {SRD_WS}, {sFP} offen sc1")
for s_ in range(4):
    E(f"v_mfma_f32_32x32x16_bf16 {v(vDEN,16)}, {v(vTB+4*s_,4)}, {v(vPQ+4*s_,4)}, {'0' if s_ == 0 else v(vDEN,16)}")
for s_ in range(4):
    E(f"v_mfma_f32_32x32x16_bf16 {v(vNUM,16)}, {v(vTA+4*s_,4)}, {v(vPQ+4*s_,4)}, {'0' if s_ == 0 else v(vNUM,16)}")
vOA = 19
E(f"""
s_lshr_b32 {sT2}, {sRG}, 4
s_lshl_b32 {sT2}, {sT2}, 19
s_lshl_b32 {sT3}, {sCG}, 15
s_add_u32 {sT2}, {sT2}, {sT3}
s_and_b32 {sT3}, {sRG}, 15
s_lshl_b32 {sT3}, {sT3}, 11
s_add_u32 {sT2}, {sT2}, {sT3}
s_add_u32 {sT2}, {sT2}, {W_O}
v_bfe_u32 {v(vT)}, {v(vL)}, 3, 2
v_bfe_u32 {v(vT2)}, {v(vL)}, 1, 1
v_lshl_or_b32 {v(vT)}, {v(vT)}, 1, {v(vT2)}
v_and_b32 {v(vT2)}, 1, {v(vL)}
v_lshl_or_b32 {v(vT)}, {v(vT2)}, 3, {v(vT)}
v_bfe_u32 {v(vT2)}, {v(vL)}, 2, 1
v_lshl_or_b32 {v(vT)}, {v(vT2)}, 4, {v(vT)}
v_lshl_or_b32 {v(vT)}, {v(vHI)}, 5, {v(vT)}
v_lshlrev_b32 {v(vOA)}, 4, {v(vT)}
v_cvt_pk_bf16_f32 {v(vDEN)}, {v(vDEN)}, {v(vDEN)}
v_and_b32 {v(vDEN)}, {sHM}, {v(vDEN)}
v_add_f32 {v(vDEN)}, 0x358637bd, {v(vDEN)}
v_cvt_pk_bf16_f32 {v(vDEN)}, {v(vDEN)}, {v(vDEN)}
v_and_b32 {v(vDEN)}, {sHM}, {v(vDEN)}
v_rcp_f32 {v(vDEN)}, {v(vDEN)}
""")
for i in range(8):
    E(f"v_cvt_pk_bf16_f32 {v(vTA+i)}, {v(vNUM+2*i)}, {v(vNUM+2*i+1)}")
for i in range(8):
    E(f"v_lshlrev_b32 {v(vNUM+2*i)}, 16, {v(vTA+i)}")
    E(f"v_and_b32 {v(vNUM+2*i+1)}, {sHM}, {v(vTA+i)}")
for i in range(8):
    E(f"v_pk_mul_f32 {v(vNUM+2*i,2)}, {v(vNUM+2*i,2)}, {v(vDEN,2)} {LO2}")
for i in range(8):
    E(f"v_cvt_pk_bf16_f32 {v(vTA+i)}, {v(vNUM+2*i)}, {v(vNUM+2*i+1)}")
for b in range(2):
    E(f"buffer_store_dwordx4 {v(vTA+4*b,4)}, {v(vOA)}, {SRD_WS}, {sT2} offen offset:{b*1024} sc1")
dump("o", [v(vTA+i) for i in range(8)])
for s_ in range(8, 12): b2_read(E, s_)
flag_store(W_FO)
stamp()

E.mark("phase 2")
vAH = [4, 5]; vAO = [6, 7]; vGL = [8, 9]; vGv = [12, 13]; vRT = [14, 16]
vACC = 64; vOF = 128
vXD, vDK = 168, 176
vOUT = 18
sRA = ["s15", "s16"]
E(f"""
s_lshr_b32 {sT1}, {sW}, 1
s_lshl_b32 {sT2}, {sRT}, 1
s_or_b32 {sRA[0]}, {sT2}, {sT1}
s_xor_b32 {sRA[1]}, {sRA[0]}, 1
""")
for ra in range(2):
    E(f"""
    s_lshr_b32 {sT2}, {sRA[ra]}, 3
    s_lshl_b32 {sT2}, {sT2}, 19
    s_and_b32 {sT3}, {sRA[ra]}, 7
    s_lshl_b32 {sT3}, {sT3}, 12
    s_add_u32 {sT2}, {sT2}, {sT3}
    s_add_u32 {sT2}, {sT2}, {W_H}
    v_add_u32 {v(vAH[ra])}, {sT2}, {v(vL16)}
    """)
def fh_load(p): p(f"buffer_load_dword {v(vFLG)}, {v(vFLA)}, {SRD_WS}, {sFP} offen sc1")
def fl_check(p): p(f"v_cmp_ne_u32 vcc, {sTAG}, {v(vFLG)}")
spin("fh", fh_load, fl_check)
for c in range(4):
    for k in range(4):
        for ra in range(2):
            E(f"buffer_load_dwordx4 {a(aXF + ((c*4+k)*2+ra)*4, 4)}, {v(vAH[ra])}, {SRD_WS}, {sCgW[c]} offen offset:{k*1024} sc1")
    if c == 0:
        E(f"""
        v_and_b32 {v(vT)}, 31, {v(vL)}
        s_lshl_b32 {sT2}, {sRA[0]}, 7
        s_add_u32 {sT2}, {sT2}, {W_G}
        v_lshl_add_u32 {v(vGL[0])}, {v(vT)}, 2, {sT2}
        v_xor_b32 {v(vGL[1])}, 128, {v(vGL[0])}
        buffer_load_dword {v(vGv[0])}, {v(vGL[0])}, {SRD_WS}, 0 offen sc1
        buffer_load_dword {v(vGv[1])}, {v(vGL[1])}, {SRD_WS}, 0 offen sc1
        s_and_b32 {sT0}, {sW}, 1
        s_lshl_b32 {sT2}, {sCT}, 7
        s_lshl_b32 {sT3}, {sT0}, 6
        s_add_u32 {sT2}, {sT2}, {sT3}
        v_lshl_add_u32 {v(vT2)}, {v(vHI)}, 3, {sT2}
        s_lshl_b32 {sT3}, {sRA[0]}, 5
        v_add_u32 {v(vT)}, {sT3}, {v(vT)}
        v_lshl_add_u32 {v(vOUT)}, {v(vT)}, 10, {v(vT2)}
        """)
        for q in range(4):
            E(f"buffer_load_dwordx2 {v(vXD+2*q,2)}, {v(vOUT)}, {SRD_X}, 0 offen offset:{16*q}")
        for q in range(4):
            E(f"global_load_dwordx2 {v(vDK+2*q,2)}, {v(vT2)}, {P_DSK} offset:{16*q}")
        E(f"v_lshlrev_b32 {v(vOUT)}, 1, {v(vOUT)}")
for ra in range(2):
    E(f"""
    s_lshr_b32 {sT2}, {sRA[ra]}, 4
    s_lshl_b32 {sT2}, {sT2}, 19
    s_and_b32 {sT3}, {sRA[ra]}, 15
    s_lshl_b32 {sT3}, {sT3}, 11
    s_add_u32 {sT2}, {sT2}, {sT3}
    s_add_u32 {sT2}, {sT2}, {W_O}
    v_add_u32 {v(vAO[ra])}, {sT2}, {v(vL16)}
    """)
E(f"v_add_u32 {v(vFLA)}, {W_FO - W_FH}, {v(vFLA)}")
tX, tDk = 128, 144
for i in range(8):
    E(f"v_lshlrev_b32 {v(tX+2*i)}, 16, {v(vXD+i)}")
    E(f"v_and_b32 {v(tX+2*i+1)}, {sHM}, {v(vXD+i)}")
    E(f"v_lshlrev_b32 {v(tDk+2*i)}, 16, {v(vDK+i)}")
    E(f"v_and_b32 {v(tDk+2*i+1)}, {sHM}, {v(vDK+i)}")
for i in range(8):
    E(f"v_pk_mul_f32 {v(tX+2*i,2)}, {v(tX+2*i,2)}, {v(tDk+2*i,2)}")
for i in range(8):
    E(f"v_cvt_pk_bf16_f32 {v(tDk+i)}, {v(tX+2*i)}, {v(tX+2*i+1)}")
for i in range(8):
    E(f"v_lshlrev_b32 {v(vACC+2*i)}, 16, {v(tDk+i)}")
    E(f"v_and_b32 {v(vACC+2*i+1)}, {sHM}, {v(tDk+i)}")
for i in range(16):
    E(f"v_mul_f32 {v(vACC+i)}, 0.5, {v(vACC+i)}")
def acc(ra, nb): return v(vACC + (ra*2+nb)*16, 16)
for c in range(4):
    for k in range(4):
        for ra in range(2):
            for nb in range(2):
                first = (c == 0 and k == 0 and (ra, nb) != (0, 0))
                E(f"v_mfma_f32_32x32x16_bf16 {acc(ra,nb)}, {a(aCF + ((c*4+k)*2+nb)*4, 4)}, {a(aXF + ((c*4+k)*2+ra)*4, 4)}, {'0' if first else acc(ra,nb)}")
    if c == 2: fh_load(E)
stamp()
spin("fo", fh_load, fl_check)
for c in range(4):
    for b in range(2):
        for ra in range(2):
            E(f"buffer_load_dwordx4 {v(vOF + ((c*2+b)*2+ra)*4, 4)}, {v(vAO[ra])}, {SRD_WS}, {sCgW[c]} offen offset:{b*1024} sc1")
def gg_load(p):
    for ra in range(2): p(f"buffer_load_dword {v(vGv[ra])}, {v(vGL[ra])}, {SRD_WS}, 0 offen sc1")
def gg_check(p):
    p(f"v_xor_b32 {v(vT)}, {v(vTAG)}, {v(vGv[0])}")
    p(f"v_bitop3_b32 {v(vT)}, {v(vGv[1])}, {v(vTAG)}, {v(vT)} bitop3:0xbe")
    p(f"v_and_b32 {v(vT)}, {sFFFF}, {v(vT)}")
    p(f"v_cmp_ne_u32 vcc, 0, {v(vT)}")
spin("g", gg_load, gg_check)
for ra in range(2):
    g_, r_ = vGv[ra], vRT[ra]
    E(f"""
    v_and_b32 {v(g_)}, {sHM}, {v(g_)}
    v_sub_f32 {v(r_)}, 1.0, {v(g_)}
    v_max_f32 {v(g_)}, 0x0da24260, {v(g_)}
    v_cvt_pk_bf16_f32 {v(r_)}, {v(r_)}, {v(r_)}
    v_rcp_f32 {v(r_+1)}, {v(g_)}
    v_and_b32 {v(r_)}, {sHM}, {v(r_)}
    v_add_f32 {v(r_)}, {v(r_)}, {v(r_)}
    v_mul_f32 {v(r_)}, {v(r_)}, {v(r_+1)}
    """)
for ra in range(2):
    for i in range(16):
        r = vACC + ra*32 + 2*i
        E(f"v_pk_mul_f32 {v(r,2)}, {v(r,2)}, {v(vRT[ra],2)} {LO2}")
for c in range(4):
    for b in range(2):
        for ra in range(2):
            for nb in range(2):
                E(f"v_mfma_f32_32x32x16_bf16 {acc(ra,nb)}, {v(vWOFR + ((c*2+b)*2+nb)*4, 4)}, {v(vOF + ((c*2+b)*2+ra)*4, 4)}, {acc(ra,nb)}")
stamp()
vRW = [4, 5, 6]; vRR = 7
for a_ in range(1, 4):
    E(f"s_xor_b32 {sT2}, {sW}, {a_}")
    E(f"s_mul_i32 {sT2}, {sT2}, 12288")
    E(f"s_add_u32 {sT2}, {sT2}, {(a_-1)*4096}")
    E(f"v_add_u32 {v(vRW[a_-1])}, {sT2}, {v(vL16)}")
E(f"s_mul_i32 {sT2}, {sW}, 12288")
E(f"v_add_u32 {v(vRR)}, {sT2}, {v(vL16)}")
for a_ in range(1, 4):
    for q in range(4):
        E(f"ds_write_b128 {v(vRW[a_-1])}, {v(vACC + 16*a_ + 4*q, 4)} offset:{q*1024}")
E.waitlg(None)
E("s_barrier")
for a_ in range(3):
    for q in range(4):
        E(f"ds_read_b128 {v(128 + 16*a_ + 4*q, 4)}, {v(vRR)} offset:{a_*4096 + q*1024}")
for a_ in range(3):
    for i in range(8):
        E(f"v_pk_add_f32 {v(vACC+2*i,2)}, {v(vACC+2*i,2)}, {v(128+16*a_+2*i,2)}")
for i in range(8):
    E(f"v_pk_mul_f32 {v(vACC+2*i,2)}, {v(vACC+2*i,2)}, {v(vGv[0],2)} {LO2}")
for q in range(4):
    E(f"buffer_store_dwordx4 {v(vACC+4*q,4)}, {v(vOUT)}, {SRD_OUT}, 0 offen offset:{32*q}")
if STAMPS:
    E.waitvm(None)
    stamp()
    E(f"""
    s_lshl_b32 {sT2}, s2, 9
    s_add_u32 {sT2}, {sT2}, {W_ST}
    v_lshlrev_b32 {v(vT)}, 1, v0
    v_mov_b32 {v(vDBG+1)}, 0
    s_mov_b64 exec, 0xffff
    buffer_store_dwordx2 {v(vDBG-1,2)}, {v(vT)}, {SRD_WS}, {sT2} offen
    s_mov_b64 exec, -1
    """) if False else None
    E(f"""
    s_lshl_b32 {sT2}, s2, 9
    s_lshl_b32 {sT3}, {sW}, 7
    s_add_u32 {sT2}, {sT2}, {sT3}
    s_add_u32 {sT2}, {sT2}, {W_ST}
    v_lshlrev_b32 {v(vT)}, 3, {v(vL)}
    v_mov_b32 {v(100)}, {v(vDBG)}
    v_mov_b32 {v(101)}, 0
    s_mov_b64 exec, 0xffff
    buffer_store_dwordx2 {v(100,2)}, {v(vT)}, {SRD_WS}, {sT2} offen
    s_mov_b64 exec, -1
    """)
E(f"""
s_or_b32 {sT2}, s2, {sW}
s_cmp_lg_u32 {sT2}, 0
s_cbranch_scc1 L_end
v_mov_b32 {v(vT)}, {W_EPOCH}
s_mov_b64 exec, 1
buffer_store_dword {v(vTAG)}, {v(vT)}, {SRD_WS}, 0 offen sc1
L_end:
s_endpgm
""")

stats = {}
body = finalize(main.ins, stats) + finalize(slow.ins)
hdr = open("gated_mix__linear_kernel_hedgehog__ssm_conv_s5__prompt.s.ref").read().split("\n")
head = [l for l in hdr if l.startswith(";") and "@launch" not in l and "Override" not in l and "grid=ceil" not in l]
out = head + ["; @launch grid=(256,1,1) block=(256,1,1) lds=163840",
  '.amdgcn_target "amdgcn-amd-amdhsa--gfx950"', ".text", f".globl {KN}", ".p2align 8", f".type {KN},@function", f"{KN}:"]
out += body
out += ['.section .rodata,"a"', ".p2align 6", f".amdhsa_kernel {KN}", "  .amdhsa_next_free_vgpr 512", "  .amdhsa_next_free_sgpr 102",
  "  .amdhsa_accum_offset 256", "  .amdhsa_group_segment_fixed_size 0", "  .amdhsa_kernarg_size 136", "  .amdhsa_user_sgpr_count 2",
  "  .amdhsa_user_sgpr_kernarg_segment_ptr 1", "  .amdhsa_system_sgpr_workgroup_id_x 1", ".end_amdhsa_kernel"]
open(sys.argv[1], "w").write("\n".join(out) + "\n")
import json
json.dump(dbg_names, open(sys.argv[1] + ".dbg.json", "w"))
print("lines", len(body), "nops", stats["nops"], "stamps", nst[0], "dbg slots", dbg_slot[0])
```

```python
import re

TRANS = ("v_exp_f32", "v_log_f32", "v_rcp_f32", "v_rsq_f32", "v_sqrt_f32", "v_sin_f32", "v_cos_f32")

def split_ops(s):
    out, depth, cur = [], 0, ""
    for ch in s:
        if ch in "[(":
            depth += 1
        if ch in "])":
            depth -= 1
        if ch == "," and depth == 0:
            out.append(cur.strip()); cur = ""
        else:
            cur += ch
    if cur.strip():
        out.append(cur.strip())
    return out

REG_RE = re.compile(r"^(?:-|\|)?(?:abs\()?-?([vas])(?:(\d+)|\[(\d+):(\d+)\])\)?\|?$")

def regs_of(op):
    op = op.strip()
    if op in ("vcc", "exec", "m0", "scc"):
        return [(op, 0)]
    if op in ("vcc_lo", "vcc_hi"):
        return [("vcc", 0)]
    if op in ("exec_lo", "exec_hi"):
        return [("exec", 0)]
    m = REG_RE.match(op)
    if not m:
        return []
    t = m.group(1)
    if m.group(2) is not None:
        return [(t, int(m.group(2)))]
    return [(t, i) for i in range(int(m.group(3)), int(m.group(4)) + 1)]

class I:
    def __init__(self, text, tok=None, pseudo=None, arg=None):
        self.text = text; self.tok = tok; self.pseudo = pseudo; self.arg = arg
        self.reads = set(); self.writes = set()
        self.kind = "pseudo" if pseudo else None
        self.dpp = self.perml = self.rdlane = self.opseld = self.wide_store = self.ldsdma = self.dot = False
        self.passes = 0
        self.A = self.B = self.C = self.D = frozenset()
        self.data = frozenset()
        if not pseudo:
            self.parse()

    def parse(self):
        t = self.text.split(";")[0].strip()
        if t.endswith(":"):
            self.kind = "label"; return
        if t.startswith("."):
            self.kind = "directive"; return
        parts = t.split(None, 1)
        op = parts[0]; self.op = op
        rest = parts[1] if len(parts) > 1 else ""
        ops = split_ops(rest)
        mods = ""
        if ops:
            lp = ops[-1].split(None, 1)
            if len(lp) > 1:
                ops[-1] = lp[0]; mods = lp[1]
        self.mods = mods
        R = [regs_of(o) for o in ops]
        def rd(idx):
            for i in idx:
                if i < len(R): self.reads.update(R[i])
        def wr(idx):
            for i in idx:
                if i < len(R): self.writes.update(R[i])
        n = len(ops)
        if op.startswith("v_mfma"):
            self.kind = "mfma"
            self.passes = 8 if "32x32x16" in op else 4 if "16x16x32" in op else None
            assert self.passes, op
            self.D = frozenset(R[0]); self.A = frozenset(R[1]); self.B = frozenset(R[2]); self.C = frozenset(R[3])
            wr([0]); rd([1, 2, 3])
        elif op.startswith("v_"):
            self.kind = "trans" if op.replace("_e32", "").replace("_e64", "") in TRANS else "valu"
            if "permlane" in op and "swap" in op:
                self.perml = True; wr([0, 1]); rd([0, 1])
            elif op.startswith(("v_add_co", "v_sub_co", "v_addc_co", "v_subb_co", "v_subrev_co")):
                wr([0, 1]); rd(range(2, n))
            else:
                wr([0]); rd(range(1, n))
            if op.startswith(("v_fmac", "v_dot2c", "v_pk_fmac", "v_writelane")):
                rd([0])
            if op.startswith(("v_readfirstlane", "v_readlane")):
                self.rdlane = True
            if op.startswith("v_dot"):
                self.dot = True
            if re.search(r"row_|quad_perm|wave_|bcast", mods):
                self.dpp = True; rd([0])
            if "dst_sel" in mods and "dst_sel:DWORD" not in mods:
                self.opseld = True; rd([0])
        elif op.startswith("ds_"):
            self.kind = "ds"
            if op.startswith("ds_read") or op.startswith("ds_bpermute") or op.startswith("ds_swizzle"):
                wr([0]); rd(range(1, n))
            else:
                rd(range(n))
        elif op.startswith("buffer_") or op.startswith("global_"):
            self.kind = "vmem"
            allm = " " + mods + " "
            if op.startswith("buffer_load") and " lds " in allm:
                self.ldsdma = True; rd(range(n)); self.reads.add(("m0", 0))
            elif "_load" in op:
                wr([0]); rd(range(1, n))
                if "d16" in op: self.d16 = True
            elif "_store" in op:
                rd(range(n))
                di = 0 if op.startswith("buffer_") else 1
                self.data = frozenset(R[di])
                self.wide_store = op.endswith(("x3", "x4"))
            else:
                raise ValueError(op)
        elif op.startswith(("s_load", "s_memrealtime", "s_memtime")):
            self.kind = "smem"; wr([0]); rd(range(1, n))
        elif op in ("s_waitcnt", "s_barrier", "s_endpgm", "s_setprio", "s_nop") or op.startswith(("s_branch", "s_cbranch")):
            self.kind = "sopp"
        elif op.startswith("s_"):
            self.kind = "salu"
            if op.startswith(("s_cmp", "s_bitcmp")):
                rd(range(n))
            else:
                wr([0]); rd(range(1, n))
        else:
            raise ValueError("unknown op " + op)

def isv(rs):
    return {r for r in rs if r[0] in "va"}
def iss(rs):
    return {r for r in rs if r[0] in ("s", "vcc")}

def hazard(p, c):
    need = 0
    pk, ck = p.kind, c.kind
    pval = pk in ("valu", "trans"); cval = ck in ("valu", "trans")
    if pval:
        wv = isv(p.writes); ws = iss(p.writes)
        if ck == "mfma" and wv & c.reads: need = max(need, 2)
        if cval:
            if ws & c.reads: need = max(need, 4 if c.op.startswith(("v_readlane", "v_writelane")) else 2)
            if wv & c.reads:
                if c.dpp or c.perml: need = max(need, 2)
                if c.rdlane: need = max(need, 1)
                if pk == "trans" and ck != "trans": need = max(need, 1)
            if p.opseld and wv & (c.reads | c.writes): need = max(need, 1)
            if p.dot and wv & (c.reads | c.writes):
                if not (c.dot and c.op == p.op): need = max(need, 3)
                else: need = max(need, 3)
        if ck == "vmem" and ws & c.reads: need = max(need, 5)
        if p.dot and ck in ("vmem", "ds", "mfma") and wv & (c.reads | c.writes): need = max(need, 3)
    if pk == "mfma":
        big, ovl, war = (12, 10, 7) if p.passes == 8 else (8, 6, 3)
        if ck == "mfma":
            if p.D & c.C and not (p.D == c.C and p.passes == c.passes): need = max(need, ovl)
            if p.D & (c.A | c.B): need = max(need, big)
            if p.D & c.D and not (p.D == c.C and p.passes == c.passes): need = max(need, big)
        elif ck in ("valu", "trans", "vmem", "ds"):
            if p.D & (c.reads | c.writes): need = max(need, big)
            if cval and p.C & c.writes: need = max(need, war)
            if ck in ("vmem", "ds") and p.C & c.writes: need = max(need, war)
    if pk == "salu" and ("m0", 0) in p.writes and c.ldsdma: need = max(need, 1)
    if pk == "vmem" and p.wide_store and p.data & c.writes:
        need = max(need, 2 if cval else 1)
    return need

class Prog:
    def __init__(self):
        self.ins = []
    def __call__(self, text, tok=None):
        for line in text.strip().split("\n"):
            line = line.strip()
            if not line or line.startswith(";"): continue
            self.ins.append(I(line, tok=tok))
        return self
    def waitvm(self, tok):
        self.ins.append(I("", pseudo="waitvm", arg=tok))
    def waitlg(self, tok):
        self.ins.append(I("", pseudo="waitlg", arg=tok))
    def mark(self, name):
        self.ins.append(I("", pseudo="mark", arg=name))
    def extend(self, other):
        self.ins.extend(other.ins if isinstance(other, Prog) else other)

def weave(main, side, every=1, start=0, pred=None, per=1):
    out = []; si = 0; cnt = 0
    side = side.ins if isinstance(side, Prog) else side
    main = main.ins if isinstance(main, Prog) else main
    for m in main:
        out.append(m)
        if pred is None or pred(m):
            cnt += 1
            if cnt > start and (cnt - start) % every == 0:
                k = per
                while k > 0 and si < len(side):
                    out.append(side[si])
                    if side[si].kind != "pseudo": k -= 1
                    si += 1
    out.extend(side[si:])
    p = Prog(); p.ins = out
    return p

def finalize(ins, stats=None, fine=None):
    out = []
    fine_on = False; fine_k = 32
    def fstamp(tag):
        nonlocal fine_k, lg_done, smem_out, st
        if not fine_on or fine_k >= 64: return
        out.append("    " + fine["clk"] + " s[100:101]"); out.append("    s_waitcnt lgkmcnt(0)")
        out.append(f"    v_writelane_b32 v63, s100, {fine_k}")
        fine["names"].append(tag); fine_k += 1
        lg_done = lg_seq; smem_out = False; pend_sm.clear(); st += 3
    hist = []
    st = 0
    vm_seq = 0; vm_done = 0; lg_seq = 0; lg_done = 0
    smem_out = False
    pend_vm = {}; pend_lg = {}; pend_sm = set()
    vm_tok = {}; lg_tok = {}
    nnop = 0
    def emit_wait(vm_t, lg_t, lg0):
        nonlocal vm_done, lg_done, smem_out, st
        parts = []
        fs = False
        if vm_t > vm_done:
            fstamp(f"pre L{len(out)}"); fs = True
            n = min(vm_seq - vm_t, 63); parts.append(f"vmcnt({n})"); vm_done = vm_seq - n
        if lg0 or lg_t > lg_done:
            if lg0 or smem_out:
                n = 0; smem_out = False; pend_sm.clear()
            else:
                n = min(lg_seq - lg_t, 15)
            parts.append(f"lgkmcnt({n})"); lg_done = lg_seq - n
        if parts:
            out.append("    s_waitcnt " + " ".join(parts)); st += 1
            if fs: fstamp(f"vm{n} #{vm_t}")
    for c in ins:
        if c.kind == "pseudo":
            if c.pseudo == "waitvm":
                t = vm_seq if c.arg is None else vm_tok[c.arg]
                emit_wait(t, 0, False)
            elif c.pseudo == "waitlg":
                if c.arg is None:
                    if lg_seq > lg_done or smem_out: emit_wait(0, lg_seq, True)
                else:
                    emit_wait(0, lg_tok[c.arg], False)
            elif c.pseudo == "mark":
                out.append(f"    ; ---- {c.arg}")
                if fine and c.arg == fine["start"]: fine_on = True
                if fine and c.arg == fine["end"]: fine_on = False
            continue
        if c.kind in ("label", "directive"):
            out.append(c.text); continue
        vm_t = 0; lg_t = 0; lg0 = False
        for r in c.reads | c.writes:
            if r in pend_vm:
                same = c.kind == "vmem" and r in c.writes and r not in c.reads
                if not same: vm_t = max(vm_t, pend_vm[r])
            if r in pend_lg:
                same = c.kind == "ds" and r in c.writes and r not in c.reads
                if not same: lg_t = max(lg_t, pend_lg[r])
            if r in pend_sm: lg0 = True
        emit_wait(vm_t, lg_t, lg0)
        need = 0
        for p, pst in hist:
            d = st - pst - 1
            h = hazard(p, c)
            if h > d: need = max(need, h - d)
        if need:
            nnop += need
            out.append(f"    s_nop {need-1}"); st += need
        if c.text.startswith("s_barrier"): fstamp("pre bar")
        out.append("    " + c.text)
        if c.text.startswith("s_barrier"): fstamp("bar")
        if c.text.startswith("s_waitcnt"):
            m = re.search(r"vmcnt\((\d+)\)", c.text)
            if m: vm_done = max(vm_done, vm_seq - int(m.group(1)))
            m = re.search(r"lgkmcnt\((\d+)\)", c.text)
            if m and int(m.group(1)) == 0:
                lg_done = lg_seq; smem_out = False; pend_sm.clear()
        hist.append((c, st))
        if c.text.startswith("s_nop"):
            st += int(c.text.split()[1], 0) + 1
        else:
            st += 1
        hist = [(p, s) for p, s in hist if st - s <= 21]
        if c.kind == "vmem":
            vm_seq += 1
            for r in c.writes: pend_vm[r] = vm_seq
            if c.tok: vm_tok[c.tok] = vm_seq
        elif c.kind == "ds":
            lg_seq += 1
            for r in c.writes: pend_lg[r] = lg_seq
            if c.tok: lg_tok[c.tok] = lg_seq
        elif c.kind == "smem":
            smem_out = True
            pend_sm.update(c.writes)
        pend_vm = {r: s for r, s in pend_vm.items() if s > vm_done}
        pend_lg = {r: s for r, s in pend_lg.items() if s > lg_done}
    if stats is not None:
        stats["nops"] = nnop
    return out

class Item:
    def __init__(self, prog, lines, after=None, name=None, lat=None):
        self.ins = prog.ins if isinstance(prog, Prog) else prog
        self.lines = lines; self.after = after; self.name = name; self.lat = lat

def vm_lines(c):
    if getattr(c, "lines", None) is not None: return c.lines
    op = c.op
    if op.endswith("x4"): return 8
    if op.endswith("x2"): return 4
    return 2

class Aux:
    def __init__(self, tok, prog, rtok, done, after=None):
        self.tok = tok; self.ins = prog.ins; self.rtok = rtok; self.done = done; self.after = after

def stream_weave(main, items, aux=(), thresh=448, thresh_wait=600, cyc_line=8.0, lat=450, t0=0, log=None, margin=64):
    out = []; t = t0; ts = 0.0; marks = set(); locked = 0
    it = 0; last_mfma = -100; mf_len = 32
    tokdone = {}; regdone = {}
    tok_item = {}
    for k, im in enumerate(items):
        for c in im.ins:
            if c.tok: tok_item[c.tok] = k
    ax = 0; timers = []
    pending = []
    def issue(c, ilat=None):
        nonlocal t, ts, last_mfma, mf_len
        out.append(c)
        if c.kind == "pseudo" or c.kind in ("label", "directive"): return
        for r in c.reads | c.writes:
            if r in regdone:
                t = max(t, regdone.pop(r))
        if c.kind == "mfma":
            t = max(t, last_mfma + mf_len); last_mfma = t; mf_len = 32 if c.passes == 8 else 16
            t += 8
        elif c.kind == "trans": t += 8
        elif c.kind == "vmem":
            L = vm_lines(c)
            ts = max(ts, t) + L * cyc_line
            d = max(ts, t + (ilat or lat))
            if c.tok: tokdone[c.tok] = d
            for r in c.writes: regdone[r] = d
            t += 4
        elif c.kind == "sopp" and c.text.startswith("s_nop"):
            t += 4 * (int(c.text.split()[1], 0) + 1)
        elif c.kind == "sopp" and c.text.startswith("s_barrier"): t += 24
        else: t += 4
    def flush_pending():
        nonlocal pending
        for c, il in pending: issue(c, il)
        pending = []
    def put_item(split):
        nonlocal it, pending
        im = items[it]; it += 1
        ins = list(im.ins)
        body = [c for c in ins if c.kind == "vmem"]
        for c in body: c.lines = im.lines / len(body)
        if split and ins[0].kind == "salu" and ("m0", 0) in ins[0].writes:
            issue(ins[0]); pending = [(c, im.lat) for c in ins[1:]]
        else:
            for c in ins: issue(c, im.lat)
    def put_aux():
        nonlocal ax, t
        A = aux[ax]; ax += 1
        while it <= tok_item[A.tok]:
            service_timers(True)
            assert items[it].after is None or items[it].after in marks, (A.tok, items[it].name, items[it].after)
            put_item(False)
        out.append(I("", pseudo="waitvm", arg=A.tok))
        t = max(t, tokdone[A.tok])
        for c in A.ins: issue(c)
        timers.append((t + 96, A))
        if log is not None: log.append(("aux " + A.tok, int(t), int(ts), it))
    def service_timers(force=False):
        while timers and (force or timers[0][0] <= t):
            _, A = timers.pop(0)
            out.append(I("", pseudo="waitlg", arg=A.rtok)); marks.add(A.done)
    def aux_ok():
        if ax >= len(aux) or locked: return False
        A = aux[ax]
        return (A.after is None or A.after in marks) and A.tok in tokdone and tokdone[A.tok] + margin <= t
    def ok(th):
        return it < len(items) and not locked and (items[it].after is None or items[it].after in marks) and ts - t < th
    for c in main.ins if isinstance(main, Prog) else main:
        if c.kind == "pseudo":
            if c.pseudo == "mark":
                marks.add(c.arg)
                if log is not None: log.append((c.arg, int(t), int(ts), it))
            elif c.pseudo == "lock":
                flush_pending(); locked += 1; continue
            elif c.pseudo == "unlock":
                locked -= 1; continue
            elif c.pseudo == "setts":
                ts = max(ts, t + c.arg); continue
            elif c.pseudo == "sett":
                t = max(t, c.arg); continue
            elif c.pseudo == "drainaux":
                flush_pending()
                while ax < len(aux): put_aux()
                service_timers(True)
                continue
            elif c.pseudo == "drain":
                flush_pending()
                k = [i for i, im in enumerate(items) if im.name == c.arg][-1]
                while it <= k:
                    while not (items[it].after is None or items[it].after in marks) and (timers or ax < len(aux)):
                        if timers: service_timers(True)
                        else: put_aux()
                    assert items[it].after is None or items[it].after in marks, (items[it].name, items[it].after)
                    put_item(False)
                continue
            elif c.pseudo == "waitvm":
                flush_pending()
                if c.arg is not None and c.arg in tok_item:
                    while it <= tok_item[c.arg]:
                        assert items[it].after is None or items[it].after in marks, (c.arg, items[it].name, items[it].after)
                        put_item(False)
                if c.arg is not None and tokdone.get(c.arg, 0) > t + 32:
                    while ok(thresh_wait): put_item(False)
                out.append(c)
                if c.arg is None: t = max(t, ts + 100)
                else: t = max(t, tokdone.get(c.arg, 0))
                continue
            out.append(c); continue
        isbr = c.kind == "sopp" and "branch" in c.text
        if c.kind == "label" or isbr:
            flush_pending()
        stall = max([regdone.get(r, 0) for r in c.reads | c.writes] + [0])
        if stall > t + 32:
            flush_pending()
            while ok(thresh_wait): put_item(False)
        issue(c)
        flush_pending()
        if c.kind in ("label", "directive") or (c.kind == "sopp" and "branch" in c.text): continue
        if not locked: service_timers()
        if aux_ok(): put_aux()
        elif ok(thresh): put_item(True)
    flush_pending()
    assert it == len(items), ("items left", [im.name for im in items[it:]])
    if log is not None: log.append(("end", int(t), int(ts), it))
    p = Prog(); p.ins = out
    return p

def _lock(self): self.ins.append(I("", pseudo="lock"))
def _unlock(self): self.ins.append(I("", pseudo="unlock"))
def _drain(self, name): self.ins.append(I("", pseudo="drain", arg=name))
Prog.lock = _lock; Prog.unlock = _unlock; Prog.drain = _drain

def _setts(self, x): self.ins.append(I("", pseudo="setts", arg=x))
def _sett(self, x): self.ins.append(I("", pseudo="sett", arg=x))
Prog.setts = _setts; Prog.sett = _sett

def _drainaux(self): self.ins.append(I("", pseudo="drainaux"))
Prog.drainaux = _drainaux
```

```python
import sys
sys.path.insert(0, "dev")
from asmlib import Prog, weave, finalize, I, Item, Aux, stream_weave

OPT = dict(dbg=0, stamps=0, spin=4096, pf=1, outsc=0, early=10, thresh=448, tw=600, lat=450, cold=1400, wl=16, tlb=1,
           glpos=3, margin=64, log=0, cl=8, rot=0, fine='', nt=0)
for a in sys.argv[2:]:
    k, v = a.split("="); assert k in OPT, k; OPT[k] = v if k == "fine" else int(v, 0)
NT = lambda b: ' nt' if OPT['nt'] >> b & 1 else ''
DBG = OPT["dbg"]; STAMPS = OPT["stamps"]
KN = "gated_mix__linear_kernel_hedgehog__ssm_conv_s5__prompt_kernel"

RB = 98304; S1 = 32768; S2 = 65536; TAB = S2 + 5120; XCH = RB
W_EPOCH = 0; W_G = 0x1000; W_E = 0x4000; W_FH = 0x24000; W_FO = 0x28000; W_KVP = 0x30000; W_ZP = 0x130000
W_H = 0x200000; W_O = 0x600000; W_DBG = 0x1000000; W_ST = 0x900000
P_WPHI = "s[8:9]"; P_LRE = "s[14:15]"; P_LIM = "s[16:17]"; P_LDT = "s[26:27]"; P_DSK = "s[28:29]"; P_GW = "s[30:31]"
SRD_X, SRD_W, SRD_B, SRD_CR, SRD_CI, SRD_WO, SRD_WS, SRD_OUT = [f"s[{i}:{i+3}]" for i in range(40, 72, 4)]
sXo = [f"s{72+j}" for j in range(8)]; sWo = [f"s{80+j}" for j in range(8)]
sRB, sCG, sW, sTAG, sRT, sCT, sRG, sT0, sT1, sFF, sT2, sSPIN = [f"s{i}" for i in range(88, 100)]
sM1, sM2, sM3 = "s[4:5]", "s[6:7]", "s[10:11]"
sHI = "s[12:13]"
sCgC = [f"s{18+c}" for c in range(4)]; sCgW = [f"s{22+c}" for c in range(4)]
sRING, sPW, sHM, sL2E = "s34", "s35", "s32", "s[38:39]"
sFFFF = "s33"; sT3 = "s3"
sRINGB = "s0"
sEP, sKV, sZP, sKVP, sZPP = "s36", "s37", "s9", "s1", "s17"
sFL, sFP, sHS, sOS = "s8", "s14", "s15", "s16"
sRA0, sGP = "s26", "s27"
def v(i, n=1): return f"v{i}" if n == 1 else f"v[{i}:{i+n-1}]"
def a(i, n=1): return f"a{i}" if n == 1 else f"a[{i}:{i+n-1}]"
vL, vHI, vT = 1, 2, 3
vX = [4, 5, 6, 7]; vB = [8, 9]; vWq = 11
vXf = [12, 13, 14, 15]; vCf = [16, 17, 18, 19]; vBf = [20, 21, 22, 23]; vTRkv, vTRq = 24, 25
vC = [26, 27, 28, 29]; vWO = [30, 31, 32, 33]; vWOf = [36, 37]
vLAM, vL8, vL16p, vL32, vMU, vMU2, vCOEF = 38, 40, 42, 44, 46, 48, 50
vA1, vA2 = 52, 56
vTAG, vL16, vT2, vDBG = 60, 61, 62, 63
vU_RE, vU_IM = 64, 80
vKT, vVV, vQT = 96, 112, 128
vFR = 144
vWOFR = 192
vALR, vALI, vBER, vBEI = 4, 6, 12, 14
vALR0, vALI0 = 188, 190
vXR, vEL = 0, 10
vXW = 34
vFLA = 35
vPhW, vVW, vPhR, vVR = 8, 9, 20, 21
vHW, vHR = 22, 23
aXF = 128; aCF = 0

main = Prog(); slow = Prog()
E = main
items = []; aux = []
dbg_slot = [0]; dbg_names = []
def dump(name, regs, p=None):
    if not DBG: return
    p = p or main
    for r in regs:
        p(f"s_mov_b32 {sT3}, {W_DBG + dbg_slot[0]*262144}")
        p(f"buffer_store_dword {r}, {v(vDBG)}, {SRD_WS}, {sT3} offen")
        dbg_slot[0] += 1
    dbg_names.append((name, dbg_slot[0] - len(regs), len(regs)))
nst = [0]; stnames = []
def stamp(name, p=None):
    p = p or main
    p.mark(name)
    if not STAMPS: return
    k = nst[0]; nst[0] += 1; stnames.append(name)
    p(f"s_memrealtime s[100:101]" if STAMPS == 1 else "s_memtime s[100:101]")
    p(f"v_writelane_b32 {v(vDBG)}, s100, {k}")
nspin = [0]
def spin(name, reload_fn, check_fn):
    check_fn(main)
    main(f"s_cbranch_vccnz L_slow_{name}")
    main(f"L_back_{name}:")
    slow(f"L_slow_{name}:")
    slow(f"s_mov_b32 {sSPIN}, {OPT['spin']}")
    slow(f"L_loop_{name}:")
    slow("s_nop 4")
    reload_fn(slow)
    slow("s_waitcnt vmcnt(0)")
    check_fn(slow)
    slow("s_nop 4")
    if STAMPS:
        slow(f"s_cbranch_vccnz L_more_{name}")
        slow(f"s_sub_u32 {sSPIN}, {OPT['spin']+1}, {sSPIN}")
        slow(f"s_mul_i32 {sSPIN}, {sSPIN}, 100")
        slow(f"v_readlane_b32 s100, {v(vDBG)}, 0")
        slow("s_nop 4")
        slow(f"s_add_u32 {sSPIN}, {sSPIN}, s100")
        slow(f"v_writelane_b32 {v(vDBG)}, {sSPIN}, {27 + nspin[0]}")
        slow(f"s_branch L_back_{name}")
        slow(f"L_more_{name}:")
    else:
        slow(f"s_cbranch_vccz L_back_{name}")
    slow(f"s_sub_u32 {sSPIN}, {sSPIN}, 1")
    slow(f"s_cbranch_scc0 L_loop_{name}")
    slow(f"s_branch L_back_{name}")
    nspin[0] += 1

def cmul_add(p, d, x, lam, y):
    p(f"v_fma_f32 {v(d)}, {v(lam)}, {v(x)}, {v(y)}")
    p(f"v_fma_f32 {v(d+1)}, {v(lam)}, {v(x+1)}, {v(y+1)}")
    p(f"v_fma_f32 {v(d)}, -{v(lam+1)}, {v(x+1)}, {v(d)}")
    p(f"v_fma_f32 {v(d+1)}, {v(lam+1)}, {v(x)}, {v(d+1)}")
def cmul(p, d, x, y):
    p(f"v_mul_f32 {v(d)}, {v(x)}, {v(y)}")
    p(f"v_mul_f32 {v(d+1)}, {v(x)}, {v(y+1)}")
    p(f"v_fma_f32 {v(d)}, -{v(x+1)}, {v(y+1)}, {v(d)}")
    p(f"v_fma_f32 {v(d+1)}, {v(x+1)}, {v(y)}, {v(d+1)}")
def csq(p, d, x): cmul(p, d, x, x)
LO = "op_sel:[0,0,0] op_sel_hi:[1,0,1]"; HI = "op_sel:[0,1,0] op_sel_hi:[1,1,1]"
LO2 = "op_sel:[0,0] op_sel_hi:[1,0]"; HI2 = "op_sel:[0,1] op_sel_hi:[1,1]"
NEG1 = "neg_lo:[0,1,0] neg_hi:[0,1,0]"
def P(text, tok=None):
    p = Prog(); p(text, tok=tok); return p
ismf = lambda c: c.kind == "mfma"

def it_x(j):
    slot = j if j < 6 else j - 6
    for q in range(4):
        p = Prog()
        if q == 0: p(f"s_add_u32 m0, {sRING}, {slot*16384}")
        p(f"buffer_load_dwordx4 {v(vX[q])}, {SRD_X}, {sXo[j]} offen offset:{q*1024}{NT(0)} lds")
        items.append(Item(p, 8, after=(f"xr{j-6}" if j >= 6 else None), name=f"x{j}_{q}", lat=OPT["cold"] if j < 2 else None))
def it_b(j):
    for q in range(2):
        p = Prog()
        if q == 0: p(f"s_add_u32 m0, {sRINGB}, {j*8192}")
        p(f"buffer_load_dwordx4 {v(vB[q])}, {SRD_B}, {sXo[j]} offen offset:{q*1024}{NT(1)} lds", tok=f"xb{j}")
        items.append(Item(p, 8, name=f"b{j}_{q}", lat=OPT["cold"] if j < 2 else None))
vGX0, vGX1, vGW = 96, 100, 104
def it_g():
    items.append(Item(P(f"buffer_load_dwordx4 {v(vGX0,4)}, {v(vL16)}, {SRD_X}, {sGP} offen"), 8, name="g0", after="addr"))
    items.append(Item(P(f"buffer_load_dwordx4 {v(vGX1,4)}, {v(vL16)}, {SRD_X}, {sGP} offen offset:1024"), 8, name="g1"))
    items.append(Item(P(f"global_load_dwordx4 {v(vGW,4)}, {v(vL16)}, {P_GW}"), 8, name="g2"))
for j in range(8):
    it_x(j); it_b(j)
    if j == OPT["glpos"]: it_g()
for pr in range(4):
    for jj in range(2):
        j = 2*pr + jj
        for m in range(2):
            p = Prog()
            if m == 0: p(f"s_add_u32 m0, {sRING}, {(2+pr)*16384 + jj*2048 - 1024}")
            p(f"buffer_load_dwordx4 {v(vWq)}, {SRD_W}, {sWo[j]} offen offset:{1024 + m*1024}{NT(2)} lds", tok=f"w{pr}")
            items.append(Item(p, OPT["wl"], after=f"xr{2+pr}", name=f"w{pr}_{jj}{m}"))
for j in range(8):
    p = Prog()
    p(f"s_add_u32 m0, {sRING}, {(j>>2)*16384 + (j&3)*1024}")
    p(f"buffer_load_dwordx4 {v(vWq)}, {SRD_W}, {sWo[j]} offen{NT(2)} lds", tok="wq")
    items.append(Item(p, OPT["wl"], after=f"xr{6 + (j>>2)}", name=f"wq{j}"))
def b2_pos(s): return ((s + 1) & 3) * 4096
def it_b2(s):
    aft = "barA" if s < 3 else "xchdone" if s == 3 else f"b2done{s-4}"
    for q in range(4):
        p = Prog()
        if q == 0: p(f"s_add_u32 m0, {sPW}, {b2_pos(s)}")
        if s < 8:
            Pp, m, nb = s >> 2, (s >> 1) & 1, s & 1
            p(f"buffer_load_dwordx4 {v(vC[q])}, {SRD_CI if m else SRD_CR}, {sCgC[2*Pp+nb]} offen offset:{q*1024}{NT(3)} lds", tok=f"b2_{s}")
        else:
            p(f"buffer_load_dwordx4 {v(vWO[q])}, {SRD_WO}, {sCgW[s-8]} offen offset:{q*1024}{NT(4)} lds", tok=f"b2_{s}")
        items.append(Item(p, 8, after=aft, name=f"b2_{s}_{q}"))
def b2_read(p, s):
    pos = b2_pos(s)
    if s < 8:
        Pp, m, nb = s >> 2, (s >> 1) & 1, s & 1
        for k in range(4):
            c, kk = 2*Pp + (k >> 1), k & 1
            p(f"ds_read_b128 {a(aCF + ((c*4 + 2*m + kk)*2 + nb)*4, 4)}, {v(vCf[k])} offset:{pos}", tok=f"b2r_{s}")
    else:
        c = s - 8
        for b in range(2):
            for nb in range(2):
                for rd in range(2):
                    p(f"ds_read_b64_tr_b16 {v(vWOFR + ((c*2+b)*2+nb)*4 + 2*rd, 2)}, {v(vWOf[nb])} offset:{pos + (8*b + 4*rd)*128}", tok=f"b2r_{s}")
for s in range(8):
    it_b2(s)
    p = Prog(); b2_read(p, s)
    aux.append(Aux(f"b2_{s}", p, f"b2r_{s}", f"b2done{s}"))
vGA = 96; vGZ = 160
def gather_list():
    L = []
    for r in range(16):
        L.append((r, f"buffer_load_dwordx4 {v(vGA+4*r,4)}, {v(vL16)}, {SRD_WS}, s{72 + (r>>2)} offen offset:{(r&3)*1024} sc1"))
    L.append((16, f"buffer_load_dwordx4 {v(vGZ,4)}, {v(vL16)}, {SRD_WS}, {sZP} offen sc1"))
    return L
def gather_loads(p):
    for r, t in gather_list(): p(t)
for r, t in gather_list():
    items.append(Item(P(t), 8, after="gather_ok", name=f"ga{r}"))
for s in range(8, 12): it_b2(s)
vAH = [4, 5]; vAO = [6, 7]; vGL = [8, 9]; vGv = [12, 13]; vRT = [14, 20]
vACC = 64; vOF = 128
for c in range(4):
    for k in range(4):
        for ra in range(2):
            items.append(Item(P(f"buffer_load_dwordx4 {a(aXF + ((c*4+k)*2+ra)*4, 4)}, {v(vAH[ra])}, {SRD_WS}, {sCgW[c]} offen offset:{k*1024} sc1"),
                              8, after="fh_ok", name=f"h{c}{k}{ra}"))
o_order = [(c, b, ra) for ra in (0, 1) for c in (0, 1) for b in range(2)] + [(c, b, ra) for ra in (1, 0) for c in (2, 3) for b in range(2)]
for c, b, ra in o_order:
    items.append(Item(P(f"buffer_load_dwordx4 {v(vOF + ((c*2+b)*2+ra)*4, 4)}, {v(vAO[ra])}, {SRD_WS}, {sCgW[c]} offen offset:{b*1024} sc1"),
                      8, after="fo_ok", name=f"o{c}{b}{ra}"))

E.lock()
E("s_cmp_ge_u32 s2, 256")
E("s_cbranch_scc1 L_end")
E("s_load_dwordx16 s[4:19], s[0:1], 0")
E("s_load_dwordx16 s[20:35], s[0:1], 64")
E("s_load_dwordx2 s[36:37], s[0:1], 128")
if OPT["pf"]:
    E(f"""
    s_getpc_b64 s[40:41]
    L_pc:
    s_lshr_b32 s3, s2, 3
    s_and_b32 s3, s3, 7
    s_lshl_b32 s3, s3, 12
    v_and_b32 v1, 31, v0
    v_lshl_add_u32 v1, v1, 7, s3
    v_min_u32 v1, L_code_end-L_pc-4, v1
    global_load_dword v255, v1, s[40:41]
    """)
if STAMPS: E(f"v_mov_b32 {v(vDBG)}, 0")
stamp("start")
if STAMPS:
    for k in range(27, 32): E(f"v_writelane_b32 {v(vDBG)}, s100, {k}")
E(f"""
s_and_b32 {sT0}, s2, 7
s_lshr_b32 {sT1}, s2, 3
v_lshrrev_b32 {v(vT)}, 6, v0
v_and_b32 {v(vL)}, 63, v0
s_and_b32 {sRB}, {sT0}, 1
v_readfirstlane_b32 {sW}, {v(vT)}
s_lshl_b32 {sRT}, {sRB}, 4
s_lshl_b32 {sRB}, {sRB}, 3
s_and_b32 {sCT}, {sT1}, 7
s_or_b32 {sRB}, {sRB}, {sCT}
s_lshr_b32 {sCG}, {sT0}, 1
s_lshl_b32 {sCG}, {sCG}, 2
s_lshr_b32 {sT1}, {sT1}, 3
s_or_b32 {sCG}, {sCG}, {sT1}
s_or_b32 {sRT}, {sRT}, {sCG}
s_lshl_b32 {sRG}, {sRB}, 2
s_or_b32 {sRG}, {sRG}, {sW}
{["s_lshl_b32 %s, %s, 1" % (sT0, sCG), "s_mov_b32 %s, 0" % sT0, "s_mov_b32 %s, 0" % sT0, "s_lshr_b32 %s, %s, 1" % (sT0, sCG)][OPT["rot"]]}
{["s_add_u32 %s, %s, %s" % (sT0, sT0, sRB), "s_add_u32 %s, %s, %s" % (sT0, sT0, sRB), "s_mov_b32 %s, 0" % sT0, "s_add_u32 %s, %s, %s" % (sT0, sT0, sRB)][OPT["rot"]]}
v_lshlrev_b32 {v(vL16)}, 4, {v(vL)}
v_lshrrev_b32 {v(vHI)}, 5, {v(vL)}
""")
if DBG:
    E(f"s_lshl_b32 {sT2}, s2, 10")
    E(f"v_lshl_add_u32 {v(vDBG)}, v0, 2, {sT2}")
for j in range(8):
    E(f"s_add_u32 {sT2}, {sT0}, {j}")
    E(f"s_and_b32 {sT2}, {sT2}, 7")
    E(f"s_lshl_b32 {sXo[j]}, {sT2}, 7")
    E(f"s_mul_i32 {sWo[j]}, {sT2}, 196608")
E(f"""
v_lshrrev_b32 {v(vT)}, 4, {v(vL)}
v_and_b32 {v(vT2)}, 7, {v(vL)}
v_xor_b32 {v(vT2)}, {v(vT2)}, {v(vT)}
v_lshlrev_b32 {v(vT2)}, 4, {v(vT2)}
v_and_b32 {v(vX[0])}, 1, {v(vT)}
v_and_b32 {v(vX[1])}, 8, {v(vL)}
v_or_b32 {v(vX[0])}, {v(vX[0])}, {v(vX[1])}
v_lshl_or_b32 {v(vX[0])}, {v(vHI)}, 4, {v(vX[0])}
s_lshl_b32 {sT2}, {sRG}, 5
v_add_u32 {v(vX[0])}, {sT2}, {v(vX[0])}
v_lshl_or_b32 {v(vX[0])}, {v(vX[0])}, 10, {v(vT2)}
v_xor_b32 {v(vX[1])}, 64, {v(vX[0])}
v_add_u32 {v(vX[1])}, 1024, {v(vX[1])}
v_add_u32 {v(vX[2])}, 2048, {v(vX[0])}
v_add_u32 {v(vX[3])}, 2048, {v(vX[1])}
s_and_b32 {sT2}, {sW}, 1
s_lshl_b32 {sT2}, {sT2}, 4
s_lshl_b32 {sT3}, {sCG}, 5
s_add_u32 {sT2}, {sT2}, {sT3}
v_lshrrev_b32 {v(vT)}, 3, {v(vL)}
v_lshl_or_b32 {v(vC[0])}, {v(vT)}, 10, {v(vT2)}
s_lshl_b32 {sT2}, {sT2}, 10
v_add_u32 {v(vB[0])}, {sT2}, {v(vC[0])}
v_xor_b32 {v(vB[1])}, 64, {v(vB[0])}
v_add_u32 {v(vB[1])}, 7168, {v(vB[1])}
s_lshl_b32 {sT3}, {sW}, 12
s_lshl_b32 {sT1}, {sW}, 11
s_add_u32 {sT1}, {sT1}, {RB}
""")
def srd(dst, lo, size):
    b = int(dst[2:].split(":")[0])
    E(f"s_mov_b32 s{b}, s{lo}")
    E(f"s_and_b32 s{b+1}, s{lo+1}, 0xffff")
    E(f"s_mov_b32 s{b+2}, {size}")
    E(f"s_mov_b32 s{b+3}, 0x20000")
E("s_mov_b32 s42, 2097152"); E("s_mov_b32 s43, 0x20000"); E("s_mov_b32 s50, 524288"); E("s_mov_b32 s51, 0x20000")
E.sett(900)
E("s_mov_b32 s40, s4"); E("s_and_b32 s41, s5, 0xffff")
E(f"s_mov_b32 {sRING}, {sT3}")
E(f"s_mov_b32 {sRINGB}, {sT1}")
E.drain("x0_3")
E(f"s_cmp_lt_u32 {sW}, 2")
E("s_cselect_b32 s48, s18, s20")
E("s_cselect_b32 s49, s19, s21")
E("s_and_b32 s49, s49, 0xffff")
E.drain(items[OPT["early"] - 1].name)
stamp("first dma")
E(f"s_load_dword {sTAG}, s[36:37], {W_EPOCH}")
vPR, vPI, vPD = 160, 161, 162
vWP = 144
E(f"""
v_and_b32 {v(vXR)}, 31, {v(vL)}
s_lshl_b32 {sT2}, {sCG}, 6
v_lshl_add_u32 {v(vT)}, {v(vXR)}, 1, {sT2}
global_load_ushort {v(vPR)}, {v(vT)}, {P_LRE}
global_load_ushort {v(vPI)}, {v(vT)}, {P_LIM}
global_load_ushort {v(vPD)}, {v(vT)}, {P_LDT}
v_bfe_u32 {v(vT)}, {v(vL)}, 3, 2
v_and_b32 {v(vT2)}, 3, {v(vL)}
v_lshl_add_u32 {v(vT)}, {v(vT)}, 2, {v(vT2)}
v_lshlrev_b32 {v(vT)}, 1, {v(vT)}
v_lshl_or_b32 {v(vT)}, {v(vHI)}, 7, {v(vT)}
v_bfe_u32 {v(vT2)}, {v(vL)}, 2, 1
v_lshl_or_b32 {v(vT)}, {v(vT2)}, 9, {v(vT)}
s_lshl_b32 {sT2}, {sCG}, 10
v_add_u32 {v(vT)}, {sT2}, {v(vT)}
""")
for e in range(8):
    E(f"global_load_ushort {v(vWP + e)}, {v(vT)}, {P_WPHI} offset:{(e&3)*32 + (e>>2)*256}")
srd(SRD_W, 6, 1572864); srd(SRD_CR, 22, 524288); srd(SRD_CI, 24, 524288); srd(SRD_WO, 10, 524288)
srd(SRD_WS, 36, 0x10000000); srd(SRD_OUT, 32, 4194304)
if OPT["tlb"]:
    E(f"""
    v_lshlrev_b32 {v(vT)}, 21, {v(vL)}
    v_and_b32 {v(vT)}, 0x600000, {v(vT)}
    s_lshl_b32 {sT2}, {sRT}, 17
    buffer_load_dword v254, {v(vT)}, {SRD_WS}, 0 offen offset:2048
    v_mov_b32 {v(vT)}, 0
    buffer_load_dword v253, {v(vT)}, {SRD_W}, {sWo[0]} offen
    buffer_load_dword v252, {v(vT)}, {SRD_CR}, 0 offen
    buffer_load_dword v251, {v(vT)}, {SRD_CI}, 0 offen
    buffer_load_dword v250, {v(vT)}, {SRD_WO}, 0 offen
    buffer_load_dword v249, {v(vT)}, {SRD_OUT}, {sT2} offen
    """)
E.setts(OPT["cold"] - 200)
E(f"""
s_lshl_b32 {sPW}, {sW}, 14
s_add_u32 {sPW}, {sPW}, {RB}
s_mov_b32 {sHM}, 0xffff0000
s_mov_b32 {sFFFF}, 0xffff
s_mov_b32 {sFF}, 0xff
s_mov_b32 s38, 0x3fb8aa3b
s_mov_b32 s39, 0x3fb8aa3b
s_cmp_ge_u32 {sW}, 1
s_cselect_b64 {sM1}, -1, 0
s_cmp_ge_u32 {sW}, 2
s_cselect_b64 {sM2}, -1, 0
s_cmp_ge_u32 {sW}, 3
s_cselect_b64 {sM3}, -1, 0
s_mov_b32 s12, 0
s_mov_b32 s13, -1
s_add_u32 {sT2}, {sCG}, {sCT}
s_and_b32 {sT2}, {sT2}, 3
s_lshl_b32 {sT0}, {sW}, 2
""")
E.unlock()
for c in range(4):
    E(f"s_xor_b32 {sT1}, {sT2}, {c}")
    E(f"s_or_b32 {sT1}, {sT1}, {sT0}")
    E(f"s_lshl_b32 {sCgW[c]}, {sT1}, 15")
E(f"""
s_and_b32 {sT1}, {sT2}, 2
s_or_b32 {sT1}, {sT1}, {sT0}
s_lshl_b32 {sT1}, {sT1}, 6
s_and_b32 {sT3}, {sW}, 1
s_lshl_b32 {sT3}, {sT3}, 15
s_or_b32 {sCgC[0]}, {sT1}, {sT3}
s_xor_b32 {sCgC[1]}, {sCgC[0]}, 32768
s_xor_b32 {sCgC[2]}, {sCgC[0]}, 128
s_xor_b32 {sCgC[3]}, {sCgC[1]}, 128
s_and_b32 {sT2}, {sT2}, 1
s_lshl_b32 {sT2}, {sT2}, 6
s_lshl_b32 {sT3}, {sCT}, 16
v_add_u32 {v(vC[0])}, {sT3}, {v(vC[0])}
v_xor_b32 {v(vC[1])}, 64, {v(vC[0])}
v_add_u32 {v(vC[1])}, 7168, {v(vC[1])}
v_add_u32 {v(vC[2])}, 14336, {v(vC[0])}
v_add_u32 {v(vC[3])}, 14336, {v(vC[1])}
v_bfe_u32 {v(vT)}, {v(vL)}, 1, 3
v_xor_b32 {v(vT)}, {v(vT)}, {v(vHI)}
v_lshlrev_b32 {v(vT)}, 4, {v(vT)}
v_lshl_or_b32 {v(vT)}, {v(vXR)}, 7, {v(vT)}
""")
for k in range(4):
    E(f"v_xor_b32 {v(vT2)}, {k*32}, {v(vT)}")
    E(f"v_add_u32 {v(vBf[k])}, {RB}, {v(vT2)}")
    E(f"v_add_u32 {v(vXf[k])}, {sRING}, {v(vT2)}")
    E(f"v_xor_b32 {v(vT2)}, {sT2}, {v(vT2)}")
    E(f"v_add_u32 {v(vCf[k])}, {sPW}, {v(vT2)}")
E(f"""
v_lshrrev_b32 {v(vT)}, 2, {v(vL)}
s_lshl_b32 {sT2}, {sW}, 4
v_add_u32 {v(vT)}, {sT2}, {v(vT)}
v_mul_u32_u24 {v(vWq)}, 3072, {v(vT)}
v_and_b32 {v(vT2)}, 3, {v(vL)}
s_lshl_b32 {sT2}, {sCG}, 6
v_lshl_add_u32 {v(vT2)}, {v(vT2)}, 4, {sT2}
v_add_u32 {v(vWq)}, {v(vWq)}, {v(vT2)}
v_bfe_u32 {v(vT)}, {v(vL)}, 2, 2
v_lshl_or_b32 {v(vT)}, {v(vHI)}, 3, {v(vT)}
v_lshlrev_b32 {v(vTRq)}, 6, {v(vT)}
v_bfe_u32 {v(vT2)}, {v(vL)}, 4, 1
v_lshl_or_b32 {v(vTRq)}, {v(vT2)}, 5, {v(vTRq)}
v_and_b32 {v(vT)}, 3, {v(vL)}
v_lshl_or_b32 {v(vTRq)}, {v(vT)}, 3, {v(vTRq)}
v_add_u32 {v(vTRkv)}, 32768, {v(vTRq)}
s_and_b32 {sT0}, {sW}, 1
v_xor_b32 {v(vT)}, {sT0}, {v(vT2)}
v_lshlrev_b32 {v(vT)}, 2, {v(vT)}
v_and_b32 {v(vT2)}, 7, {v(vL)}
v_xor_b32 {v(vT)}, {v(vT)}, {v(vT2)}
s_lshl_b32 {sT2}, {sCT}, 7
v_lshl_add_u32 {v(vT)}, {v(vT)}, 4, {sT2}
v_lshrrev_b32 {v(vT2)}, 3, {v(vL)}
v_lshl_add_u32 {v(vWO[0])}, {v(vT2)}, 10, {v(vT)}
v_add_u32 {v(vWO[1])}, 7168, {v(vWO[0])}
v_add_u32 {v(vWO[2])}, 14336, {v(vWO[0])}
v_add_u32 {v(vWO[3])}, 21504, {v(vWO[0])}
v_bfe_u32 {v(vT)}, {v(vL)}, 2, 2
v_lshl_or_b32 {v(vT)}, {v(vHI)}, 4, {v(vT)}
v_lshlrev_b32 {v(vT)}, 7, {v(vT)}
v_bfe_u32 {v(vT2)}, {v(vL)}, 3, 1
v_lshl_or_b32 {v(vT)}, {v(vT2)}, 6, {v(vT)}
v_and_b32 {v(vT2)}, 63, {v(vTRq)}
v_or_b32 {v(vT)}, {v(vT2)}, {v(vT)}
v_add_u32 {v(vWOf[0])}, {sPW}, {v(vT)}
v_xor_b32 {v(vT)}, 64, {v(vT)}
v_add_u32 {v(vWOf[1])}, {sPW}, {v(vT)}
""")
E(f"""
v_lshlrev_b32 {v(vXR)}, 3, {v(vXR)}
v_lshl_or_b32 {v(vEL)}, {v(vHI)}, 8, {v(vXR)}
v_add_u32 {v(vXR)}, {XCH}, {v(vXR)}
s_lshl_b32 {sT2}, {sW}, 8
v_add_u32 {v(vXW)}, {sT2}, {v(vXR)}
v_and_b32 {v(vT)}, 7, {v(vL)}
v_lshlrev_b32 {v(vT)}, 2, {v(vT)}
v_add_u32 {v(vFLA)}, {W_FH}, {v(vT)}
s_lshl_b32 {sT2}, {sCG}, 13
s_lshl_b32 {sT3}, {sRB}, 8
s_sub_u32 {sT2}, {sT2}, {sT3}
s_add_u32 {sEP}, {sT2}, {W_E + 15*256}
s_lshl_b32 {sT2}, {sCG}, 2
s_add_u32 {sT2}, {sT2}, {sW}
s_lshl_b32 {sKV}, {sT2}, 14
s_add_u32 {sKV}, {sKV}, {W_KVP}
s_lshl_b32 {sZP}, {sT2}, 10
s_add_u32 {sZP}, {sZP}, {W_ZP}
s_lshl_b32 {sT2}, {sRB}, 10
s_add_u32 {sKVP}, {sT2}, {sKV}
s_lshl_b32 {sT3}, {sRB}, 6
s_add_u32 {sZPP}, {sT3}, {sZP}
s_lshr_b32 {sT2}, {sRG}, 3
s_lshl_b32 {sT2}, {sT2}, 19
s_lshl_b32 {sT1}, {sCG}, 15
s_add_u32 {sT2}, {sT2}, {sT1}
s_and_b32 {sT3}, {sRG}, 7
s_lshl_b32 {sT3}, {sT3}, 12
s_add_u32 {sT2}, {sT2}, {sT3}
s_add_u32 {sHS}, {sT2}, {W_H}
s_lshr_b32 {sT2}, {sRG}, 4
s_lshl_b32 {sT2}, {sT2}, 19
s_add_u32 {sT2}, {sT2}, {sT1}
s_and_b32 {sT3}, {sRG}, 15
s_lshl_b32 {sT3}, {sT3}, 11
s_add_u32 {sT2}, {sT2}, {sT3}
s_add_u32 {sOS}, {sT2}, {W_O}
s_lshr_b32 {sFL}, {sRG}, 1
s_lshl_b32 {sFL}, {sFL}, 2
s_lshr_b32 {sT3}, {sCG}, 2
s_add_u32 {sFL}, {sFL}, {sT3}
s_lshl_b32 {sFL}, {sFL}, 7
s_and_b32 {sT3}, {sRG}, 1
s_lshl_b32 {sT3}, {sT3}, 4
s_add_u32 {sFL}, {sFL}, {sT3}
s_and_b32 {sT3}, {sCG}, 3
s_lshl_b32 {sT3}, {sT3}, 2
s_add_u32 {sFL}, {sFL}, {sT3}
s_lshl_b32 {sFP}, {sRT}, 2
s_add_u32 {sFP}, {sFP}, {sW}
s_lshl_b32 {sFP}, {sFP}, 7
s_lshr_b32 {sT1}, {sW}, 1
s_lshl_b32 {sT2}, {sRT}, 1
s_or_b32 {sRA0}, {sT2}, {sT1}
s_lshl_b32 {sT2}, {sRG}, 5
s_lshl_b32 {sT3}, {sCG}, 1
s_add_u32 {sT2}, {sT2}, {sT3}
s_lshl_b32 {sGP}, {sT2}, 10
s_add_u32 {sTAG}, {sTAG}, 1
v_mov_b32 {v(vTAG)}, {sTAG}
""")
stamp("addr")

t0, t1, t2, t3 = 164, 166, 168, 170
F = [Prog() for _ in range(8)]
F[0](f"""
v_lshlrev_b32 {v(vPR)}, 16, {v(vPR)}
v_lshlrev_b32 {v(vPI)}, 16, {v(vPI)}
v_lshlrev_b32 {v(vPD)}, 16, {v(vPD)}
v_mul_f32 {v(vPD)}, s38, {v(vPD)}
v_exp_f32 {v(vPD)}, {v(vPD)}
v_mul_f32 {v(t2)}, {v(vPR)}, {v(vPR)}
v_fma_f32 {v(t2)}, {v(vPI)}, {v(vPI)}, {v(t2)}
v_cvt_pk_bf16_f32 {v(vPD)}, {v(vPD)}, {v(vPD)}
v_and_b32 {v(vPD)}, {sHM}, {v(vPD)}
v_mul_f32 {v(t0)}, {v(vPD)}, {v(vPR)}
v_mul_f32 {v(t0+1)}, {v(vPD)}, {v(vPI)}
v_mul_f32 {v(t0)}, s38, {v(t0)}
v_mul_f32 {v(t0+1)}, 0.15915494, {v(t0+1)}
v_exp_f32 {v(t0)}, {v(t0)}
v_cos_f32 {v(t1)}, {v(t0+1)}
v_sin_f32 {v(t1+1)}, {v(t0+1)}
v_rcp_f32 {v(t3)}, {v(t2)}
v_mul_f32 {v(vLAM)}, {v(t0)}, {v(t1)}
v_mul_f32 {v(vLAM+1)}, {v(t0)}, {v(t1+1)}
v_add_f32 {v(t1)}, -1.0, {v(vLAM)}
v_mul_f32 {v(t2)}, {v(t1)}, {v(vPR)}
v_fma_f32 {v(t2)}, {v(vLAM+1)}, {v(vPI)}, {v(t2)}
v_mul_f32 {v(t2+1)}, {v(vLAM+1)}, {v(vPR)}
v_fma_f32 {v(t2+1)}, -{v(t1)}, {v(vPI)}, {v(t2+1)}
v_mul_f32 {v(vCOEF)}, {v(t2)}, {v(t3)}
v_mul_f32 {v(vCOEF+1)}, {v(t2+1)}, {v(t3)}
""")
csq(F[1], t0, vLAM); csq(F[1], t1, t0); csq(F[1], vL8, t1); csq(F[1], vL16p, vL8); csq(F[1], vL32, vL16p)
csq(F[1], t0, vL32); cmul(F[1], t1, t0, vL32)
csq(F[2], vMU, t0); csq(F[2], vMU2, vMU)
F[2](f"""
v_cndmask_b32 {v(t2)}, 1.0, {v(vL32)}, {sM1}
v_cndmask_b32 {v(t2+1)}, 0, {v(vL32+1)}, {sM1}
v_cndmask_b32 {v(t2)}, {v(t2)}, {v(t0)}, {sM2}
v_cndmask_b32 {v(t2+1)}, {v(t2+1)}, {v(t0+1)}, {sM2}
v_cndmask_b32 {v(t2)}, {v(t2)}, {v(t1)}, {sM3}
v_cndmask_b32 {v(t2+1)}, {v(t2+1)}, {v(t1+1)}, {sM3}
""")
cmul(F[2], t3, t2, vL16p)
F[2](f"v_cndmask_b32 {v(vALR0)}, {v(t2)}, {v(t3)}, {sHI}")
F[2](f"v_cndmask_b32 {v(vALI0)}, {v(t2+1)}, {v(t3+1)}, {sHI}")
F[2](f"""
v_mul_f32 {v(vALR0+1)}, {v(vALR0)}, {v(vL8)}
v_mul_f32 {v(vALI0+1)}, {v(vALR0)}, {v(vL8+1)}
v_fma_f32 {v(vALR0+1)}, -{v(vALI0)}, {v(vL8+1)}, {v(vALR0+1)}
v_fma_f32 {v(vALI0+1)}, {v(vALI0)}, {v(vL8)}, {v(vALI0+1)}
""")
F[3]("s_mov_b32 s100, 0xf0f0f0f0")
F[3]("s_mov_b32 s101, 0xf0f0f0f0")
for i in range(4):
    F[3](f"v_lshl_or_b32 {v(vA1+i)}, {v(vWP+2*i+1)}, 16, {v(vWP+2*i)}")
for i in range(4):
    F[3](f"v_cndmask_b32 {v(vA2+i)}, 0, {v(vA1+i)}, s[100:101]")
    F[3](f"v_cndmask_b32 {v(vA1+i)}, {v(vA1+i)}, 0, s[100:101]")
dump("lam", [v(vLAM), v(vLAM+1), v(vCOEF), v(vCOEF+1), v(vMU2), v(vMU2+1)], F[3])
gW, gP, gR = 108, 116, 124
gS0, gS1 = 128, 130
G1, G2 = F[OPT["glpos"] + 2], F[OPT["glpos"] + 3]
for i in range(4):
    G1(f"v_lshlrev_b32 {v(gW+2*i)}, 16, {v(vGW+i)}")
    G1(f"v_and_b32 {v(gW+2*i+1)}, {sHM}, {v(vGW+i)}")
for row, src, dst, G in ((0, vGX0, gS0, G1), (1, vGX1, gS1, G2)):
    for i in range(4):
        G(f"v_lshlrev_b32 {v(gP+2*i)}, 16, {v(src+i)}")
        G(f"v_and_b32 {v(gP+2*i+1)}, {sHM}, {v(src+i)}")
    for i in range(4):
        G(f"v_pk_mul_f32 {v(gP+2*i,2)}, {v(gP+2*i,2)}, {v(gW+2*i,2)}")
    for i in range(4):
        G(f"v_cvt_pk_bf16_f32 {v(gR+i)}, {v(gP+2*i)}, {v(gP+2*i+1)}")
    for i in range(4):
        G(f"v_lshlrev_b32 {v(gP+2*i)}, 16, {v(gR+i)}")
        G(f"v_and_b32 {v(gP+2*i+1)}, {sHM}, {v(gR+i)}")
    G(f"v_pk_add_f32 {v(gP,2)}, {v(gP,2)}, {v(gP+2,2)}")
    G(f"v_pk_add_f32 {v(gP+4,2)}, {v(gP+4,2)}, {v(gP+6,2)}")
    G(f"v_pk_add_f32 {v(gP,2)}, {v(gP,2)}, {v(gP+4,2)}")
    G(f"v_add_f32 {v(dst)}, {v(gP)}, {v(gP+1)}")
G3 = Prog()
G3(f"""
v_permlane32_swap_b32 {v(gS0)}, {v(gS1)}
v_add_f32 {v(gS0)}, {v(gS0)}, {v(gS1)}
v_mov_b32 {v(gS1)}, {v(gS0)}
s_lshr_b32 {sT2}, {sGP}, 8
v_permlane16_swap_b32 {v(gS0)}, {v(gS1)}
v_add_f32 {v(gS0)}, {v(gS0)}, {v(gS1)}
""")
for r in (8, 4, 2, 1):
    G3(f"v_add_f32_dpp {v(gS0)}, {v(gS0)}, {v(gS0)} row_ror:{r} row_mask:0xf bank_mask:0xf")
G3(f"""
v_cvt_pk_bf16_f32 {v(gS0)}, {v(gS0)}, {v(gS0)}
v_and_b32 {v(gS0)}, {sHM}, {v(gS0)}
v_mul_f32 {v(gS0)}, 0xbfb8aa3b, {v(gS0)}
v_exp_f32 {v(gS0)}, {v(gS0)}
v_lshlrev_b32 {v(gS1)}, 2, {v(vHI)}
v_add_f32 {v(gS0)}, 1.0, {v(gS0)}
v_rcp_f32 {v(gS0)}, {v(gS0)}
s_add_u32 {sT2}, {sT2}, {W_G}
v_cvt_pk_bf16_f32 {v(gS0)}, {v(gS0)}, {v(gS0)}
v_bfi_b32 {v(gS0)}, {sFFFF}, {v(vTAG)}, {v(gS0)}
""")
G3.lock()
G3(f"""
s_mov_b32 exec_lo, 1
s_mov_b32 exec_hi, 1
buffer_store_dword {v(gS0)}, {v(gS1)}, {SRD_WS}, {sT2} offen sc1
s_mov_b64 exec, -1
""")
G3.unlock()

vBB = [192, 224]
def u_reads(j):
    p = Prog()
    slot = j if j < 6 else j - 6
    for k in range(4):
        p(f"ds_read_b128 {a(aXF + 16*j + 4*k, 4)}, {v(vXf[k])} offset:{(slot & 3)*16384}")
        p(f"ds_read_b128 {v(vBB[j&1] + 8*k, 4)}, {v(vBf[k])} offset:{j*8192}")
        p(f"ds_read_b128 {v(vBB[j&1] + 8*k + 4, 4)}, {v(vBf[k])} offset:{j*8192 + 4096}")
    return p
def u_mm(j, ks):
    p = Prog()
    for k in ks:
        c_re = "0" if (j == 0 and k == 0) else v(vU_RE, 16)
        c_im = "0" if (j == 0 and k == 0) else v(vU_IM, 16)
        p(f"v_mfma_f32_32x32x16_bf16 {v(vU_RE,16)}, {a(aXF + 16*j + 4*k, 4)}, {v(vBB[j&1] + 8*k, 4)}, {c_re}")
        p(f"v_mfma_f32_32x32x16_bf16 {v(vU_IM,16)}, {a(aXF + 16*j + 4*k, 4)}, {v(vBB[j&1] + 8*k + 4, 4)}, {c_im}")
    return p
E.waitvm("xb0")
E("s_barrier")
stamp("xb0 landed")
E.extend(u_reads(0))
for j in range(8):
    E.mark(f"U chunk {j}")
    if j in (3, 5):
        for k in range(4): F[j](f"v_add_u32 {v(vXf[k])}, {65536 if j == 3 else -65536}, {v(vXf[k])}")
    E.extend(weave(u_mm(j, (0, 1)), F[j], every=1, per=4))
    if j < 7:
        E.waitvm(f"xb{j+1}")
        E("s_barrier")
        if j in (1, 3, 5): stamp(f"xb{j+1} landed")
        E.extend(weave(u_mm(j, (2, 3)), u_reads(j+1), every=1, per=3))
    else:
        E.extend(u_mm(j, (2, 3)))
    E.mark(f"xr{j}")
stamp("U done")
dump("U", [v(vU_RE+i) for i in range(32)])

tA, tB, tC, tD = 192, 194, 196, 198
for m in range(8):
    r, i = vU_RE + 2*m, vU_IM + 2*m
    E(f"v_pk_mul_f32 {v(tA+4*(m&1),2)}, {v(r,2)}, {v(vCOEF,2)} {HI2}")
    E(f"v_pk_mul_f32 {v(r,2)}, {v(r,2)}, {v(vCOEF,2)} {LO2}")
    E(f"v_pk_fma_f32 {v(r,2)}, {v(i,2)}, {v(vCOEF,2)}, {v(r,2)} {HI} {NEG1}")
    E(f"v_pk_fma_f32 {v(i,2)}, {v(i,2)}, {v(vCOEF,2)}, {v(tA+4*(m&1),2)} {LO}")
er, ei = vU_RE, vU_IM
pp = [(tA, tB), (tC, tD)]
for m in range(1, 8):
    nr, ni = pp[m & 1]
    E(f"v_pk_fma_f32 {v(nr,2)}, {v(er,2)}, {v(vLAM,2)}, {v(vU_RE+2*m,2)} {LO}")
    E(f"v_pk_fma_f32 {v(ni,2)}, {v(ei,2)}, {v(vLAM,2)}, {v(vU_IM+2*m,2)} {LO}")
    E(f"v_pk_fma_f32 {v(nr,2)}, {v(ei,2)}, {v(vLAM,2)}, {v(nr,2)} {HI} {NEG1}")
    E(f"v_pk_fma_f32 {v(ni,2)}, {v(er,2)}, {v(vLAM,2)}, {v(ni,2)} {HI}")
    er, ei = nr, ni
eA, e16, e16h, e32 = 200, 202, 204, 206
E(f"""
v_fma_f32 {v(e16)}, {v(vL8)}, {v(er)}, {v(er+1)}
v_fma_f32 {v(e16+1)}, {v(vL8)}, {v(ei)}, {v(ei+1)}
v_fma_f32 {v(e16)}, -{v(vL8+1)}, {v(ei)}, {v(e16)}
v_fma_f32 {v(e16+1)}, {v(vL8+1)}, {v(er)}, {v(e16+1)}
v_mov_b32 {v(eA)}, {v(er)}
v_mov_b32 {v(e16h)}, {v(e16)}
v_mov_b32 {v(e16h+1)}, {v(e16+1)}
v_mov_b32 {v(eA+1)}, {v(ei)}
v_permlane32_swap_b32 {v(e16)}, {v(e16h)}
v_permlane32_swap_b32 {v(e16+1)}, {v(e16h+1)}
""")
cmul_add(E, e32, e16, vL16p, e16h)
E(f"ds_write_b64 {v(vXW)}, {v(e32,2)}")
E.waitlg(None)
stamp("scan1")
E.waitvm("w0")
E("s_barrier")
E.mark("barA")
stamp("barA")
K = Prog()
eW = [208, 210, 212, 214]
for w in range(4):
    K(f"ds_read_b64 {v(eW[w],2)}, {v(vXR)} offset:{w*256}")
K(f"""
v_mov_b32 {v(vALR)}, {v(vALR0)}
v_mov_b32 {v(vALR+1)}, {v(vALR0+1)}
v_mov_b32 {v(vALI)}, {v(vALI0)}
v_mov_b32 {v(vALI+1)}, {v(vALI0+1)}
v_lshl_or_b32 {v(vT2)}, {v(vHI)}, 12, {v(vEL)}
v_and_b32 {v(vT2)}, 0x10ff, {v(vT2)}
""")
p2, p3, e128 = 216, 218, 220
cmul_add(K, p2, eW[0], vL32, eW[1])
cmul_add(K, p3, p2, vL32, eW[2])
cmul_add(K, e128, p3, vL32, eW[3])
K(f"""
v_cndmask_b32 {v(e128)}, {v(e128)}, 0, {sHI}
v_cndmask_b32 {v(e128+1)}, {v(e128+1)}, 0, {sHI}
v_bfi_b32 {v(e128)}, {sFF}, {v(vTAG)}, {v(e128)}
buffer_store_dwordx2 {v(e128,2)}, {v(vT2)}, {SRD_WS}, {sEP} offen sc1
""")
pw, pb = 222, 224
K(f"""
v_cndmask_b32 {v(pw)}, 0, {v(eW[0])}, {sM1}
v_cndmask_b32 {v(pw+1)}, 0, {v(eW[0]+1)}, {sM1}
v_cndmask_b32 {v(pw)}, {v(pw)}, {v(p2)}, {sM2}
v_cndmask_b32 {v(pw+1)}, {v(pw+1)}, {v(p2+1)}, {sM2}
v_cndmask_b32 {v(pw)}, {v(pw)}, {v(p3)}, {sM3}
v_cndmask_b32 {v(pw+1)}, {v(pw+1)}, {v(p3+1)}, {sM3}
""")
cmul_add(K, pb, pw, vL16p, e16)
K(f"v_cndmask_b32 {v(vBER)}, {v(pw)}, {v(pb)}, {sHI}")
K(f"v_cndmask_b32 {v(vBEI)}, {v(pw+1)}, {v(pb+1)}, {sHI}")
K(f"""
v_fma_f32 {v(vBER+1)}, {v(vL8)}, {v(vBER)}, {v(eA)}
v_fma_f32 {v(vBEI+1)}, {v(vL8)}, {v(vBEI)}, {v(eA+1)}
v_fma_f32 {v(vBER+1)}, -{v(vL8+1)}, {v(vBEI)}, {v(vBER+1)}
v_fma_f32 {v(vBEI+1)}, {v(vL8+1)}, {v(vBER)}, {v(vBEI+1)}
""")
K.extend(G3)
K(f"""
s_lshl_b32 {sT2}, {sW}, 13
s_add_u32 {sT2}, {sT2}, {S1}
v_mul_u32_u24 {v(vT)}, 80, {v(vL)}
v_add_u32 {v(vPhW)}, {sT2}, {v(vT)}
s_add_u32 {sT3}, {sT2}, 5120
v_add_u32 {v(vVW)}, {sT3}, {v(vL16)}
s_add_u32 {sT2}, {sT2}, {S2 - S1}
v_and_b32 {v(vT)}, 31, {v(vL)}
v_mul_u32_u24 {v(vT)}, 80, {v(vT)}
v_lshl_add_u32 {v(vT)}, {v(vHI)}, 5, {v(vT)}
v_add_u32 {v(vHW)}, {sT2}, {v(vT)}
v_bfe_u32 {v(vT)}, {v(vL)}, 2, 2
v_lshl_or_b32 {v(vT)}, {v(vHI)}, 3, {v(vT)}
v_mul_u32_u24 {v(vT)}, 80, {v(vT)}
v_and_b32 {v(vT2)}, 63, {v(vTRq)}
v_add3_u32 {v(vHR)}, {sT2}, {v(vT)}, {v(vT2)}
v_bfe_u32 {v(vT)}, {v(vL)}, 2, 3
v_lshl_or_b32 {v(vT)}, {v(vHI)}, 4, {v(vT)}
v_mul_u32_u24 {v(vT)}, 80, {v(vT)}
v_and_b32 {v(vT2)}, 3, {v(vL)}
v_lshl_add_u32 {v(vT)}, {v(vT2)}, 3, {v(vT)}
s_and_b32 {sT0}, {sW}, 1
s_lshr_b32 {sT1}, {sW}, 1
s_mul_i32 {sT2}, {sT0}, 2560
s_lshl_b32 {sT3}, {sT1}, 5
s_add_u32 {sT2}, {sT2}, {sT3}
s_add_u32 {sT2}, {sT2}, {S1}
v_add_u32 {v(vPhR)}, {sT2}, {v(vT)}
v_and_b32 {v(vT)}, 15, {v(vL)}
v_bfe_u32 {v(vT2)}, {v(vL)}, 4, 1
v_lshl_or_b32 {v(vT)}, {v(vT2)}, 5, {v(vT)}
v_lshlrev_b32 {v(vT)}, 4, {v(vT)}
v_lshl_or_b32 {v(vT)}, {v(vHI)}, 10, {v(vT)}
s_lshl_b32 {sT2}, {sT0}, 8
s_add_u32 {sT2}, {sT2}, {S1 + 5120}
v_add_u32 {v(vVR)}, {sT2}, {v(vT)}
s_mov_b32 s72, {sKV}
s_add_u32 s73, {sKV}, 4096
s_add_u32 s74, {sKV}, 8192
s_add_u32 s75, {sKV}, 12288
""")

def kv_reads(p, n):
    j, k = n >> 2, n & 3
    for m in range(2):
        for rd in range(2):
            off = (j >> 1)*16384 + k*4096 + (j & 1)*2048 + m*1024 + rd*256
            p(f"ds_read_b64_tr_b16 {v(vFR + (n&3)*8 + 4*m + 2*rd, 2)}, {v(vTRkv)} offset:{off}")
AH = 3
vEQ = 224
def e_loads(p):
    for k in range(8):
        p(f"buffer_load_dwordx2 {v(vEQ+2*k,2)}, {v(vEL)}, {SRD_WS}, {sEP} offen offset:{256 + 512*k} sc1")
KV = Prog()
for n in range(AH): kv_reads(KV, n)
for n in range(32):
    xf = a(aXF + 4*n, 4)
    fr = vFR + (n & 3)*8
    KV(f"v_mfma_f32_32x32x16_bf16 {v(vKT,16)}, {v(fr,4)}, {xf}, {'0' if n == 0 else v(vKT,16)}")
    nn = n + AH
    if nn < 32 and nn % 8 == 0:
        KV.waitvm(f"w{nn//8}")
        KV("s_barrier")
        if nn == 8: KV.mark("xchdone")
    KV(f"v_mfma_f32_32x32x16_bf16 {v(vVV,16)}, {xf}, {v(fr+4,4)}, {'0' if n == 0 else v(vVV,16)}")
    if nn < 32: kv_reads(KV, nn)
cnt = [0]
def kpred(c):
    if c.kind != "mfma": return False
    cnt[0] += 1
    return cnt[0] % 2 == 1
def weave_locked(mainp, side, pred, per):
    out = []; si = 0; S = side.ins
    for m in mainp.ins:
        out.append(m)
        if pred(m):
            k = per
            while k > 0 and si < len(S):
                if S[si].kind == "pseudo" and S[si].pseudo == "lock":
                    while not (S[si].kind == "pseudo" and S[si].pseudo == "unlock"):
                        out.append(S[si]); si += 1
                    out.append(S[si]); si += 1; k = 0
                else:
                    out.append(S[si])
                    if S[si].kind != "pseudo": k -= 1
                    si += 1
    out.extend(S[si:])
    p = Prog(); p.ins = out
    return p
E.extend(weave_locked(KV, K, kpred, 4))
e_loads(E)
dump("kT", [v(vKT+i) for i in range(16)])
dump("v", [v(vVV+i) for i in range(16)])
stamp("kv done")

def softmax(p, src, dst, ap, am, mn, mid=None):
    for i in range(8):
        p(f"v_cvt_pk_bf16_f32 {v(am+i)}, {v(src+2*i)}, {v(src+2*i+1)}")
    p(f"v_mfma_f32_32x32x16_bf16 {v(ap,16)}, {v(vA1,4)}, {v(am,4)}, 0")
    p(f"v_mfma_f32_32x32x16_bf16 {v(ap,16)}, {v(vA2,4)}, {v(am+4,4)}, {v(ap,16)}")
    if mid is not None: p.extend(mid)
    for i in range(8):
        p(f"v_cvt_pk_bf16_f32 {v(am+i)}, {v(ap+2*i)}, {v(ap+2*i+1)}")
    for i in range(8):
        p(f"v_lshlrev_b32 {v(src+2*i)}, 16, {v(am+i)}")
        p(f"v_and_b32 {v(src+2*i+1)}, {sHM}, {v(am+i)}")
    p(f"v_max3_f32 {v(mn)}, {v(src)}, {v(src+1)}, {v(src+2)}")
    p(f"v_min3_f32 {v(mn+1)}, {v(src)}, {v(src+1)}, {v(src+2)}")
    for i in range(3, 15, 2):
        p(f"v_max3_f32 {v(mn)}, {v(mn)}, {v(src+i)}, {v(src+i+1)}")
        p(f"v_min3_f32 {v(mn+1)}, {v(mn+1)}, {v(src+i)}, {v(src+i+1)}")
    p(f"v_max_f32 {v(mn)}, {v(mn)}, {v(src+15)}")
    p(f"v_min_f32 {v(mn+1)}, {v(mn+1)}, {v(src+15)}")
    p(f"v_pk_mul_f32 {v(mn,2)}, {v(mn,2)}, {sL2E} neg_lo:[1,0]")
    for i in range(8):
        p(f"v_pk_fma_f32 {v(ap+2*i,2)}, {v(src+2*i,2)}, {sL2E}, {v(mn,2)} op_sel:[0,0,0] op_sel_hi:[1,1,0]")
        p(f"v_pk_fma_f32 {v(am+2*i,2)}, {v(src+2*i,2)}, {sL2E}, {v(mn,2)} op_sel:[0,0,1] op_sel_hi:[1,1,1] neg_lo:[1,0,0] neg_hi:[1,0,0]")
    for i in range(16):
        p(f"v_exp_f32 {v(ap+i)}, {v(ap+i)}")
        p(f"v_exp_f32 {v(am+i)}, {v(am+i)}")
    for i in range(4):
        p(f"v_pk_add_f32 {v(src+2*i,2)}, {v(ap+4*i,2)}, {v(ap+4*i+2,2)}")
        p(f"v_pk_add_f32 {v(src+8+2*i,2)}, {v(am+4*i,2)}, {v(am+4*i+2,2)}")
    for b in (0, 8):
        p(f"v_pk_add_f32 {v(src+b,2)}, {v(src+b,2)}, {v(src+b+2,2)}")
        p(f"v_pk_add_f32 {v(src+b+4,2)}, {v(src+b+4,2)}, {v(src+b+6,2)}")
    for b in (0, 8):
        p(f"v_pk_add_f32 {v(src+b,2)}, {v(src+b,2)}, {v(src+b+4,2)}")
    p(f"v_add_f32 {v(mn)}, {v(src)}, {v(src+1)}")
    p(f"v_add_f32 {v(mn+1)}, {v(src+8)}, {v(src+9)}")
    p(f"v_rcp_f32 {v(mn)}, {v(mn)}")
    p(f"v_rcp_f32 {v(mn+1)}, {v(mn+1)}")
    for i in range(8):
        p(f"v_pk_mul_f32 {v(ap+2*i,2)}, {v(ap+2*i,2)}, {v(mn,2)} {LO2}")
        p(f"v_pk_mul_f32 {v(am+2*i,2)}, {v(am+2*i,2)}, {v(mn,2)} {HI2}")
    for i in range(8):
        p(f"v_cvt_pk_bf16_f32 {v(dst+i)}, {v(ap+2*i)}, {v(ap+2*i+1)}")
    for i in range(8):
        p(f"v_cvt_pk_bf16_f32 {v(dst+8+i)}, {v(am+2*i)}, {v(am+2*i+1)}")

vVP = vFR
vPHK = 152
mid = Prog()
for i in range(8):
    mid(f"v_cvt_pk_bf16_f32 {v(vVP+i)}, {v(vVV+2*i)}, {v(vVV+2*i+1)}")
mid(f"ds_write_b128 {v(vVW)}, {v(vVP,4)}")
mid(f"ds_write_b128 {v(vVW)}, {v(vVP+4,4)} offset:1024")
softmax(E, vKT, vPHK, 176, vQT, 168, mid)
dump("phik", [v(vPHK+i) for i in range(16)])
for q in range(4):
    E(f"ds_write_b128 {v(vPhW)}, {v(vPHK+4*q,4)} offset:{16*q}")
vKA, vKB, vONE, vKD, vZD = 96, 112, 172, 128, 132
for i in range(4):
    E(f"v_mov_b32 {v(vONE+i)}, 0x3f803f80")
E(f"v_and_b32 {v(vT)}, 0x30, {v(vL)}")
E.waitlg(None)
stamp("softmax k")
E.waitvm("wq")
E("s_barrier")
for sw in range(4):
    for rd in range(2):
        E(f"ds_read_b64_tr_b16 {v(vKA + 4*sw + 2*rd, 2)}, {v(vPhR)} offset:{sw*8192 + rd*640}")
    E(f"ds_read_b128 {v(vKB + 4*sw, 4)}, {v(vVR)} offset:{sw*8192}")
def q_reads(p, n):
    j, k = n >> 2, n & 3
    for rd in range(2):
        off = (j >> 2)*16384 + k*4096 + (j & 3)*1024 + rd*256
        p(f"ds_read_b64_tr_b16 {v(vFR + (n%7)*4 + 2*rd, 2)}, {v(vTRq)} offset:{off}")
AHQ = 5
for n in range(AHQ): q_reads(E, n)
for sw in range(4):
    E(f"v_mfma_f32_16x16x32_bf16 {v(vKD,4)}, {v(vKA+4*sw,4)}, {v(vKB+4*sw,4)}, {'0' if sw == 0 else v(vKD,4)}")
    E(f"v_mfma_f32_16x16x32_bf16 {v(vZD,4)}, {v(vKA+4*sw,4)}, {v(vONE,4)}, {'0' if sw == 0 else v(vZD,4)}")
vQT2 = 176
Q = Prog()
for n in range(32):
    Q(f"v_mfma_f32_32x32x16_bf16 {v(vQT2,16)}, {v(vFR + (n%7)*4,4)}, {a(aXF + 4*n, 4)}, {'0' if n == 0 else v(vQT2,16)}")
    if n + AHQ < 32: q_reads(Q, n + AHQ)
    if n == 1:
        Q(f"""
        v_bfi_b32 {v(vKD)}, {sFF}, {v(vTAG)}, {v(vKD)}
        v_bfi_b32 {v(vZD)}, {sFF}, {v(vTAG)}, {v(vZD)}
        buffer_store_dwordx4 {v(vKD,4)}, {v(vL16)}, {SRD_WS}, {sKVP} offen sc1
        """)
        Q.lock()
        Q(f"""
        s_mov_b32 exec_lo, 0x10001
        s_mov_b32 exec_hi, 0x10001
        buffer_store_dwordx4 {v(vZD,4)}, {v(vT)}, {SRD_WS}, {sZPP} offen sc1
        s_mov_b64 exec, -1
        """)
        Q.unlock()
        Q.mark("kvpub")
vTW, vTZ, vTZ2, vTN, vTD, vOA = 8, 9, 20, 21, 0, 34
QF = Prog()
QF(f"""
s_and_b32 {sT0}, {sW}, 1
s_lshr_b32 {sT1}, {sW}, 1
s_mul_i32 {sT2}, {sT0}, 1280
s_lshl_b32 {sT3}, {sT1}, 5
s_add_u32 {sT2}, {sT2}, {sT3}
s_add_u32 {sT2}, {sT2}, {TAB}
v_and_b32 {v(vTZ2)}, 15, {v(vL)}
v_mul_u32_u24 {v(vTW)}, 80, {v(vTZ2)}
v_lshrrev_b32 {v(vT2)}, 4, {v(vL)}
v_lshl_add_u32 {v(vTW)}, {v(vT2)}, 3, {v(vTW)}
v_add_u32 {v(vTW)}, {sT2}, {v(vTW)}
s_mul_i32 {sT2}, {sT0}, 80
s_add_u32 {sT2}, {sT2}, {sT3}
s_add_u32 {sT2}, {sT2}, {TAB + 32*80}
v_and_b32 {v(vTN)}, 3, {v(vL)}
v_lshlrev_b32 {v(vTZ)}, 3, {v(vTN)}
v_bfe_u32 {v(vT2)}, {v(vL)}, 4, 1
v_lshl_or_b32 {v(vTZ)}, {v(vT2)}, 2, {v(vTZ)}
v_lshl_or_b32 {v(vTZ)}, {v(vHI)}, 1, {v(vTZ)}
v_add_u32 {v(vTZ)}, {sT2}, {v(vTZ)}
v_lshlrev_b32 {v(vTZ2)}, 2, {v(vTZ2)}
v_add_u32 {v(vTZ2)}, {TAB + 34*80}, {v(vTZ2)}
v_bfe_u32 {v(vOA)}, {v(vL)}, 3, 2
v_lshl_add_u32 {v(vTN)}, {v(vOA)}, 2, {v(vTN)}
v_lshl_add_u32 {v(vTN)}, {v(vHI)}, 4, {v(vTN)}
v_mul_u32_u24 {v(vTN)}, 80, {v(vTN)}
v_add_u32 {v(vTN)}, {TAB}, {v(vTN)}
v_mul_u32_u24 {v(vTD)}, 80, {v(vHI)}
v_add_u32 {v(vTD)}, {TAB + 32*80}, {v(vTD)}
v_mov_b32 {v(vT2)}, {TAB + 34*80}
s_mov_b32 s76, 0xf0f0f0f0
s_mov_b32 s77, 0x0f0f0f0f
v_cndmask_b32 {v(vTN)}, {v(vTN)}, {v(vT2)}, s[76:77]
v_cndmask_b32 {v(vTD)}, {v(vTD)}, {v(vT2)}, s[76:77]
v_bfe_u32 {v(vT2)}, {v(vL)}, 1, 1
v_lshl_or_b32 {v(vOA)}, {v(vOA)}, 1, {v(vT2)}
v_and_b32 {v(vT2)}, 1, {v(vL)}
v_lshl_or_b32 {v(vOA)}, {v(vT2)}, 3, {v(vOA)}
v_bfe_u32 {v(vT2)}, {v(vL)}, 2, 1
v_lshl_or_b32 {v(vOA)}, {v(vT2)}, 4, {v(vOA)}
v_lshl_or_b32 {v(vOA)}, {v(vHI)}, 5, {v(vOA)}
v_lshlrev_b32 {v(vOA)}, 4, {v(vOA)}
""")
vXD, vDK = 192, 200
vOUT = 11
QF(f"""
v_and_b32 {v(vT)}, 31, {v(vL)}
s_lshl_b32 {sT2}, {sCT}, 7
s_lshl_b32 {sT3}, {sT0}, 6
s_add_u32 {sT2}, {sT2}, {sT3}
v_lshl_add_u32 {v(vT2)}, {v(vHI)}, 3, {sT2}
s_lshl_b32 {sT3}, {sRA0}, 5
v_add_u32 {v(vT)}, {sT3}, {v(vT)}
v_lshl_add_u32 {v(vOUT)}, {v(vT)}, 10, {v(vT2)}
""")
for q in range(4):
    QF(f"buffer_load_dwordx2 {v(vXD+2*q,2)}, {v(vOUT)}, {SRD_X}, 0 offen offset:{16*q}")
    QF.ins[-1].lines = 8
for q in range(4):
    QF(f"global_load_dwordx2 {v(vDK+2*q,2)}, {v(vT2)}, {P_DSK} offset:{16*q}")
    QF.ins[-1].lines = 1
QF(f"v_lshlrev_b32 {v(vOUT)}, 1, {v(vOUT)}")
cq = [0]
def qpred(c):
    if c.kind != "mfma": return False
    cq[0] += 1
    return cq[0] > 3
E.extend(weave(Q, QF, pred=qpred, per=2))
dump("qT", [v(vQT2+i) for i in range(16)])
stamp("q done")
E.mark("gather_ok")

def e_check(p):
    p(f"v_xor_b32 {v(vT)}, {v(vTAG)}, {v(vEQ)}")
    for k in range(1, 8):
        p(f"v_bitop3_b32 {v(vT)}, {v(vEQ+2*k)}, {v(vTAG)}, {v(vT)} bitop3:0xbe")
    p(f"v_and_b32 {v(vT)}, {sFF}, {v(vT)}")
    p(f"v_cmp_ne_u32 vcc, 0, {v(vT)}")
spin("e", e_loads, e_check)
hq = [240, 242]
cur = vEQ + 14
for k in range(6, -1, -1):
    cmul_add(E, vEQ + 2*k, cur, vMU2, vEQ + 2*k)
    cur = vEQ + 2*k
E(f"""
v_mov_b32 {v(hq[0])}, {v(cur)}
v_mov_b32 {v(hq[0]+1)}, {v(cur+1)}
v_permlane32_swap_b32 {v(cur)}, {v(hq[0])}
v_permlane32_swap_b32 {v(cur+1)}, {v(hq[0]+1)}
""")
cmul_add(E, cur, hq[0], vMU, cur)
E(f"""
v_pk_fma_f32 {v(vBER,2)}, {v(vALR,2)}, {v(cur,2)}, {v(vBER,2)} {LO}
v_pk_fma_f32 {v(vBEI,2)}, {v(vALI,2)}, {v(cur,2)}, {v(vBEI,2)} {LO}
v_pk_fma_f32 {v(vBER,2)}, {v(vALI,2)}, {v(cur,2)}, {v(vBER,2)} {HI} {NEG1}
v_pk_fma_f32 {v(vBEI,2)}, {v(vALR,2)}, {v(cur,2)}, {v(vBEI,2)} {HI}
""")
hr, hi_ = vBER, vBEI
for m in range(8):
    r, i = vU_RE + 2*m, vU_IM + 2*m
    E(f"v_pk_fma_f32 {v(r,2)}, {v(hr,2)}, {v(vLAM,2)}, {v(r,2)} {LO}")
    E(f"v_pk_fma_f32 {v(i,2)}, {v(hi_,2)}, {v(vLAM,2)}, {v(i,2)} {LO}")
    E(f"v_pk_fma_f32 {v(r,2)}, {v(hi_,2)}, {v(vLAM,2)}, {v(r,2)} {HI} {NEG1}")
    E(f"v_pk_fma_f32 {v(i,2)}, {v(hr,2)}, {v(vLAM,2)}, {v(i,2)} {HI}")
    hr, hi_ = r, i
dump("h", [v(vU_RE+i) for i in range(32)])
vHP = 224
for par in range(2):
    for i in range(4):
        E(f"v_cvt_pk_bf16_f32 {v(vHP + 4*par + i)}, {v(vU_RE + 4*i + par)}, {v(vU_RE + 4*i + 2 + par)}")
E(f"ds_write_b128 {v(vHW)}, {v(vHP,4)}")
E(f"ds_write_b128 {v(vHW)}, {v(vHP+4,4)} offset:16")
for par in range(2):
    for i in range(4):
        E(f"v_cvt_pk_bf16_f32 {v(vHP + 8 + 4*par + i)}, -{v(vU_IM + 4*i + par)}, -{v(vU_IM + 4*i + 2 + par)}")
E(f"ds_write_b128 {v(vHW)}, {v(vHP+8,4)} offset:2560")
E(f"ds_write_b128 {v(vHW)}, {v(vHP+12,4)} offset:2576")
vHF = 240
for k in range(4):
    for rd in range(2):
        E(f"ds_read_b64_tr_b16 {v(vHF + 4*k + 2*rd, 2)}, {v(vHR)} offset:{(16*k + 4*rd)*80}")
vPQ = 224
mid = Prog()
for k in range(4):
    mid(f"buffer_store_dwordx4 {v(vHF+4*k,4)}, {v(vL16)}, {SRD_WS}, {sHS} offen offset:{k*1024} sc1", tok="hst")
stamp("scan2", mid)
def flag_store(p, base, tok):
    p.waitvm(tok)
    p.lock()
    p(f"""
    s_mov_b64 exec, 1
    v_mov_b32 {v(vT)}, {base}
    buffer_store_dword {v(vTAG)}, {v(vT)}, {SRD_WS}, {sFL} offen sc1
    s_mov_b64 exec, -1
    """)
    p.unlock()
SQ = Prog()
softmax(SQ, vQT2, vPQ, vU_RE, vU_IM, 164, mid)
cut = len(SQ.ins) - 40
fl = Prog(); flag_store(fl, W_FH, "hst")
E.extend(SQ.ins[:cut]); E.extend(fl); E.extend(SQ.ins[cut:])
dump("phiq", [v(vPQ+i) for i in range(16)])
stamp("softmax q")
tX, tDk = 208, 176
for i in range(8):
    E(f"v_lshlrev_b32 {v(tX+2*i)}, 16, {v(vXD+i)}")
    E(f"v_and_b32 {v(tX+2*i+1)}, {sHM}, {v(vXD+i)}")
    E(f"v_lshlrev_b32 {v(tDk+2*i)}, 16, {v(vDK+i)}")
    E(f"v_and_b32 {v(tDk+2*i+1)}, {sHM}, {v(vDK+i)}")
for i in range(8):
    E(f"v_pk_mul_f32 {v(tX+2*i,2)}, {v(tX+2*i,2)}, {v(tDk+2*i,2)}")
for i in range(8):
    E(f"v_cvt_pk_bf16_f32 {v(tDk+i)}, {v(tX+2*i)}, {v(tX+2*i+1)}")
for i in range(8):
    E(f"v_lshlrev_b32 {v(vACC+2*i)}, 16, {v(tDk+i)}")
    E(f"v_and_b32 {v(vACC+2*i+1)}, {sHM}, {v(tDk+i)}")
for i in range(8):
    E(f"v_pk_mul_f32 {v(vACC+2*i,2)}, {v(vACC+2*i,2)}, 0.5 op_sel_hi:[1,0]")
E(f"""
s_lshr_b32 {sT2}, {sRA0}, 3
s_lshl_b32 {sT2}, {sT2}, 19
s_and_b32 {sT3}, {sRA0}, 7
s_lshl_b32 {sT3}, {sT3}, 12
s_add_u32 {sT2}, {sT2}, {sT3}
s_add_u32 {sT2}, {sT2}, {W_H}
v_add_u32 {v(vAH[0])}, {sT2}, {v(vL16)}
v_xor_b32 {v(vAH[1])}, 4096, {v(vAH[0])}
s_lshr_b32 {sT2}, {sRA0}, 4
s_lshl_b32 {sT2}, {sT2}, 19
s_and_b32 {sT3}, {sRA0}, 15
s_lshl_b32 {sT3}, {sT3}, 11
s_add_u32 {sT2}, {sT2}, {sT3}
s_add_u32 {sT2}, {sT2}, {W_O}
v_add_u32 {v(vAO[0])}, {sT2}, {v(vL16)}
v_xor_b32 {v(vAO[1])}, 2048, {v(vAO[0])}
""")

vFLG = 22
def g_check(p):
    p(f"v_xor_b32 {v(vT)}, {v(vTAG)}, {v(vGZ)}")
    for r in range(16):
        p(f"v_bitop3_b32 {v(vT)}, {v(vGA+4*r)}, {v(vTAG)}, {v(vT)} bitop3:0xbe")
    p(f"v_and_b32 {v(vT)}, {sFF}, {v(vT)}")
    p(f"v_cmp_ne_u32 vcc, 0, {v(vT)}")
E.drain("ga16")
spin("kv", gather_loads, g_check)
stamp("gather ok")
st = 32
while st >= 4:
    for b in range(0, st, 4):
        for h in range(2):
            E(f"v_pk_add_f32 {v(vGA+b+2*h,2)}, {v(vGA+b+2*h,2)}, {v(vGA+b+st+2*h,2)}")
    st //= 2
E(f"""
v_permlane32_swap_b32 {v(vGZ)}, {v(vGZ+1)}
v_permlane32_swap_b32 {v(vGZ+2)}, {v(vGZ+3)}
v_cvt_pk_bf16_f32 {v(vGA)}, {v(vGA)}, {v(vGA+1)}
v_cvt_pk_bf16_f32 {v(vGA+1)}, {v(vGA+2)}, {v(vGA+3)}
v_add_f32 {v(vGZ)}, {v(vGZ)}, {v(vGZ+1)}
v_add_f32 {v(vGZ+2)}, {v(vGZ+2)}, {v(vGZ+3)}
ds_write_b64 {v(vTW)}, {v(vGA,2)}
v_mov_b32 {v(vGZ+1)}, 0
v_permlane16_swap_b32 {v(vGZ)}, {v(vGZ+2)}
v_add_f32 {v(vGZ)}, {v(vGZ)}, {v(vGZ+2)}
ds_write_b32 {v(vTZ2)}, {v(vGZ+1)}
v_add_f32_dpp {v(vGZ)}, {v(vGZ)}, {v(vGZ)} row_ror:8 row_mask:0xf bank_mask:0xf
v_add_f32_dpp {v(vGZ)}, {v(vGZ)}, {v(vGZ)} row_ror:4 row_mask:0xf bank_mask:0xf
v_cvt_pk_bf16_f32 {v(vGZ)}, {v(vGZ)}, {v(vGZ)}
ds_write_b16 {v(vTZ)}, {v(vGZ)}
""")
def fh_load(p): p(f"buffer_load_dword {v(vFLG)}, {v(vFLA)}, {SRD_WS}, {sFP} offen sc1")
def fo_load(p): p(f"buffer_load_dword {v(vFLG)}, {v(vFLA)}, {SRD_WS}, {sFP} offen offset:0 sc1")
fh_load(E)
E.waitlg(None)
E("s_barrier")
vTA, vTB, vNUM, vDEN = 104, 120, 136, 152
for s_ in range(4):
    E(f"ds_read_b128 {v(vTB+4*s_,4)}, {v(vTD)} offset:{16*s_}")
for s_ in range(4):
    E(f"ds_read_b128 {v(vTA+4*s_,4)}, {v(vTN)} offset:{16*s_}")
E(f"""
v_and_b32 {v(vT)}, 31, {v(vL)}
s_lshl_b32 {sT2}, {sRA0}, 7
s_add_u32 {sT2}, {sT2}, {W_G}
v_lshl_add_u32 {v(vGL[0])}, {v(vT)}, 2, {sT2}
v_xor_b32 {v(vGL[1])}, 128, {v(vGL[0])}
""")
def gg_load(p):
    for ra in range(2): p(f"buffer_load_dword {v(vGv[ra])}, {v(vGL[ra])}, {SRD_WS}, 0 offen sc1")
gg_load(E)
for s_ in range(4):
    E(f"v_mfma_f32_32x32x16_bf16 {v(vDEN,16)}, {v(vTB+4*s_,4)}, {v(vPQ+4*s_,4)}, {'0' if s_ == 0 else v(vDEN,16)}")
for s_ in range(4):
    E(f"v_mfma_f32_32x32x16_bf16 {v(vNUM,16)}, {v(vTA+4*s_,4)}, {v(vPQ+4*s_,4)}, {'0' if s_ == 0 else v(vNUM,16)}")
def fl_check(p): p(f"v_cmp_ne_u32 vcc, {sTAG}, {v(vFLG)}")
E.drainaux()
E.drain("b2_11_3")
spin("fh", fh_load, fl_check)
E.mark("fh_ok")
E(f"""
v_add_u32 {v(vFLA)}, {W_FO - W_FH}, {v(vFLA)}
v_cvt_pk_bf16_f32 {v(vDEN)}, {v(vDEN)}, {v(vDEN)}
v_and_b32 {v(vDEN)}, {sHM}, {v(vDEN)}
v_add_f32 {v(vDEN)}, 0x358637bd, {v(vDEN)}
v_cvt_pk_bf16_f32 {v(vDEN)}, {v(vDEN)}, {v(vDEN)}
v_and_b32 {v(vDEN)}, {sHM}, {v(vDEN)}
v_rcp_f32 {v(vDEN)}, {v(vDEN)}
""")
E.lock()
for i in range(8):
    E(f"v_cvt_pk_bf16_f32 {v(vTA+i)}, {v(vNUM+2*i)}, {v(vNUM+2*i+1)}")
for i in range(8):
    E(f"v_lshlrev_b32 {v(vNUM+2*i)}, 16, {v(vTA+i)}")
    E(f"v_and_b32 {v(vNUM+2*i+1)}, {sHM}, {v(vTA+i)}")
for i in range(8):
    E(f"v_pk_mul_f32 {v(vNUM+2*i,2)}, {v(vNUM+2*i,2)}, {v(vDEN,2)} {LO2}")
for i in range(8):
    E(f"v_cvt_pk_bf16_f32 {v(vTA+i)}, {v(vNUM+2*i)}, {v(vNUM+2*i+1)}")
for b in range(2):
    E(f"buffer_store_dwordx4 {v(vTA+4*b,4)}, {v(vOA)}, {SRD_WS}, {sOS} offen offset:{b*1024} sc1", tok="ost")
E.unlock()
dump("o", [v(vTA+i) for i in range(8)])
stamp("o stored")
for s_ in range(8, 12):
    E.waitvm(f"b2_{s_}")
    b2_read(E, s_)
def gg_check(p):
    p(f"v_xor_b32 {v(vT)}, {v(vTAG)}, {v(vGv[0])}")
    p(f"v_bitop3_b32 {v(vT)}, {v(vGv[1])}, {v(vTAG)}, {v(vT)} bitop3:0xbe")
    p(f"v_and_b32 {v(vT)}, {sFFFF}, {v(vT)}")
    p(f"v_cmp_ne_u32 vcc, 0, {v(vT)}")
spin("g", gg_load, gg_check)
for ra in range(2):
    g_, r_ = vGv[ra], vRT[ra]
    E(f"""
    v_and_b32 {v(g_)}, {sHM}, {v(g_)}
    v_sub_f32 {v(r_)}, 1.0, {v(g_)}
    v_max_f32 {v(g_)}, 0x0da24260, {v(g_)}
    v_cvt_pk_bf16_f32 {v(r_)}, {v(r_)}, {v(r_)}
    v_rcp_f32 {v(r_+1)}, {v(g_)}
    v_and_b32 {v(r_)}, {sHM}, {v(r_)}
    v_add_f32 {v(r_)}, {v(r_)}, {v(r_)}
    v_mul_f32 {v(r_)}, {v(r_)}, {v(r_+1)}
    """)
flag_store(E, W_FO, "ost")
stamp("fo flag")

def acc(ra, nb): return v(vACC + (ra*2+nb)*16, 16)
def hm(p, c, k, ra, nb):
    first = (c == 0 and k == 0 and (ra, nb) != (0, 0))
    p(f"v_mfma_f32_32x32x16_bf16 {acc(ra,nb)}, {a(aCF + ((c*4+k)*2+nb)*4, 4)}, {a(aXF + ((c*4+k)*2+ra)*4, 4)}, {'0' if first else acc(ra,nb)}")
def need(nm): E.drain(nm)
for c in range(3):
    for k in range(4):
        for ra in range(2):
            need(f"h{c}{k}{ra}")
            for nb in range(2): hm(E, c, k, ra, nb)
    if c == 1:
        E.drain("h331")
        fo_load(E)
vRW = [23, 24, 25]; vRR = 10
RA = Prog()
for a_ in range(1, 4):
    RA(f"s_xor_b32 {sT2}, {sW}, {a_}")
    RA(f"s_mul_i32 {sT2}, {sT2}, 12288")
    RA(f"s_add_u32 {sT2}, {sT2}, {(a_-1)*4096}")
    RA(f"v_add_u32 {v(vRW[a_-1])}, {sT2}, {v(vL16)}")
RA(f"s_mul_i32 {sT2}, {sW}, 12288")
RA(f"v_add_u32 {v(vRR)}, {sT2}, {v(vL16)}")
spin("fo", fo_load, fl_check)
E.mark("fo_ok")
stamp("h012")
def scale(ra, nb):
    p = Prog()
    for i in range(16):
        r = vACC + (ra*2+nb)*16 + i
        p(f"v_mul_f32 {v(r)}, {v(vRT[ra])}, {v(r)}")
    return p
def om(p, c, b, ra, nb):
    p(f"v_mfma_f32_32x32x16_bf16 {acc(ra,nb)}, {v(vWOFR + ((c*2+b)*2+nb)*4, 4)}, {v(vOF + ((c*2+b)*2+ra)*4, 4)}, {acc(ra,nb)}")
accs = [(0, 0), (0, 1), (1, 0), (1, 1)]
for n_, (ra, nb) in enumerate(accs):
    p = Prog()
    for k in range(4): hm(p, 3, k, ra, nb)
    if n_ < 2: E.extend(p)
    else: E.extend(weave(p, scale(*accs[n_-2]), pred=ismf, per=4))
stamp("h done")
for g_ in range(4):
    p = Prog()
    for c, b, ra in o_order[2*g_:2*g_+2]:
        p.drain(f"o{c}{b}{ra}")
        for nb in range(2): om(p, c, b, ra, nb)
    if g_ < 2: E.extend(weave(p, scale(*accs[2+g_]), pred=ismf, per=4))
    else: E.extend(p)
def wr(a_):
    p = Prog()
    for q in range(4): p(f"ds_write_b128 {v(vRW[a_-1])}, {v(vACC + 16*a_ + 4*q, 4)} offset:{q*1024}")
    return p
E.drain("o311")
tail = [(1, 0), (1, 1), (0, 1), (0, 0)]
for n_, (ra, nb) in enumerate(tail):
    if n_ == 2: E.drain("o310")
    p = Prog()
    for c in (2, 3):
        for b in range(2): om(p, c, b, ra, nb)
    if n_ == 0: E.extend(p)
    elif n_ == 1: E.extend(weave(p, RA, pred=ismf, per=4))
    else:
        pa = tail[n_-2]
        E.extend(weave(p, wr(pa[0]*2 + pa[1]), pred=ismf, per=1))
E.extend(wr(1))
stamp("o done")
E.waitlg(None)
E("s_barrier")
for a_ in range(3):
    for q in range(4):
        E(f"ds_read_b128 {v(128 + 16*a_ + 4*q, 4)}, {v(vRR)} offset:{a_*4096 + q*1024}")
for q in range(4):
    for a_ in range(3):
        for i in range(2):
            E(f"v_pk_add_f32 {v(vACC+4*q+2*i,2)}, {v(vACC+4*q+2*i,2)}, {v(128+16*a_+4*q+2*i,2)}")
    for i in range(2):
        E(f"v_pk_mul_f32 {v(vACC+4*q+2*i,2)}, {v(vACC+4*q+2*i,2)}, {v(vGv[0],2)} {LO2}")
    E(f"buffer_store_dwordx4 {v(vACC+4*q,4)}, {v(vOUT)}, {SRD_OUT}, 0 offen offset:{32*q}" + ["", " sc1", " nt", " sc0 sc1"][OPT["outsc"]])
if STAMPS:
    E.waitvm(None)
    stamp("end")
    E(f"""
    s_lshl_b32 {sT2}, s2, 11
    s_lshl_b32 {sT3}, {sW}, 9
    s_add_u32 {sT2}, {sT2}, {sT3}
    s_add_u32 {sT2}, {sT2}, {W_ST}
    v_lshlrev_b32 {v(vT)}, 3, {v(vL)}
    v_mov_b32 {v(100)}, {v(vDBG)}
    v_mov_b32 {v(101)}, 0
    buffer_store_dwordx2 {v(100,2)}, {v(vT)}, {SRD_WS}, {sT2} offen
    """)
E(f"""
s_or_b32 {sT2}, s2, {sW}
s_cmp_lg_u32 {sT2}, 0
s_cbranch_scc1 L_end
v_mov_b32 {v(vT)}, {W_EPOCH}
s_mov_b64 exec, 1
buffer_store_dword {v(vTAG)}, {v(vT)}, {SRD_WS}, 0 offen sc1
L_end:
s_endpgm
""")

log = []
woven = stream_weave(main, items, aux, thresh=OPT["thresh"], thresh_wait=OPT["tw"], lat=OPT["lat"], log=log, margin=OPT["margin"], cyc_line=OPT["cl"])
if OPT["log"]:
    for nm, t, ts, it in log: print(f"{nm:14s} t={t:6d} ({t/2200:.2f}us) ts={ts:6d} next={items[it].name if it < len(items) else '-'}")
stats = {}
fine = None
if OPT["fine"]:
    a_, b_ = OPT["fine"].replace("_", " ").split(":")
    fine = dict(start=a_, end=b_, names=[], clk="s_memrealtime" if STAMPS == 1 else "s_memtime")
body = finalize(woven.ins, stats, fine) + ["L_code_end:"] + finalize(slow.ins)
if fine: stnames += [""] * (32 - len(stnames)) + fine["names"]
hdr = open("gated_mix__linear_kernel_hedgehog__ssm_conv_s5__prompt.s.ref").read().split("\n")
head = [l for l in hdr if l.startswith(";") and "@launch" not in l and "Override" not in l and "grid=ceil" not in l]
out = head + ["; @launch grid=(256,1,1) block=(256,1,1) lds=163840",
  '.amdgcn_target "amdgcn-amd-amdhsa--gfx950"', ".text", f".globl {KN}", ".p2align 8", f".type {KN},@function", f"{KN}:"]
out += body
out += ['.section .rodata,"a"', ".p2align 6", f".amdhsa_kernel {KN}", "  .amdhsa_next_free_vgpr 512", "  .amdhsa_next_free_sgpr 102",
  "  .amdhsa_accum_offset 256", "  .amdhsa_group_segment_fixed_size 0", "  .amdhsa_kernarg_size 136", "  .amdhsa_user_sgpr_count 2",
  "  .amdhsa_user_sgpr_kernarg_segment_ptr 1", "  .amdhsa_system_sgpr_workgroup_id_x 1", ".end_amdhsa_kernel"]
import json
if STAMPS: out += ["; STNAMES " + json.dumps(stnames), "; OPTS " + " ".join(sys.argv[2:])]
open(sys.argv[1], "w").write("\n".join(out) + "\n")
json.dump(dbg_names, open(sys.argv[1] + ".dbg.json", "w"))
json.dump(stnames, open(sys.argv[1] + ".st.json", "w"))
print("lines", len(body), "nops", stats["nops"], "stamps", nst[0], "dbg slots", dbg_slot[0])
```

```python
import re

TRANS = ("v_exp_f32", "v_log_f32", "v_rcp_f32", "v_rsq_f32", "v_sqrt_f32", "v_sin_f32", "v_cos_f32")

def split_ops(s):
    out, depth, cur = [], 0, ""
    for ch in s:
        if ch in "[(":
            depth += 1
        if ch in "])":
            depth -= 1
        if ch == "," and depth == 0:
            out.append(cur.strip()); cur = ""
        else:
            cur += ch
    if cur.strip():
        out.append(cur.strip())
    return out

REG_RE = re.compile(r"^(?:-|\|)?(?:abs\()?-?([vas])(?:(\d+)|\[(\d+):(\d+)\])\)?\|?$")

def regs_of(op):
    op = op.strip()
    if op in ("vcc", "exec", "m0", "scc"):
        return [(op, 0)]
    if op in ("vcc_lo", "vcc_hi"):
        return [("vcc", 0)]
    if op in ("exec_lo", "exec_hi"):
        return [("exec", 0)]
    m = REG_RE.match(op)
    if not m:
        return []
    t = m.group(1)
    if m.group(2) is not None:
        return [(t, int(m.group(2)))]
    return [(t, i) for i in range(int(m.group(3)), int(m.group(4)) + 1)]

class I:
    def __init__(self, text, tok=None, pseudo=None, arg=None):
        self.text = text; self.tok = tok; self.pseudo = pseudo; self.arg = arg
        self.reads = set(); self.writes = set()
        self.kind = "pseudo" if pseudo else None
        self.dpp = self.perml = self.rdlane = self.opseld = self.wide_store = self.ldsdma = self.dot = False
        self.passes = 0
        self.A = self.B = self.C = self.D = frozenset()
        self.data = frozenset()
        if not pseudo:
            self.parse()

    def parse(self):
        t = self.text.split(";")[0].strip()
        if t.endswith(":"):
            self.kind = "label"; return
        if t.startswith("."):
            self.kind = "directive"; return
        parts = t.split(None, 1)
        op = parts[0]; self.op = op
        rest = parts[1] if len(parts) > 1 else ""
        ops = split_ops(rest)
        mods = ""
        if ops:
            lp = ops[-1].split(None, 1)
            if len(lp) > 1:
                ops[-1] = lp[0]; mods = lp[1]
        self.mods = mods
        R = [regs_of(o) for o in ops]
        def rd(idx):
            for i in idx:
                if i < len(R): self.reads.update(R[i])
        def wr(idx):
            for i in idx:
                if i < len(R): self.writes.update(R[i])
        n = len(ops)
        if op.startswith("v_mfma"):
            self.kind = "mfma"
            self.passes = 8 if "32x32x16" in op else 4 if "16x16x32" in op else None
            assert self.passes, op
            self.D = frozenset(R[0]); self.A = frozenset(R[1]); self.B = frozenset(R[2]); self.C = frozenset(R[3])
            wr([0]); rd([1, 2, 3])
        elif op.startswith("v_"):
            self.kind = "trans" if op.replace("_e32", "").replace("_e64", "") in TRANS else "valu"
            if "permlane" in op and "swap" in op:
                self.perml = True; wr([0, 1]); rd([0, 1])
            elif op.startswith(("v_add_co", "v_sub_co", "v_addc_co", "v_subb_co", "v_subrev_co")):
                wr([0, 1]); rd(range(2, n))
            else:
                wr([0]); rd(range(1, n))
            if op.startswith(("v_fmac", "v_dot2c", "v_pk_fmac", "v_writelane")):
                rd([0])
            if op.startswith(("v_readfirstlane", "v_readlane")):
                self.rdlane = True
            if op.startswith("v_dot"):
                self.dot = True
            if re.search(r"row_|quad_perm|wave_|bcast", mods):
                self.dpp = True; rd([0])
            if "dst_sel" in mods and "dst_sel:DWORD" not in mods:
                self.opseld = True; rd([0])
        elif op.startswith("ds_"):
            self.kind = "ds"
            if op.startswith("ds_read") or op.startswith("ds_bpermute") or op.startswith("ds_swizzle"):
                wr([0]); rd(range(1, n))
            else:
                rd(range(n))
        elif op.startswith("buffer_") or op.startswith("global_"):
            self.kind = "vmem"
            allm = " " + mods + " "
            if op.startswith("buffer_load") and " lds " in allm:
                self.ldsdma = True; rd(range(n)); self.reads.add(("m0", 0))
            elif "_load" in op:
                wr([0]); rd(range(1, n))
                if "d16" in op: self.d16 = True
            elif "_store" in op:
                rd(range(n))
                di = 0 if op.startswith("buffer_") else 1
                self.data = frozenset(R[di])
                self.wide_store = op.endswith(("x3", "x4"))
            else:
                raise ValueError(op)
        elif op.startswith(("s_load", "s_memrealtime", "s_memtime")):
            self.kind = "smem"; wr([0]); rd(range(1, n))
        elif op in ("s_waitcnt", "s_barrier", "s_endpgm", "s_setprio", "s_nop") or op.startswith(("s_branch", "s_cbranch")):
            self.kind = "sopp"
        elif op.startswith("s_"):
            self.kind = "salu"
            if op.startswith(("s_cmp", "s_bitcmp")):
                rd(range(n))
            else:
                wr([0]); rd(range(1, n))
        else:
            raise ValueError("unknown op " + op)

def isv(rs):
    return {r for r in rs if r[0] in "va"}
def iss(rs):
    return {r for r in rs if r[0] in ("s", "vcc")}

def hazard(p, c):
    need = 0
    pk, ck = p.kind, c.kind
    pval = pk in ("valu", "trans"); cval = ck in ("valu", "trans")
    if pval:
        wv = isv(p.writes); ws = iss(p.writes)
        if ck == "mfma" and wv & c.reads: need = max(need, 2)
        if cval:
            if ws & c.reads: need = max(need, 4 if c.op.startswith(("v_readlane", "v_writelane")) else 2)
            if wv & c.reads:
                if c.dpp or c.perml: need = max(need, 2)
                if c.rdlane: need = max(need, 1)
                if pk == "trans" and ck != "trans": need = max(need, 1)
            if p.opseld and wv & (c.reads | c.writes): need = max(need, 1)
            if p.dot and wv & (c.reads | c.writes):
                if not (c.dot and c.op == p.op): need = max(need, 3)
                else: need = max(need, 3)
        if ck == "vmem" and ws & c.reads: need = max(need, 5)
        if p.dot and ck in ("vmem", "ds", "mfma") and wv & (c.reads | c.writes): need = max(need, 3)
    if pk == "mfma":
        big, ovl, war = (12, 10, 7) if p.passes == 8 else (8, 6, 3)
        if ck == "mfma":
            if p.D & c.C and not (p.D == c.C and p.passes == c.passes): need = max(need, ovl)
            if p.D & (c.A | c.B): need = max(need, big)
            if p.D & c.D and not (p.D == c.C and p.passes == c.passes): need = max(need, big)
        elif ck in ("valu", "trans", "vmem", "ds"):
            if p.D & (c.reads | c.writes): need = max(need, big)
            if cval and p.C & c.writes: need = max(need, war)
            if ck in ("vmem", "ds") and p.C & c.writes: need = max(need, war)
    if pk == "salu" and ("m0", 0) in p.writes and c.ldsdma: need = max(need, 1)
    if pk == "vmem" and p.wide_store and p.data & c.writes:
        need = max(need, 2 if cval else 1)
    return need

class Prog:
    def __init__(self):
        self.ins = []
    def __call__(self, text, tok=None):
        for line in text.strip().split("\n"):
            line = line.strip()
            if not line or line.startswith(";"): continue
            self.ins.append(I(line, tok=tok))
        return self
    def waitvm(self, tok):
        self.ins.append(I("", pseudo="waitvm", arg=tok))
    def waitlg(self, tok):
        self.ins.append(I("", pseudo="waitlg", arg=tok))
    def mark(self, name):
        self.ins.append(I("", pseudo="mark", arg=name))
    def extend(self, other):
        self.ins.extend(other.ins if isinstance(other, Prog) else other)

def weave(main, side, every=1, start=0, pred=None, per=1):
    out = []; si = 0; cnt = 0
    side = side.ins if isinstance(side, Prog) else side
    main = main.ins if isinstance(main, Prog) else main
    for m in main:
        out.append(m)
        if pred is None or pred(m):
            cnt += 1
            if cnt > start and (cnt - start) % every == 0:
                k = per
                while k > 0 and si < len(side):
                    out.append(side[si])
                    if side[si].kind != "pseudo": k -= 1
                    si += 1
    out.extend(side[si:])
    p = Prog(); p.ins = out
    return p

def finalize(ins, stats=None, fine=None, lgk=0):
    out = []
    fine_on = False; fine_k = 32
    cyc = 0
    def fstamp(tag):
        nonlocal fine_k, lg_done, smem_out, st
        if not fine_on or fine_k >= 64: return
        if fine.get("skip", 0) > 0: fine["skip"] -= 1; return
        out.append("    " + fine["clk"] + " s[100:101]"); out.append("    s_waitcnt lgkmcnt(0)")
        out.append(f"    v_writelane_b32 v63, s100, {fine_k}")
        fine["names"].append(f"{tag} e{cyc - fine.get('last', cyc)}"); fine["last"] = cyc; fine_k += 1
        lg_done = lg_seq; smem_out = False; pend_sm.clear(); st += 3
    hist = []
    st = 0
    vm_seq = 0; vm_done = 0; lg_seq = 0; lg_done = 0
    smem_out = False
    pend_vm = {}; pend_lg = {}; pend_sm = set()
    vm_tok = {}; lg_tok = {}
    nnop = 0
    lg_at = {}
    def emit_wait(vm_t, lg_t, lg0):
        nonlocal vm_done, lg_done, smem_out, st
        parts = []
        if lgk and lg_t > lg_done:
            while lg_t < lg_seq and lg_at[lg_t + 1] + lgk <= cyc: lg_t += 1
        fs = False
        if vm_t > vm_done:
            fstamp(f"pre L{len(out)}"); fs = True
            n = min(vm_seq - vm_t, 63); parts.append(f"vmcnt({n})"); vm_done = vm_seq - n
        if lg0 or lg_t > lg_done:
            if lg0 or smem_out:
                n = 0; smem_out = False; pend_sm.clear()
            else:
                n = min(lg_seq - lg_t, 15)
            parts.append(f"lgkmcnt({n})"); lg_done = lg_seq - n
        if parts:
            out.append("    s_waitcnt " + " ".join(parts)); st += 1
            if fs: fstamp(f"vm{n} #{vm_t}")
    for c in ins:
        if c.kind == "pseudo":
            if c.pseudo == "waitvm":
                t = vm_seq if c.arg is None else vm_tok[c.arg]
                emit_wait(t, 0, False)
            elif c.pseudo == "waitlg":
                if c.arg is None:
                    if lg_seq > lg_done or smem_out: emit_wait(0, lg_seq, True)
                else:
                    emit_wait(0, lg_tok[c.arg], False)
            elif c.pseudo == "mark":
                out.append(f"    ; ---- {c.arg}")
                if fine and c.arg == fine["start"]: fine_on = True
                if fine and c.arg == fine["end"]: fine_on = False
            continue
        if c.kind in ("label", "directive"):
            out.append(c.text); continue
        vm_t = 0; lg_t = 0; lg0 = False
        for r in c.reads | c.writes:
            if r in pend_vm:
                same = c.kind == "vmem" and r in c.writes and r not in c.reads
                if not same: vm_t = max(vm_t, pend_vm[r])
            if r in pend_lg:
                same = c.kind == "ds" and r in c.writes and r not in c.reads
                if not same: lg_t = max(lg_t, pend_lg[r])
            if r in pend_sm: lg0 = True
        if getattr(c, "ghost", False): assert vm_t <= vm_done and lg_t <= lg_done and not lg0, c.text
        emit_wait(vm_t, lg_t, lg0)
        need = 0
        for p, pst in hist:
            d = max(st - pst - 1, 0)
            h = hazard(p, c)
            if h > d: need = max(need, h - d)
        if need:
            assert not getattr(c, "ghost", False), c.text
            nnop += need
            out.append(f"    s_nop {need-1}"); st += need
        if c.text.startswith("s_barrier"): fstamp("pre bar")
        fv = fine and fine.get("vm") and c.kind == "vmem" and not getattr(c, "ghost", False)
        if fv and fine["vm"] == 2:
            fstamp("prev")
            if c.ldsdma: out.append("    s_nop 0")
        out.append("    " + c.text)
        if fv: fstamp("V " + c.op[7:12] + " " + c.text.split(",")[-2].strip()[2:4] + ("L" if c.ldsdma else ""))
        if c.text.startswith("s_barrier"): fstamp("bar")
        if c.text.startswith("s_waitcnt"):
            m = re.search(r"vmcnt\((\d+)\)", c.text)
            if m: vm_done = max(vm_done, vm_seq - int(m.group(1)))
            m = re.search(r"lgkmcnt\((\d+)\)", c.text)
            if m and int(m.group(1)) == 0:
                lg_done = lg_seq; smem_out = False; pend_sm.clear()
        hist.append((c, st))
        if getattr(c, "ghost", False):
            continue
        if c.text.startswith("s_nop"):
            st += int(c.text.split()[1], 0) + 1
        else:
            st += 1
        hist = [(p, s) for p, s in hist if st - s <= 21]
        cyc += 8 if c.kind in ("mfma", "trans") else (16 if c.op.endswith("b128") else 8) if c.kind == "ds" else 4
        if c.kind == "vmem":
            vm_seq += 1
            for r in c.writes: pend_vm[r] = vm_seq
            if c.tok: vm_tok[c.tok] = vm_seq
        elif c.kind == "ds":
            lg_seq += 1; lg_at[lg_seq] = cyc
            for r in c.writes: pend_lg[r] = lg_seq
            if c.tok: lg_tok[c.tok] = lg_seq
        elif c.kind == "smem":
            smem_out = True
            pend_sm.update(c.writes)
        pend_vm = {r: s for r, s in pend_vm.items() if s > vm_done}
        pend_lg = {r: s for r, s in pend_lg.items() if s > lg_done}
    if stats is not None:
        stats["nops"] = nnop
    return out

class Item:
    def __init__(self, prog, lines, after=None, name=None, lat=None):
        self.ins = prog.ins if isinstance(prog, Prog) else prog
        self.lines = lines; self.after = after; self.name = name; self.lat = lat

def vm_lines(c):
    if getattr(c, "lines", None) is not None: return c.lines
    op = c.op
    if op.endswith("x4"): return 8
    if op.endswith("x2"): return 4
    return 2

class Aux:
    def __init__(self, tok, prog, rtok, done, after=None):
        self.tok = tok; self.ins = prog.ins; self.rtok = rtok; self.done = done; self.after = after

def stream_weave(main, items, aux=(), thresh=448, thresh_wait=600, cyc_line=8.0, lat=450, t0=0, log=None, margin=64):
    out = []; t = t0; ts = 0.0; marks = set(); locked = 0
    it = 0; last_mfma = -100; mf_len = 32
    tokdone = {}; regdone = {}
    tok_item = {}
    for k, im in enumerate(items):
        for c in im.ins:
            if c.tok: tok_item[c.tok] = k
    ax = 0; timers = []
    pending = []
    def issue(c, ilat=None):
        nonlocal t, ts, last_mfma, mf_len
        out.append(c)
        if c.kind == "pseudo" or c.kind in ("label", "directive"): return
        for r in c.reads | c.writes:
            if r in regdone:
                t = max(t, regdone.pop(r))
        if c.kind == "mfma":
            t = max(t, last_mfma + mf_len); last_mfma = t; mf_len = 32 if c.passes == 8 else 16
            t += 8
        elif c.kind == "trans": t += 8
        elif c.kind == "vmem":
            L = vm_lines(c)
            ts = max(ts, t) + L * cyc_line
            d = max(ts, t + (ilat or lat))
            if c.tok: tokdone[c.tok] = d
            for r in c.writes: regdone[r] = d
            t += 4
        elif c.kind == "sopp" and c.text.startswith("s_nop"):
            t += 4 * (int(c.text.split()[1], 0) + 1)
        elif c.kind == "sopp" and c.text.startswith("s_barrier"): t += 24
        else: t += 4
    def flush_pending():
        nonlocal pending
        for c, il in pending: issue(c, il)
        pending = []
    def put_item(split):
        nonlocal it, pending
        im = items[it]; it += 1
        ins = list(im.ins)
        body = [c for c in ins if c.kind == "vmem"]
        for c in body: c.lines = im.lines / len(body)
        if split and ins[0].kind == "salu" and ("m0", 0) in ins[0].writes:
            issue(ins[0]); pending = [(c, im.lat) for c in ins[1:]]
        else:
            for c in ins: issue(c, im.lat)
    def put_aux():
        nonlocal ax, t
        A = aux[ax]; ax += 1
        while it <= tok_item[A.tok]:
            service_timers(True)
            assert items[it].after is None or items[it].after in marks, (A.tok, items[it].name, items[it].after)
            put_item(False)
        out.append(I("", pseudo="waitvm", arg=A.tok))
        t = max(t, tokdone[A.tok])
        for c in A.ins: issue(c)
        timers.append((t + 96, A))
        if log is not None: log.append(("aux " + A.tok, int(t), int(ts), it))
    def service_timers(force=False):
        while timers and (force or timers[0][0] <= t):
            _, A = timers.pop(0)
            out.append(I("", pseudo="waitlg", arg=A.rtok)); marks.add(A.done)
    def aux_ok():
        if ax >= len(aux) or locked: return False
        A = aux[ax]
        return (A.after is None or A.after in marks) and A.tok in tokdone and tokdone[A.tok] + margin <= t
    def ok(th):
        return it < len(items) and not locked and (items[it].after is None or items[it].after in marks) and ts - t < th
    for c in main.ins if isinstance(main, Prog) else main:
        if c.kind == "pseudo":
            if c.pseudo == "mark":
                marks.add(c.arg)
                if log is not None: log.append((c.arg, int(t), int(ts), it))
            elif c.pseudo == "lock":
                flush_pending(); locked += 1; continue
            elif c.pseudo == "unlock":
                locked -= 1; continue
            elif c.pseudo == "setts":
                ts = max(ts, t + c.arg); continue
            elif c.pseudo == "sett":
                t = max(t, c.arg); continue
            elif c.pseudo == "drainaux":
                flush_pending()
                while ax < len(aux): put_aux()
                service_timers(True)
                continue
            elif c.pseudo == "drain":
                flush_pending()
                k = [i for i, im in enumerate(items) if im.name == c.arg][-1]
                while it <= k:
                    while not (items[it].after is None or items[it].after in marks) and (timers or ax < len(aux)):
                        if timers: service_timers(True)
                        else: put_aux()
                    assert items[it].after is None or items[it].after in marks, (items[it].name, items[it].after)
                    put_item(False)
                continue
            elif c.pseudo == "waitvm":
                flush_pending()
                if c.arg is not None and c.arg in tok_item:
                    while it <= tok_item[c.arg]:
                        assert items[it].after is None or items[it].after in marks, (c.arg, items[it].name, items[it].after)
                        put_item(False)
                if c.arg is not None and tokdone.get(c.arg, 0) > t + 32:
                    while ok(thresh_wait): put_item(False)
                out.append(c)
                if c.arg is None: t = max(t, ts + 100)
                else: t = max(t, tokdone.get(c.arg, 0))
                continue
            out.append(c); continue
        isbr = c.kind == "sopp" and "branch" in c.text
        if c.kind == "label" or isbr:
            flush_pending()
        stall = max([regdone.get(r, 0) for r in c.reads | c.writes] + [0])
        if stall > t + 32:
            flush_pending()
            while ok(thresh_wait): put_item(False)
        issue(c)
        flush_pending()
        if c.kind in ("label", "directive") or (c.kind == "sopp" and "branch" in c.text): continue
        if not locked: service_timers()
        if aux_ok(): put_aux()
        elif ok(thresh): put_item(True)
    flush_pending()
    assert it == len(items), ("items left", [im.name for im in items[it:]])
    if log is not None: log.append(("end", int(t), int(ts), it))
    p = Prog(); p.ins = out
    return p

def _lock(self): self.ins.append(I("", pseudo="lock"))
def _unlock(self): self.ins.append(I("", pseudo="unlock"))
def _drain(self, name): self.ins.append(I("", pseudo="drain", arg=name))
Prog.lock = _lock; Prog.unlock = _unlock; Prog.drain = _drain

def _setts(self, x): self.ins.append(I("", pseudo="setts", arg=x))
def _sett(self, x): self.ins.append(I("", pseudo="sett", arg=x))
Prog.setts = _setts; Prog.sett = _sett

def _drainaux(self): self.ins.append(I("", pseudo="drainaux"))
Prog.drainaux = _drainaux

def stream_weave2(main, items, aux=(), lat=600, stlat=1000, cyc_line=8.0, taq=2, log=None, margin=64, dscost=6, capf=1.0, ahead=100000, qcap=4, sthol=0, ds128=19, ds64=10):
    out = []; t = 0; marks = set(); locked = 0
    ta = 0.0; dprev = 0.0; fl = []
    dvm = [0.0]
    it = 0; last_mfma = -100; mf_len = 32
    tokdone = {}; regdone = {}
    tok_item = {}
    stall = [0, 0]
    for k, im in enumerate(items):
        for c in im.ins:
            if c.tok: tok_item[c.tok] = k
    ax = 0; timers = []
    pending = []
    LCAP = 64 * capf; QCAP = qcap
    def plan(L, at):
        s0 = max(at, ta)
        live = sorted(x for x in fl if x[0] > s0)
        tot = sum(x[1] for x in live)
        for d_, l_, _ in live:
            if tot + min(L, LCAP) <= LCAP + 1e-9: break
            s0 = d_; tot -= l_
        return s0
    def waiting(at): return sum(1 for x in fl if x[2] > at)
    def issue(c, ilat=None):
        nonlocal t, ta, dprev, last_mfma, mf_len, fl
        out.append(c)
        if c.kind == "pseudo" or c.kind in ("label", "directive"): return
        for r in (c.reads if c.kind == "vmem" else c.reads | c.writes):
            if r in regdone:
                d = regdone.pop(r)
                if d > t: stall[1] += d - t; t = d
        if c.kind == "mfma":
            t = max(t, last_mfma + mf_len); last_mfma = t; mf_len = 32 if c.passes == 8 else 16
            t += 8
        elif c.kind == "trans" or c.perml: t += 8
        elif c.kind == "ds": t += (ds128 if c.op.endswith("b128") else ds64) if c.op.startswith("ds_read") else 40 if c.op.endswith("b128") else 8
        elif c.kind == "vmem" and getattr(c, "nomodel", False): pass
        elif c.kind == "vmem":
            L = vm_lines(c)
            st = "_store" in c.op
            t0 = t
            fl = [x for x in fl if x[0] > t]
            while waiting(t) >= QCAP: t = min(x[2] for x in fl if x[2] > t)
            stall[0] += t - t0
            s0 = plan(0 if st else L, t)
            ta = s0 + L * cyc_line * (0.5 if L <= 8 else 0.25)
            il = getattr(c, "lat", None) or ilat or (stlat if st else lat)
            d = max(dprev + (0 if st else L * cyc_line), s0 + il)
            if sthol or not st: dprev = d
            fl.append((d, 0 if st else L, s0))
            d = max(d, dvm[0]); dvm[0] = d
            if c.tok: tokdone[c.tok] = d
            if not getattr(c, "ghost", False):
                for r in c.writes: regdone[r] = d
            t += 4
        elif c.kind == "sopp" and c.text.startswith("s_nop"):
            t += 4 * (int(c.text.split()[1], 0) + 1)
        elif c.kind == "sopp" and c.text.startswith("s_barrier"): t += 24
        else: t += 4
    def flush_pending():
        nonlocal pending
        for c, il in pending: issue(c, il)
        pending = []
    def prep(im):
        body = [c for c in im.ins if c.kind == "vmem"]
        for c in body: c.lines = im.lines / len(body)
        return body
    def put_item(split):
        nonlocal it, pending
        im = items[it]; it += 1
        ins = list(im.ins); prep(im)
        if log is not None: log.append(("  it " + im.name, int(t), int(dprev), it))
        if split and ins[0].kind == "salu" and ("m0", 0) in ins[0].writes:
            issue(ins[0]); pending = [(c, im.lat) for c in ins[1:]]
        else:
            for c in ins: issue(c, im.lat)
    def put_aux():
        nonlocal ax, t
        A = aux[ax]; ax += 1
        while it <= tok_item[A.tok]:
            service_timers(True)
            assert items[it].after is None or items[it].after in marks, (A.tok, items[it].name, items[it].after)
            put_item(False)
        out.append(I("", pseudo="waitvm", arg=A.tok))
        t = max(t, tokdone[A.tok])
        if A.phase_split:
            A.left = list(A.ins); spread.append(A)
        else:
            for c in A.ins: issue(c)
            timers.append((t + 96, A))
        if log is not None: log.append(("aux " + A.tok, int(t), int(dprev), it))
    spread = []
    def service_spread(n):
        while spread and n > 0:
            A = spread[0]
            issue(A.left.pop(0)); n -= 1
            if not A.left:
                spread.pop(0); timers.append((t + 96, A))
    def service_timers(force=False):
        if force: service_spread(1000)
        while timers and (force or timers[0][0] <= t):
            _, A = timers.pop(0)
            out.append(I("", pseudo="waitlg", arg=A.rtok)); marks.add(A.done)
    def aux_ok():
        if ax >= len(aux) or locked or spread: return False
        A = aux[ax]
        return (A.after is None or A.after in marks) and A.tok in tokdone and tokdone[A.tok] + margin <= t
    def ok():
        if it >= len(items) or locked: return False
        im = items[it]
        if not (im.after is None or im.after in marks): return False
        body = prep(im)
        n = sum(1 for c in body if not getattr(c, "nomodel", False))
        return waiting(t) + n <= taq and dprev - t < ahead
    for c in main.ins if isinstance(main, Prog) else main:
        if c.kind == "pseudo":
            if c.pseudo == "mark":
                marks.add(c.arg)
                if log is not None: log.append((c.arg, int(t), int(dprev), it))
            elif c.pseudo == "lock":
                flush_pending(); locked += 1; continue
            elif c.pseudo == "unlock":
                locked -= 1; continue
            elif c.pseudo == "setts": continue
            elif c.pseudo == "sett":
                t = max(t, c.arg); continue
            elif c.pseudo == "drainaux":
                flush_pending()
                n = len(aux) if c.arg is None else c.arg
                while ax < n: service_spread(1000); put_aux()
                service_timers(True)
                continue
            elif c.pseudo == "drain":
                flush_pending()
                k = [i for i, im in enumerate(items) if im.name == c.arg][-1]
                while it <= k:
                    while not (items[it].after is None or items[it].after in marks) and (timers or spread or ax < len(aux)):
                        if timers or spread: service_timers(True)
                        else: put_aux()
                    assert items[it].after is None or items[it].after in marks, (items[it].name, items[it].after)
                    put_item(False)
                continue
            elif c.pseudo == "waitvm":
                flush_pending()
                if c.arg is not None and c.arg in tok_item:
                    while it <= tok_item[c.arg]:
                        assert items[it].after is None or items[it].after in marks, (c.arg, items[it].name, items[it].after)
                        put_item(False)
                while ok(): put_item(False)
                out.append(c)
                d = dvm[0] if c.arg is None else tokdone.get(c.arg, 0)
                if d > t: stall[1] += d - t; t = d
                continue
            out.append(c); continue
        isbr = c.kind == "sopp" and "branch" in c.text
        if c.kind == "label" or isbr:
            flush_pending()
        need = max([regdone.get(r, 0) for r in c.reads | c.writes] + [0])
        if need > t + 32:
            flush_pending()
            while ok(): put_item(False)
        issue(c)
        flush_pending()
        if c.kind in ("label", "directive") or (c.kind == "sopp" and "branch" in c.text): continue
        if not locked:
            service_timers()
            if c.kind == "mfma" or not spread or not spread[0].mf_only: service_spread(spread[0].per if spread else 0)
        if aux_ok(): put_aux()
        elif ok(): put_item(True)
    flush_pending()
    assert it == len(items), ("items left", [im.name for im in items[it:]])
    if log is not None: log.append((f"end stall_issue={int(stall[0])} stall_data={int(stall[1])}", int(t), int(dprev), it))
    p = Prog(); p.ins = out
    return p
Aux.phase_split = False; Aux.per = 1; Aux.mf_only = False
def _drainaux2(self, n=None): self.ins.append(I("", pseudo="drainaux", arg=n))
Prog.drainaux = _drainaux2
```

```python
import sys
sys.path.insert(0, "dev")
from asmlib import Prog, weave, finalize, I, Item, Aux, stream_weave2

OPT = dict(dbg=0, stamps=0, spin=4096, pf=1, outsc=0, early=10, thresh=448, tw=600, lat=500, cold=2000, wl=16, tlb=1,
           glpos=3, margin=64, log=0, cl=8, rot=0, fine='', nt=0,
           wo1=2, wo2=2, cold2=1500, lm=900, stlat=900, taq=2, pfg=0, pfm=1, pflat=1100, p0=1, p1=3, p2=5, p3=7, capf=100, fhst=22, fold=14, fost=28, fogap=12, fochk=56, hpf=0, al=1, epos=24, osent=1, old=40, upf=0, upos=0, ulat=1500, sentpos=1, gpos=16, eaft=1, latc=1300, latc2=600, latw=1000, lgk=100, amargin=300, sthol=1, wpf=0, wpos=1, gfirst=1, crot=0, wopf=0, pro=1, wqpf=0, latw0=500, fvm=0, fskip=0, tl=1, xdpos=20, xdper=4)
for a in sys.argv[2:]:
    k, v = a.split("="); assert k in OPT, k; OPT[k] = v if k == "fine" else int(v, 0)
NT = lambda b: ' nt' if OPT['nt'] >> b & 1 else ''
DBG = OPT["dbg"]; STAMPS = OPT["stamps"]
KN = "gated_mix__linear_kernel_hedgehog__ssm_conv_s5__prompt_kernel"

RB = 98304; S1 = 32768; S2 = 65536; TAB = S2 + 5120; XCH = RB
W_EPOCH = 0; W_G = 0x1000; W_E = 0x4000; W_FH = 0x24000; W_FO = 0x28000; W_KVP = 0x30000; W_ZP = 0x130000
W_H = 0x200000; W_O = 0x600000; W_DBG = 0x1000000; W_ST = 0x900000
P_WPHI = "s[8:9]"; P_LRE = "s[14:15]"; P_LIM = "s[16:17]"; P_LDT = "s[26:27]"; P_DSK = "s[28:29]"; P_GW = "s[30:31]"
SRD_X, SRD_W, SRD_B, SRD_CR, SRD_CI, SRD_WO, SRD_WS, SRD_OUT = [f"s[{i}:{i+3}]" for i in range(40, 72, 4)]
sXo = [f"s{72+j}" for j in range(8)]; sWo = [f"s{80+j}" for j in range(8)]
sRB, sCG, sW, sTAG, sRT, sCT, sRG, sT0, sT1, sFF, sT2, sSPIN = [f"s{i}" for i in range(88, 100)]
sM1, sM2, sM3 = "s[4:5]", "s[6:7]", "s[10:11]"
sHI = "s[12:13]"
sCgC = [f"s{18+c}" for c in range(4)]; sCgW = [f"s{22+c}" for c in range(4)]
sRING, sPW, sHM, sL2E = "s34", "s35", "s32", "s[38:39]"
sFFFF = "s33"; sT3 = "s3"
sRINGB = "s0"
sEP, sKV, sZP, sKVP, sZPP = "s36", "s37", "s9", "s1", "s17"
sFL, sFP, sHS, sOS = "s8", "s14", "s15", "s16"
sGRP = sSPIN
sRA0, sGP = "s26", "s27"
def v(i, n=1): return f"v{i}" if n == 1 else f"v[{i}:{i+n-1}]"
def a(i, n=1): return f"a{i}" if n == 1 else f"a[{i}:{i+n-1}]"
vL, vHI, vT = 1, 2, 3
vX = [4, 5, 6, 7]; vB = [8, 9]; vWq = 11
vXf = [12, 13, 14, 15]; vCf = [16, 17, 18, 19]; vBf = [20, 21, 22, 23]; vTRkv, vTRq = 24, 25
vC = [26, 27, 28, 29]; vWO = [30, 31, 32, 33]; vWOf = [36, 37]
vLAM, vL8, vL16p, vL32, vMU, vMU2, vCOEF = 38, 40, 42, 44, 46, 48, 50
vA1, vA2 = 52, 56
vTAG, vL16, vT2, vDBG = 60, 61, 62, 63
vU_RE, vU_IM = 64, 80
vKT, vVV, vQT = 96, 112, 128
vFR = 144
vWOFR = 192
vALR, vALI, vBER, vBEI = 4, 6, 12, 14
vALR0, vALI0 = 188, 190
vXR, vEL = 0, 10
vXW = 34
vFLA = 35
vPhW, vVW, vPhR, vVR = 8, 9, 20, 21
vHW, vHR = 22, 23
aXF = 128; aCF = 0

main = Prog(); slow = Prog()
E = main
items = []; aux = []
dbg_slot = [0]; dbg_names = []
def dump(name, regs, p=None):
    if not DBG: return
    p = p or main
    for r in regs:
        p(f"s_mov_b32 {sT3}, {W_DBG + dbg_slot[0]*262144}")
        p(f"buffer_store_dword {r}, {v(vDBG)}, {SRD_WS}, {sT3} offen")
        dbg_slot[0] += 1
    dbg_names.append((name, dbg_slot[0] - len(regs), len(regs)))
nst = [0]; stnames = []
def stamp(name, p=None):
    p = p or main
    p.mark(name)
    if not STAMPS: return
    k = nst[0]; nst[0] += 1; stnames.append(name)
    p(f"s_memrealtime s[100:101]" if STAMPS == 1 else "s_memtime s[100:101]")
    p(f"v_writelane_b32 {v(vDBG)}, s100, {k}")
nspin = [0]
def spin(name, reload_fn, check_fn, emit=True):
    if emit: check_fn(main)
    main(f"s_cbranch_vccnz L_slow_{name}")
    main(f"L_back_{name}:")
    slow(f"L_slow_{name}:")
    slow(f"s_mov_b32 {sSPIN}, {OPT['spin']}")
    slow(f"L_loop_{name}:")
    slow("s_nop 4")
    reload_fn(slow)
    slow("s_waitcnt vmcnt(0)")
    check_fn(slow)
    slow("s_nop 4")
    if STAMPS:
        slow(f"s_cbranch_vccnz L_more_{name}")
        slow(f"s_sub_u32 {sSPIN}, {OPT['spin']+1}, {sSPIN}")
        slow(f"s_mul_i32 {sSPIN}, {sSPIN}, 100")
        slow(f"v_readlane_b32 s100, {v(vDBG)}, 0")
        slow("s_nop 4")
        slow(f"s_add_u32 {sSPIN}, {sSPIN}, s100")
        slow(f"v_writelane_b32 {v(vDBG)}, {sSPIN}, {27 + nspin[0]}")
        slow(f"s_branch L_back_{name}")
        slow(f"L_more_{name}:")
    else:
        slow(f"s_cbranch_vccz L_back_{name}")
    slow(f"s_sub_u32 {sSPIN}, {sSPIN}, 1")
    slow(f"s_cbranch_scc0 L_loop_{name}")
    slow(f"s_branch L_back_{name}")
    nspin[0] += 1

def cmul_add(p, d, x, lam, y):
    p(f"v_fma_f32 {v(d)}, {v(lam)}, {v(x)}, {v(y)}")
    p(f"v_fma_f32 {v(d+1)}, {v(lam)}, {v(x+1)}, {v(y+1)}")
    p(f"v_fma_f32 {v(d)}, -{v(lam+1)}, {v(x+1)}, {v(d)}")
    p(f"v_fma_f32 {v(d+1)}, {v(lam+1)}, {v(x)}, {v(d+1)}")
def cmul(p, d, x, y):
    p(f"v_mul_f32 {v(d)}, {v(x)}, {v(y)}")
    p(f"v_mul_f32 {v(d+1)}, {v(x)}, {v(y+1)}")
    p(f"v_fma_f32 {v(d)}, -{v(x+1)}, {v(y+1)}, {v(d)}")
    p(f"v_fma_f32 {v(d+1)}, {v(x+1)}, {v(y)}, {v(d+1)}")
def csq(p, d, x): cmul(p, d, x, x)
LO = "op_sel:[0,0,0] op_sel_hi:[1,0,1]"; HI = "op_sel:[0,1,0] op_sel_hi:[1,1,1]"
LO2 = "op_sel:[0,0] op_sel_hi:[1,0]"; HI2 = "op_sel:[0,1] op_sel_hi:[1,1]"
NEG1 = "neg_lo:[0,1,0] neg_hi:[0,1,0]"
def P(text, tok=None):
    p = Prog(); p(text, tok=tok); return p
ismf = lambda c: c.kind == "mfma"

def it_x(j):
    slot = j if j < 6 else j - 6
    for q in range(4):
        p = Prog()
        if q == 0: p(f"s_add_u32 m0, {sRING}, {slot*16384}")
        p(f"buffer_load_dwordx4 {v(vX[q])}, {SRD_X}, {sXo[j]} offen offset:{q*1024}{NT(0)} lds")
        items.append(Item(p, 8, after=(f"xr{j-6}" if j >= 6 else None), name=f"x{j}_{q}", lat=OPT["cold"] if j < 1 else OPT["cold2"] if j < 2 else None))
def it_b(j):
    for q in range(2):
        p = Prog()
        if q == 0: p(f"s_add_u32 m0, {sRINGB}, {j*8192}")
        p(f"buffer_load_dwordx4 {v(vB[q])}, {SRD_B}, {sXo[j]} offen offset:{q*1024}{NT(1)} lds", tok=f"xb{j}")
        items.append(Item(p, 8, name=f"b{j}_{q}", lat=OPT["cold"] if j < 1 else None))
vGX0, vGX1, vGW = 96, 100, 104
def it_g():
    items.append(Item(P(f"buffer_load_dwordx4 {v(vGX0,4)}, {v(vL16)}, {SRD_X}, {sGP} offen"), 8, name="g0", after="addr"))
    items.append(Item(P(f"buffer_load_dwordx4 {v(vGX1,4)}, {v(vL16)}, {SRD_X}, {sGP} offen offset:1024"), 8, name="g1"))
vPFa, vPFb, vJUNK, vK3 = 176, 177, 180, 178
def it_pf(gp):
    p = Prog()
    p(f"s_cmp_lg_u32 {sGRP}, {gp}")
    p(f"s_cbranch_scc1 L_pf{gp}")
    srd_ = [SRD_W, SRD_CR, SRD_CI, SRD_WO][gp]
    p(f"buffer_load_dword {v(vJUNK)}, {v(vPFa)}, {srd_}, 0 offen")
    p(f"buffer_load_dword {v(vJUNK)}, {v(vPFb)}, {srd_}, 0 offen")
    for c in p.ins[-2:]:
        c.ghost = True; c.nomodel = gp != OPT["pfm"]
    p(f"L_pf{gp}:")
    items.append(Item(p, 128, after="addr", name=f"pf{gp}", lat=OPT["pflat"]))
def it_wpf():
    for o_ in ([1024, 2048, 0] if OPT["wpf"] == 1 else [1024, 2048]):
        items.append(Item(P(f"buffer_load_dword {v(vJUNK)}, {v(vWq)}, {SRD_W}, {sWo[0]} offen offset:{o_}"), 16, after="waddr", name="wpf", lat=OPT["cold2"]))
for j in range(8):
    it_x(j)
    if OPT["wpf"] and OPT["wpos"] == j: it_wpf()
    it_b(j)
    if j == OPT["glpos"]: it_g()
    if OPT["pfg"]:
        for gp in range(4):
            if OPT[f"p{gp}"] == j: it_pf(gp)
def it_upf():
    n = {1: 1, 2: 2, 3: 4}[OPT["upf"]]
    for srd_ in (SRD_CR, SRD_CI, SRD_WO):
        for q in range(n):
            if OPT["upf"] == 3: t = f"buffer_load_dwordx4 {v(vJUNK,4)}, {v(vPFa)}, {srd_}, 0 offen offset:{q*1024}"
            else: t = f"buffer_load_dword {v(vJUNK)}, {v(vPFa)}, {srd_}, 0 offen offset:{q*2048}"
            items.append(Item(P(t), 32 // n, after="addr", name=f"upf{srd_}{q}", lat=OPT["ulat"]))
for pr in range(4):
    if OPT["upf"] and OPT["upos"] == pr: it_upf()
    for jj in range(2):
        j = 2*pr + jj
        for m in range(2):
            p = Prog()
            if m == 0: p(f"s_add_u32 m0, {sRING}, {(2+pr)*16384 + jj*2048 - 1024}")
            p(f"buffer_load_dwordx4 {v(vWq)}, {SRD_W}, {sWo[j]} offen offset:{1024 + m*1024}{NT(2)} lds", tok=f"w{pr}")
            items.append(Item(p, OPT["wl"], after=f"xr{2+pr}", name=f"w{pr}_{jj}{m}", lat=OPT["latw0"] if j == 0 else None))
        if j == 0 and OPT["wqpf"]:
            items.append(Item(P(f"buffer_load_dword {v(vJUNK)}, {v(vWq)}, {SRD_W}, {sWo[0]} offen"), 16, name="wqpf", lat=OPT["latw0"]))
if OPT["upf"] and OPT["upos"] == 4: it_upf()
for j in range(8):
    p = Prog()
    p(f"s_add_u32 m0, {sRING}, {(j>>2)*16384 + (j&3)*1024}")
    p(f"buffer_load_dwordx4 {v(vWq)}, {SRD_W}, {sWo[j]} offen{NT(2)} lds", tok="wq")
    items.append(Item(p, OPT["wl"], after=f"xr{6 + (j>>2)}", name=f"wq{j}", lat=OPT["latw0"] if j == 0 and not OPT["wqpf"] else None))
if OPT["upf"] and OPT["upos"] == 5: it_upf()
def b2_pos(s): return ((s + 1) & 3) * 4096
def it_b2(s):
    aft = "barA" if s < 3 else "xchdone" if s == 3 else f"b2done{s-4}"
    for q in range(4):
        p = Prog()
        if q == 0: p(f"s_add_u32 m0, {sPW}, {b2_pos(s)}")
        if s < 8:
            Pp, m, nb = s >> 2, (s >> 1) & 1, s & 1
            p(f"buffer_load_dwordx4 {v(vC[q])}, {SRD_CI if m else SRD_CR}, {sCgC[2*Pp+nb]} offen offset:{q*1024}{NT(3)} lds", tok=f"b2_{s}")
        else:
            p(f"buffer_load_dwordx4 {v(vWO[q])}, {SRD_WO}, {sCgW[s-8]} offen offset:{q*1024}{NT(4)} lds", tok=f"b2_{s}")
        items.append(Item(p, 8, after=aft, name=f"b2_{s}_{q}", lat=OPT["latc"] if s < (2 if OPT["crot"] else 4) else OPT["latc2"] if s < 8 else OPT["latw"] if s < 10 and not OPT["wopf"] else None))
def b2_read(p, s):
    pos = b2_pos(s)
    if s < 8:
        Pp, m, nb = s >> 2, (s >> 1) & 1, s & 1
        for k in range(4):
            c, kk = 2*Pp + (k >> 1), k & 1
            p(f"ds_read_b128 {a(aCF + ((c*4 + 2*m + kk)*2 + nb)*4, 4)}, {v(vCf[k])} offset:{pos}", tok=f"b2r_{s}")
    else:
        c = s - 8
        for b in range(2):
            for nb in range(2):
                for rd in range(2):
                    p(f"ds_read_b64_tr_b16 {v(vWOFR + ((c*2+b)*2+nb)*4 + 2*rd, 2)}, {v(vWOf[nb])} offset:{pos + (8*b + 4*rd)*128}", tok=f"b2r_{s}")
vEQ = 224
def e_list(): return [f"buffer_load_dwordx2 {v(vEQ+2*k,2)}, {v(vEL)}, {SRD_WS}, {sEP} offen offset:{256 + 512*k} sc1" for k in range(8)]
def e_loads(p):
    for t in e_list(): p(t)
def it_e():
    for k, t in enumerate(e_list()): items.append(Item(P(t, tok="eld"), 4, after="e_ok", name=f"e{k}", lat=OPT["lm"]))
if OPT["eaft"] < 0: it_e()
for s in range(8):
    it_b2(s)
    p = Prog(); b2_read(p, s)
    aux.append(Aux(f"b2_{s}", p, f"b2r_{s}", f"b2done{s}"))
    if s == OPT["wopf"] - 1:
        items.append(Item(P(f"buffer_load_dword {v(245)}, {v(244)}, {SRD_WO}, {sCgW[0]} offen"), 32, after="wopf_ok", name="wopf", lat=OPT["latc"]))
    if s == OPT["eaft"]: it_e()
vXD, vDK = 192, 200
vOUT = 11
vDA = 46
vGL = [38, 39]; vGv = [40, 41]; vRT = [42, 44]
def it_wo(s):
    it_b2(s)
    p = Prog(); b2_read(p, s)
    A_ = Aux(f"b2_{s}", p, f"b2r_{s}", f"b2done{s}", after="o stored"); A_.phase_split = True; A_.per = 1; A_.mf_only = True
    aux.append(A_)
TL = OPT["tl"]
sQ8 = ["0", "s78", "s79", "s80"]; sQ16 = ["0", "s79", "s81", "s82"]
vXD2, vDK2 = 26, 14
def it_xd():
    if TL:
        for q in range(4):
            items.append(Item(P(f"buffer_load_dwordx2 {v(vXD2+2*q,2)}, {v(vOUT)}, {SRD_X}, {sQ8[q]} offen", tok="xdl"), 8, after="xd_ok", name=f"xd{q}"))
        items.append(Item(P(f"global_load_dwordx2 {v(vDK2,2)}, {v(vDA)}, {P_DSK}", tok="xdl"), 1, name="dk3"))
        return
    for q in range(4):
        items.append(Item(P(f"buffer_load_dwordx2 {v(vXD+2*q,2)}, {v(vOUT)}, {SRD_X}, 0 offen offset:{16*q}"), 32, after="xd_ok", name=f"xd{q}"))
    for q in range(4):
        items.append(Item(P(f"global_load_dwordx2 {v(vDK+2*q,2)}, {v(vDA)}, {P_DSK} offset:{16*q}"), 1, name=f"dk{q}"))
if not TL: it_xd()
WO1, WO2 = OPT["wo1"], OPT["wo2"]
for s in range(8, 8 + WO1): it_wo(s)
def gg_list(): return [f"buffer_load_dword {v(vGv[ra])}, {v(vGL[ra])}, {SRD_WS}, 0 offen sc1" for ra in range(2)]
def gg_load(p):
    for t in gg_list(): p(t)
vGA = 96; vGZ = 160
def gather_list():
    L = []
    for r in range(16):
        L.append((r, f"buffer_load_dwordx4 {v(vGA+4*r,4)}, {v(vL16)}, {SRD_WS}, s{72 + (r>>2)} offen offset:{(r&3)*1024} sc1"))
    L.append((16, f"buffer_load_dwordx4 {v(vGZ,4)}, {v(vL16)}, {SRD_WS}, {sZP} offen sc1"))
    return L
def gather_loads(p):
    for r, t in gather_list(): p(t)
GL_ = gather_list()
if OPT["gfirst"]:
    GL_ = GL_[16:] + GL_[:16]
    for k, t in enumerate(gg_list()): items.append(Item(P(t), 2, after="gl_ok", name=f"gg{k}", lat=OPT["lm"]))
for i_, (r, t) in enumerate(GL_):
    items.append(Item(P(t, tok="gld"), 8, after="gather_ok", name=f"ga{r}", lat=OPT["lm"] if i_ < 8 or r == 16 else None))
if not OPT["gfirst"]:
    for k, t in enumerate(gg_list()): items.append(Item(P(t), 2, after="gl_ok", name=f"gg{k}", lat=OPT["lm"]))
vAH = [4, 5]; vAO = [6, 7]; vAH2 = [12, 13]
def h_ld(c, k, ra):
    if OPT["crot"]: return f"buffer_load_dwordx4 {a(aXF + ((c*4+k)*2+ra)*4, 4)}, {v([vAH, vAH2][k>>1][ra])}, {SRD_WS}, {sCgW[c]} offen offset:{(k&1)*1024} sc1"
    return f"buffer_load_dwordx4 {a(aXF + ((c*4+k)*2+ra)*4, 4)}, {v(vAH[ra])}, {SRD_WS}, {sCgW[c]} offen offset:{k*1024} sc1"
vACC = 64; vOF = 128
vFLG = 22
FH_LOAD = f"buffer_load_dword {v(vFLG)}, {v(vFLA)}, {SRD_WS}, {sFP} offen sc1"
items.append(Item(P(FH_LOAD), 1, after="fh_ld", name="fhl", lat=OPT["lm"]))
for s in range(8 + WO1, 8 + WO1 + WO2): it_wo(s)
if TL:
    assert WO1 + WO2 == 4
    it_xd()
nh = 0
for c in range(4):
    for k in range(4):
        for ra in range(2):
            items.append(Item(P(h_ld(c, k, ra)),
                              8, after="fh_ok", name=f"h{c}{k}{ra}", lat=OPT["lm"] if nh < 8 else None))
            nh += 1
for s in range(8 + WO1 + WO2, 12): it_wo(s)
o_order = [(c, b, ra) for ra in (0, 1) for c in (0, 1) for b in range(2)] + [(c, b, ra) for ra in (1, 0) for c in (2, 3) for b in range(2)]
def o_ld(c, b, ra): return f"buffer_load_dwordx4 {v(vOF + ((c*2+b)*2+ra)*4, 4)}, {v(vAO[ra])}, {SRD_WS}, {sCgW[c]} offen offset:{b*1024} sc1"
for c, b, ra in o_order:
    items.append(Item(P(o_ld(c, b, ra)),
                      8, after="fo_ok", name=f"o{c}{b}{ra}", lat=OPT["lm"] if (c, b, ra) in o_order[:8] else None))

E.lock()
E("s_cmp_ge_u32 s2, 256")
E("s_cbranch_scc1 L_end")
E("s_load_dwordx16 s[4:19], s[0:1], 0")
E("s_load_dwordx16 s[20:35], s[0:1], 64")
E("s_load_dwordx2 s[36:37], s[0:1], 128")
if OPT["pf"]:
    E(f"""
    s_getpc_b64 s[40:41]
    L_pc:
    s_lshr_b32 s3, s2, 3
    s_and_b32 s3, s3, 7
    s_lshl_b32 s3, s3, 12
    v_and_b32 v1, 31, v0
    v_lshl_add_u32 v1, v1, 7, s3
    v_min_u32 v1, L_code_end-L_pc-4, v1
    global_load_dword v255, v1, s[40:41]
    """)
if STAMPS: E(f"v_mov_b32 {v(vDBG)}, 0")
stamp("start")
if STAMPS:
    for k in range(27, 32): E(f"v_writelane_b32 {v(vDBG)}, s100, {k}")
E(f"""
s_and_b32 {sT0}, s2, 7
s_lshr_b32 {sT1}, s2, 3
v_lshrrev_b32 {v(vT)}, 6, v0
v_and_b32 {v(vL)}, 63, v0
s_and_b32 {sRB}, {sT0}, 1
v_readfirstlane_b32 {sW}, {v(vT)}
s_lshl_b32 {sRT}, {sRB}, 4
s_lshl_b32 {sRB}, {sRB}, 3
s_and_b32 {sCT}, {sT1}, 7
s_or_b32 {sRB}, {sRB}, {sCT}
s_lshr_b32 {sCG}, {sT0}, 1
s_lshl_b32 {sCG}, {sCG}, 2
s_lshr_b32 {sT1}, {sT1}, 3
s_or_b32 {sCG}, {sCG}, {sT1}
s_or_b32 {sRT}, {sRT}, {sCG}
s_lshl_b32 {sRG}, {sRB}, 2
s_or_b32 {sRG}, {sRG}, {sW}
{["s_lshl_b32 %s, %s, 1" % (sT0, sCG), "s_mov_b32 %s, 0" % sT0, "s_mov_b32 %s, 0" % sT0, "s_lshr_b32 %s, %s, 1" % (sT0, sCG)][OPT["rot"]]}
{["s_add_u32 %s, %s, %s" % (sT0, sT0, sRB), "s_add_u32 %s, %s, %s" % (sT0, sT0, sRB), "s_mov_b32 %s, 0" % sT0, "s_add_u32 %s, %s, %s" % (sT0, sT0, sRB)][OPT["rot"]]}
v_lshlrev_b32 {v(vL16)}, 4, {v(vL)}
v_lshrrev_b32 {v(vHI)}, 5, {v(vL)}
""")
if DBG:
    E(f"s_lshl_b32 {sT2}, s2, 10")
    E(f"v_lshl_add_u32 {v(vDBG)}, v0, 2, {sT2}")
for j in range(8):
    E(f"s_add_u32 {sT2}, {sT0}, {j}")
    E(f"s_and_b32 {sT2}, {sT2}, 7")
    E(f"s_lshl_b32 {sXo[j]}, {sT2}, 7")
    E(f"s_mul_i32 {sWo[j]}, {sT2}, 196608")
E(f"""
v_lshrrev_b32 {v(vT)}, 4, {v(vL)}
v_and_b32 {v(vT2)}, 7, {v(vL)}
v_xor_b32 {v(vT2)}, {v(vT2)}, {v(vT)}
v_lshlrev_b32 {v(vT2)}, 4, {v(vT2)}
v_and_b32 {v(vX[0])}, 1, {v(vT)}
v_and_b32 {v(vX[1])}, 8, {v(vL)}
v_or_b32 {v(vX[0])}, {v(vX[0])}, {v(vX[1])}
v_lshl_or_b32 {v(vX[0])}, {v(vHI)}, 4, {v(vX[0])}
s_lshl_b32 {sT2}, {sRG}, 5
v_add_u32 {v(vX[0])}, {sT2}, {v(vX[0])}
v_lshl_or_b32 {v(vX[0])}, {v(vX[0])}, 10, {v(vT2)}
v_xor_b32 {v(vX[1])}, 64, {v(vX[0])}
v_add_u32 {v(vX[1])}, 1024, {v(vX[1])}
v_add_u32 {v(vX[2])}, 2048, {v(vX[0])}
v_add_u32 {v(vX[3])}, 2048, {v(vX[1])}
s_and_b32 {sT2}, {sW}, 1
s_lshl_b32 {sT2}, {sT2}, 4
s_lshl_b32 {sT3}, {sCG}, 5
s_add_u32 {sT2}, {sT2}, {sT3}
v_lshrrev_b32 {v(vT)}, 3, {v(vL)}
v_lshl_or_b32 {v(vC[0])}, {v(vT)}, 10, {v(vT2)}
s_lshl_b32 {sT2}, {sT2}, 10
v_add_u32 {v(vB[0])}, {sT2}, {v(vC[0])}
v_xor_b32 {v(vB[1])}, 64, {v(vB[0])}
v_add_u32 {v(vB[1])}, 7168, {v(vB[1])}
s_lshl_b32 {sT3}, {sW}, 12
s_lshl_b32 {sT1}, {sW}, 11
s_add_u32 {sT1}, {sT1}, {RB}
""")
def srd(dst, lo, size):
    b = int(dst[2:].split(":")[0])
    E(f"s_mov_b32 s{b}, s{lo}")
    E(f"s_and_b32 s{b+1}, s{lo+1}, 0xffff")
    E(f"s_mov_b32 s{b+2}, {size}")
    E(f"s_mov_b32 s{b+3}, 0x20000")
E(f"""
v_lshrrev_b32 {v(vT)}, 2, {v(vL)}
s_lshl_b32 {sT2}, {sW}, 4
v_add_u32 {v(vT)}, {sT2}, {v(vT)}
v_mul_u32_u24 {v(vWq)}, 3072, {v(vT)}
v_and_b32 {v(vT2)}, 3, {v(vL)}
s_lshl_b32 {sT2}, {sCG}, 6
v_lshl_add_u32 {v(vT2)}, {v(vT2)}, 4, {sT2}
v_add_u32 {v(vWq)}, {v(vWq)}, {v(vT2)}
""")
vPR, vPI, vPD = 160, 161, 162
vWP = 144
vSA, vSB, vSC, vSD, vSZ = 200, 201, 202, 203, 204
E(f"""
v_and_b32 {v(vXR)}, 31, {v(vL)}
s_lshl_b32 {sT2}, {sCG}, 6
v_lshl_add_u32 {v(vSA)}, {v(vXR)}, 1, {sT2}
v_bfe_u32 {v(vT)}, {v(vL)}, 3, 2
v_and_b32 {v(vT2)}, 3, {v(vL)}
v_lshl_add_u32 {v(vT)}, {v(vT)}, 2, {v(vT2)}
v_lshlrev_b32 {v(vT)}, 1, {v(vT)}
v_lshl_or_b32 {v(vT)}, {v(vHI)}, 7, {v(vT)}
v_bfe_u32 {v(vT2)}, {v(vL)}, 2, 1
v_lshl_or_b32 {v(vT)}, {v(vT2)}, 9, {v(vT)}
s_lshl_b32 {sT2}, {sCG}, 10
v_add_u32 {v(vSB)}, {sT2}, {v(vT)}
v_lshlrev_b32 {v(vSC)}, 21, {v(vL)}
v_and_b32 {v(vSC)}, 0x600000, {v(vSC)}
s_lshl_b32 {sT2}, {sRT}, 17
v_mov_b32 {v(vSD)}, {sT2}
v_mov_b32 {v(vSZ)}, 0
""")
def small_loads():
    n0 = len(E.ins)
    E(f"""
    global_load_ushort {v(vPR)}, {v(vSA)}, {P_LRE}
    global_load_ushort {v(vPI)}, {v(vSA)}, {P_LIM}
    global_load_ushort {v(vPD)}, {v(vSA)}, {P_LDT}
    """)
    for e in range(8):
        E(f"global_load_ushort {v(vWP + e)}, {v(vSB)}, {P_WPHI} offset:{(e&3)*32 + (e>>2)*256}")
    E(f"global_load_dwordx4 {v(vGW,4)}, {v(vL16)}, {P_GW}")
    E(f"global_load_dword v248, {v(vL16)}, {P_DSK}")
    if OPT["tlb"]:
        E(f"""
        global_load_dword v254, {v(vSC)}, s[36:37] offset:2048
        global_load_dword v252, {v(vSZ)}, s[22:23]
        global_load_dword v251, {v(vSZ)}, s[24:25]
        global_load_dword v250, {v(vSZ)}, s[10:11]
        global_load_dword v249, {v(vSD)}, s[32:33]
        """)
        if not OPT["wpf"]: E(f"global_load_dword v253, {v(vSZ)}, s[6:7]")
    for c_ in E.ins[n0:]: c_.lines = 0.0; c_.lat = OPT["cold"]
E("s_mov_b32 s46, 1572864"); E("s_mov_b32 s47, 0x20000")
E("s_mov_b32 s42, 2097152"); E("s_mov_b32 s43, 0x20000"); E("s_mov_b32 s50, 524288"); E("s_mov_b32 s51, 0x20000")
E.sett(900)
E("s_mov_b32 s40, s4"); E("s_and_b32 s41, s5, 0xffff")
E(f"s_mov_b32 {sRING}, {sT3}")
E(f"s_mov_b32 {sRINGB}, {sT1}")
E.drain("x0_3")
E(f"s_cmp_lt_u32 {sW}, 2")
E("s_cselect_b32 s48, s18, s20")
E("s_cselect_b32 s49, s19, s21")
E("s_and_b32 s49, s49, 0xffff")
if OPT["pro"] == 1:
    E.drain("b0_1")
    small_loads()
E.drain(items[OPT["early"] - 1].name)
E("s_mov_b32 s44, s6"); E("s_and_b32 s45, s7, 0xffff")
E.mark("waddr")
stamp("first dma")
E(f"s_load_dword {sTAG}, s[36:37], {W_EPOCH}")
if OPT["pro"] == 0: small_loads()
if OPT["crot"]:
    E(f"""
    s_lshr_b32 {sT2}, {sCT}, 2
    s_add_u32 {sT2}, {sT2}, {sCT}
    s_add_u32 {sT2}, {sT2}, {sCG}
    s_and_b32 {sT2}, {sT2}, 1
    s_cselect_b32 s52, s24, s22
    s_cselect_b32 s53, s25, s23
    s_cselect_b32 s56, s22, s24
    s_cselect_b32 s57, s23, s25
    s_and_b32 s53, s53, 0xffff
    s_and_b32 s57, s57, 0xffff
    s_mov_b32 s54, 524288
    s_mov_b32 s55, 0x20000
    s_mov_b32 s58, 524288
    s_mov_b32 s59, 0x20000
    """)
else:
    srd(SRD_CR, 22, 524288); srd(SRD_CI, 24, 524288)
srd(SRD_WO, 10, 524288)
srd(SRD_WS, 36, 0x10000000); srd(SRD_OUT, 32, 4194304)
E.setts(OPT["cold"] - 200)
E(f"""
s_lshl_b32 {sPW}, {sW}, 14
s_add_u32 {sPW}, {sPW}, {RB}
s_mov_b32 {sHM}, 0xffff0000
s_mov_b32 {sFFFF}, 0xffff
s_mov_b32 {sFF}, 0xff
s_mov_b32 s38, 0x3fb8aa3b
s_mov_b32 s39, 0x3fb8aa3b
s_cmp_ge_u32 {sW}, 1
s_cselect_b64 {sM1}, -1, 0
s_cmp_ge_u32 {sW}, 2
s_cselect_b64 {sM2}, -1, 0
s_cmp_ge_u32 {sW}, 3
s_cselect_b64 {sM3}, -1, 0
s_mov_b32 s12, 0
s_mov_b32 s13, -1
s_add_u32 {sT2}, {sCG}, {sCT}
s_and_b32 {sT2}, {sT2}, 3
s_lshl_b32 {sT0}, {sW}, 2
""")
E.unlock()
for c in range(4):
    E(f"s_xor_b32 {sT1}, {sT2}, {c}")
    E(f"s_or_b32 {sT1}, {sT1}, {sT0}")
    E(f"s_lshl_b32 {sCgW[c]}, {sT1}, 15")
E(f"""
s_and_b32 {sT1}, {sT2}, 2
s_or_b32 {sT1}, {sT1}, {sT0}
s_lshl_b32 {sT1}, {sT1}, 6
s_and_b32 {sT3}, {sW}, 1
s_lshl_b32 {sT3}, {sT3}, 15
s_or_b32 {sCgC[0]}, {sT1}, {sT3}
s_xor_b32 {sCgC[1]}, {sCgC[0]}, 32768
s_xor_b32 {sCgC[2]}, {sCgC[0]}, 128
s_xor_b32 {sCgC[3]}, {sCgC[1]}, 128
s_and_b32 {sT2}, {sT2}, 1
s_lshl_b32 {sT2}, {sT2}, 6
s_lshl_b32 {sT3}, {sCT}, 16
v_add_u32 {v(vC[0])}, {sT3}, {v(vC[0])}
v_xor_b32 {v(vC[1])}, 64, {v(vC[0])}
v_add_u32 {v(vC[1])}, 7168, {v(vC[1])}
v_add_u32 {v(vC[2])}, 14336, {v(vC[0])}
v_add_u32 {v(vC[3])}, 14336, {v(vC[1])}
v_bfe_u32 {v(vT)}, {v(vL)}, 1, 3
v_xor_b32 {v(vT)}, {v(vT)}, {v(vHI)}
v_lshlrev_b32 {v(vT)}, 4, {v(vT)}
v_lshl_or_b32 {v(vT)}, {v(vXR)}, 7, {v(vT)}
""")
for k in range(4):
    E(f"v_xor_b32 {v(vT2)}, {k*32}, {v(vT)}")
    E(f"v_add_u32 {v(vBf[k])}, {RB}, {v(vT2)}")
    E(f"v_add_u32 {v(vXf[k])}, {sRING}, {v(vT2)}")
    E(f"v_xor_b32 {v(vT2)}, {sT2}, {v(vT2)}")
    E(f"v_add_u32 {v(vCf[k])}, {sPW}, {v(vT2)}")
E(f"""
v_bfe_u32 {v(vT)}, {v(vL)}, 2, 2
v_lshl_or_b32 {v(vT)}, {v(vHI)}, 3, {v(vT)}
v_lshlrev_b32 {v(vTRq)}, 6, {v(vT)}
v_bfe_u32 {v(vT2)}, {v(vL)}, 4, 1
v_lshl_or_b32 {v(vTRq)}, {v(vT2)}, 5, {v(vTRq)}
v_and_b32 {v(vT)}, 3, {v(vL)}
v_lshl_or_b32 {v(vTRq)}, {v(vT)}, 3, {v(vTRq)}
v_add_u32 {v(vTRkv)}, 32768, {v(vTRq)}
s_and_b32 {sT0}, {sW}, 1
v_xor_b32 {v(vT)}, {sT0}, {v(vT2)}
v_lshlrev_b32 {v(vT)}, 2, {v(vT)}
v_and_b32 {v(vT2)}, 7, {v(vL)}
v_xor_b32 {v(vT)}, {v(vT)}, {v(vT2)}
s_lshl_b32 {sT2}, {sCT}, 7
v_lshl_add_u32 {v(vT)}, {v(vT)}, 4, {sT2}
v_lshrrev_b32 {v(vT2)}, 3, {v(vL)}
v_lshl_add_u32 {v(vWO[0])}, {v(vT2)}, 10, {v(vT)}
v_add_u32 {v(vWO[1])}, 7168, {v(vWO[0])}
v_add_u32 {v(vWO[2])}, 14336, {v(vWO[0])}
v_add_u32 {v(vWO[3])}, 21504, {v(vWO[0])}
v_bfe_u32 {v(vT)}, {v(vL)}, 2, 2
v_lshl_or_b32 {v(vT)}, {v(vHI)}, 4, {v(vT)}
v_lshlrev_b32 {v(vT)}, 7, {v(vT)}
v_bfe_u32 {v(vT2)}, {v(vL)}, 3, 1
v_lshl_or_b32 {v(vT)}, {v(vT2)}, 6, {v(vT)}
v_and_b32 {v(vT2)}, 63, {v(vTRq)}
v_or_b32 {v(vT)}, {v(vT2)}, {v(vT)}
v_add_u32 {v(vWOf[0])}, {sPW}, {v(vT)}
v_xor_b32 {v(vT)}, 64, {v(vT)}
v_add_u32 {v(vWOf[1])}, {sPW}, {v(vT)}
""")
E(f"""
v_lshlrev_b32 {v(vXR)}, 3, {v(vXR)}
v_lshl_or_b32 {v(vEL)}, {v(vHI)}, 8, {v(vXR)}
v_add_u32 {v(vXR)}, {XCH}, {v(vXR)}
s_lshl_b32 {sT2}, {sW}, 8
v_add_u32 {v(vXW)}, {sT2}, {v(vXR)}
v_and_b32 {v(vT)}, 7, {v(vL)}
v_lshlrev_b32 {v(vT)}, 2, {v(vT)}
v_add_u32 {v(vFLA)}, {W_FH}, {v(vT)}
s_lshl_b32 {sT2}, {sCG}, 13
s_lshl_b32 {sT3}, {sRB}, 8
s_sub_u32 {sT2}, {sT2}, {sT3}
s_add_u32 {sEP}, {sT2}, {W_E + 15*256}
s_lshl_b32 {sT2}, {sCG}, 2
s_add_u32 {sT2}, {sT2}, {sW}
s_lshl_b32 {sKV}, {sT2}, 14
s_add_u32 {sKV}, {sKV}, {W_KVP}
s_lshl_b32 {sZP}, {sT2}, 10
s_add_u32 {sZP}, {sZP}, {W_ZP}
s_lshl_b32 {sT2}, {sRB}, 10
s_add_u32 {sKVP}, {sT2}, {sKV}
s_lshl_b32 {sT3}, {sRB}, 6
s_add_u32 {sZPP}, {sT3}, {sZP}
s_lshr_b32 {sT2}, {sRG}, 3
s_lshl_b32 {sT2}, {sT2}, 19
s_lshl_b32 {sT1}, {sCG}, 15
s_add_u32 {sT2}, {sT2}, {sT1}
s_and_b32 {sT3}, {sRG}, 7
s_lshl_b32 {sT3}, {sT3}, 12
s_add_u32 {sT2}, {sT2}, {sT3}
s_add_u32 {sHS}, {sT2}, {W_H}
s_lshr_b32 {sT2}, {sRG}, 4
s_lshl_b32 {sT2}, {sT2}, 19
s_add_u32 {sT2}, {sT2}, {sT1}
s_and_b32 {sT3}, {sRG}, 15
s_lshl_b32 {sT3}, {sT3}, 11
s_add_u32 {sT2}, {sT2}, {sT3}
s_add_u32 {sOS}, {sT2}, {W_O}
s_lshr_b32 {sFL}, {sRG}, 1
s_lshl_b32 {sFL}, {sFL}, 2
s_lshr_b32 {sT3}, {sCG}, 2
s_add_u32 {sFL}, {sFL}, {sT3}
s_lshl_b32 {sFL}, {sFL}, 7
s_and_b32 {sT3}, {sRG}, 1
s_lshl_b32 {sT3}, {sT3}, 4
s_add_u32 {sFL}, {sFL}, {sT3}
s_and_b32 {sT3}, {sCG}, 3
s_lshl_b32 {sT3}, {sT3}, 2
s_add_u32 {sFL}, {sFL}, {sT3}
s_lshl_b32 {sFP}, {sRT}, 2
s_add_u32 {sFP}, {sFP}, {sW}
s_lshl_b32 {sFP}, {sFP}, 7
s_lshr_b32 {sT1}, {sW}, 1
s_lshl_b32 {sT2}, {sRT}, 1
s_or_b32 {sRA0}, {sT2}, {sT1}
s_lshl_b32 {sT2}, {sRG}, 5
s_lshl_b32 {sT3}, {sCG}, 1
s_add_u32 {sT2}, {sT2}, {sT3}
s_lshl_b32 {sGP}, {sT2}, 10
""")
if OPT["pfg"]:
    E(f"""
    v_mov_b32 {v(vK3)}, 3072
    v_mov_b32 {v(vK3+1)}, 0
    s_lshl_b32 {sT2}, {sCT}, 2
    s_or_b32 {sT2}, {sT2}, {sW}
    s_mul_i32 {sT3}, {sT2}, 49152
    s_lshr_b32 {sT1}, {sCG}, 2
    s_lshl_b32 {sT1}, {sT1}, 8
    s_add_u32 {sT3}, {sT3}, {sT1}
    v_and_b32 {v(vT2)}, 1, {v(vL)}
    v_lshl_add_u32 {v(vT2)}, {v(vT2)}, 7, {sT3}
    v_lshrrev_b32 {v(vT)}, 2, {v(vL)}
    v_mad_u32_u24 {v(vPFa)}, {v(vT)}, {v(vK3)}, {v(vT2)}
    v_bfe_u32 {v(vT)}, {v(vL)}, 1, 1
    v_lshl_add_u32 {v(vPFa)}, {v(vT)}, 10, {v(vPFa)}
    v_bfe_u32 {v(vT)}, {v(vL)}, 1, 4
    v_mad_u32_u24 {v(vPFb)}, {v(vT)}, {v(vK3)}, {v(vT2)}
    v_add_u32 {v(vPFb)}, 2048, {v(vPFb)}
    s_lshl_b32 {sT2}, {sT2}, 14
    v_lshl_add_u32 {v(vT)}, {v(vL)}, 7, {sT2}
    v_add_u32 {v(vT2)}, 8192, {v(vT)}
    s_and_b32 {sGRP}, {sCG}, 3
    v_cmp_ne_u32 vcc, {sGRP}, {v(vK3+1)}
    v_cndmask_b32 {v(vPFa)}, {v(vPFa)}, {v(vT)}, vcc
    v_cndmask_b32 {v(vPFb)}, {v(vPFb)}, {v(vT2)}, vcc
    """)
if OPT["upf"]:
    E(f"""
    s_lshr_b32 {sT2}, s2, 3
    s_lshl_b32 {sT2}, {sT2}, 2
    s_or_b32 {sT2}, {sT2}, {sW}
    s_lshl_b32 {sT2}, {sT2}, 12
    v_lshl_add_u32 {v(vPFa)}, {v(vL)}, {[0, 6, 5, 4][OPT["upf"]]}, {sT2}
    """)
E(f"""
s_add_u32 {sTAG}, {sTAG}, 1
v_mov_b32 {v(vTAG)}, {sTAG}
""")
stamp("addr")

t0, t1, t2, t3 = 164, 166, 168, 170
F = [Prog() for _ in range(8)]
F[0](f"""
v_lshlrev_b32 {v(vPR)}, 16, {v(vPR)}
v_lshlrev_b32 {v(vPI)}, 16, {v(vPI)}
v_lshlrev_b32 {v(vPD)}, 16, {v(vPD)}
v_mul_f32 {v(vPD)}, s38, {v(vPD)}
v_exp_f32 {v(vPD)}, {v(vPD)}
v_mul_f32 {v(t2)}, {v(vPR)}, {v(vPR)}
v_fma_f32 {v(t2)}, {v(vPI)}, {v(vPI)}, {v(t2)}
v_cvt_pk_bf16_f32 {v(vPD)}, {v(vPD)}, {v(vPD)}
v_and_b32 {v(vPD)}, {sHM}, {v(vPD)}
v_mul_f32 {v(t0)}, {v(vPD)}, {v(vPR)}
v_mul_f32 {v(t0+1)}, {v(vPD)}, {v(vPI)}
v_mul_f32 {v(t0)}, s38, {v(t0)}
v_mul_f32 {v(t0+1)}, 0.15915494, {v(t0+1)}
v_exp_f32 {v(t0)}, {v(t0)}
v_cos_f32 {v(t1)}, {v(t0+1)}
v_sin_f32 {v(t1+1)}, {v(t0+1)}
v_rcp_f32 {v(t3)}, {v(t2)}
v_mul_f32 {v(vLAM)}, {v(t0)}, {v(t1)}
v_mul_f32 {v(vLAM+1)}, {v(t0)}, {v(t1+1)}
v_add_f32 {v(t1)}, -1.0, {v(vLAM)}
v_mul_f32 {v(t2)}, {v(t1)}, {v(vPR)}
v_fma_f32 {v(t2)}, {v(vLAM+1)}, {v(vPI)}, {v(t2)}
v_mul_f32 {v(t2+1)}, {v(vLAM+1)}, {v(vPR)}
v_fma_f32 {v(t2+1)}, -{v(t1)}, {v(vPI)}, {v(t2+1)}
v_mul_f32 {v(vCOEF)}, {v(t2)}, {v(t3)}
v_mul_f32 {v(vCOEF+1)}, {v(t2+1)}, {v(t3)}
""")
csq(F[1], t0, vLAM); csq(F[1], t1, t0); csq(F[1], vL8, t1); csq(F[1], vL16p, vL8); csq(F[1], vL32, vL16p)
csq(F[1], t0, vL32); cmul(F[1], t1, t0, vL32)
csq(F[2], vMU, t0); csq(F[2], vMU2, vMU)
F[2](f"""
v_cndmask_b32 {v(t2)}, 1.0, {v(vL32)}, {sM1}
v_cndmask_b32 {v(t2+1)}, 0, {v(vL32+1)}, {sM1}
v_cndmask_b32 {v(t2)}, {v(t2)}, {v(t0)}, {sM2}
v_cndmask_b32 {v(t2+1)}, {v(t2+1)}, {v(t0+1)}, {sM2}
v_cndmask_b32 {v(t2)}, {v(t2)}, {v(t1)}, {sM3}
v_cndmask_b32 {v(t2+1)}, {v(t2+1)}, {v(t1+1)}, {sM3}
""")
cmul(F[2], t3, t2, vL16p)
F[2](f"v_cndmask_b32 {v(vALR0)}, {v(t2)}, {v(t3)}, {sHI}")
F[2](f"v_cndmask_b32 {v(vALI0)}, {v(t2+1)}, {v(t3+1)}, {sHI}")
F[2](f"""
v_mul_f32 {v(vALR0+1)}, {v(vALR0)}, {v(vL8)}
v_mul_f32 {v(vALI0+1)}, {v(vALR0)}, {v(vL8+1)}
v_fma_f32 {v(vALR0+1)}, -{v(vALI0)}, {v(vL8+1)}, {v(vALR0+1)}
v_fma_f32 {v(vALI0+1)}, {v(vALI0)}, {v(vL8)}, {v(vALI0+1)}
""")
F[3]("s_mov_b32 s100, 0xf0f0f0f0")
F[3]("s_mov_b32 s101, 0xf0f0f0f0")
for i in range(4):
    F[3](f"v_lshl_or_b32 {v(vA1+i)}, {v(vWP+2*i+1)}, 16, {v(vWP+2*i)}")
for i in range(4):
    F[3](f"v_cndmask_b32 {v(vA2+i)}, 0, {v(vA1+i)}, s[100:101]")
    F[3](f"v_cndmask_b32 {v(vA1+i)}, {v(vA1+i)}, 0, s[100:101]")
dump("lam", [v(vLAM), v(vLAM+1), v(vCOEF), v(vCOEF+1), v(vMU2), v(vMU2+1)], F[3])
gW, gP, gR = 108, 116, 124
gS0, gS1 = 128, 130
G1, G2 = F[OPT["glpos"] + 2], F[OPT["glpos"] + 3]
for i in range(4):
    G1(f"v_lshlrev_b32 {v(gW+2*i)}, 16, {v(vGW+i)}")
    G1(f"v_and_b32 {v(gW+2*i+1)}, {sHM}, {v(vGW+i)}")
for row, src, dst, G in ((0, vGX0, gS0, G1), (1, vGX1, gS1, G2)):
    for i in range(4):
        G(f"v_lshlrev_b32 {v(gP+2*i)}, 16, {v(src+i)}")
        G(f"v_and_b32 {v(gP+2*i+1)}, {sHM}, {v(src+i)}")
    for i in range(4):
        G(f"v_pk_mul_f32 {v(gP+2*i,2)}, {v(gP+2*i,2)}, {v(gW+2*i,2)}")
    for i in range(4):
        G(f"v_cvt_pk_bf16_f32 {v(gR+i)}, {v(gP+2*i)}, {v(gP+2*i+1)}")
    for i in range(4):
        G(f"v_lshlrev_b32 {v(gP+2*i)}, 16, {v(gR+i)}")
        G(f"v_and_b32 {v(gP+2*i+1)}, {sHM}, {v(gR+i)}")
    G(f"v_pk_add_f32 {v(gP,2)}, {v(gP,2)}, {v(gP+2,2)}")
    G(f"v_pk_add_f32 {v(gP+4,2)}, {v(gP+4,2)}, {v(gP+6,2)}")
    G(f"v_pk_add_f32 {v(gP,2)}, {v(gP,2)}, {v(gP+4,2)}")
    G(f"v_add_f32 {v(dst)}, {v(gP)}, {v(gP+1)}")
G3 = Prog()
G3(f"""
v_permlane32_swap_b32 {v(gS0)}, {v(gS1)}
v_add_f32 {v(gS0)}, {v(gS0)}, {v(gS1)}
v_mov_b32 {v(gS1)}, {v(gS0)}
s_lshr_b32 {sT2}, {sGP}, 8
v_permlane16_swap_b32 {v(gS0)}, {v(gS1)}
v_add_f32 {v(gS0)}, {v(gS0)}, {v(gS1)}
""")
for r in (8, 4, 2, 1):
    G3(f"v_add_f32_dpp {v(gS0)}, {v(gS0)}, {v(gS0)} row_ror:{r} row_mask:0xf bank_mask:0xf")
G3(f"""
v_cvt_pk_bf16_f32 {v(gS0)}, {v(gS0)}, {v(gS0)}
v_and_b32 {v(gS0)}, {sHM}, {v(gS0)}
v_mul_f32 {v(gS0)}, 0xbfb8aa3b, {v(gS0)}
v_exp_f32 {v(gS0)}, {v(gS0)}
v_lshlrev_b32 {v(gS1)}, 2, {v(vHI)}
v_add_f32 {v(gS0)}, 1.0, {v(gS0)}
v_rcp_f32 {v(gS0)}, {v(gS0)}
s_add_u32 {sT2}, {sT2}, {W_G}
v_cvt_pk_bf16_f32 {v(gS0)}, {v(gS0)}, {v(gS0)}
v_bfi_b32 {v(gS0)}, {sFFFF}, {v(vTAG)}, {v(gS0)}
""")
G3.lock()
G3(f"""
s_mov_b32 exec_lo, 1
s_mov_b32 exec_hi, 1
buffer_store_dword {v(gS0)}, {v(gS1)}, {SRD_WS}, {sT2} offen sc1
s_mov_b64 exec, -1
""")
G3.unlock()

vBB = [192, 224]
def u_reads(j):
    p = Prog()
    slot = j if j < 6 else j - 6
    for k in range(4):
        p(f"ds_read_b128 {a(aXF + 16*j + 4*k, 4)}, {v(vXf[k])} offset:{(slot & 3)*16384}")
        p(f"ds_read_b128 {v(vBB[j&1] + 8*k, 4)}, {v(vBf[k])} offset:{j*8192}")
        p(f"ds_read_b128 {v(vBB[j&1] + 8*k + 4, 4)}, {v(vBf[k])} offset:{j*8192 + 4096}")
    return p
def u_mm(j, ks):
    p = Prog()
    for k in ks:
        c_re = "0" if (j == 0 and k == 0) else v(vU_RE, 16)
        c_im = "0" if (j == 0 and k == 0) else v(vU_IM, 16)
        p(f"v_mfma_f32_32x32x16_bf16 {v(vU_RE,16)}, {a(aXF + 16*j + 4*k, 4)}, {v(vBB[j&1] + 8*k, 4)}, {c_re}")
        p(f"v_mfma_f32_32x32x16_bf16 {v(vU_IM,16)}, {a(aXF + 16*j + 4*k, 4)}, {v(vBB[j&1] + 8*k + 4, 4)}, {c_im}")
    return p
E.waitvm("xb0")
E("s_barrier")
stamp("xb0 landed")
E.extend(u_reads(0))
for j in range(8):
    E.mark(f"U chunk {j}")
    if j in (3, 5):
        for k in range(4): F[j](f"v_add_u32 {v(vXf[k])}, {65536 if j == 3 else -65536}, {v(vXf[k])}")
    E.extend(weave(u_mm(j, (0, 1)), F[j], every=1, per=4))
    if j < 7:
        E.waitvm(f"xb{j+1}")
        E("s_barrier")
        if j in (1, 3, 5): stamp(f"xb{j+1} landed")
        E.extend(weave(u_mm(j, (2, 3)), u_reads(j+1), every=1, per=3))
    else:
        E.extend(u_mm(j, (2, 3)))
    E.mark(f"xr{j}")
stamp("U done")
dump("U", [v(vU_RE+i) for i in range(32)])

tA, tB, tC, tD = 192, 194, 196, 198
for m in range(8):
    r, i = vU_RE + 2*m, vU_IM + 2*m
    E(f"v_pk_mul_f32 {v(tA+4*(m&1),2)}, {v(r,2)}, {v(vCOEF,2)} {HI2}")
    E(f"v_pk_mul_f32 {v(r,2)}, {v(r,2)}, {v(vCOEF,2)} {LO2}")
    E(f"v_pk_fma_f32 {v(r,2)}, {v(i,2)}, {v(vCOEF,2)}, {v(r,2)} {HI} {NEG1}")
    E(f"v_pk_fma_f32 {v(i,2)}, {v(i,2)}, {v(vCOEF,2)}, {v(tA+4*(m&1),2)} {LO}")
er, ei = vU_RE, vU_IM
pp = [(tA, tB), (tC, tD)]
for m in range(1, 8):
    nr, ni = pp[m & 1]
    E(f"v_pk_fma_f32 {v(nr,2)}, {v(er,2)}, {v(vLAM,2)}, {v(vU_RE+2*m,2)} {LO}")
    E(f"v_pk_fma_f32 {v(ni,2)}, {v(ei,2)}, {v(vLAM,2)}, {v(vU_IM+2*m,2)} {LO}")
    E(f"v_pk_fma_f32 {v(nr,2)}, {v(ei,2)}, {v(vLAM,2)}, {v(nr,2)} {HI} {NEG1}")
    E(f"v_pk_fma_f32 {v(ni,2)}, {v(er,2)}, {v(vLAM,2)}, {v(ni,2)} {HI}")
    er, ei = nr, ni
eA, e16, e16h, e32 = 200, 202, 204, 206
E(f"""
v_fma_f32 {v(e16)}, {v(vL8)}, {v(er)}, {v(er+1)}
v_fma_f32 {v(e16+1)}, {v(vL8)}, {v(ei)}, {v(ei+1)}
v_fma_f32 {v(e16)}, -{v(vL8+1)}, {v(ei)}, {v(e16)}
v_fma_f32 {v(e16+1)}, {v(vL8+1)}, {v(er)}, {v(e16+1)}
v_mov_b32 {v(eA)}, {v(er)}
v_mov_b32 {v(e16h)}, {v(e16)}
v_mov_b32 {v(e16h+1)}, {v(e16+1)}
v_mov_b32 {v(eA+1)}, {v(ei)}
v_permlane32_swap_b32 {v(e16)}, {v(e16h)}
v_permlane32_swap_b32 {v(e16+1)}, {v(e16h+1)}
""")
cmul_add(E, e32, e16, vL16p, e16h)
E(f"ds_write_b64 {v(vXW)}, {v(e32,2)}")
E.waitlg(None)
stamp("scan1")
E.waitvm("w0")
E("s_barrier")
E.mark("barA")
stamp("barA")
K = Prog()
eW = [208, 210, 212, 214]
for w in range(4):
    K(f"ds_read_b64 {v(eW[w],2)}, {v(vXR)} offset:{w*256}")
K(f"""
v_mov_b32 {v(vALR)}, {v(vALR0)}
v_mov_b32 {v(vALR+1)}, {v(vALR0+1)}
v_mov_b32 {v(vALI)}, {v(vALI0)}
v_mov_b32 {v(vALI+1)}, {v(vALI0+1)}
v_lshl_or_b32 {v(vT2)}, {v(vHI)}, 12, {v(vEL)}
v_and_b32 {v(vT2)}, 0x10ff, {v(vT2)}
""")
p2, p3, e128 = 216, 218, 220
cmul_add(K, p2, eW[0], vL32, eW[1])
cmul_add(K, p3, p2, vL32, eW[2])
cmul_add(K, e128, p3, vL32, eW[3])
K(f"""
v_cndmask_b32 {v(e128)}, {v(e128)}, 0, {sHI}
v_cndmask_b32 {v(e128+1)}, {v(e128+1)}, 0, {sHI}
v_bfi_b32 {v(e128)}, {sFF}, {v(vTAG)}, {v(e128)}
buffer_store_dwordx2 {v(e128,2)}, {v(vT2)}, {SRD_WS}, {sEP} offen sc1
""")
pw, pb = 222, 224
K(f"""
v_cndmask_b32 {v(pw)}, 0, {v(eW[0])}, {sM1}
v_cndmask_b32 {v(pw+1)}, 0, {v(eW[0]+1)}, {sM1}
v_cndmask_b32 {v(pw)}, {v(pw)}, {v(p2)}, {sM2}
v_cndmask_b32 {v(pw+1)}, {v(pw+1)}, {v(p2+1)}, {sM2}
v_cndmask_b32 {v(pw)}, {v(pw)}, {v(p3)}, {sM3}
v_cndmask_b32 {v(pw+1)}, {v(pw+1)}, {v(p3+1)}, {sM3}
""")
cmul_add(K, pb, pw, vL16p, e16)
K(f"v_cndmask_b32 {v(vBER)}, {v(pw)}, {v(pb)}, {sHI}")
K(f"v_cndmask_b32 {v(vBEI)}, {v(pw+1)}, {v(pb+1)}, {sHI}")
K(f"""
v_fma_f32 {v(vBER+1)}, {v(vL8)}, {v(vBER)}, {v(eA)}
v_fma_f32 {v(vBEI+1)}, {v(vL8)}, {v(vBEI)}, {v(eA+1)}
v_fma_f32 {v(vBER+1)}, -{v(vL8+1)}, {v(vBEI)}, {v(vBER+1)}
v_fma_f32 {v(vBEI+1)}, {v(vL8+1)}, {v(vBER)}, {v(vBEI+1)}
""")
if OPT["osent"] and OPT["sentpos"] == 0:
    for i in range(4): K(f"v_mov_b32 {v(184+i)}, -1")
    for b in range(2): K(f"buffer_store_dwordx4 {v(184,4)}, {v(vL16)}, {SRD_WS}, {sOS} offen offset:{b*1024} sc1")
if OPT["wopf"]:
    K(f"""
    v_lshrrev_b32 {v(244)}, 1, {v(vL)}
    v_and_b32 {v(245)}, 1, {v(vL)}
    v_lshlrev_b32 {v(245)}, 6, {v(245)}
    s_lshl_b32 {sT2}, {sCT}, 7
    v_lshl_or_b32 {v(244)}, {v(244)}, 10, {v(245)}
    v_add_u32 {v(244)}, {sT2}, {v(244)}
    """)
    K.mark("wopf_ok")
K.extend(G3)
K(f"""
s_lshl_b32 {sT2}, {sW}, 13
s_add_u32 {sT2}, {sT2}, {S1}
v_mul_u32_u24 {v(vT)}, 80, {v(vL)}
v_add_u32 {v(vPhW)}, {sT2}, {v(vT)}
s_add_u32 {sT3}, {sT2}, 5120
v_add_u32 {v(vVW)}, {sT3}, {v(vL16)}
s_add_u32 {sT2}, {sT2}, {S2 - S1}
v_and_b32 {v(vT)}, 31, {v(vL)}
v_mul_u32_u24 {v(vT)}, 80, {v(vT)}
v_lshl_add_u32 {v(vT)}, {v(vHI)}, 5, {v(vT)}
v_add_u32 {v(vHW)}, {sT2}, {v(vT)}
v_bfe_u32 {v(vT)}, {v(vL)}, 2, 2
v_lshl_or_b32 {v(vT)}, {v(vHI)}, 3, {v(vT)}
v_mul_u32_u24 {v(vT)}, 80, {v(vT)}
v_and_b32 {v(vT2)}, 63, {v(vTRq)}
v_add3_u32 {v(vHR)}, {sT2}, {v(vT)}, {v(vT2)}
v_bfe_u32 {v(vT)}, {v(vL)}, 2, 3
v_lshl_or_b32 {v(vT)}, {v(vHI)}, 4, {v(vT)}
v_mul_u32_u24 {v(vT)}, 80, {v(vT)}
v_and_b32 {v(vT2)}, 3, {v(vL)}
v_lshl_add_u32 {v(vT)}, {v(vT2)}, 3, {v(vT)}
s_and_b32 {sT0}, {sW}, 1
s_lshr_b32 {sT1}, {sW}, 1
s_mul_i32 {sT2}, {sT0}, 2560
s_lshl_b32 {sT3}, {sT1}, 5
s_add_u32 {sT2}, {sT2}, {sT3}
s_add_u32 {sT2}, {sT2}, {S1}
v_add_u32 {v(vPhR)}, {sT2}, {v(vT)}
v_and_b32 {v(vT)}, 15, {v(vL)}
v_bfe_u32 {v(vT2)}, {v(vL)}, 4, 1
v_lshl_or_b32 {v(vT)}, {v(vT2)}, 5, {v(vT)}
v_lshlrev_b32 {v(vT)}, 4, {v(vT)}
v_lshl_or_b32 {v(vT)}, {v(vHI)}, 10, {v(vT)}
s_lshl_b32 {sT2}, {sT0}, 8
s_add_u32 {sT2}, {sT2}, {S1 + 5120}
v_add_u32 {v(vVR)}, {sT2}, {v(vT)}
s_and_b32 {sT2}, {sRB}, 3
s_lshl_b32 {sT2}, {sT2}, 12
s_add_u32 s72, {sKV}, {sT2}
s_xor_b32 s73, s72, 4096
s_xor_b32 s74, s72, 8192
s_xor_b32 s75, s72, 12288
""")

def kv_reads(p, n):
    j, k = n >> 2, n & 3
    for m in range(2):
        for rd in range(2):
            off = (j >> 1)*16384 + k*4096 + (j & 1)*2048 + m*1024 + rd*256
            p(f"ds_read_b64_tr_b16 {v(vFR + (n&3)*8 + 4*m + 2*rd, 2)}, {v(vTRkv)} offset:{off}")
AH = 3
KV = Prog()
for n in range(AH): kv_reads(KV, n)
for n in range(32):
    xf = a(aXF + 4*n, 4)
    fr = vFR + (n & 3)*8
    KV(f"v_mfma_f32_32x32x16_bf16 {v(vKT,16)}, {v(fr,4)}, {xf}, {'0' if n == 0 else v(vKT,16)}")
    nn = n + AH
    if nn < 32 and nn % 8 == 0:
        KV.waitvm(f"w{nn//8}")
        KV("s_barrier")
        if nn == 8: KV.mark("xchdone")
    KV(f"v_mfma_f32_32x32x16_bf16 {v(vVV,16)}, {xf}, {v(fr+4,4)}, {'0' if n == 0 else v(vVV,16)}")
    if nn < 32: kv_reads(KV, nn)
    if n == OPT["epos"]: KV.mark("e_ok")
cnt = [0]
def kpred(c):
    if c.kind != "mfma": return False
    cnt[0] += 1
    return cnt[0] % 2 == 1
def weave_locked(mainp, side, pred, per):
    out = []; si = 0; S = side.ins
    for m in mainp.ins:
        out.append(m)
        if pred(m):
            k = per
            while k > 0 and si < len(S):
                if S[si].kind == "pseudo" and S[si].pseudo == "lock":
                    while not (S[si].kind == "pseudo" and S[si].pseudo == "unlock"):
                        out.append(S[si]); si += 1
                    out.append(S[si]); si += 1; k = 0
                else:
                    out.append(S[si])
                    if S[si].kind != "pseudo": k -= 1
                    si += 1
    out.extend(S[si:])
    p = Prog(); p.ins = out
    return p
E.extend(weave_locked(KV, K, kpred, 4))
dump("kT", [v(vKT+i) for i in range(16)])
dump("v", [v(vVV+i) for i in range(16)])
stamp("kv done")

def softmax(p, src, dst, ap, am, mn, mid=None):
    for i in range(8):
        p(f"v_cvt_pk_bf16_f32 {v(am+i)}, {v(src+2*i)}, {v(src+2*i+1)}")
    p(f"v_mfma_f32_32x32x16_bf16 {v(ap,16)}, {v(vA1,4)}, {v(am,4)}, 0")
    p(f"v_mfma_f32_32x32x16_bf16 {v(ap,16)}, {v(vA2,4)}, {v(am+4,4)}, {v(ap,16)}")
    if mid is not None: p.extend(mid)
    for i in range(8):
        p(f"v_cvt_pk_bf16_f32 {v(am+i)}, {v(ap+2*i)}, {v(ap+2*i+1)}")
    for i in range(8):
        p(f"v_lshlrev_b32 {v(src+2*i)}, 16, {v(am+i)}")
        p(f"v_and_b32 {v(src+2*i+1)}, {sHM}, {v(am+i)}")
    p(f"v_max3_f32 {v(mn)}, {v(src)}, {v(src+1)}, {v(src+2)}")
    p(f"v_min3_f32 {v(mn+1)}, {v(src)}, {v(src+1)}, {v(src+2)}")
    for i in range(3, 15, 2):
        p(f"v_max3_f32 {v(mn)}, {v(mn)}, {v(src+i)}, {v(src+i+1)}")
        p(f"v_min3_f32 {v(mn+1)}, {v(mn+1)}, {v(src+i)}, {v(src+i+1)}")
    p(f"v_max_f32 {v(mn)}, {v(mn)}, {v(src+15)}")
    p(f"v_min_f32 {v(mn+1)}, {v(mn+1)}, {v(src+15)}")
    p(f"v_pk_mul_f32 {v(mn,2)}, {v(mn,2)}, {sL2E} neg_lo:[1,0]")
    for i in range(8):
        p(f"v_pk_fma_f32 {v(ap+2*i,2)}, {v(src+2*i,2)}, {sL2E}, {v(mn,2)} op_sel:[0,0,0] op_sel_hi:[1,1,0]")
        p(f"v_pk_fma_f32 {v(am+2*i,2)}, {v(src+2*i,2)}, {sL2E}, {v(mn,2)} op_sel:[0,0,1] op_sel_hi:[1,1,1] neg_lo:[1,0,0] neg_hi:[1,0,0]")
    for i in range(16):
        p(f"v_exp_f32 {v(ap+i)}, {v(ap+i)}")
        p(f"v_exp_f32 {v(am+i)}, {v(am+i)}")
    for i in range(4):
        p(f"v_pk_add_f32 {v(src+2*i,2)}, {v(ap+4*i,2)}, {v(ap+4*i+2,2)}")
        p(f"v_pk_add_f32 {v(src+8+2*i,2)}, {v(am+4*i,2)}, {v(am+4*i+2,2)}")
    for b in (0, 8):
        p(f"v_pk_add_f32 {v(src+b,2)}, {v(src+b,2)}, {v(src+b+2,2)}")
        p(f"v_pk_add_f32 {v(src+b+4,2)}, {v(src+b+4,2)}, {v(src+b+6,2)}")
    for b in (0, 8):
        p(f"v_pk_add_f32 {v(src+b,2)}, {v(src+b,2)}, {v(src+b+4,2)}")
    p(f"v_add_f32 {v(mn)}, {v(src)}, {v(src+1)}")
    p(f"v_add_f32 {v(mn+1)}, {v(src+8)}, {v(src+9)}")
    p(f"v_rcp_f32 {v(mn)}, {v(mn)}")
    p(f"v_rcp_f32 {v(mn+1)}, {v(mn+1)}")
    for i in range(8):
        p(f"v_pk_mul_f32 {v(ap+2*i,2)}, {v(ap+2*i,2)}, {v(mn,2)} {LO2}")
        p(f"v_pk_mul_f32 {v(am+2*i,2)}, {v(am+2*i,2)}, {v(mn,2)} {HI2}")
    for i in range(8):
        p(f"v_cvt_pk_bf16_f32 {v(dst+i)}, {v(ap+2*i)}, {v(ap+2*i+1)}")
    for i in range(8):
        p(f"v_cvt_pk_bf16_f32 {v(dst+8+i)}, {v(am+2*i)}, {v(am+2*i+1)}")

vVP = vFR
vPHK = 152
mid = Prog()
for i in range(8):
    mid(f"v_cvt_pk_bf16_f32 {v(vVP+i)}, {v(vVV+2*i)}, {v(vVV+2*i+1)}")
mid(f"ds_write_b128 {v(vVW)}, {v(vVP,4)}")
mid(f"ds_write_b128 {v(vVW)}, {v(vVP+4,4)} offset:1024")
softmax(E, vKT, vPHK, 176, vQT, 168, mid)
dump("phik", [v(vPHK+i) for i in range(16)])
for q in range(4):
    E(f"ds_write_b128 {v(vPhW)}, {v(vPHK+4*q,4)} offset:{16*q}")
vKA, vKB, vONE, vKD, vZD = 96, 112, 172, 128, 132
for i in range(4):
    E(f"v_mov_b32 {v(vONE+i)}, 0x3f803f80")
def e_check(p):
    p(f"v_xor_b32 {v(vT)}, {v(vTAG)}, {v(vEQ)}")
    for k in range(1, 8):
        p(f"v_bitop3_b32 {v(vT)}, {v(vEQ+2*k)}, {v(vTAG)}, {v(vT)} bitop3:0xbe")
    p(f"v_and_b32 {v(vT)}, {sFF}, {v(vT)}")
    p(f"v_cmp_ne_u32 vcc, 0, {v(vT)}")
E.waitvm("eld")
spin("e", e_loads, e_check)
E.waitlg(None)
stamp("softmax k")
E.waitvm("wq")
E("s_barrier")
for sw in range(4):
    for rd in range(2):
        E(f"ds_read_b64_tr_b16 {v(vKA + 4*sw + 2*rd, 2)}, {v(vPhR)} offset:{sw*8192 + rd*640}")
    E(f"ds_read_b128 {v(vKB + 4*sw, 4)}, {v(vVR)} offset:{sw*8192}")
hq = [240, 242]
CI = Prog()
cur = vEQ + 14
for k in range(6, -1, -1):
    cmul_add(CI, vEQ + 2*k, cur, vMU2, vEQ + 2*k)
    cur = vEQ + 2*k
CI(f"""
v_mov_b32 {v(hq[0])}, {v(cur)}
v_mov_b32 {v(hq[0]+1)}, {v(cur+1)}
v_and_b32 {v(vT)}, 0x30, {v(vL)}
v_permlane32_swap_b32 {v(cur)}, {v(hq[0])}
v_permlane32_swap_b32 {v(cur+1)}, {v(hq[0]+1)}
""")
cmul_add(CI, cur, hq[0], vMU, cur)
E.extend(CI.ins[:8])
KP = Prog()
for sw in range(4):
    KP(f"v_mfma_f32_16x16x32_bf16 {v(vKD,4)}, {v(vKA+4*sw,4)}, {v(vKB+4*sw,4)}, {'0' if sw == 0 else v(vKD,4)}")
    KP(f"v_mfma_f32_16x16x32_bf16 {v(vZD,4)}, {v(vKA+4*sw,4)}, {v(vONE,4)}, {'0' if sw == 0 else v(vZD,4)}")
E.extend(weave(KP, CI.ins[8:], every=1, per=2))
E(f"""
v_bfi_b32 {v(vKD)}, {sFF}, {v(vTAG)}, {v(vKD)}
v_bfi_b32 {v(vZD)}, {sFF}, {v(vTAG)}, {v(vZD)}
buffer_store_dwordx4 {v(vKD,4)}, {v(vL16)}, {SRD_WS}, {sKVP} offen sc1
""")
E.lock()
E(f"""
s_mov_b32 exec_lo, 0x10001
s_mov_b32 exec_hi, 0x10001
buffer_store_dwordx4 {v(vZD,4)}, {v(vT)}, {SRD_WS}, {sZPP} offen sc1
s_mov_b64 exec, -1
""")
E.ins[-2].lines = 1
E.unlock()
stamp("kvpub")
E(f"""
v_pk_fma_f32 {v(vBER,2)}, {v(vALR,2)}, {v(cur,2)}, {v(vBER,2)} {LO}
v_pk_fma_f32 {v(vBEI,2)}, {v(vALI,2)}, {v(cur,2)}, {v(vBEI,2)} {LO}
v_pk_fma_f32 {v(vBER,2)}, {v(vALI,2)}, {v(cur,2)}, {v(vBER,2)} {HI} {NEG1}
v_pk_fma_f32 {v(vBEI,2)}, {v(vALR,2)}, {v(cur,2)}, {v(vBEI,2)} {HI}
""")
hr, hi_ = vBER, vBEI
for m in range(8):
    r, i = vU_RE + 2*m, vU_IM + 2*m
    E(f"v_pk_fma_f32 {v(r,2)}, {v(hr,2)}, {v(vLAM,2)}, {v(r,2)} {LO}")
    E(f"v_pk_fma_f32 {v(i,2)}, {v(hi_,2)}, {v(vLAM,2)}, {v(i,2)} {LO}")
    E(f"v_pk_fma_f32 {v(r,2)}, {v(hi_,2)}, {v(vLAM,2)}, {v(r,2)} {HI} {NEG1}")
    E(f"v_pk_fma_f32 {v(i,2)}, {v(hr,2)}, {v(vLAM,2)}, {v(i,2)} {HI}")
    hr, hi_ = r, i
dump("h", [v(vU_RE+i) for i in range(32)])
vHP = 224
for par in range(2):
    for i in range(4):
        E(f"v_cvt_pk_bf16_f32 {v(vHP + 4*par + i)}, {v(vU_RE + 4*i + par)}, {v(vU_RE + 4*i + 2 + par)}")
E(f"ds_write_b128 {v(vHW)}, {v(vHP,4)}")
E(f"ds_write_b128 {v(vHW)}, {v(vHP+4,4)} offset:16")
for par in range(2):
    for i in range(4):
        E(f"v_cvt_pk_bf16_f32 {v(vHP + 8 + 4*par + i)}, -{v(vU_IM + 4*i + par)}, -{v(vU_IM + 4*i + 2 + par)}")
E(f"ds_write_b128 {v(vHW)}, {v(vHP+8,4)} offset:2560")
E(f"ds_write_b128 {v(vHW)}, {v(vHP+12,4)} offset:2576")
vHF = 240
for k in range(4):
    for rd in range(2):
        E(f"ds_read_b64_tr_b16 {v(vHF + 4*k + 2*rd, 2)}, {v(vHR)} offset:{(16*k + 4*rd)*80}")
vQF = 208
def q_reads(p, n):
    j, k = n >> 2, n & 3
    for rd in range(2):
        off = (j >> 2)*16384 + k*4096 + (j & 3)*1024 + rd*256
        p(f"ds_read_b64_tr_b16 {v(vQF + (n%7)*4 + 2*rd, 2)}, {v(vTRq)} offset:{off}")
AHQ = 5
vSENT = 164
if OPT["osent"] and OPT["sentpos"] == 1:
    for i in range(4): E(f"v_mov_b32 {v(vSENT+i)}, -1")
for n in range(AHQ): q_reads(E, n)
stamp("scan2")
def flag_store(p, base, tok):
    p.waitvm(tok)
    p.lock()
    p(f"""
    s_mov_b64 exec, 1
    v_mov_b32 {v(vT)}, {base}
    buffer_store_dword {v(vTAG)}, {v(vT)}, {SRD_WS}, {sFL} offen sc1
    s_mov_b64 exec, -1
    """)
    p.ins[-2].lines = 1
    p.unlock()
vQT2 = 176
Q = Prog()
for n in range(32):
    Q(f"v_mfma_f32_32x32x16_bf16 {v(vQT2,16)}, {v(vQF + (n%7)*4,4)}, {a(aXF + 4*n, 4)}, {'0' if n == 0 else v(vQT2,16)}")
    if n == OPT["gpos"]: Q.mark("gather_ok")
    if n + AHQ < 32: q_reads(Q, n + AHQ)
    if n < 4:
        Q(f"buffer_store_dwordx4 {v(vHF+4*n,4)}, {v(vL16)}, {SRD_WS}, {sHS} offen offset:{n*1024} sc1", tok="hst")
    if OPT["osent"] and OPT["sentpos"] == 1 and 4 <= n < 6:
        Q(f"buffer_store_dwordx4 {v(vSENT,4)}, {v(vL16)}, {SRD_WS}, {sOS} offen offset:{(n-4)*1024} sc1", tok="hst")
    if n == OPT["fhst"]: flag_store(Q, W_FH, "hst")
vTW, vTZ, vTZ2, vTN, vTD, vOA = 8, 9, 20, 21, 0, 34
vQT_ = 47
QF = Prog()
QF(f"""
s_and_b32 {sT0}, {sW}, 1
v_and_b32 {v(vQT_)}, 31, {v(vL)}
s_lshl_b32 {sT2}, {sCT}, 7
s_lshl_b32 {sT3}, {sT0}, 6
s_add_u32 {sT2}, {sT2}, {sT3}
""")
if TL:
    QF(f"""
    v_and_b32 {v(vDA)}, 7, {v(vL)}
    v_lshl_add_u32 {v(vDA)}, {v(vDA)}, 3, {sT2}
    s_lshl_b32 {sT3}, {sRA0}, 5
    v_lshrrev_b32 {v(vOUT)}, 3, {v(vL)}
    v_add_u32 {v(vOUT)}, {sT3}, {v(vOUT)}
    v_lshl_add_u32 {v(vOUT)}, {v(vOUT)}, 10, {v(vDA)}
    s_mov_b32 s78, 8192
    s_mov_b32 s79, 16384
    s_mov_b32 s80, 24576
    """)
else:
    QF(f"""
    v_lshl_add_u32 {v(vDA)}, {v(vHI)}, 3, {sT2}
    s_lshl_b32 {sT3}, {sRA0}, 5
    v_add_u32 {v(vOUT)}, {sT3}, {v(vQT_)}
    v_lshl_add_u32 {v(vOUT)}, {v(vOUT)}, 10, {v(vDA)}
    """)
QF.mark("xd_ok")
QF(f"""
s_lshl_b32 {sT2}, {sRA0}, 7
s_add_u32 {sT2}, {sT2}, {W_G}
v_lshl_add_u32 {v(vGL[0])}, {v(vQT_)}, 2, {sT2}
v_xor_b32 {v(vGL[1])}, 128, {v(vGL[0])}
""")
QF.mark("gl_ok")
QF(f"""
s_lshr_b32 {sT1}, {sW}, 1
s_mul_i32 {sT2}, {sT0}, 1280
s_lshl_b32 {sT3}, {sT1}, 5
s_add_u32 {sT2}, {sT2}, {sT3}
s_add_u32 {sT2}, {sT2}, {TAB}
v_and_b32 {v(vTZ2)}, 15, {v(vL)}
v_mul_u32_u24 {v(vTW)}, 80, {v(vTZ2)}
v_lshrrev_b32 {v(vT2)}, 4, {v(vL)}
v_lshl_add_u32 {v(vTW)}, {v(vT2)}, 3, {v(vTW)}
v_add_u32 {v(vTW)}, {sT2}, {v(vTW)}
s_mul_i32 {sT2}, {sT0}, 80
s_add_u32 {sT2}, {sT2}, {sT3}
s_add_u32 {sT2}, {sT2}, {TAB + 32*80}
v_and_b32 {v(vTN)}, 3, {v(vL)}
v_lshlrev_b32 {v(vTZ)}, 3, {v(vTN)}
v_bfe_u32 {v(vT2)}, {v(vL)}, 4, 1
v_lshl_or_b32 {v(vTZ)}, {v(vT2)}, 2, {v(vTZ)}
v_lshl_or_b32 {v(vTZ)}, {v(vHI)}, 1, {v(vTZ)}
v_add_u32 {v(vTZ)}, {sT2}, {v(vTZ)}
v_lshlrev_b32 {v(vTZ2)}, 2, {v(vTZ2)}
v_add_u32 {v(vTZ2)}, {TAB + 34*80}, {v(vTZ2)}
v_bfe_u32 {v(vOA)}, {v(vL)}, 3, 2
v_lshl_add_u32 {v(vTN)}, {v(vOA)}, 2, {v(vTN)}
v_lshl_add_u32 {v(vTN)}, {v(vHI)}, 4, {v(vTN)}
v_mul_u32_u24 {v(vTN)}, 80, {v(vTN)}
v_add_u32 {v(vTN)}, {TAB}, {v(vTN)}
v_mul_u32_u24 {v(vTD)}, 80, {v(vHI)}
v_add_u32 {v(vTD)}, {TAB + 32*80}, {v(vTD)}
v_mov_b32 {v(vT2)}, {TAB + 34*80}
s_mov_b32 s76, 0xf0f0f0f0
s_mov_b32 s77, 0x0f0f0f0f
v_cndmask_b32 {v(vTN)}, {v(vTN)}, {v(vT2)}, s[76:77]
v_cndmask_b32 {v(vTD)}, {v(vTD)}, {v(vT2)}, s[76:77]
v_bfe_u32 {v(vT2)}, {v(vL)}, 1, 1
v_lshl_or_b32 {v(vOA)}, {v(vOA)}, 1, {v(vT2)}
v_and_b32 {v(vT2)}, 1, {v(vL)}
v_lshl_or_b32 {v(vOA)}, {v(vT2)}, 3, {v(vOA)}
v_bfe_u32 {v(vT2)}, {v(vL)}, 2, 1
v_lshl_or_b32 {v(vOA)}, {v(vT2)}, 4, {v(vOA)}
v_lshl_or_b32 {v(vOA)}, {v(vHI)}, 5, {v(vOA)}
v_lshlrev_b32 {v(vOA)}, 4, {v(vOA)}
s_lshr_b32 {sT2}, {sRA0}, 3
s_lshl_b32 {sT2}, {sT2}, 19
s_and_b32 {sT3}, {sRA0}, 7
s_lshl_b32 {sT3}, {sT3}, 12
s_add_u32 {sT2}, {sT2}, {sT3}
s_add_u32 {sT2}, {sT2}, {W_H}
""")
if OPT["crot"]:
    QF(f"""
    s_lshr_b32 {sT3}, {sCT}, 2
    s_add_u32 {sT3}, {sT3}, {sCT}
    s_add_u32 {sT3}, {sT3}, {sCG}
    s_and_b32 {sT3}, {sT3}, 1
    s_lshl_b32 {sT3}, {sT3}, 11
    s_add_u32 {sT2}, {sT2}, {sT3}
    """)
QF(f"""
v_add_u32 {v(vAH[0])}, {sT2}, {v(vL16)}
v_xor_b32 {v(vAH[1])}, 4096, {v(vAH[0])}
{"v_xor_b32 %s, 2048, %s" % (v(vAH2[0]), v(vAH[0])) if OPT["crot"] else ""}
{"v_xor_b32 %s, 2048, %s" % (v(vAH2[1]), v(vAH[1])) if OPT["crot"] else ""}
s_lshr_b32 {sT2}, {sRA0}, 4
s_lshl_b32 {sT2}, {sT2}, 19
s_and_b32 {sT3}, {sRA0}, 15
s_lshl_b32 {sT3}, {sT3}, 11
s_add_u32 {sT2}, {sT2}, {sT3}
s_add_u32 {sT2}, {sT2}, {W_O}
v_add_u32 {v(vAO[0])}, {sT2}, {v(vL16)}
v_xor_b32 {v(vAO[1])}, 2048, {v(vAO[0])}
""")
E.extend(weave_locked(Q, QF, ismf, 2))
dump("qT", [v(vQT2+i) for i in range(16)])
stamp("q done")
if OPT["gpos"] >= 32: E.mark("gather_ok")

vPQ = 224
SQ = Prog()
softmax(SQ, vQT2, vPQ, vU_RE, vU_IM, 164)
cut = min(len(SQ.ins), OPT["fold"] * 10)
E.extend(SQ.ins[:cut]); E.mark("fh_ld"); E.extend(SQ.ins[cut:])
dump("phiq", [v(vPQ+i) for i in range(16)])
stamp("softmax q")
tX, tDk = 208, 176
if not TL:
    E.drain("dk3")
    for i in range(8):
        E(f"v_lshlrev_b32 {v(tX+2*i)}, 16, {v(vXD+i)}")
        E(f"v_and_b32 {v(tX+2*i+1)}, {sHM}, {v(vXD+i)}")
        E(f"v_lshlrev_b32 {v(tDk+2*i)}, 16, {v(vDK+i)}")
        E(f"v_and_b32 {v(tDk+2*i+1)}, {sHM}, {v(vDK+i)}")
    for i in range(8):
        E(f"v_pk_mul_f32 {v(tX+2*i,2)}, {v(tX+2*i,2)}, {v(tDk+2*i,2)}")
    for i in range(8):
        E(f"v_cvt_pk_bf16_f32 {v(tDk+i)}, {v(tX+2*i)}, {v(tX+2*i+1)}")
    for i in range(8):
        E(f"v_lshlrev_b32 {v(vACC+2*i)}, 16, {v(tDk+i)}")
        E(f"v_and_b32 {v(vACC+2*i+1)}, {sHM}, {v(tDk+i)}")
    for i in range(8):
        E(f"v_pk_mul_f32 {v(vACC+2*i,2)}, {v(vACC+2*i,2)}, 0.5 op_sel_hi:[1,0]")
    E(f"v_lshlrev_b32 {v(vOUT)}, 1, {v(vOUT)}")

def g_check(p):
    p(f"v_xor_b32 {v(vT)}, {v(vTAG)}, {v(vGZ)}")
    for r in range(16):
        p(f"v_bitop3_b32 {v(vT)}, {v(vGA+4*r)}, {v(vTAG)}, {v(vT)} bitop3:0xbe")
    p(f"v_and_b32 {v(vT)}, {sFF}, {v(vT)}")
    p(f"v_cmp_ne_u32 vcc, 0, {v(vT)}")
E.drain("fhl")
E.waitvm("gld")
spin("kv", gather_loads, g_check)
def fh_load(p): p(FH_LOAD)
def fl_check(p): p(f"v_cmp_ne_u32 vcc, {sTAG}, {v(vFLG)}")
spin("fh", fh_load, fl_check)
E.mark("fh_ok")
stamp("gather ok")
if not OPT["osent"]: E(f"v_add_u32 {v(vFLA)}, {W_FO - W_FH}, {v(vFLA)}")
st = 32
while st >= 4:
    for b in range(0, st, 4):
        for h in range(2):
            E(f"v_pk_add_f32 {v(vGA+b+2*h,2)}, {v(vGA+b+2*h,2)}, {v(vGA+b+st+2*h,2)}")
    st //= 2
E(f"""
v_permlane32_swap_b32 {v(vGZ)}, {v(vGZ+1)}
v_permlane32_swap_b32 {v(vGZ+2)}, {v(vGZ+3)}
v_cvt_pk_bf16_f32 {v(vGA)}, {v(vGA)}, {v(vGA+1)}
v_cvt_pk_bf16_f32 {v(vGA+1)}, {v(vGA+2)}, {v(vGA+3)}
v_add_f32 {v(vGZ)}, {v(vGZ)}, {v(vGZ+1)}
v_add_f32 {v(vGZ+2)}, {v(vGZ+2)}, {v(vGZ+3)}
ds_write_b64 {v(vTW)}, {v(vGA,2)}
v_mov_b32 {v(vGZ+1)}, 0
v_permlane16_swap_b32 {v(vGZ)}, {v(vGZ+2)}
v_add_f32 {v(vGZ)}, {v(vGZ)}, {v(vGZ+2)}
ds_write_b32 {v(vTZ2)}, {v(vGZ+1)}
v_add_f32_dpp {v(vGZ)}, {v(vGZ)}, {v(vGZ)} row_ror:8 row_mask:0xf bank_mask:0xf
v_add_f32_dpp {v(vGZ)}, {v(vGZ)}, {v(vGZ)} row_ror:4 row_mask:0xf bank_mask:0xf
v_cvt_pk_bf16_f32 {v(vGZ)}, {v(vGZ)}, {v(vGZ)}
ds_write_b16 {v(vTZ)}, {v(vGZ)}
""")
def gg_check(p):
    p(f"v_xor_b32 {v(vT)}, {v(vTAG)}, {v(vGv[0])}")
    p(f"v_bitop3_b32 {v(vT)}, {v(vGv[1])}, {v(vTAG)}, {v(vT)} bitop3:0xbe")
    p(f"v_and_b32 {v(vT)}, {sFFFF}, {v(vT)}")
    p(f"v_cmp_ne_u32 vcc, 0, {v(vT)}")
spin("g", gg_load, gg_check)
E.waitlg(None)
E("s_barrier")
vTA, vTB, vNUM, vDEN = 104, 120, 136, 152
for s_ in range(4):
    E(f"ds_read_b128 {v(vTB+4*s_,4)}, {v(vTD)} offset:{16*s_}")
for s_ in range(4):
    E(f"ds_read_b128 {v(vTA+4*s_,4)}, {v(vTN)} offset:{16*s_}")
GR = Prog()
for ra in range(2):
    g_, r_ = vGv[ra], vRT[ra]
    GR(f"""
    v_and_b32 {v(g_)}, {sHM}, {v(g_)}
    v_sub_f32 {v(r_)}, 1.0, {v(g_)}
    v_max_f32 {v(g_)}, 0x0da24260, {v(g_)}
    v_cvt_pk_bf16_f32 {v(r_)}, {v(r_)}, {v(r_)}
    v_rcp_f32 {v(r_+1)}, {v(g_)}
    v_and_b32 {v(r_)}, {sHM}, {v(r_)}
    v_add_f32 {v(r_)}, {v(r_)}, {v(r_)}
    v_mul_f32 {v(r_)}, {v(r_)}, {v(r_+1)}
    """)
E.extend(GR.ins[:8])
DN = Prog()
for s_ in range(4):
    DN(f"v_mfma_f32_32x32x16_bf16 {v(vDEN,16)}, {v(vTB+4*s_,4)}, {v(vPQ+4*s_,4)}, {'0' if s_ == 0 else v(vDEN,16)}")
for s_ in range(4):
    DN(f"v_mfma_f32_32x32x16_bf16 {v(vNUM,16)}, {v(vTA+4*s_,4)}, {v(vPQ+4*s_,4)}, {'0' if s_ == 0 else v(vNUM,16)}")
E.extend(weave(DN, GR.ins[8:], every=1, per=4))
E.drainaux(8)
E(f"""
v_cvt_pk_bf16_f32 {v(vDEN)}, {v(vDEN)}, {v(vDEN)}
v_and_b32 {v(vDEN)}, {sHM}, {v(vDEN)}
v_add_f32 {v(vDEN)}, 0x358637bd, {v(vDEN)}
v_cvt_pk_bf16_f32 {v(vDEN)}, {v(vDEN)}, {v(vDEN)}
v_and_b32 {v(vDEN)}, {sHM}, {v(vDEN)}
v_rcp_f32 {v(vDEN)}, {v(vDEN)}
""")
for i in range(8):
    E(f"v_cvt_pk_bf16_f32 {v(vTA+i)}, {v(vNUM+2*i)}, {v(vNUM+2*i+1)}")
for i in range(8):
    E(f"v_lshlrev_b32 {v(vNUM+2*i)}, 16, {v(vTA+i)}")
    E(f"v_and_b32 {v(vNUM+2*i+1)}, {sHM}, {v(vTA+i)}")
for i in range(8):
    E(f"v_pk_mul_f32 {v(vNUM+2*i,2)}, {v(vNUM+2*i,2)}, {v(vDEN,2)} {LO2}")
for i in range(8):
    E(f"v_cvt_pk_bf16_f32 {v(vTA+i)}, {v(vNUM+2*i)}, {v(vNUM+2*i+1)}")
for b in range(2):
    E(f"buffer_store_dwordx4 {v(vTA+4*b,4)}, {v(vOA)}, {SRD_WS}, {sOS} offen offset:{b*1024} sc1", tok="ost")
dump("o", [v(vTA+i) for i in range(8)])
stamp("o stored")

def acc(ra, nb): return v(vACC + (ra*2+nb)*16, 16)
def hm(p, c, k, ra, nb):
    first = (c == 0 and k == 0 and ((ra, nb) != (0, 0) or TL))
    p(f"v_mfma_f32_32x32x16_bf16 {acc(ra,nb)}, {a(aCF + ((c*4+k)*2+nb)*4, 4)}, {a(aXF + ((c*4+k)*2+ra)*4, 4)}, {'0' if first else acc(ra,nb)}")
def fo_load(p): p(FH_LOAD)
vRW = [23, 24, 25]; vRR = 10
RA = Prog()
XD = Prog()
vXR_ = [48, 50, 52, 54, 56, 58, 16, 18]
vGQ = [8, 20]; vRQ = [38, 46]; vDU = 22
vWA = [14, 15, 22, 23]; vRA = [26, 27, 28, 29]
if TL:
    XD(f"v_lshrrev_b32 {v(vT2)}, 3, {v(vL)}")
    XD(f"v_lshlrev_b32 {v(vT2)}, 2, {v(vT2)}")
    for q in range(4): XD(f"ds_bpermute_b32 {v(vGQ[q>>1] + (q&1))}, {v(vT2)}, {v(vGv[0])} offset:{32*q}")
    XD.waitvm("xdl")
    for i in range(2):
        XD(f"v_lshlrev_b32 {v(vDU+2*i)}, 16, {v(vDK2+i)}")
        XD(f"v_and_b32 {v(vDU+2*i+1)}, {sHM}, {v(vDK2+i)}")
    for j in range(8):
        XD(f"v_lshlrev_b32 {v(vXR_[j])}, 16, {v(vXD2+j)}")
        XD(f"v_and_b32 {v(vXR_[j]+1)}, {sHM}, {v(vXD2+j)}")
    for j in range(8):
        for h in range(2): XD(f"v_mul_f32 {v(vXR_[j]+h)}, {v(vXR_[j]+h)}, {v(vDU+2*(j&1)+h)}")
    for j in range(8): XD(f"v_cvt_pk_bf16_f32 {v(vXD2+j)}, {v(vXR_[j])}, {v(vXR_[j]+1)}")
    for q in range(4):
        r_ = vRQ[q>>1] + (q&1)
        XD(f"v_sub_f32 {v(r_)}, 1.0, {v(vGQ[q>>1] + (q&1))}")
    for q in range(4):
        r_ = vRQ[q>>1] + (q&1)
        XD(f"v_cvt_pk_bf16_f32 {v(r_)}, {v(r_)}, {v(r_)}")
    for q in range(4):
        r_ = vRQ[q>>1] + (q&1)
        XD(f"v_and_b32 {v(r_)}, {sHM}, {v(r_)}")
    for j in range(8):
        XD(f"v_lshlrev_b32 {v(vXR_[j])}, 16, {v(vXD2+j)}")
        XD(f"v_and_b32 {v(vXR_[j]+1)}, {sHM}, {v(vXD2+j)}")
    for j in range(8):
        q = j >> 1
        for h in range(2): XD(f"v_mul_f32 {v(vXR_[j]+h)}, {v(vXR_[j]+h)}, {v(vRQ[q>>1] + (q&1))}")
    WAP = Prog(); RAP = Prog()
    WAP(f"""
    s_lshl_b32 {sT2}, {sW}, 12
    v_and_b32 {v(vT2)}, 7, {v(vL)}
    v_xor_b32 {v(vWA[0])}, {v(vT2)}, {v(vHI)}
    v_and_b32 {v(vWA[1])}, 31, {v(vL)}
    v_lshl_add_u32 {v(vWA[1])}, {v(vWA[1])}, 7, {sT2}
    v_lshl_or_b32 {v(vWA[0])}, {v(vWA[0])}, 4, {v(vWA[1])}
    v_xor_b32 {v(vWA[1])}, 32, {v(vWA[0])}
    v_xor_b32 {v(vWA[2])}, 64, {v(vWA[0])}
    v_xor_b32 {v(vWA[3])}, 0x60, {v(vWA[0])}
    """)
    RAP(f"""
    v_lshrrev_b32 {v(vRA[2])}, 3, {v(vL)}
    v_xor_b32 {v(vT2)}, {v(vT2)}, {v(vRA[2])}
    v_lshl_add_u32 {v(vRA[1])}, {v(vRA[2])}, 7, {sT2}
    v_lshl_or_b32 {v(vRA[0])}, {v(vT2)}, 4, {v(vRA[1])}
    v_xor_b32 {v(vRA[1])}, 4096, {v(vRA[0])}
    v_xor_b32 {v(vRA[2])}, 8192, {v(vRA[0])}
    v_xor_b32 {v(vRA[3])}, 12288, {v(vRA[0])}
    v_lshlrev_b32 {v(vOUT)}, 1, {v(vOUT)}
    s_mov_b32 s81, 32768
    s_mov_b32 s82, 49152
    s_or_b32 {sT3}, s2, {sW}
    v_mov_b32 {v(vT)}, {W_EPOCH}
    """)
else:
    for a_ in range(1, 4):
        RA(f"s_xor_b32 {sT2}, {sW}, {a_}")
        RA(f"s_mul_i32 {sT2}, {sT2}, 12288")
        RA(f"s_add_u32 {sT2}, {sT2}, {(a_-1)*4096}")
        RA(f"v_add_u32 {v(vRW[a_-1])}, {sT2}, {v(vL16)}")
    RA(f"s_mul_i32 {sT2}, {sW}, 12288")
    RA(f"v_add_u32 {v(vRR)}, {sT2}, {v(vL16)}")
xd_left = list(XD.ins)
def scale(ra, nb):
    p = Prog()
    for i in range(16):
        r = vACC + (ra*2+nb)*16 + i
        p(f"v_mul_f32 {v(r)}, {v(vRT[ra])}, {v(r)}")
    return p
hseq = [(c, k, ra, nb) for c in range(3) for k in range(4) for ra in range(2) for nb in range(2)]
accs = [(0, 0), (0, 1), (1, 0), (1, 1)]
hseq += [(3, k, ra, nb) for ra, nb in accs for k in range(4)]
sc_left = []
for n_, (c, k, ra, nb) in enumerate(hseq):
    if OPT["osent"]:
        if n_ == OPT["old"]: E.mark("fo_ok"); stamp("o ld")
    else:
        if n_ == OPT["fost"]:
            flag_store(E, W_FO, "ost"); stamp("fo flag")
        if n_ == OPT["fost"] + OPT["fogap"]:
            fo_load(E); E.ins[-1].lat = OPT["lm"]; E.ins[-1].lines = 1
        if n_ == OPT["fochk"]:
            spin("fo", fo_load, fl_check); E.mark("fo_ok"); stamp("fo ok")
    E.drain(f"h{c}{k}{ra}")
    hm(E, c, k, ra, nb)
    if n_ >= OPT["xdpos"]:
        k_ = OPT["xdper"] if n_ < 55 else 1000
        while xd_left and k_ > 0:
            c_ = xd_left.pop(0); E.ins.append(c_)
            if c_.kind != "pseudo": k_ -= 1
    if n_ >= 56:
        if n_ % 4 == 0: sc_left = scale(*accs[(n_ - 56) // 4]).ins
        E.extend(sc_left[:4]); sc_left = sc_left[4:]
if OPT["osent"] and OPT["old"] == 64: E.mark("fo_ok"); stamp("o ld")
if OPT["fochk"] == 64 and not OPT["osent"]:
    spin("fo", fo_load, fl_check); E.mark("fo_ok"); stamp("fo ok")
def om(p, c, b, ra, nb):
    p(f"v_mfma_f32_32x32x16_bf16 {acc(ra,nb)}, {v(vWOFR + ((c*2+b)*2+nb)*4, 4)}, {v(vOF + ((c*2+b)*2+ra)*4, 4)}, {acc(ra,nb)}")
stamp("h done")
E.drainaux()
E.extend(RA)
def o_reload(h):
    def f(p):
        for x in o_order[8*h:8*h+8]: p(o_ld(*x))
    return f
def o_check(h):
    def f(p):
        r = [vOF + ((c*2+b)*2+ra)*4 for c, b, ra in o_order[8*h:8*h+8]]
        p(f"v_max3_u32 {v(vT)}, {v(r[0])}, {v(r[1])}, {v(r[2])}")
        p(f"v_max3_u32 {v(vT)}, {v(vT)}, {v(r[3])}, {v(r[4])}")
        p(f"v_max3_u32 {v(vT)}, {v(vT)}, {v(r[5])}, {v(r[6])}")
        p(f"v_max_u32 {v(vT)}, {v(vT)}, {v(r[7])}")
        p(f"v_cmp_eq_u32 vcc, -1, {v(vT)}")
    return f
if OPT["osent"]:
    E.drain("o%d%d%d" % o_order[7])
    spin("o1", o_reload(0), o_check(0)); stamp("o1 ok")
for g_ in range(4):
    p = Prog()
    for c, b, ra in o_order[2*g_:2*g_+2]:
        p.drain(f"o{c}{b}{ra}")
        for nb in range(2): om(p, c, b, ra, nb)
    if g_ < 2: E.extend(weave(p, scale(*accs[2+g_]), pred=ismf, per=4))
    elif g_ == 3 and OPT["osent"]:
        E.drain("o%d%d%d" % o_order[15])
        ck = Prog(); o_check(1)(ck)
        E.extend(weave(p, ck, pred=ismf, per=2))
        spin("o2", o_reload(1), o_check(1), emit=False)
    else: E.extend(p)
def wr(a_):
    p = Prog()
    for q in range(4):
        if TL: p(f"ds_write_b128 {v(vWA[q])}, {v(vACC + 16*a_ + 4*q, 4)} offset:{a_*16384}")
        else: p(f"ds_write_b128 {v(vRW[a_-1])}, {v(vACC + 16*a_ + 4*q, 4)} offset:{q*1024}")
    return p
E.drain("o311")
tail = [(1, 0), (1, 1), (0, 1), (0, 0)]
for n_, (ra, nb) in enumerate(tail):
    if n_ == 2: E.drain("o310")
    p = Prog()
    for c in (2, 3):
        for b in range(2): om(p, c, b, ra, nb)
    if TL:
        W_ = lambda k: wr(tail[k][0]*2 + tail[k][1]).ins
        if n_ == 0: E.extend(p)
        elif n_ == 1: E.extend(weave(p, WAP, pred=ismf, per=3))
        elif n_ == 2: E.extend(weave(p, W_(0), pred=ismf, per=1))
        else:
            m_ = p.ins; R_ = RAP.ins; wb = W_(1); wc = W_(2)
            E.extend(m_[:1] + R_[:3] + wb[:2] + m_[1:2] + wb[2:] + m_[2:3] + R_[3:5] + wc[:2] + m_[3:] + wc[2:] + R_[5:])
    elif n_ < 2: E.extend(p)
    else:
        pa = tail[n_-2]
        E.extend(weave(p, wr(pa[0]*2 + pa[1]), pred=ismf, per=1))
E.extend(wr(0 if TL else 1))
stamp("o done")
E.waitlg(None)
E("s_barrier")
OSC = ["", " sc1", " nt", " sc0 sc1"][OPT["outsc"]]
if TL:
    for q in range(4):
        for a_ in range(4):
            E(f"ds_read_b128 {v(128 + 16*q + 4*a_, 4)}, {v(vRA[a_])} offset:{a_*16384 + q*1024}")
    for q in range(4):
        b_ = 128 + 16*q
        for i in range(2):
            E(f"v_pk_add_f32 {v(b_+2*i,2)}, {v(b_+2*i,2)}, {v(b_+4+2*i,2)}")
            E(f"v_pk_add_f32 {v(b_+8+2*i,2)}, {v(b_+8+2*i,2)}, {v(b_+12+2*i,2)}")
        for i in range(2):
            E(f"v_pk_add_f32 {v(b_+2*i,2)}, {v(b_+2*i,2)}, {v(b_+8+2*i,2)}")
        for i in range(2):
            E(f"v_pk_fma_f32 {v(b_+2*i,2)}, {v(b_+2*i,2)}, {v(vGQ[q>>1],2)}, {v(vXR_[2*q+i],2)} {HI if q & 1 else LO}")
        E(f"buffer_store_dwordx4 {v(b_,4)}, {v(vOUT)}, {SRD_OUT}, {sQ16[q]} offen" + OSC)
else:
  for a_ in range(3):
    for q in range(4):
        E(f"ds_read_b128 {v(128 + 16*a_ + 4*q, 4)}, {v(vRR)} offset:{a_*4096 + q*1024}")
  for q in range(4):
    for a_ in range(3):
        for i in range(2):
            E(f"v_pk_add_f32 {v(vACC+4*q+2*i,2)}, {v(vACC+4*q+2*i,2)}, {v(128+16*a_+4*q+2*i,2)}")
    for i in range(2):
        E(f"v_pk_mul_f32 {v(vACC+4*q+2*i,2)}, {v(vACC+4*q+2*i,2)}, {v(vGv[0],2)} {LO2}")
    E(f"buffer_store_dwordx4 {v(vACC+4*q,4)}, {v(vOUT)}, {SRD_OUT}, 0 offen offset:{32*q}" + OSC)
if STAMPS:
    E.waitvm(None)
    stamp("end")
    E(f"""
    s_lshl_b32 {sT2}, s2, 11
    s_lshl_b32 {sT3}, {sW}, 9
    s_add_u32 {sT2}, {sT2}, {sT3}
    s_add_u32 {sT2}, {sT2}, {W_ST}
    v_lshlrev_b32 {v(vT)}, 3, {v(vL)}
    v_mov_b32 {v(100)}, {v(vDBG)}
    v_mov_b32 {v(101)}, 0
    buffer_store_dwordx2 {v(100,2)}, {v(vT)}, {SRD_WS}, {sT2} offen
    """)
if STAMPS or not TL:
    E(f"s_or_b32 {sT3}, s2, {sW}")
    E(f"v_mov_b32 {v(vT)}, {W_EPOCH}")
E(f"""
s_cmp_lg_u32 {sT3}, 0
s_cbranch_scc1 L_end
s_mov_b64 exec, 1
buffer_store_dword {v(vTAG)}, {v(vT)}, {SRD_WS}, 0 offen sc1
L_end:
s_endpgm
""")

log = []
woven = stream_weave2(main, items, aux, lat=OPT["lat"], stlat=OPT["stlat"], taq=OPT["taq"], log=log, margin=OPT["amargin"], cyc_line=OPT["cl"], capf=OPT["capf"]/100, sthol=OPT["sthol"])
if OPT["log"]:
    for nm, t, ts, it in log:
        if OPT["log"] > 1 or not nm.startswith("  it"): print(f"{nm:14s} t={t:6d} ({t/2200:.2f}us) ts={ts:6d} next={items[it].name if it < len(items) else '-'}")
stats = {}
fine = None
if OPT["fine"]:
    a_, b_ = OPT["fine"].replace("_", " ").split(":")
    fine = dict(start=a_, end=b_, names=[], clk="s_memrealtime" if STAMPS == 1 else "s_memtime", vm=OPT["fvm"], skip=OPT["fskip"])
body = finalize(woven.ins, stats, fine, lgk=OPT["lgk"]) + ["L_code_end:"] + finalize(slow.ins)
if fine: stnames += [""] * (32 - len(stnames)) + fine["names"]
hdr = open("gated_mix__linear_kernel_hedgehog__ssm_conv_s5__prompt.s.ref").read().split("\n")
head = [l for l in hdr if l.startswith(";") and "@launch" not in l and "Override" not in l and "grid=ceil" not in l]
out = head + ["; @launch grid=(256,1,1) block=(256,1,1) lds=163840",
  '.amdgcn_target "amdgcn-amd-amdhsa--gfx950"', ".text", f".globl {KN}", ".p2align 8", f".type {KN},@function", f"{KN}:"]
out += body
out += ['.section .rodata,"a"', ".p2align 6", f".amdhsa_kernel {KN}", "  .amdhsa_next_free_vgpr 512", "  .amdhsa_next_free_sgpr 102",
  "  .amdhsa_accum_offset 256", "  .amdhsa_group_segment_fixed_size 0", "  .amdhsa_kernarg_size 136", "  .amdhsa_user_sgpr_count 2",
  "  .amdhsa_user_sgpr_kernarg_segment_ptr 1", "  .amdhsa_system_sgpr_workgroup_id_x 1", ".end_amdhsa_kernel"]
import json
if STAMPS: out += ["; STNAMES " + json.dumps(stnames), "; OPTS " + " ".join(sys.argv[2:])]
open(sys.argv[1], "w").write("\n".join(out) + "\n")
json.dump(dbg_names, open(sys.argv[1] + ".dbg.json", "w"))
json.dump(stnames, open(sys.argv[1] + ".st.json", "w"))
print("lines", len(body), "nops", stats["nops"], "stamps", nst[0], "dbg slots", dbg_slot[0])
```

```python
import re

TRANS = ("v_exp_f32", "v_log_f32", "v_rcp_f32", "v_rsq_f32", "v_sqrt_f32", "v_sin_f32", "v_cos_f32")

def split_ops(s):
    out, depth, cur = [], 0, ""
    for ch in s:
        if ch in "[(":
            depth += 1
        if ch in "])":
            depth -= 1
        if ch == "," and depth == 0:
            out.append(cur.strip()); cur = ""
        else:
            cur += ch
    if cur.strip():
        out.append(cur.strip())
    return out

REG_RE = re.compile(r"^(?:-|\|)?(?:abs\()?-?([vas])(?:(\d+)|\[(\d+):(\d+)\])\)?\|?$")

def regs_of(op):
    op = op.strip()
    if op in ("vcc", "exec", "m0", "scc"):
        return [(op, 0)]
    if op in ("vcc_lo", "vcc_hi"):
        return [("vcc", 0)]
    if op in ("exec_lo", "exec_hi"):
        return [("exec", 0)]
    m = REG_RE.match(op)
    if not m:
        return []
    t = m.group(1)
    if m.group(2) is not None:
        return [(t, int(m.group(2)))]
    return [(t, i) for i in range(int(m.group(3)), int(m.group(4)) + 1)]

class I:
    def __init__(self, text, tok=None, pseudo=None, arg=None):
        self.text = text; self.tok = tok; self.pseudo = pseudo; self.arg = arg
        self.reads = set(); self.writes = set()
        self.kind = "pseudo" if pseudo else None
        self.dpp = self.perml = self.rdlane = self.opseld = self.wide_store = self.ldsdma = self.dot = False
        self.passes = 0
        self.A = self.B = self.C = self.D = frozenset()
        self.data = frozenset()
        if not pseudo:
            self.parse()

    def parse(self):
        t = self.text.split(";")[0].strip()
        if t.endswith(":"):
            self.kind = "label"; return
        if t.startswith("."):
            self.kind = "directive"; return
        parts = t.split(None, 1)
        op = parts[0]; self.op = op
        rest = parts[1] if len(parts) > 1 else ""
        ops = split_ops(rest)
        mods = ""
        if ops:
            lp = ops[-1].split(None, 1)
            if len(lp) > 1:
                ops[-1] = lp[0]; mods = lp[1]
        self.mods = mods
        R = [regs_of(o) for o in ops]
        def rd(idx):
            for i in idx:
                if i < len(R): self.reads.update(R[i])
        def wr(idx):
            for i in idx:
                if i < len(R): self.writes.update(R[i])
        n = len(ops)
        if op.startswith("v_mfma"):
            self.kind = "mfma"
            self.passes = 8 if "32x32x16" in op else 4 if "16x16x32" in op else None
            assert self.passes, op
            self.D = frozenset(R[0]); self.A = frozenset(R[1]); self.B = frozenset(R[2]); self.C = frozenset(R[3])
            wr([0]); rd([1, 2, 3])
        elif op.startswith("v_"):
            self.kind = "trans" if op.replace("_e32", "").replace("_e64", "") in TRANS else "valu"
            if "permlane" in op and "swap" in op:
                self.perml = True; wr([0, 1]); rd([0, 1])
            elif op.startswith(("v_add_co", "v_sub_co", "v_addc_co", "v_subb_co", "v_subrev_co")):
                wr([0, 1]); rd(range(2, n))
            else:
                wr([0]); rd(range(1, n))
            if op.startswith(("v_fmac", "v_dot2c", "v_pk_fmac", "v_writelane")):
                rd([0])
            if op.startswith(("v_readfirstlane", "v_readlane")):
                self.rdlane = True
            if op.startswith("v_dot"):
                self.dot = True
            if re.search(r"row_|quad_perm|wave_|bcast", mods):
                self.dpp = True; rd([0])
            if "dst_sel" in mods and "dst_sel:DWORD" not in mods:
                self.opseld = True; rd([0])
        elif op.startswith("ds_"):
            self.kind = "ds"
            if op.startswith("ds_read") or op.startswith("ds_bpermute") or op.startswith("ds_swizzle"):
                wr([0]); rd(range(1, n))
            else:
                rd(range(n))
        elif op.startswith("buffer_") or op.startswith("global_"):
            self.kind = "vmem"
            allm = " " + mods + " "
            if op.startswith("buffer_load") and " lds " in allm:
                self.ldsdma = True; rd(range(n)); self.reads.add(("m0", 0))
            elif "_load" in op:
                wr([0]); rd(range(1, n))
                if "d16" in op: self.d16 = True
            elif "_store" in op:
                rd(range(n))
                di = 0 if op.startswith("buffer_") else 1
                self.data = frozenset(R[di])
                self.wide_store = op.endswith(("x3", "x4"))
            else:
                raise ValueError(op)
        elif op.startswith(("s_load", "s_memrealtime", "s_memtime")):
            self.kind = "smem"; wr([0]); rd(range(1, n))
        elif op in ("s_waitcnt", "s_barrier", "s_endpgm", "s_setprio", "s_nop") or op.startswith(("s_branch", "s_cbranch")):
            self.kind = "sopp"
        elif op.startswith("s_"):
            self.kind = "salu"
            if op.startswith(("s_cmp", "s_bitcmp")):
                rd(range(n))
            else:
                wr([0]); rd(range(1, n))
        else:
            raise ValueError("unknown op " + op)

def isv(rs):
    return {r for r in rs if r[0] in "va"}
def iss(rs):
    return {r for r in rs if r[0] in ("s", "vcc")}

def hazard(p, c):
    need = 0
    pk, ck = p.kind, c.kind
    pval = pk in ("valu", "trans"); cval = ck in ("valu", "trans")
    if pval:
        wv = isv(p.writes); ws = iss(p.writes)
        if ck == "mfma" and wv & c.reads: need = max(need, 2)
        if cval:
            if ws & c.reads: need = max(need, 4 if c.op.startswith(("v_readlane", "v_writelane")) else 2)
            if wv & c.reads:
                if c.dpp or c.perml: need = max(need, 2)
                if c.rdlane: need = max(need, 1)
                if pk == "trans" and ck != "trans": need = max(need, 1)
            if p.opseld and wv & (c.reads | c.writes): need = max(need, 1)
            if p.dot and wv & (c.reads | c.writes):
                if not (c.dot and c.op == p.op): need = max(need, 3)
                else: need = max(need, 3)
        if ck == "vmem" and ws & c.reads: need = max(need, 5)
        if p.dot and ck in ("vmem", "ds", "mfma") and wv & (c.reads | c.writes): need = max(need, 3)
    if pk == "mfma":
        big, ovl, war = (12, 10, 7) if p.passes == 8 else (8, 6, 3)
        if ck == "mfma":
            if p.D & c.C and not (p.D == c.C and p.passes == c.passes): need = max(need, ovl)
            if p.D & (c.A | c.B): need = max(need, big)
            if p.D & c.D and not (p.D == c.C and p.passes == c.passes): need = max(need, big)
        elif ck in ("valu", "trans", "vmem", "ds"):
            if p.D & (c.reads | c.writes): need = max(need, big)
            if cval and p.C & c.writes: need = max(need, war)
            if ck in ("vmem", "ds") and p.C & c.writes: need = max(need, war)
    if pk == "salu" and ("m0", 0) in p.writes and c.ldsdma: need = max(need, 1)
    if pk == "vmem" and p.wide_store and p.data & c.writes:
        need = max(need, 2 if cval else 1)
    return need

class Prog:
    def __init__(self):
        self.ins = []
    def __call__(self, text, tok=None):
        for line in text.strip().split("\n"):
            line = line.strip()
            if not line or line.startswith(";"): continue
            self.ins.append(I(line, tok=tok))
        return self
    def waitvm(self, tok):
        self.ins.append(I("", pseudo="waitvm", arg=tok))
    def waitlg(self, tok):
        self.ins.append(I("", pseudo="waitlg", arg=tok))
    def mark(self, name):
        self.ins.append(I("", pseudo="mark", arg=name))
    def extend(self, other):
        self.ins.extend(other.ins if isinstance(other, Prog) else other)

def weave(main, side, every=1, start=0, pred=None, per=1):
    out = []; si = 0; cnt = 0
    side = side.ins if isinstance(side, Prog) else side
    main = main.ins if isinstance(main, Prog) else main
    for m in main:
        out.append(m)
        if pred is None or pred(m):
            cnt += 1
            if cnt > start and (cnt - start) % every == 0:
                k = per
                while k > 0 and si < len(side):
                    out.append(side[si])
                    if side[si].kind != "pseudo": k -= 1
                    si += 1
    out.extend(side[si:])
    p = Prog(); p.ins = out
    return p

def finalize(ins, stats=None, fine=None, lgk=0):
    out = []
    fine_on = False; fine_k = 32
    cyc = 0
    def fstamp(tag):
        nonlocal fine_k, lg_done, smem_out, st
        if not fine_on or fine_k >= 64: return
        if fine.get("skip", 0) > 0: fine["skip"] -= 1; return
        out.append("    " + fine["clk"] + " s[100:101]"); out.append("    s_waitcnt lgkmcnt(0)")
        out.append(f"    v_writelane_b32 v63, s100, {fine_k}")
        fine["names"].append(f"{tag} e{cyc - fine.get('last', cyc)}"); fine["last"] = cyc; fine_k += 1
        lg_done = lg_seq; smem_out = False; pend_sm.clear(); st += 3
    hist = []
    st = 0
    vm_seq = 0; vm_done = 0; lg_seq = 0; lg_done = 0
    smem_out = False
    pend_vm = {}; pend_lg = {}; pend_sm = set()
    vm_tok = {}; lg_tok = {}
    nnop = 0
    lg_at = {}
    def emit_wait(vm_t, lg_t, lg0):
        nonlocal vm_done, lg_done, smem_out, st
        parts = []
        if lgk and lg_t > lg_done:
            while lg_t < lg_seq and lg_at[lg_t + 1] + lgk <= cyc: lg_t += 1
        fs = False
        if vm_t > vm_done:
            fstamp(f"pre L{len(out)}"); fs = True
            n = min(vm_seq - vm_t, 63); parts.append(f"vmcnt({n})"); vm_done = vm_seq - n
        if lg0 or lg_t > lg_done:
            if lg0 or smem_out:
                n = 0; smem_out = False; pend_sm.clear()
            else:
                n = min(lg_seq - lg_t, 15)
            parts.append(f"lgkmcnt({n})"); lg_done = lg_seq - n
        if parts:
            out.append("    s_waitcnt " + " ".join(parts)); st += 1
            if fs: fstamp(f"vm{n} #{vm_t}")
    for c in ins:
        if c.kind == "pseudo":
            if c.pseudo == "waitvm":
                t = vm_seq if c.arg is None else vm_tok[c.arg]
                emit_wait(t, 0, False)
            elif c.pseudo == "waitlg":
                if c.arg is None:
                    if lg_seq > lg_done or smem_out: emit_wait(0, lg_seq, True)
                else:
                    emit_wait(0, lg_tok[c.arg], False)
            elif c.pseudo == "mark":
                out.append(f"    ; ---- {c.arg}")
                if fine and c.arg == fine["start"]: fine_on = True
                if fine and c.arg == fine["end"]: fine_on = False
            continue
        if c.kind in ("label", "directive"):
            out.append(c.text); continue
        vm_t = 0; lg_t = 0; lg0 = False
        for r in c.reads | c.writes:
            if r in pend_vm:
                same = c.kind == "vmem" and r in c.writes and r not in c.reads
                if not same: vm_t = max(vm_t, pend_vm[r])
            if r in pend_lg:
                same = c.kind == "ds" and r in c.writes and r not in c.reads
                if not same: lg_t = max(lg_t, pend_lg[r])
            if r in pend_sm: lg0 = True
        if getattr(c, "ghost", False): assert vm_t <= vm_done and lg_t <= lg_done and not lg0, c.text
        emit_wait(vm_t, lg_t, lg0)
        need = 0
        for p, pst in hist:
            d = max(st - pst - 1, 0)
            h = hazard(p, c)
            if h > d: need = max(need, h - d)
        if need:
            assert not getattr(c, "ghost", False), c.text
            nnop += need
            out.append(f"    s_nop {need-1}"); st += need
        if c.text.startswith("s_barrier"): fstamp("pre bar")
        fv = fine and fine.get("vm") and c.kind == "vmem" and not getattr(c, "ghost", False)
        if fv and fine["vm"] == 2:
            fstamp("prev")
            if c.ldsdma: out.append("    s_nop 0")
        out.append("    " + c.text)
        if fv: fstamp("V " + c.op[7:12] + " " + c.text.split(",")[-2].strip()[2:4] + ("L" if c.ldsdma else ""))
        if c.text.startswith("s_barrier"): fstamp("bar")
        if c.text.startswith("s_waitcnt"):
            m = re.search(r"vmcnt\((\d+)\)", c.text)
            if m: vm_done = max(vm_done, vm_seq - int(m.group(1)))
            m = re.search(r"lgkmcnt\((\d+)\)", c.text)
            if m and int(m.group(1)) == 0:
                lg_done = lg_seq; smem_out = False; pend_sm.clear()
        hist.append((c, st))
        if getattr(c, "ghost", False):
            continue
        if c.text.startswith("s_nop"):
            st += int(c.text.split()[1], 0) + 1
        else:
            st += 1
        hist = [(p, s) for p, s in hist if st - s <= 21]
        cyc += 8 if c.kind in ("mfma", "trans") else (16 if c.op.endswith("b128") else 8) if c.kind == "ds" else 4
        if c.kind == "vmem":
            vm_seq += 1
            for r in c.writes: pend_vm[r] = vm_seq
            if c.tok: vm_tok[c.tok] = vm_seq
        elif c.kind == "ds":
            lg_seq += 1; lg_at[lg_seq] = cyc
            for r in c.writes: pend_lg[r] = lg_seq
            if c.tok: lg_tok[c.tok] = lg_seq
        elif c.kind == "smem":
            smem_out = True
            pend_sm.update(c.writes)
        pend_vm = {r: s for r, s in pend_vm.items() if s > vm_done}
        pend_lg = {r: s for r, s in pend_lg.items() if s > lg_done}
    if stats is not None:
        stats["nops"] = nnop
    return out

class Item:
    def __init__(self, prog, lines, after=None, name=None, lat=None):
        self.ins = prog.ins if isinstance(prog, Prog) else prog
        self.lines = lines; self.after = after; self.name = name; self.lat = lat

def vm_lines(c):
    if getattr(c, "lines", None) is not None: return c.lines
    op = c.op
    if op.endswith("x4"): return 8
    if op.endswith("x2"): return 4
    return 2

class Aux:
    def __init__(self, tok, prog, rtok, done, after=None):
        self.tok = tok; self.ins = prog.ins; self.rtok = rtok; self.done = done; self.after = after

def stream_weave(main, items, aux=(), thresh=448, thresh_wait=600, cyc_line=8.0, lat=450, t0=0, log=None, margin=64):
    out = []; t = t0; ts = 0.0; marks = set(); locked = 0
    it = 0; last_mfma = -100; mf_len = 32
    tokdone = {}; regdone = {}
    tok_item = {}
    for k, im in enumerate(items):
        for c in im.ins:
            if c.tok: tok_item[c.tok] = k
    ax = 0; timers = []
    pending = []
    def issue(c, ilat=None):
        nonlocal t, ts, last_mfma, mf_len
        out.append(c)
        if c.kind == "pseudo" or c.kind in ("label", "directive"): return
        for r in c.reads | c.writes:
            if r in regdone:
                t = max(t, regdone.pop(r))
        if c.kind == "mfma":
            t = max(t, last_mfma + mf_len); last_mfma = t; mf_len = 32 if c.passes == 8 else 16
            t += 8
        elif c.kind == "trans": t += 8
        elif c.kind == "vmem":
            L = vm_lines(c)
            ts = max(ts, t) + L * cyc_line
            d = max(ts, t + (ilat or lat))
            if c.tok: tokdone[c.tok] = d
            for r in c.writes: regdone[r] = d
            t += 4
        elif c.kind == "sopp" and c.text.startswith("s_nop"):
            t += 4 * (int(c.text.split()[1], 0) + 1)
        elif c.kind == "sopp" and c.text.startswith("s_barrier"): t += 24
        else: t += 4
    def flush_pending():
        nonlocal pending
        for c, il in pending: issue(c, il)
        pending = []
    def put_item(split):
        nonlocal it, pending
        im = items[it]; it += 1
        ins = list(im.ins)
        body = [c for c in ins if c.kind == "vmem"]
        for c in body: c.lines = im.lines / len(body)
        if split and ins[0].kind == "salu" and ("m0", 0) in ins[0].writes:
            issue(ins[0]); pending = [(c, im.lat) for c in ins[1:]]
        else:
            for c in ins: issue(c, im.lat)
    def put_aux():
        nonlocal ax, t
        A = aux[ax]; ax += 1
        while it <= tok_item[A.tok]:
            service_timers(True)
            assert items[it].after is None or items[it].after in marks, (A.tok, items[it].name, items[it].after)
            put_item(False)
        out.append(I("", pseudo="waitvm", arg=A.tok))
        t = max(t, tokdone[A.tok])
        for c in A.ins: issue(c)
        timers.append((t + 96, A))
        if log is not None: log.append(("aux " + A.tok, int(t), int(ts), it))
    def service_timers(force=False):
        while timers and (force or timers[0][0] <= t):
            _, A = timers.pop(0)
            out.append(I("", pseudo="waitlg", arg=A.rtok)); marks.add(A.done)
    def aux_ok():
        if ax >= len(aux) or locked: return False
        A = aux[ax]
        return (A.after is None or A.after in marks) and A.tok in tokdone and tokdone[A.tok] + margin <= t
    def ok(th):
        return it < len(items) and not locked and (items[it].after is None or items[it].after in marks) and ts - t < th
    for c in main.ins if isinstance(main, Prog) else main:
        if c.kind == "pseudo":
            if c.pseudo == "mark":
                marks.add(c.arg)
                if log is not None: log.append((c.arg, int(t), int(ts), it))
            elif c.pseudo == "lock":
                flush_pending(); locked += 1; continue
            elif c.pseudo == "unlock":
                locked -= 1; continue
            elif c.pseudo == "setts":
                ts = max(ts, t + c.arg); continue
            elif c.pseudo == "sett":
                t = max(t, c.arg); continue
            elif c.pseudo == "drainaux":
                flush_pending()
                while ax < len(aux): put_aux()
                service_timers(True)
                continue
            elif c.pseudo == "drain":
                flush_pending()
                k = [i for i, im in enumerate(items) if im.name == c.arg][-1]
                while it <= k:
                    while not (items[it].after is None or items[it].after in marks) and (timers or ax < len(aux)):
                        if timers: service_timers(True)
                        else: put_aux()
                    assert items[it].after is None or items[it].after in marks, (items[it].name, items[it].after)
                    put_item(False)
                continue
            elif c.pseudo == "waitvm":
                flush_pending()
                if c.arg is not None and c.arg in tok_item:
                    while it <= tok_item[c.arg]:
                        assert items[it].after is None or items[it].after in marks, (c.arg, items[it].name, items[it].after)
                        put_item(False)
                if c.arg is not None and tokdone.get(c.arg, 0) > t + 32:
                    while ok(thresh_wait): put_item(False)
                out.append(c)
                if c.arg is None: t = max(t, ts + 100)
                else: t = max(t, tokdone.get(c.arg, 0))
                continue
            out.append(c); continue
        isbr = c.kind == "sopp" and "branch" in c.text
        if c.kind == "label" or isbr:
            flush_pending()
        stall = max([regdone.get(r, 0) for r in c.reads | c.writes] + [0])
        if stall > t + 32:
            flush_pending()
            while ok(thresh_wait): put_item(False)
        issue(c)
        flush_pending()
        if c.kind in ("label", "directive") or (c.kind == "sopp" and "branch" in c.text): continue
        if not locked: service_timers()
        if aux_ok(): put_aux()
        elif ok(thresh): put_item(True)
    flush_pending()
    assert it == len(items), ("items left", [im.name for im in items[it:]])
    if log is not None: log.append(("end", int(t), int(ts), it))
    p = Prog(); p.ins = out
    return p

def _lock(self): self.ins.append(I("", pseudo="lock"))
def _unlock(self): self.ins.append(I("", pseudo="unlock"))
def _drain(self, name): self.ins.append(I("", pseudo="drain", arg=name))
Prog.lock = _lock; Prog.unlock = _unlock; Prog.drain = _drain

def _setts(self, x): self.ins.append(I("", pseudo="setts", arg=x))
def _sett(self, x): self.ins.append(I("", pseudo="sett", arg=x))
Prog.setts = _setts; Prog.sett = _sett

def _drainaux(self): self.ins.append(I("", pseudo="drainaux"))
Prog.drainaux = _drainaux

def stream_weave2(main, items, aux=(), lat=600, stlat=1000, cyc_line=8.0, taq=2, log=None, margin=64, dscost=6, capf=1.0, ahead=100000, qcap=4, sthol=0, ds128=19, ds64=10):
    out = []; t = 0; marks = set(); locked = 0
    ta = 0.0; dprev = 0.0; fl = []
    dvm = [0.0]
    it = 0; last_mfma = -100; mf_len = 32
    tokdone = {}; regdone = {}
    tok_item = {}
    stall = [0, 0]
    for k, im in enumerate(items):
        for c in im.ins:
            if c.tok: tok_item[c.tok] = k
    ax = 0; timers = []
    pending = []
    LCAP = 64 * capf; QCAP = qcap
    def plan(L, at):
        s0 = max(at, ta)
        live = sorted(x for x in fl if x[0] > s0)
        tot = sum(x[1] for x in live)
        for d_, l_, _ in live:
            if tot + min(L, LCAP) <= LCAP + 1e-9: break
            s0 = d_; tot -= l_
        return s0
    def waiting(at): return sum(1 for x in fl if x[2] > at)
    def issue(c, ilat=None):
        nonlocal t, ta, dprev, last_mfma, mf_len, fl
        out.append(c)
        if c.kind == "pseudo" or c.kind in ("label", "directive"): return
        for r in (c.reads if c.kind == "vmem" else c.reads | c.writes):
            if r in regdone:
                d = regdone.pop(r)
                if d > t: stall[1] += d - t; t = d
        if c.kind == "mfma":
            t = max(t, last_mfma + mf_len); last_mfma = t; mf_len = 32 if c.passes == 8 else 16
            t += 8
        elif c.kind == "trans" or c.perml: t += 8
        elif c.kind == "ds": t += (ds128 if c.op.endswith("b128") else ds64) if c.op.startswith("ds_read") else 40 if c.op.endswith("b128") else 8
        elif c.kind == "vmem" and getattr(c, "nomodel", False): pass
        elif c.kind == "vmem":
            L = vm_lines(c)
            st = "_store" in c.op
            t0 = t
            fl = [x for x in fl if x[0] > t]
            while waiting(t) >= QCAP: t = min(x[2] for x in fl if x[2] > t)
            stall[0] += t - t0
            s0 = plan(0 if st else L, t)
            ta = s0 + L * cyc_line * (0.5 if L <= 8 else 0.25)
            il = getattr(c, "lat", None) or ilat or (stlat if st else lat)
            d = max(dprev + (0 if st else L * cyc_line), s0 + il)
            if sthol or not st: dprev = d
            fl.append((d, 0 if st else L, s0))
            d = max(d, dvm[0]); dvm[0] = d
            if c.tok: tokdone[c.tok] = d
            if not getattr(c, "ghost", False):
                for r in c.writes: regdone[r] = d
            t += 4
        elif c.kind == "sopp" and c.text.startswith("s_nop"):
            t += 4 * (int(c.text.split()[1], 0) + 1)
        elif c.kind == "sopp" and c.text.startswith("s_barrier"): t += 24
        else: t += 4
    def flush_pending():
        nonlocal pending
        for c, il in pending: issue(c, il)
        pending = []
    def prep(im):
        body = [c for c in im.ins if c.kind == "vmem"]
        for c in body: c.lines = im.lines / len(body)
        return body
    def put_item(split):
        nonlocal it, pending
        im = items[it]; it += 1
        ins = list(im.ins); prep(im)
        if log is not None: log.append(("  it " + im.name, int(t), int(dprev), it))
        if split and ins[0].kind == "salu" and ("m0", 0) in ins[0].writes:
            issue(ins[0]); pending = [(c, im.lat) for c in ins[1:]]
        else:
            for c in ins: issue(c, im.lat)
    def put_aux():
        nonlocal ax, t
        A = aux[ax]; ax += 1
        while it <= tok_item[A.tok]:
            service_timers(True)
            assert items[it].after is None or items[it].after in marks, (A.tok, items[it].name, items[it].after)
            put_item(False)
        out.append(I("", pseudo="waitvm", arg=A.tok))
        t = max(t, tokdone[A.tok])
        if A.phase_split:
            A.left = list(A.ins); spread.append(A)
        else:
            for c in A.ins: issue(c)
            timers.append((t + 96, A))
        if log is not None: log.append(("aux " + A.tok, int(t), int(dprev), it))
    spread = []
    def service_spread(n):
        while spread and n > 0:
            A = spread[0]
            issue(A.left.pop(0)); n -= 1
            if not A.left:
                spread.pop(0); timers.append((t + 96, A))
    def service_timers(force=False):
        if force: service_spread(1000)
        while timers and (force or timers[0][0] <= t):
            _, A = timers.pop(0)
            out.append(I("", pseudo="waitlg", arg=A.rtok)); marks.add(A.done)
    def aux_ok():
        if ax >= len(aux) or locked or spread: return False
        A = aux[ax]
        return (A.after is None or A.after in marks) and A.tok in tokdone and tokdone[A.tok] + margin <= t
    def ok():
        if it >= len(items) or locked: return False
        im = items[it]
        if not (im.after is None or im.after in marks): return False
        body = prep(im)
        n = sum(1 for c in body if not getattr(c, "nomodel", False))
        return waiting(t) + n <= taq and dprev - t < ahead
    for c in main.ins if isinstance(main, Prog) else main:
        if c.kind == "pseudo":
            if c.pseudo == "mark":
                marks.add(c.arg)
                if log is not None: log.append((c.arg, int(t), int(dprev), it))
            elif c.pseudo == "lock":
                flush_pending(); locked += 1; continue
            elif c.pseudo == "unlock":
                locked -= 1; continue
            elif c.pseudo == "setts": continue
            elif c.pseudo == "sett":
                t = max(t, c.arg); continue
            elif c.pseudo == "drainaux":
                flush_pending()
                n = len(aux) if c.arg is None else c.arg
                while ax < n: service_spread(1000); put_aux()
                service_timers(True)
                continue
            elif c.pseudo == "drain":
                flush_pending()
                k = [i for i, im in enumerate(items) if im.name == c.arg][-1]
                while it <= k:
                    while not (items[it].after is None or items[it].after in marks) and (timers or spread or ax < len(aux)):
                        if timers or spread: service_timers(True)
                        else: put_aux()
                    assert items[it].after is None or items[it].after in marks, (items[it].name, items[it].after)
                    put_item(False)
                continue
            elif c.pseudo == "waitvm":
                flush_pending()
                if c.arg is not None and c.arg in tok_item:
                    while it <= tok_item[c.arg]:
                        assert items[it].after is None or items[it].after in marks, (c.arg, items[it].name, items[it].after)
                        put_item(False)
                while ok(): put_item(False)
                out.append(c)
                d = dvm[0] if c.arg is None else tokdone.get(c.arg, 0)
                if d > t: stall[1] += d - t; t = d
                continue
            out.append(c); continue
        isbr = c.kind == "sopp" and "branch" in c.text
        if c.kind == "label" or isbr:
            flush_pending()
        need = max([regdone.get(r, 0) for r in c.reads | c.writes] + [0])
        if need > t + 32:
            flush_pending()
            while ok(): put_item(False)
        issue(c)
        flush_pending()
        if c.kind in ("label", "directive") or (c.kind == "sopp" and "branch" in c.text): continue
        if not locked:
            service_timers()
            if c.kind == "mfma" or not spread or not spread[0].mf_only: service_spread(spread[0].per if spread else 0)
        if aux_ok(): put_aux()
        elif ok(): put_item(True)
    flush_pending()
    assert it == len(items), ("items left", [im.name for im in items[it:]])
    if log is not None: log.append((f"end stall_issue={int(stall[0])} stall_data={int(stall[1])}", int(t), int(dprev), it))
    p = Prog(); p.ins = out
    return p
Aux.phase_split = False; Aux.per = 1; Aux.mf_only = False
def _drainaux2(self, n=None): self.ins.append(I("", pseudo="drainaux", arg=n))
Prog.drainaux = _drainaux2

import subprocess, os
def _asm_sizes(lines, extra=()):
    src = ['.amdgcn_target "amdgcn-amd-amdhsa--gfx950"', ".text"] + list(lines) + list(extra)
    open("_al.s", "w").write("\n".join(src) + "\n")
    r = subprocess.run(["clang", "-x", "assembler", "-target", "amdgcn-amd-amdhsa", "-mcpu=gfx950", "-c", "_al.s", "-o", "_al.o"], capture_output=True, text=True)
    assert r.returncode == 0, r.stderr[:2000]
    d = subprocess.run(["llvm-objdump", "-d", "_al.o"], capture_output=True, text=True).stdout
    res = []
    for l in d.split("\n"):
        m = re.match(r"\s+(\S+)(.*)//\s*([0-9A-F]+): (.*)", l)
        if m: res.append((m.group(1), len(m.group(4).split()) * 4))
    return res
def align_pass(body, salu=True, endlabel="L_code_end:", weight=None):
    isins = lambda l: l.strip() and not l.strip().startswith((";", ".")) and not l.strip().endswith(":")
    idx = [i for i, l in enumerate(body) if isins(l)]
    sz = _asm_sizes(body)
    assert len(sz) == len(idx), (len(sz), len(idx))
    end = body.index(endlabel)
    lits = {}
    def promote(i, op):
        t = body[i].strip(); w = t.split(None, 1)
        if op.endswith("_e32") and not op.startswith(("v_permlane", "v_readfirst", "v_nop", "v_fmac", "v_swap")) and not w[0].endswith(("_e32", "_e64")):
            return "    " + w[0] + "_e64 " + w[1]
        if salu and re.match(r"s_(mov_b32|add_u32|sub_u32|lshl_b32|lshr_b32|and_b32|or_b32|xor_b32|mul_i32|cmp_\w+_u32|cmp_\w+_i32)$", w[0]):
            ops = [x.strip() for x in w[1].split(",")]
            for k in range(len(ops) - 1, 0, -1):
                if re.match(r"^(\d+|0x[0-9a-fA-F]+)$", ops[k]) and int(ops[k], 0) <= 64:
                    n = int(ops[k], 0); lits[n] = f"K_{n}"; ops[k] = f"K_{n}"
                    return "    " + w[0] + " " + ", ".join(ops)
        return None
    alt = {}
    for k, i in enumerate(idx):
        if sz[k][1] == 4 and i < end:
            p = promote(i, sz[k][0])
            if p: alt[k] = p
    defs = [f".set K_{n}, {n}" for n in sorted(lits)]
    test = list(body)
    for k, p in alt.items(): test[idx[k]] = p
    s2 = _asm_sizes(test, defs)
    for k in list(alt):
        if s2[k][1] != 8: del alt[k]
    INF = 1e18
    n = len(idx)
    cost = [INF] * 16; cost[0] = 0
    back = []
    for k in range(n):
        nc = [INF] * 16; bk = [None] * 16
        wgt = 1.0 if idx[k] < end else 0.0
        if weight: wgt *= weight(idx[k])
        opts = [(sz[k][1], 0, 0.0)] + ([(8, 1, 0.01)] if k in alt else [])
        for s in range(16):
            if cost[s] >= INF: continue
            for b, pr, c0 in opts:
                c = cost[s] + c0 + (wgt if s * 4 + b > 64 else 0)
                t = (s + b // 4) % 16
                if c < nc[t]: nc[t] = c; bk[t] = (s, pr)
        cost = nc; back.append(bk)
    s = min(range(16), key=lambda x: cost[x]); best = cost[s]
    out = list(body); used = set(); npro = 0
    for k in range(n - 1, -1, -1):
        ps, pr = back[k][s]
        if pr:
            out[idx[k]] = alt[k]; npro += 1
            m = re.search(r"K_(\d+)", alt[k])
            if m: used.add(int(m.group(1)))
        s = ps
    return out + [f".set K_{n}, {n}" for n in sorted(used)], (best, npro, len(alt))
```

```python
import sys
sys.path.insert(0, "dev")
from asmlib import Prog, weave, finalize, I, Item, Aux, stream_weave2, align_pass

OPT = dict(dbg=0, stamps=0, spin=4096, pf=1, outsc=0, early=10, thresh=448, tw=600, lat=500, cold=2000, wl=16, tlb=1,
           glpos=3, margin=64, log=0, cl=8, rot=0, fine='', nt=0,
           wo1=2, wo2=2, cold2=1500, lm=900, stlat=900, taq=2, pfg=0, pfm=1, pflat=1100, p0=1, p1=3, p2=5, p3=7, capf=100, fhst=22, fold=14, fost=28, fogap=12, fochk=56, hpf=0, al=1, epos=24, osent=1, old=40, upf=0, upos=0, ulat=1500, sentpos=1, gpos=16, eaft=1, latc=1300, latc2=600, latw=1000, lgk=100, amargin=300, sthol=1, wpf=0, wpos=1, gfirst=1, crot=0, wopf=0, pro=1, wqpf=0, latw0=500, fvm=0, fskip=0, tl=1, xdpos=20, xdper=4, usp=0, ksp=0, strip=1)
for a in sys.argv[2:]:
    k, v = a.split("="); assert k in OPT, k; OPT[k] = v if k == "fine" else int(v, 0)
NT = lambda b: ' nt' if OPT['nt'] >> b & 1 else ''
DBG = OPT["dbg"]; STAMPS = OPT["stamps"]
KN = "gated_mix__linear_kernel_hedgehog__ssm_conv_s5__prompt_kernel"

RB = 98304; S1 = 32768; S2 = 65536; TAB = S2 + 5120; XCH = RB
W_EPOCH = 0; W_G = 0x1000; W_E = 0x4000; W_FH = 0x24000; W_FO = 0x28000; W_KVP = 0x30000; W_ZP = 0x130000
W_H = 0x200000; W_O = 0x600000; W_DBG = 0x1000000; W_ST = 0x900000
P_WPHI = "s[8:9]"; P_LRE = "s[14:15]"; P_LIM = "s[16:17]"; P_LDT = "s[26:27]"; P_DSK = "s[28:29]"; P_GW = "s[30:31]"
SRD_X, SRD_W, SRD_B, SRD_CR, SRD_CI, SRD_WO, SRD_WS, SRD_OUT = [f"s[{i}:{i+3}]" for i in range(40, 72, 4)]
sXo = [f"s{72+j}" for j in range(8)]; sWo = [f"s{80+j}" for j in range(8)]
sRB, sCG, sW, sTAG, sRT, sCT, sRG, sT0, sT1, sFF, sT2, sSPIN = [f"s{i}" for i in range(88, 100)]
sM1, sM2, sM3 = "s[4:5]", "s[6:7]", "s[10:11]"
sHI = "s[12:13]"
sCgC = [f"s{18+c}" for c in range(4)]; sCgW = [f"s{22+c}" for c in range(4)]
sRING, sPW, sHM, sL2E = "s34", "s35", "s32", "s[38:39]"
sFFFF = "s33"; sT3 = "s3"
sRINGB = "s0"
sEP, sKV, sZP, sKVP, sZPP = "s36", "s37", "s9", "s1", "s17"
sFL, sFP, sHS, sOS = "s8", "s14", "s15", "s16"
sGRP = sSPIN
sRA0, sGP = "s26", "s27"
def v(i, n=1): return f"v{i}" if n == 1 else f"v[{i}:{i+n-1}]"
def a(i, n=1): return f"a{i}" if n == 1 else f"a[{i}:{i+n-1}]"
vL, vHI, vT = 1, 2, 3
vX = [4, 5, 6, 7]; vB = [8, 9]; vWq = 11
vXf = [12, 13, 14, 15]; vCf = [16, 17, 18, 19]; vBf = [20, 21, 22, 23]; vTRkv, vTRq = 24, 25
vC = [26, 27, 28, 29]; vWO = [30, 31, 32, 33]; vWOf = [36, 37]
vLAM, vL8, vL16p, vL32, vMU, vMU2, vCOEF = 38, 40, 42, 44, 46, 48, 50
vA1, vA2 = 52, 56
vTAG, vL16, vT2, vDBG = 60, 61, 62, 63
vU_RE, vU_IM = 64, 80
vKT, vVV, vQT = 96, 112, 128
vFR = 144
vWOFR = 192
vALR, vALI, vBER, vBEI = 4, 6, 12, 14
vALR0, vALI0 = 188, 190
vXR, vEL = 0, 10
vXW = 34
vFLA = 35
vPhW, vVW, vPhR, vVR = 8, 9, 20, 21
vHW, vHR = 22, 23
aXF = 128; aCF = 0

main = Prog(); slow = Prog()
E = main
items = []; aux = []
dbg_slot = [0]; dbg_names = []
def dump(name, regs, p=None):
    if not DBG: return
    p = p or main
    for r in regs:
        p(f"s_mov_b32 {sT3}, {W_DBG + dbg_slot[0]*262144}")
        p(f"buffer_store_dword {r}, {v(vDBG)}, {SRD_WS}, {sT3} offen")
        dbg_slot[0] += 1
    dbg_names.append((name, dbg_slot[0] - len(regs), len(regs)))
nst = [0]; stnames = []
def stamp(name, p=None):
    p = p or main
    p.mark(name)
    if not STAMPS: return
    k = nst[0]; nst[0] += 1; stnames.append(name)
    p(f"s_memrealtime s[100:101]" if STAMPS == 1 else "s_memtime s[100:101]")
    p(f"v_writelane_b32 {v(vDBG)}, s100, {k}")
nspin = [0]
def spin(name, reload_fn, check_fn, emit=True):
    if emit: check_fn(main)
    main(f"s_cbranch_vccnz L_slow_{name}")
    main(f"L_back_{name}:")
    slow(f"L_slow_{name}:")
    slow(f"s_mov_b32 {sSPIN}, {OPT['spin']}")
    slow(f"L_loop_{name}:")
    slow("s_nop 4")
    reload_fn(slow)
    slow("s_waitcnt vmcnt(0)")
    check_fn(slow)
    slow("s_nop 4")
    if STAMPS:
        slow(f"s_cbranch_vccnz L_more_{name}")
        slow(f"s_sub_u32 {sSPIN}, {OPT['spin']+1}, {sSPIN}")
        slow(f"s_mul_i32 {sSPIN}, {sSPIN}, 100")
        slow(f"v_readlane_b32 s100, {v(vDBG)}, 0")
        slow("s_nop 4")
        slow(f"s_add_u32 {sSPIN}, {sSPIN}, s100")
        slow(f"v_writelane_b32 {v(vDBG)}, {sSPIN}, {27 + nspin[0]}")
        slow(f"s_branch L_back_{name}")
        slow(f"L_more_{name}:")
    else:
        slow(f"s_cbranch_vccz L_back_{name}")
    slow(f"s_sub_u32 {sSPIN}, {sSPIN}, 1")
    slow(f"s_cbranch_scc0 L_loop_{name}")
    slow(f"s_branch L_back_{name}")
    nspin[0] += 1

def cmul_add(p, d, x, lam, y):
    p(f"v_fma_f32 {v(d)}, {v(lam)}, {v(x)}, {v(y)}")
    p(f"v_fma_f32 {v(d+1)}, {v(lam)}, {v(x+1)}, {v(y+1)}")
    p(f"v_fma_f32 {v(d)}, -{v(lam+1)}, {v(x+1)}, {v(d)}")
    p(f"v_fma_f32 {v(d+1)}, {v(lam+1)}, {v(x)}, {v(d+1)}")
def cmul(p, d, x, y):
    p(f"v_mul_f32 {v(d)}, {v(x)}, {v(y)}")
    p(f"v_mul_f32 {v(d+1)}, {v(x)}, {v(y+1)}")
    p(f"v_fma_f32 {v(d)}, -{v(x+1)}, {v(y+1)}, {v(d)}")
    p(f"v_fma_f32 {v(d+1)}, {v(x+1)}, {v(y)}, {v(d+1)}")
def csq(p, d, x): cmul(p, d, x, x)
LO = "op_sel:[0,0,0] op_sel_hi:[1,0,1]"; HI = "op_sel:[0,1,0] op_sel_hi:[1,1,1]"
LO2 = "op_sel:[0,0] op_sel_hi:[1,0]"; HI2 = "op_sel:[0,1] op_sel_hi:[1,1]"
NEG1 = "neg_lo:[0,1,0] neg_hi:[0,1,0]"
def P(text, tok=None):
    p = Prog(); p(text, tok=tok); return p
ismf = lambda c: c.kind == "mfma"

def it_x(j):
    slot = j if j < 6 else j - 6
    for q in range(4):
        p = Prog()
        if q == 0: p(f"s_add_u32 m0, {sRING}, {slot*16384}")
        p(f"buffer_load_dwordx4 {v(vX[q])}, {SRD_X}, {sXo[j]} offen offset:{q*1024}{NT(0)} lds")
        items.append(Item(p, 8, after=(f"xr{j-6}" if j >= 6 else None), name=f"x{j}_{q}", lat=OPT["cold"] if j < 1 else OPT["cold2"] if j == (4 if OPT["rot"] == 4 else 1) else None))
def it_b(j):
    for q in range(2):
        p = Prog()
        if q == 0: p(f"s_add_u32 m0, {sRINGB}, {j*8192}")
        p(f"buffer_load_dwordx4 {v(vB[q])}, {SRD_B}, {sXo[j]} offen offset:{q*1024}{NT(1)} lds", tok=f"xb{j}")
        items.append(Item(p, 8, name=f"b{j}_{q}", lat=OPT["cold"] if j < 1 else None))
vGX0, vGX1, vGW = 96, 100, 104
def it_g():
    items.append(Item(P(f"buffer_load_dwordx4 {v(vGX0,4)}, {v(vL16)}, {SRD_X}, {sGP} offen"), 8, name="g0", after="addr"))
    items.append(Item(P(f"buffer_load_dwordx4 {v(vGX1,4)}, {v(vL16)}, {SRD_X}, {sGP} offen offset:1024"), 8, name="g1"))
vPFa, vPFb, vJUNK, vK3 = 176, 177, 180, 178
def it_pf(gp):
    p = Prog()
    p(f"s_cmp_lg_u32 {sGRP}, {gp}")
    p(f"s_cbranch_scc1 L_pf{gp}")
    srd_ = [SRD_W, SRD_CR, SRD_CI, SRD_WO][gp]
    p(f"buffer_load_dword {v(vJUNK)}, {v(vPFa)}, {srd_}, 0 offen")
    p(f"buffer_load_dword {v(vJUNK)}, {v(vPFb)}, {srd_}, 0 offen")
    for c in p.ins[-2:]:
        c.ghost = True; c.nomodel = gp != OPT["pfm"]
    p(f"L_pf{gp}:")
    items.append(Item(p, 128, after="addr", name=f"pf{gp}", lat=OPT["pflat"]))
def it_wpf():
    for o_ in ([1024, 2048, 0] if OPT["wpf"] == 1 else [1024, 2048]):
        items.append(Item(P(f"buffer_load_dword {v(vJUNK)}, {v(vWq)}, {SRD_W}, {sWo[0]} offen offset:{o_}"), 16, after="waddr", name="wpf", lat=OPT["cold2"]))
for j in range(8):
    it_x(j)
    if OPT["wpf"] and OPT["wpos"] == j: it_wpf()
    it_b(j)
    if j == OPT["glpos"]: it_g()
    if OPT["pfg"]:
        for gp in range(4):
            if OPT[f"p{gp}"] == j: it_pf(gp)
def it_upf():
    n = {1: 1, 2: 2, 3: 4}[OPT["upf"]]
    for srd_ in (SRD_CR, SRD_CI, SRD_WO):
        for q in range(n):
            if OPT["upf"] == 3: t = f"buffer_load_dwordx4 {v(vJUNK,4)}, {v(vPFa)}, {srd_}, 0 offen offset:{q*1024}"
            else: t = f"buffer_load_dword {v(vJUNK)}, {v(vPFa)}, {srd_}, 0 offen offset:{q*2048}"
            items.append(Item(P(t), 32 // n, after="addr", name=f"upf{srd_}{q}", lat=OPT["ulat"]))
for pr in range(4):
    if OPT["upf"] and OPT["upos"] == pr: it_upf()
    for jj in range(2):
        j = 2*pr + jj
        for m in range(2):
            p = Prog()
            if m == 0: p(f"s_add_u32 m0, {sRING}, {(2+pr)*16384 + jj*2048 - 1024}")
            p(f"buffer_load_dwordx4 {v(vWq)}, {SRD_W}, {sWo[j]} offen offset:{1024 + m*1024}{NT(2)} lds", tok=f"w{pr}")
            items.append(Item(p, OPT["wl"], after=f"xr{2+pr}", name=f"w{pr}_{jj}{m}", lat=OPT["latw0"] if j == 0 else None))
        if j == 0 and OPT["wqpf"]:
            items.append(Item(P(f"buffer_load_dword {v(vJUNK)}, {v(vWq)}, {SRD_W}, {sWo[0]} offen"), 16, name="wqpf", lat=OPT["latw0"]))
if OPT["upf"] and OPT["upos"] == 4: it_upf()
for j in range(8):
    p = Prog()
    p(f"s_add_u32 m0, {sRING}, {(j>>2)*16384 + (j&3)*1024}")
    p(f"buffer_load_dwordx4 {v(vWq)}, {SRD_W}, {sWo[j]} offen{NT(2)} lds", tok="wq")
    items.append(Item(p, OPT["wl"], after=f"xr{6 + (j>>2)}", name=f"wq{j}", lat=OPT["latw0"] if j == 0 and not OPT["wqpf"] else None))
if OPT["upf"] and OPT["upos"] == 5: it_upf()
def b2_pos(s): return ((s + 1) & 3) * 4096
def it_b2(s):
    aft = "barA" if s < 3 else "xchdone" if s == 3 else f"b2done{s-4}"
    for q in range(4):
        p = Prog()
        if q == 0: p(f"s_add_u32 m0, {sPW}, {b2_pos(s)}")
        if s < 8:
            Pp, m, nb = s >> 2, (s >> 1) & 1, s & 1
            p(f"buffer_load_dwordx4 {v(vC[q])}, {SRD_CI if m else SRD_CR}, {sCgC[2*Pp+nb]} offen offset:{q*1024}{NT(3)} lds", tok=f"b2_{s}")
        else:
            p(f"buffer_load_dwordx4 {v(vWO[q])}, {SRD_WO}, {sCgW[s-8]} offen offset:{q*1024}{NT(4)} lds", tok=f"b2_{s}")
        items.append(Item(p, 8, after=aft, name=f"b2_{s}_{q}", lat=OPT["latc"] if s < (2 if OPT["crot"] else 4) else OPT["latc2"] if s < 8 else OPT["latw"] if s < 10 and not OPT["wopf"] else None))
def b2_read(p, s):
    pos = b2_pos(s)
    if s < 8:
        Pp, m, nb = s >> 2, (s >> 1) & 1, s & 1
        for k in range(4):
            c, kk = 2*Pp + (k >> 1), k & 1
            p(f"ds_read_b128 {a(aCF + ((c*4 + 2*m + kk)*2 + nb)*4, 4)}, {v(vCf[k])} offset:{pos}", tok=f"b2r_{s}")
    else:
        c = s - 8
        for b in range(2):
            for nb in range(2):
                for rd in range(2):
                    p(f"ds_read_b64_tr_b16 {v(vWOFR + ((c*2+b)*2+nb)*4 + 2*rd, 2)}, {v(vWOf[nb])} offset:{pos + (8*b + 4*rd)*128}", tok=f"b2r_{s}")
vEQ = 224
def e_list(): return [f"buffer_load_dwordx2 {v(vEQ+2*k,2)}, {v(vEL)}, {SRD_WS}, {sEP} offen offset:{256 + 512*k} sc1" for k in range(8)]
def e_loads(p):
    for t in e_list(): p(t)
def it_e():
    for k, t in enumerate(e_list()): items.append(Item(P(t, tok="eld"), 4, after="e_ok", name=f"e{k}", lat=OPT["lm"]))
if OPT["eaft"] < 0: it_e()
for s in range(8):
    it_b2(s)
    p = Prog(); b2_read(p, s)
    aux.append(Aux(f"b2_{s}", p, f"b2r_{s}", f"b2done{s}"))
    if s == OPT["wopf"] - 1:
        items.append(Item(P(f"buffer_load_dword {v(245)}, {v(244)}, {SRD_WO}, {sCgW[0]} offen"), 32, after="wopf_ok", name="wopf", lat=OPT["latc"]))
    if s == OPT["eaft"]: it_e()
vXD, vDK = 192, 200
vOUT = 11
vDA = 46
vGL = [38, 39]; vGv = [40, 41]; vRT = [42, 44]
def it_wo(s):
    it_b2(s)
    p = Prog(); b2_read(p, s)
    A_ = Aux(f"b2_{s}", p, f"b2r_{s}", f"b2done{s}", after="o stored"); A_.phase_split = True; A_.per = 1; A_.mf_only = True
    aux.append(A_)
TL = OPT["tl"]
sQ8 = ["0", "s78", "s79", "s80"]; sQ16 = ["0", "s79", "s81", "s82"]
vXD2, vDK2 = 26, 14
def it_xd():
    if TL:
        for q in range(4):
            items.append(Item(P(f"buffer_load_dwordx2 {v(vXD2+2*q,2)}, {v(vOUT)}, {SRD_X}, {sQ8[q]} offen", tok="xdl"), 8, after="xd_ok", name=f"xd{q}"))
        items.append(Item(P(f"global_load_dwordx2 {v(vDK2,2)}, {v(vDA)}, {P_DSK}", tok="xdl"), 1, name="dk3"))
        return
    for q in range(4):
        items.append(Item(P(f"buffer_load_dwordx2 {v(vXD+2*q,2)}, {v(vOUT)}, {SRD_X}, 0 offen offset:{16*q}"), 32, after="xd_ok", name=f"xd{q}"))
    for q in range(4):
        items.append(Item(P(f"global_load_dwordx2 {v(vDK+2*q,2)}, {v(vDA)}, {P_DSK} offset:{16*q}"), 1, name=f"dk{q}"))
if not TL: it_xd()
WO1, WO2 = OPT["wo1"], OPT["wo2"]
for s in range(8, 8 + WO1): it_wo(s)
def gg_list(): return [f"buffer_load_dword {v(vGv[ra])}, {v(vGL[ra])}, {SRD_WS}, 0 offen sc1" for ra in range(2)]
def gg_load(p):
    for t in gg_list(): p(t)
vGA = 96; vGZ = 160
def gather_list():
    L = []
    for r in range(16):
        L.append((r, f"buffer_load_dwordx4 {v(vGA+4*r,4)}, {v(vL16)}, {SRD_WS}, s{72 + (r>>2)} offen offset:{(r&3)*1024} sc1"))
    L.append((16, f"buffer_load_dwordx4 {v(vGZ,4)}, {v(vL16)}, {SRD_WS}, {sZP} offen sc1"))
    return L
def gather_loads(p):
    for r, t in gather_list(): p(t)
GL_ = gather_list()
if OPT["gfirst"]:
    GL_ = GL_[16:] + GL_[:16]
    for k, t in enumerate(gg_list()): items.append(Item(P(t), 2, after="gl_ok", name=f"gg{k}", lat=OPT["lm"]))
for i_, (r, t) in enumerate(GL_):
    items.append(Item(P(t, tok="gld"), 8, after="gather_ok", name=f"ga{r}", lat=OPT["lm"] if i_ < 8 or r == 16 else None))
if not OPT["gfirst"]:
    for k, t in enumerate(gg_list()): items.append(Item(P(t), 2, after="gl_ok", name=f"gg{k}", lat=OPT["lm"]))
vAH = [4, 5]; vAO = [6, 7]; vAH2 = [12, 13]
def h_ld(c, k, ra):
    if OPT["crot"]: return f"buffer_load_dwordx4 {a(aXF + ((c*4+k)*2+ra)*4, 4)}, {v([vAH, vAH2][k>>1][ra])}, {SRD_WS}, {sCgW[c]} offen offset:{(k&1)*1024} sc1"
    return f"buffer_load_dwordx4 {a(aXF + ((c*4+k)*2+ra)*4, 4)}, {v(vAH[ra])}, {SRD_WS}, {sCgW[c]} offen offset:{k*1024} sc1"
vACC = 64; vOF = 128
vFLG = 22
FH_LOAD = f"buffer_load_dword {v(vFLG)}, {v(vFLA)}, {SRD_WS}, {sFP} offen sc1"
items.append(Item(P(FH_LOAD), 1, after="fh_ld", name="fhl", lat=OPT["lm"]))
for s in range(8 + WO1, 8 + WO1 + WO2): it_wo(s)
if TL:
    assert WO1 + WO2 == 4
    it_xd()
nh = 0
for c in range(4):
    for k in range(4):
        for ra in range(2):
            items.append(Item(P(h_ld(c, k, ra)),
                              8, after="fh_ok", name=f"h{c}{k}{ra}", lat=OPT["lm"] if nh < 8 else None))
            nh += 1
for s in range(8 + WO1 + WO2, 12): it_wo(s)
o_order = [(c, b, ra) for ra in (0, 1) for c in (0, 1) for b in range(2)] + [(c, b, ra) for ra in (1, 0) for c in (2, 3) for b in range(2)]
def o_ld(c, b, ra): return f"buffer_load_dwordx4 {v(vOF + ((c*2+b)*2+ra)*4, 4)}, {v(vAO[ra])}, {SRD_WS}, {sCgW[c]} offen offset:{b*1024} sc1"
for c, b, ra in o_order:
    items.append(Item(P(o_ld(c, b, ra)),
                      8, after="fo_ok", name=f"o{c}{b}{ra}", lat=OPT["lm"] if (c, b, ra) in o_order[:8] else None))

E.lock()
E("s_cmp_ge_u32 s2, 256")
E("s_cbranch_scc1 L_end")
E("s_load_dwordx16 s[4:19], s[0:1], 0")
E("s_load_dwordx16 s[20:35], s[0:1], 64")
E("s_load_dwordx2 s[36:37], s[0:1], 128")
if OPT["pf"]:
    E(f"""
    s_getpc_b64 s[40:41]
    L_pc:
    s_lshr_b32 s3, s2, 3
    s_and_b32 s3, s3, 7
    s_lshl_b32 s3, s3, 12
    v_and_b32 v1, 31, v0
    v_lshl_add_u32 v1, v1, 7, s3
    v_min_u32 v1, L_code_end-L_pc-4, v1
    global_load_dword v255, v1, s[40:41]
    """)
if STAMPS: E(f"v_mov_b32 {v(vDBG)}, 0")
stamp("start")
if STAMPS:
    for k in range(27, 32): E(f"v_writelane_b32 {v(vDBG)}, s100, {k}")
E(f"""
s_and_b32 {sT0}, s2, 7
s_lshr_b32 {sT1}, s2, 3
v_lshrrev_b32 {v(vT)}, 6, v0
v_and_b32 {v(vL)}, 63, v0
s_and_b32 {sRB}, {sT0}, 1
v_readfirstlane_b32 {sW}, {v(vT)}
s_lshl_b32 {sRT}, {sRB}, 4
s_lshl_b32 {sRB}, {sRB}, 3
s_and_b32 {sCT}, {sT1}, 7
s_or_b32 {sRB}, {sRB}, {sCT}
s_lshr_b32 {sCG}, {sT0}, 1
s_lshl_b32 {sCG}, {sCG}, 2
s_lshr_b32 {sT1}, {sT1}, 3
s_or_b32 {sCG}, {sCG}, {sT1}
s_or_b32 {sRT}, {sRT}, {sCG}
s_lshl_b32 {sRG}, {sRB}, 2
s_or_b32 {sRG}, {sRG}, {sW}
{["s_lshl_b32 %s, %s, 1" % (sT0, sCG), "s_mov_b32 %s, 0" % sT0, "s_mov_b32 %s, 0" % sT0, "s_lshr_b32 %s, %s, 1" % (sT0, sCG), "s_and_b32 %s, %s, 3" % (sT0, sCG)][OPT["rot"]]}
{["s_add_u32 %s, %s, %s" % (sT0, sT0, sRB), "s_add_u32 %s, %s, %s" % (sT0, sT0, sRB), "s_mov_b32 %s, 0" % sT0, "s_add_u32 %s, %s, %s" % (sT0, sT0, sRB), "s_xor_b32 %s, %s, %s" % (sT0, sT0, sCT)][OPT["rot"]]}
v_lshlrev_b32 {v(vL16)}, 4, {v(vL)}
v_lshrrev_b32 {v(vHI)}, 5, {v(vL)}
""")
if DBG:
    E(f"s_lshl_b32 {sT2}, s2, 10")
    E(f"v_lshl_add_u32 {v(vDBG)}, v0, 2, {sT2}")
if OPT["rot"] == 4:
    E(f"s_lshl_b32 {sXo[0]}, {sT0}, 7")
    for j in range(1, 8): E(f"s_xor_b32 {sXo[j]}, {sXo[0]}, {j << 7}")
    for j in range(8): E(f"s_mul_i32 {sWo[j]}, {sXo[j]}, 1536")
else:
  for j in range(8):
    E(f"s_add_u32 {sT2}, {sT0}, {j}")
    E(f"s_and_b32 {sT2}, {sT2}, 7")
    E(f"s_lshl_b32 {sXo[j]}, {sT2}, 7")
    E(f"s_mul_i32 {sWo[j]}, {sT2}, 196608")
E(f"""
v_lshrrev_b32 {v(vT)}, 4, {v(vL)}
v_and_b32 {v(vT2)}, 7, {v(vL)}
v_xor_b32 {v(vT2)}, {v(vT2)}, {v(vT)}
v_lshlrev_b32 {v(vT2)}, 4, {v(vT2)}
v_and_b32 {v(vX[0])}, 1, {v(vT)}
v_and_b32 {v(vX[1])}, 8, {v(vL)}
v_or_b32 {v(vX[0])}, {v(vX[0])}, {v(vX[1])}
v_lshl_or_b32 {v(vX[0])}, {v(vHI)}, 4, {v(vX[0])}
s_lshl_b32 {sT2}, {sRG}, 5
v_add_u32 {v(vX[0])}, {sT2}, {v(vX[0])}
v_lshl_or_b32 {v(vX[0])}, {v(vX[0])}, 10, {v(vT2)}
v_xor_b32 {v(vX[1])}, 64, {v(vX[0])}
v_add_u32 {v(vX[1])}, 1024, {v(vX[1])}
v_add_u32 {v(vX[2])}, 2048, {v(vX[0])}
v_add_u32 {v(vX[3])}, 2048, {v(vX[1])}
s_and_b32 {sT2}, {sW}, 1
s_lshl_b32 {sT2}, {sT2}, 4
s_lshl_b32 {sT3}, {sCG}, 5
s_add_u32 {sT2}, {sT2}, {sT3}
v_lshrrev_b32 {v(vT)}, 3, {v(vL)}
v_lshl_or_b32 {v(vC[0])}, {v(vT)}, 10, {v(vT2)}
s_lshl_b32 {sT2}, {sT2}, 10
v_add_u32 {v(vB[0])}, {sT2}, {v(vC[0])}
v_xor_b32 {v(vB[1])}, 64, {v(vB[0])}
v_add_u32 {v(vB[1])}, 7168, {v(vB[1])}
s_lshl_b32 {sT3}, {sW}, 12
s_lshl_b32 {sT1}, {sW}, 11
s_add_u32 {sT1}, {sT1}, {RB}
""")
def srd(dst, lo, size):
    b = int(dst[2:].split(":")[0])
    E(f"s_mov_b32 s{b}, s{lo}")
    E(f"s_and_b32 s{b+1}, s{lo+1}, 0xffff")
    E(f"s_mov_b32 s{b+2}, {size}")
    E(f"s_mov_b32 s{b+3}, 0x20000")
E(f"""
v_lshrrev_b32 {v(vT)}, 2, {v(vL)}
s_lshl_b32 {sT2}, {sW}, 4
v_add_u32 {v(vT)}, {sT2}, {v(vT)}
v_mul_u32_u24 {v(vWq)}, 3072, {v(vT)}
v_and_b32 {v(vT2)}, 3, {v(vL)}
s_lshl_b32 {sT2}, {sCG}, 6
v_lshl_add_u32 {v(vT2)}, {v(vT2)}, 4, {sT2}
v_add_u32 {v(vWq)}, {v(vWq)}, {v(vT2)}
""")
vPR, vPI, vPD = 160, 161, 162
vWP = 144
vSA, vSB, vSC, vSD, vSZ = 200, 201, 202, 203, 204
E(f"""
v_and_b32 {v(vXR)}, 31, {v(vL)}
s_lshl_b32 {sT2}, {sCG}, 6
v_lshl_add_u32 {v(vSA)}, {v(vXR)}, 1, {sT2}
v_bfe_u32 {v(vT)}, {v(vL)}, 3, 2
v_and_b32 {v(vT2)}, 3, {v(vL)}
v_lshl_add_u32 {v(vT)}, {v(vT)}, 2, {v(vT2)}
v_lshlrev_b32 {v(vT)}, 1, {v(vT)}
v_lshl_or_b32 {v(vT)}, {v(vHI)}, 7, {v(vT)}
v_bfe_u32 {v(vT2)}, {v(vL)}, 2, 1
v_lshl_or_b32 {v(vT)}, {v(vT2)}, 9, {v(vT)}
s_lshl_b32 {sT2}, {sCG}, 10
v_add_u32 {v(vSB)}, {sT2}, {v(vT)}
v_lshlrev_b32 {v(vSC)}, 21, {v(vL)}
v_and_b32 {v(vSC)}, 0x600000, {v(vSC)}
s_lshl_b32 {sT2}, {sRT}, 17
v_mov_b32 {v(vSD)}, {sT2}
v_mov_b32 {v(vSZ)}, 0
""")
def small_loads():
    n0 = len(E.ins)
    E(f"""
    global_load_ushort {v(vPR)}, {v(vSA)}, {P_LRE}
    global_load_ushort {v(vPI)}, {v(vSA)}, {P_LIM}
    global_load_ushort {v(vPD)}, {v(vSA)}, {P_LDT}
    """)
    for e in range(8):
        E(f"global_load_ushort {v(vWP + e)}, {v(vSB)}, {P_WPHI} offset:{(e&3)*32 + (e>>2)*256}")
    E(f"global_load_dwordx4 {v(vGW,4)}, {v(vL16)}, {P_GW}")
    E(f"global_load_dword v248, {v(vL16)}, {P_DSK}")
    if OPT["tlb"]:
        E(f"""
        global_load_dword v254, {v(vSC)}, s[36:37] offset:2048
        global_load_dword v252, {v(vSZ)}, s[22:23]
        global_load_dword v251, {v(vSZ)}, s[24:25]
        global_load_dword v250, {v(vSZ)}, s[10:11]
        global_load_dword v249, {v(vSD)}, s[32:33]
        """)
        if not OPT["wpf"]: E(f"global_load_dword v253, {v(vSZ)}, s[6:7]")
    for c_ in E.ins[n0:]: c_.lines = 0.0; c_.lat = OPT["cold"]
E("s_mov_b32 s46, 1572864"); E("s_mov_b32 s47, 0x20000")
E("s_mov_b32 s42, 2097152"); E("s_mov_b32 s43, 0x20000"); E("s_mov_b32 s50, 524288"); E("s_mov_b32 s51, 0x20000")
E.sett(900)
E("s_mov_b32 s40, s4"); E("s_and_b32 s41, s5, 0xffff")
E(f"s_mov_b32 {sRING}, {sT3}")
E(f"s_mov_b32 {sRINGB}, {sT1}")
E.drain("x0_3")
E(f"s_cmp_lt_u32 {sW}, 2")
E("s_cselect_b32 s48, s18, s20")
E("s_cselect_b32 s49, s19, s21")
E("s_and_b32 s49, s49, 0xffff")
if OPT["pro"] == 1:
    E.drain("b0_1")
    small_loads()
E.drain(items[OPT["early"] - 1].name)
E("s_mov_b32 s44, s6"); E("s_and_b32 s45, s7, 0xffff")
E.mark("waddr")
stamp("first dma")
E(f"s_load_dword {sTAG}, s[36:37], {W_EPOCH}")
if OPT["pro"] == 0: small_loads()
if OPT["crot"]:
    E(f"""
    s_lshr_b32 {sT2}, {sCT}, 2
    s_add_u32 {sT2}, {sT2}, {sCT}
    s_add_u32 {sT2}, {sT2}, {sCG}
    s_and_b32 {sT2}, {sT2}, 1
    s_cselect_b32 s52, s24, s22
    s_cselect_b32 s53, s25, s23
    s_cselect_b32 s56, s22, s24
    s_cselect_b32 s57, s23, s25
    s_and_b32 s53, s53, 0xffff
    s_and_b32 s57, s57, 0xffff
    s_mov_b32 s54, 524288
    s_mov_b32 s55, 0x20000
    s_mov_b32 s58, 524288
    s_mov_b32 s59, 0x20000
    """)
else:
    srd(SRD_CR, 22, 524288); srd(SRD_CI, 24, 524288)
srd(SRD_WO, 10, 524288)
srd(SRD_WS, 36, 0x10000000); srd(SRD_OUT, 32, 4194304)
E.setts(OPT["cold"] - 200)
E(f"""
s_lshl_b32 {sPW}, {sW}, 14
s_add_u32 {sPW}, {sPW}, {RB}
s_mov_b32 {sHM}, 0xffff0000
s_mov_b32 {sFFFF}, 0xffff
s_mov_b32 {sFF}, 0xff
s_mov_b32 s38, 0x3fb8aa3b
s_mov_b32 s39, 0x3fb8aa3b
s_cmp_ge_u32 {sW}, 1
s_cselect_b64 {sM1}, -1, 0
s_cmp_ge_u32 {sW}, 2
s_cselect_b64 {sM2}, -1, 0
s_cmp_ge_u32 {sW}, 3
s_cselect_b64 {sM3}, -1, 0
s_mov_b32 s12, 0
s_mov_b32 s13, -1
s_add_u32 {sT2}, {sCG}, {sCT}
s_and_b32 {sT2}, {sT2}, 3
s_lshl_b32 {sT0}, {sW}, 2
""")
E.unlock()
for c in range(4):
    E(f"s_xor_b32 {sT1}, {sT2}, {c}")
    E(f"s_or_b32 {sT1}, {sT1}, {sT0}")
    E(f"s_lshl_b32 {sCgW[c]}, {sT1}, 15")
E(f"""
s_and_b32 {sT1}, {sT2}, 2
s_or_b32 {sT1}, {sT1}, {sT0}
s_lshl_b32 {sT1}, {sT1}, 6
s_and_b32 {sT3}, {sW}, 1
s_lshl_b32 {sT3}, {sT3}, 15
s_or_b32 {sCgC[0]}, {sT1}, {sT3}
s_xor_b32 {sCgC[1]}, {sCgC[0]}, 32768
s_xor_b32 {sCgC[2]}, {sCgC[0]}, 128
s_xor_b32 {sCgC[3]}, {sCgC[1]}, 128
s_and_b32 {sT2}, {sT2}, 1
s_lshl_b32 {sT2}, {sT2}, 6
s_lshl_b32 {sT3}, {sCT}, 16
v_add_u32 {v(vC[0])}, {sT3}, {v(vC[0])}
v_xor_b32 {v(vC[1])}, 64, {v(vC[0])}
v_add_u32 {v(vC[1])}, 7168, {v(vC[1])}
v_add_u32 {v(vC[2])}, 14336, {v(vC[0])}
v_add_u32 {v(vC[3])}, 14336, {v(vC[1])}
v_bfe_u32 {v(vT)}, {v(vL)}, 1, 3
v_xor_b32 {v(vT)}, {v(vT)}, {v(vHI)}
v_lshlrev_b32 {v(vT)}, 4, {v(vT)}
v_lshl_or_b32 {v(vT)}, {v(vXR)}, 7, {v(vT)}
""")
for k in range(4):
    E(f"v_xor_b32 {v(vT2)}, {k*32}, {v(vT)}")
    E(f"v_add_u32 {v(vBf[k])}, {RB}, {v(vT2)}")
    E(f"v_add_u32 {v(vXf[k])}, {sRING}, {v(vT2)}")
    E(f"v_xor_b32 {v(vT2)}, {sT2}, {v(vT2)}")
    E(f"v_add_u32 {v(vCf[k])}, {sPW}, {v(vT2)}")
E(f"""
v_bfe_u32 {v(vT)}, {v(vL)}, 2, 2
v_lshl_or_b32 {v(vT)}, {v(vHI)}, 3, {v(vT)}
v_lshlrev_b32 {v(vTRq)}, 6, {v(vT)}
v_bfe_u32 {v(vT2)}, {v(vL)}, 4, 1
v_lshl_or_b32 {v(vTRq)}, {v(vT2)}, 5, {v(vTRq)}
v_and_b32 {v(vT)}, 3, {v(vL)}
v_lshl_or_b32 {v(vTRq)}, {v(vT)}, 3, {v(vTRq)}
v_add_u32 {v(vTRkv)}, 32768, {v(vTRq)}
s_and_b32 {sT0}, {sW}, 1
v_xor_b32 {v(vT)}, {sT0}, {v(vT2)}
v_lshlrev_b32 {v(vT)}, 2, {v(vT)}
v_and_b32 {v(vT2)}, 7, {v(vL)}
v_xor_b32 {v(vT)}, {v(vT)}, {v(vT2)}
s_lshl_b32 {sT2}, {sCT}, 7
v_lshl_add_u32 {v(vT)}, {v(vT)}, 4, {sT2}
v_lshrrev_b32 {v(vT2)}, 3, {v(vL)}
v_lshl_add_u32 {v(vWO[0])}, {v(vT2)}, 10, {v(vT)}
v_add_u32 {v(vWO[1])}, 7168, {v(vWO[0])}
v_add_u32 {v(vWO[2])}, 14336, {v(vWO[0])}
v_add_u32 {v(vWO[3])}, 21504, {v(vWO[0])}
v_bfe_u32 {v(vT)}, {v(vL)}, 2, 2
v_lshl_or_b32 {v(vT)}, {v(vHI)}, 4, {v(vT)}
v_lshlrev_b32 {v(vT)}, 7, {v(vT)}
v_bfe_u32 {v(vT2)}, {v(vL)}, 3, 1
v_lshl_or_b32 {v(vT)}, {v(vT2)}, 6, {v(vT)}
v_and_b32 {v(vT2)}, 63, {v(vTRq)}
v_or_b32 {v(vT)}, {v(vT2)}, {v(vT)}
v_add_u32 {v(vWOf[0])}, {sPW}, {v(vT)}
v_xor_b32 {v(vT)}, 64, {v(vT)}
v_add_u32 {v(vWOf[1])}, {sPW}, {v(vT)}
""")
E(f"""
v_lshlrev_b32 {v(vXR)}, 3, {v(vXR)}
v_lshl_or_b32 {v(vEL)}, {v(vHI)}, 8, {v(vXR)}
v_add_u32 {v(vXR)}, {XCH}, {v(vXR)}
s_lshl_b32 {sT2}, {sW}, 8
v_add_u32 {v(vXW)}, {sT2}, {v(vXR)}
v_and_b32 {v(vT)}, 7, {v(vL)}
v_lshlrev_b32 {v(vT)}, 2, {v(vT)}
v_add_u32 {v(vFLA)}, {W_FH}, {v(vT)}
s_lshl_b32 {sT2}, {sCG}, 13
s_lshl_b32 {sT3}, {sRB}, 8
s_sub_u32 {sT2}, {sT2}, {sT3}
s_add_u32 {sEP}, {sT2}, {W_E + 15*256}
s_lshl_b32 {sT2}, {sCG}, 2
s_add_u32 {sT2}, {sT2}, {sW}
s_lshl_b32 {sKV}, {sT2}, 14
s_add_u32 {sKV}, {sKV}, {W_KVP}
s_lshl_b32 {sZP}, {sT2}, 10
s_add_u32 {sZP}, {sZP}, {W_ZP}
s_lshl_b32 {sT2}, {sRB}, 10
s_add_u32 {sKVP}, {sT2}, {sKV}
s_lshl_b32 {sT3}, {sRB}, 6
s_add_u32 {sZPP}, {sT3}, {sZP}
s_lshr_b32 {sT2}, {sRG}, 3
s_lshl_b32 {sT2}, {sT2}, 19
s_lshl_b32 {sT1}, {sCG}, 15
s_add_u32 {sT2}, {sT2}, {sT1}
s_and_b32 {sT3}, {sRG}, 7
s_lshl_b32 {sT3}, {sT3}, 12
s_add_u32 {sT2}, {sT2}, {sT3}
s_add_u32 {sHS}, {sT2}, {W_H}
s_lshr_b32 {sT2}, {sRG}, 4
s_lshl_b32 {sT2}, {sT2}, 19
s_add_u32 {sT2}, {sT2}, {sT1}
s_and_b32 {sT3}, {sRG}, 15
s_lshl_b32 {sT3}, {sT3}, 11
s_add_u32 {sT2}, {sT2}, {sT3}
s_add_u32 {sOS}, {sT2}, {W_O}
s_lshr_b32 {sFL}, {sRG}, 1
s_lshl_b32 {sFL}, {sFL}, 2
s_lshr_b32 {sT3}, {sCG}, 2
s_add_u32 {sFL}, {sFL}, {sT3}
s_lshl_b32 {sFL}, {sFL}, 7
s_and_b32 {sT3}, {sRG}, 1
s_lshl_b32 {sT3}, {sT3}, 4
s_add_u32 {sFL}, {sFL}, {sT3}
s_and_b32 {sT3}, {sCG}, 3
s_lshl_b32 {sT3}, {sT3}, 2
s_add_u32 {sFL}, {sFL}, {sT3}
s_lshl_b32 {sFP}, {sRT}, 2
s_add_u32 {sFP}, {sFP}, {sW}
s_lshl_b32 {sFP}, {sFP}, 7
s_lshr_b32 {sT1}, {sW}, 1
s_lshl_b32 {sT2}, {sRT}, 1
s_or_b32 {sRA0}, {sT2}, {sT1}
s_lshl_b32 {sT2}, {sRG}, 5
s_lshl_b32 {sT3}, {sCG}, 1
s_add_u32 {sT2}, {sT2}, {sT3}
s_lshl_b32 {sGP}, {sT2}, 10
""")
if OPT["pfg"]:
    E(f"""
    v_mov_b32 {v(vK3)}, 3072
    v_mov_b32 {v(vK3+1)}, 0
    s_lshl_b32 {sT2}, {sCT}, 2
    s_or_b32 {sT2}, {sT2}, {sW}
    s_mul_i32 {sT3}, {sT2}, 49152
    s_lshr_b32 {sT1}, {sCG}, 2
    s_lshl_b32 {sT1}, {sT1}, 8
    s_add_u32 {sT3}, {sT3}, {sT1}
    v_and_b32 {v(vT2)}, 1, {v(vL)}
    v_lshl_add_u32 {v(vT2)}, {v(vT2)}, 7, {sT3}
    v_lshrrev_b32 {v(vT)}, 2, {v(vL)}
    v_mad_u32_u24 {v(vPFa)}, {v(vT)}, {v(vK3)}, {v(vT2)}
    v_bfe_u32 {v(vT)}, {v(vL)}, 1, 1
    v_lshl_add_u32 {v(vPFa)}, {v(vT)}, 10, {v(vPFa)}
    v_bfe_u32 {v(vT)}, {v(vL)}, 1, 4
    v_mad_u32_u24 {v(vPFb)}, {v(vT)}, {v(vK3)}, {v(vT2)}
    v_add_u32 {v(vPFb)}, 2048, {v(vPFb)}
    s_lshl_b32 {sT2}, {sT2}, 14
    v_lshl_add_u32 {v(vT)}, {v(vL)}, 7, {sT2}
    v_add_u32 {v(vT2)}, 8192, {v(vT)}
    s_and_b32 {sGRP}, {sCG}, 3
    v_cmp_ne_u32 vcc, {sGRP}, {v(vK3+1)}
    v_cndmask_b32 {v(vPFa)}, {v(vPFa)}, {v(vT)}, vcc
    v_cndmask_b32 {v(vPFb)}, {v(vPFb)}, {v(vT2)}, vcc
    """)
if OPT["upf"]:
    E(f"""
    s_lshr_b32 {sT2}, s2, 3
    s_lshl_b32 {sT2}, {sT2}, 2
    s_or_b32 {sT2}, {sT2}, {sW}
    s_lshl_b32 {sT2}, {sT2}, 12
    v_lshl_add_u32 {v(vPFa)}, {v(vL)}, {[0, 6, 5, 4][OPT["upf"]]}, {sT2}
    """)
E(f"""
s_add_u32 {sTAG}, {sTAG}, 1
v_mov_b32 {v(vTAG)}, {sTAG}
""")
stamp("addr")

t0, t1, t2, t3 = 164, 166, 168, 170
F = [Prog() for _ in range(8)]
F[0](f"""
v_lshlrev_b32 {v(vPR)}, 16, {v(vPR)}
v_lshlrev_b32 {v(vPI)}, 16, {v(vPI)}
v_lshlrev_b32 {v(vPD)}, 16, {v(vPD)}
v_mul_f32 {v(vPD)}, s38, {v(vPD)}
v_exp_f32 {v(vPD)}, {v(vPD)}
v_mul_f32 {v(t2)}, {v(vPR)}, {v(vPR)}
v_fma_f32 {v(t2)}, {v(vPI)}, {v(vPI)}, {v(t2)}
v_cvt_pk_bf16_f32 {v(vPD)}, {v(vPD)}, {v(vPD)}
v_and_b32 {v(vPD)}, {sHM}, {v(vPD)}
v_mul_f32 {v(t0)}, {v(vPD)}, {v(vPR)}
v_mul_f32 {v(t0+1)}, {v(vPD)}, {v(vPI)}
v_mul_f32 {v(t0)}, s38, {v(t0)}
v_mul_f32 {v(t0+1)}, 0.15915494, {v(t0+1)}
v_exp_f32 {v(t0)}, {v(t0)}
v_cos_f32 {v(t1)}, {v(t0+1)}
v_sin_f32 {v(t1+1)}, {v(t0+1)}
v_rcp_f32 {v(t3)}, {v(t2)}
v_mul_f32 {v(vLAM)}, {v(t0)}, {v(t1)}
v_mul_f32 {v(vLAM+1)}, {v(t0)}, {v(t1+1)}
v_add_f32 {v(t1)}, -1.0, {v(vLAM)}
v_mul_f32 {v(t2)}, {v(t1)}, {v(vPR)}
v_fma_f32 {v(t2)}, {v(vLAM+1)}, {v(vPI)}, {v(t2)}
v_mul_f32 {v(t2+1)}, {v(vLAM+1)}, {v(vPR)}
v_fma_f32 {v(t2+1)}, -{v(t1)}, {v(vPI)}, {v(t2+1)}
v_mul_f32 {v(vCOEF)}, {v(t2)}, {v(t3)}
v_mul_f32 {v(vCOEF+1)}, {v(t2+1)}, {v(t3)}
""")
csq(F[1], t0, vLAM); csq(F[1], t1, t0); csq(F[1], vL8, t1); csq(F[1], vL16p, vL8); csq(F[1], vL32, vL16p)
csq(F[1], t0, vL32); cmul(F[1], t1, t0, vL32)
csq(F[2], vMU, t0); csq(F[2], vMU2, vMU)
F[2](f"""
v_cndmask_b32 {v(t2)}, 1.0, {v(vL32)}, {sM1}
v_cndmask_b32 {v(t2+1)}, 0, {v(vL32+1)}, {sM1}
v_cndmask_b32 {v(t2)}, {v(t2)}, {v(t0)}, {sM2}
v_cndmask_b32 {v(t2+1)}, {v(t2+1)}, {v(t0+1)}, {sM2}
v_cndmask_b32 {v(t2)}, {v(t2)}, {v(t1)}, {sM3}
v_cndmask_b32 {v(t2+1)}, {v(t2+1)}, {v(t1+1)}, {sM3}
""")
cmul(F[2], t3, t2, vL16p)
F[2](f"v_cndmask_b32 {v(vALR0)}, {v(t2)}, {v(t3)}, {sHI}")
F[2](f"v_cndmask_b32 {v(vALI0)}, {v(t2+1)}, {v(t3+1)}, {sHI}")
F[2](f"""
v_mul_f32 {v(vALR0+1)}, {v(vALR0)}, {v(vL8)}
v_mul_f32 {v(vALI0+1)}, {v(vALR0)}, {v(vL8+1)}
v_fma_f32 {v(vALR0+1)}, -{v(vALI0)}, {v(vL8+1)}, {v(vALR0+1)}
v_fma_f32 {v(vALI0+1)}, {v(vALI0)}, {v(vL8)}, {v(vALI0+1)}
""")
F[3]("s_mov_b32 s100, 0xf0f0f0f0")
F[3]("s_mov_b32 s101, 0xf0f0f0f0")
for i in range(4):
    F[3](f"v_lshl_or_b32 {v(vA1+i)}, {v(vWP+2*i+1)}, 16, {v(vWP+2*i)}")
for i in range(4):
    F[3](f"v_cndmask_b32 {v(vA2+i)}, 0, {v(vA1+i)}, s[100:101]")
    F[3](f"v_cndmask_b32 {v(vA1+i)}, {v(vA1+i)}, 0, s[100:101]")
dump("lam", [v(vLAM), v(vLAM+1), v(vCOEF), v(vCOEF+1), v(vMU2), v(vMU2+1)], F[3])
gW, gP, gR = 108, 116, 124
gS0, gS1 = 128, 130
G1, G2 = F[OPT["glpos"] + 2], F[OPT["glpos"] + 3]
for i in range(4):
    G1(f"v_lshlrev_b32 {v(gW+2*i)}, 16, {v(vGW+i)}")
    G1(f"v_and_b32 {v(gW+2*i+1)}, {sHM}, {v(vGW+i)}")
for row, src, dst, G in ((0, vGX0, gS0, G1), (1, vGX1, gS1, G2)):
    for i in range(4):
        G(f"v_lshlrev_b32 {v(gP+2*i)}, 16, {v(src+i)}")
        G(f"v_and_b32 {v(gP+2*i+1)}, {sHM}, {v(src+i)}")
    for i in range(4):
        G(f"v_pk_mul_f32 {v(gP+2*i,2)}, {v(gP+2*i,2)}, {v(gW+2*i,2)}")
    for i in range(4):
        G(f"v_cvt_pk_bf16_f32 {v(gR+i)}, {v(gP+2*i)}, {v(gP+2*i+1)}")
    for i in range(4):
        G(f"v_lshlrev_b32 {v(gP+2*i)}, 16, {v(gR+i)}")
        G(f"v_and_b32 {v(gP+2*i+1)}, {sHM}, {v(gR+i)}")
    G(f"v_pk_add_f32 {v(gP,2)}, {v(gP,2)}, {v(gP+2,2)}")
    G(f"v_pk_add_f32 {v(gP+4,2)}, {v(gP+4,2)}, {v(gP+6,2)}")
    G(f"v_pk_add_f32 {v(gP,2)}, {v(gP,2)}, {v(gP+4,2)}")
    G(f"v_add_f32 {v(dst)}, {v(gP)}, {v(gP+1)}")
G3 = Prog()
G3(f"""
v_permlane32_swap_b32 {v(gS0)}, {v(gS1)}
v_add_f32 {v(gS0)}, {v(gS0)}, {v(gS1)}
v_mov_b32 {v(gS1)}, {v(gS0)}
s_lshr_b32 {sT2}, {sGP}, 8
v_permlane16_swap_b32 {v(gS0)}, {v(gS1)}
v_add_f32 {v(gS0)}, {v(gS0)}, {v(gS1)}
""")
for r in (8, 4, 2, 1):
    G3(f"v_add_f32_dpp {v(gS0)}, {v(gS0)}, {v(gS0)} row_ror:{r} row_mask:0xf bank_mask:0xf")
G3(f"""
v_cvt_pk_bf16_f32 {v(gS0)}, {v(gS0)}, {v(gS0)}
v_and_b32 {v(gS0)}, {sHM}, {v(gS0)}
v_mul_f32 {v(gS0)}, 0xbfb8aa3b, {v(gS0)}
v_exp_f32 {v(gS0)}, {v(gS0)}
v_lshlrev_b32 {v(gS1)}, 2, {v(vHI)}
v_add_f32 {v(gS0)}, 1.0, {v(gS0)}
v_rcp_f32 {v(gS0)}, {v(gS0)}
s_add_u32 {sT2}, {sT2}, {W_G}
v_cvt_pk_bf16_f32 {v(gS0)}, {v(gS0)}, {v(gS0)}
v_bfi_b32 {v(gS0)}, {sFFFF}, {v(vTAG)}, {v(gS0)}
""")
G3.lock()
G3(f"""
s_mov_b32 exec_lo, 1
s_mov_b32 exec_hi, 1
buffer_store_dword {v(gS0)}, {v(gS1)}, {SRD_WS}, {sT2} offen sc1
s_mov_b64 exec, -1
""")
G3.unlock()

vBB = [192, 224]
def u_reads(j):
    p = Prog()
    slot = j if j < 6 else j - 6
    for k in range(4):
        p(f"ds_read_b128 {a(aXF + 16*j + 4*k, 4)}, {v(vXf[k])} offset:{(slot & 3)*16384}")
        p(f"ds_read_b128 {v(vBB[j&1] + 8*k, 4)}, {v(vBf[k])} offset:{j*8192}")
        p(f"ds_read_b128 {v(vBB[j&1] + 8*k + 4, 4)}, {v(vBf[k])} offset:{j*8192 + 4096}")
    return p
def u_mm(j, ks):
    p = Prog()
    for k in ks:
        c_re = "0" if (j == 0 and k == 0) else v(vU_RE, 16)
        c_im = "0" if (j == 0 and k == 0) else v(vU_IM, 16)
        p(f"v_mfma_f32_32x32x16_bf16 {v(vU_RE,16)}, {a(aXF + 16*j + 4*k, 4)}, {v(vBB[j&1] + 8*k, 4)}, {c_re}")
        p(f"v_mfma_f32_32x32x16_bf16 {v(vU_IM,16)}, {a(aXF + 16*j + 4*k, 4)}, {v(vBB[j&1] + 8*k + 4, 4)}, {c_im}")
    return p
E.waitvm("xb0")
E("s_barrier")
stamp("xb0 landed")
E.extend(u_reads(0))
def weave2(mainp, s1, n1, s2, n2):
    out = []; s1 = list(s1.ins); s2 = list(s2.ins); i = 0
    for m in mainp.ins:
        out.append(m)
        out += s1[:n1[i]]; s1 = s1[n1[i]:]
        out += s2[:n2]; s2 = s2[n2:]
        i += 1
    p = Prog(); p.ins = out + s1 + s2
    return p
for j in range(8):
    E.mark(f"U chunk {j}")
    if OPT["usp"] and j >= OPT["usp"] - 1:
        if j in (3, 5):
            for k in range(4): E(f"v_add_u32 {v(vXf[k])}, {65536 if j == 3 else -65536}, {v(vXf[k])}")
        mm = u_mm(j, (0, 1, 2, 3))
        if j < 7:
            E.extend(mm.ins[:1]); mm.ins = mm.ins[1:]
            E.waitvm(f"xb{j+1}")
            E("s_barrier")
            E.mark(f"xr{j-1}b")
            if j in (1, 3, 5): stamp(f"xb{j+1} landed")
            rd = u_reads(j+1)
            E.extend(rd.ins[:2]); rd.ins = rd.ins[2:]
            E.extend(weave2(mm, rd, [2, 1, 2, 1, 2, 1, 1], F[j], (len(F[j].ins) + 6) // 7))
        else:
            E.extend(weave(mm, F[j], every=1, per=4))
        E.mark(f"xr{j}")
        continue
    if j in (3, 5):
        for k in range(4): F[j](f"v_add_u32 {v(vXf[k])}, {65536 if j == 3 else -65536}, {v(vXf[k])}")
    E.extend(weave(u_mm(j, (0, 1)), F[j], every=1, per=4))
    if j < 7:
        E.waitvm(f"xb{j+1}")
        E("s_barrier")
        if j in (1, 3, 5): stamp(f"xb{j+1} landed")
        E.extend(weave(u_mm(j, (2, 3)), u_reads(j+1), every=1, per=3))
    else:
        E.extend(u_mm(j, (2, 3)))
    E.mark(f"xr{j}")
stamp("U done")
dump("U", [v(vU_RE+i) for i in range(32)])

tA, tB, tC, tD = 192, 194, 196, 198
for m in range(8):
    r, i = vU_RE + 2*m, vU_IM + 2*m
    E(f"v_pk_mul_f32 {v(tA+4*(m&1),2)}, {v(r,2)}, {v(vCOEF,2)} {HI2}")
    E(f"v_pk_mul_f32 {v(r,2)}, {v(r,2)}, {v(vCOEF,2)} {LO2}")
    E(f"v_pk_fma_f32 {v(r,2)}, {v(i,2)}, {v(vCOEF,2)}, {v(r,2)} {HI} {NEG1}")
    E(f"v_pk_fma_f32 {v(i,2)}, {v(i,2)}, {v(vCOEF,2)}, {v(tA+4*(m&1),2)} {LO}")
er, ei = vU_RE, vU_IM
pp = [(tA, tB), (tC, tD)]
for m in range(1, 8):
    nr, ni = pp[m & 1]
    E(f"v_pk_fma_f32 {v(nr,2)}, {v(er,2)}, {v(vLAM,2)}, {v(vU_RE+2*m,2)} {LO}")
    E(f"v_pk_fma_f32 {v(ni,2)}, {v(ei,2)}, {v(vLAM,2)}, {v(vU_IM+2*m,2)} {LO}")
    E(f"v_pk_fma_f32 {v(nr,2)}, {v(ei,2)}, {v(vLAM,2)}, {v(nr,2)} {HI} {NEG1}")
    E(f"v_pk_fma_f32 {v(ni,2)}, {v(er,2)}, {v(vLAM,2)}, {v(ni,2)} {HI}")
    er, ei = nr, ni
eA, e16, e16h, e32 = 200, 202, 204, 206
E(f"""
v_fma_f32 {v(e16)}, {v(vL8)}, {v(er)}, {v(er+1)}
v_fma_f32 {v(e16+1)}, {v(vL8)}, {v(ei)}, {v(ei+1)}
v_fma_f32 {v(e16)}, -{v(vL8+1)}, {v(ei)}, {v(e16)}
v_fma_f32 {v(e16+1)}, {v(vL8+1)}, {v(er)}, {v(e16+1)}
v_mov_b32 {v(eA)}, {v(er)}
v_mov_b32 {v(e16h)}, {v(e16)}
v_mov_b32 {v(e16h+1)}, {v(e16+1)}
v_mov_b32 {v(eA+1)}, {v(ei)}
v_permlane32_swap_b32 {v(e16)}, {v(e16h)}
v_permlane32_swap_b32 {v(e16+1)}, {v(e16h+1)}
""")
cmul_add(E, e32, e16, vL16p, e16h)
E(f"ds_write_b64 {v(vXW)}, {v(e32,2)}")
E.waitlg(None)
stamp("scan1")
E.waitvm("w0")
E("s_barrier")
E.mark("barA")
stamp("barA")
K = Prog()
eW = [208, 210, 212, 214]
for w in range(4):
    K(f"ds_read_b64 {v(eW[w],2)}, {v(vXR)} offset:{w*256}")
K(f"""
v_mov_b32 {v(vALR)}, {v(vALR0)}
v_mov_b32 {v(vALR+1)}, {v(vALR0+1)}
v_mov_b32 {v(vALI)}, {v(vALI0)}
v_mov_b32 {v(vALI+1)}, {v(vALI0+1)}
v_lshl_or_b32 {v(vT2)}, {v(vHI)}, 12, {v(vEL)}
v_and_b32 {v(vT2)}, 0x10ff, {v(vT2)}
""")
p2, p3, e128 = 216, 218, 220
cmul_add(K, p2, eW[0], vL32, eW[1])
cmul_add(K, p3, p2, vL32, eW[2])
cmul_add(K, e128, p3, vL32, eW[3])
K(f"""
v_cndmask_b32 {v(e128)}, {v(e128)}, 0, {sHI}
v_cndmask_b32 {v(e128+1)}, {v(e128+1)}, 0, {sHI}
v_bfi_b32 {v(e128)}, {sFF}, {v(vTAG)}, {v(e128)}
buffer_store_dwordx2 {v(e128,2)}, {v(vT2)}, {SRD_WS}, {sEP} offen sc1
""")
pw, pb = 222, 224
K(f"""
v_cndmask_b32 {v(pw)}, 0, {v(eW[0])}, {sM1}
v_cndmask_b32 {v(pw+1)}, 0, {v(eW[0]+1)}, {sM1}
v_cndmask_b32 {v(pw)}, {v(pw)}, {v(p2)}, {sM2}
v_cndmask_b32 {v(pw+1)}, {v(pw+1)}, {v(p2+1)}, {sM2}
v_cndmask_b32 {v(pw)}, {v(pw)}, {v(p3)}, {sM3}
v_cndmask_b32 {v(pw+1)}, {v(pw+1)}, {v(p3+1)}, {sM3}
""")
cmul_add(K, pb, pw, vL16p, e16)
K(f"v_cndmask_b32 {v(vBER)}, {v(pw)}, {v(pb)}, {sHI}")
K(f"v_cndmask_b32 {v(vBEI)}, {v(pw+1)}, {v(pb+1)}, {sHI}")
K(f"""
v_fma_f32 {v(vBER+1)}, {v(vL8)}, {v(vBER)}, {v(eA)}
v_fma_f32 {v(vBEI+1)}, {v(vL8)}, {v(vBEI)}, {v(eA+1)}
v_fma_f32 {v(vBER+1)}, -{v(vL8+1)}, {v(vBEI)}, {v(vBER+1)}
v_fma_f32 {v(vBEI+1)}, {v(vL8+1)}, {v(vBER)}, {v(vBEI+1)}
""")
if OPT["osent"] and OPT["sentpos"] == 0:
    for i in range(4): K(f"v_mov_b32 {v(184+i)}, -1")
    for b in range(2): K(f"buffer_store_dwordx4 {v(184,4)}, {v(vL16)}, {SRD_WS}, {sOS} offen offset:{b*1024} sc1")
if OPT["wopf"]:
    K(f"""
    v_lshrrev_b32 {v(244)}, 1, {v(vL)}
    v_and_b32 {v(245)}, 1, {v(vL)}
    v_lshlrev_b32 {v(245)}, 6, {v(245)}
    s_lshl_b32 {sT2}, {sCT}, 7
    v_lshl_or_b32 {v(244)}, {v(244)}, 10, {v(245)}
    v_add_u32 {v(244)}, {sT2}, {v(244)}
    """)
    K.mark("wopf_ok")
K.extend(G3)
K(f"""
s_lshl_b32 {sT2}, {sW}, 13
s_add_u32 {sT2}, {sT2}, {S1}
v_mul_u32_u24 {v(vT)}, 80, {v(vL)}
v_add_u32 {v(vPhW)}, {sT2}, {v(vT)}
s_add_u32 {sT3}, {sT2}, 5120
v_add_u32 {v(vVW)}, {sT3}, {v(vL16)}
s_add_u32 {sT2}, {sT2}, {S2 - S1}
v_and_b32 {v(vT)}, 31, {v(vL)}
v_mul_u32_u24 {v(vT)}, 80, {v(vT)}
v_lshl_add_u32 {v(vT)}, {v(vHI)}, 5, {v(vT)}
v_add_u32 {v(vHW)}, {sT2}, {v(vT)}
v_bfe_u32 {v(vT)}, {v(vL)}, 2, 2
v_lshl_or_b32 {v(vT)}, {v(vHI)}, 3, {v(vT)}
v_mul_u32_u24 {v(vT)}, 80, {v(vT)}
v_and_b32 {v(vT2)}, 63, {v(vTRq)}
v_add3_u32 {v(vHR)}, {sT2}, {v(vT)}, {v(vT2)}
v_bfe_u32 {v(vT)}, {v(vL)}, 2, 3
v_lshl_or_b32 {v(vT)}, {v(vHI)}, 4, {v(vT)}
v_mul_u32_u24 {v(vT)}, 80, {v(vT)}
v_and_b32 {v(vT2)}, 3, {v(vL)}
v_lshl_add_u32 {v(vT)}, {v(vT2)}, 3, {v(vT)}
s_and_b32 {sT0}, {sW}, 1
s_lshr_b32 {sT1}, {sW}, 1
s_mul_i32 {sT2}, {sT0}, 2560
s_lshl_b32 {sT3}, {sT1}, 5
s_add_u32 {sT2}, {sT2}, {sT3}
s_add_u32 {sT2}, {sT2}, {S1}
v_add_u32 {v(vPhR)}, {sT2}, {v(vT)}
v_and_b32 {v(vT)}, 15, {v(vL)}
v_bfe_u32 {v(vT2)}, {v(vL)}, 4, 1
v_lshl_or_b32 {v(vT)}, {v(vT2)}, 5, {v(vT)}
v_lshlrev_b32 {v(vT)}, 4, {v(vT)}
v_lshl_or_b32 {v(vT)}, {v(vHI)}, 10, {v(vT)}
s_lshl_b32 {sT2}, {sT0}, 8
s_add_u32 {sT2}, {sT2}, {S1 + 5120}
v_add_u32 {v(vVR)}, {sT2}, {v(vT)}
s_and_b32 {sT2}, {sRB}, 3
s_lshl_b32 {sT2}, {sT2}, 12
s_add_u32 s72, {sKV}, {sT2}
s_xor_b32 s73, s72, 4096
s_xor_b32 s74, s72, 8192
s_xor_b32 s75, s72, 12288
""")

def kv_reads(p, n):
    j, k = n >> 2, n & 3
    for m in range(2):
        for rd in range(2):
            off = (j >> 1)*16384 + k*4096 + (j & 1)*2048 + m*1024 + rd*256
            p(f"ds_read_b64_tr_b16 {v(vFR + (n&3)*8 + 4*m + 2*rd, 2)}, {v(vTRkv)} offset:{off}")
AH = 3
KV = Prog()
for n in range(AH): kv_reads(KV, n)
for n in range(32):
    xf = a(aXF + 4*n, 4)
    fr = vFR + (n & 3)*8
    KV(f"v_mfma_f32_32x32x16_bf16 {v(vKT,16)}, {v(fr,4)}, {xf}, {'0' if n == 0 else v(vKT,16)}")
    nn = n + AH
    if nn < 32 and nn % 8 == 0:
        KV.waitvm(f"w{nn//8}")
        KV("s_barrier")
        if nn == 8: KV.mark("xchdone")
    rr = Prog()
    if nn < 32: kv_reads(rr, nn)
    if OPT["ksp"]: KV.extend(rr.ins[:2]); rr.ins = rr.ins[2:]
    KV(f"v_mfma_f32_32x32x16_bf16 {v(vVV,16)}, {xf}, {v(fr+4,4)}, {'0' if n == 0 else v(vVV,16)}")
    KV.extend(rr)
    if n == OPT["epos"]: KV.mark("e_ok")
cnt = [0]
def kpred(c):
    if c.kind != "mfma": return False
    cnt[0] += 1
    return cnt[0] % 2 == 1
def weave_locked(mainp, side, pred, per):
    out = []; si = 0; S = side.ins
    for m in mainp.ins:
        out.append(m)
        if pred(m):
            k = per
            while k > 0 and si < len(S):
                if S[si].kind == "pseudo" and S[si].pseudo == "lock":
                    while not (S[si].kind == "pseudo" and S[si].pseudo == "unlock"):
                        out.append(S[si]); si += 1
                    out.append(S[si]); si += 1; k = 0
                else:
                    out.append(S[si])
                    if S[si].kind != "pseudo": k -= 1
                    si += 1
    out.extend(S[si:])
    p = Prog(); p.ins = out
    return p
E.extend(weave_locked(KV, K, ismf, 2) if OPT["ksp"] else weave_locked(KV, K, kpred, 4))
dump("kT", [v(vKT+i) for i in range(16)])
dump("v", [v(vVV+i) for i in range(16)])
stamp("kv done")

def softmax(p, src, dst, ap, am, mn, mid=None):
    for i in range(8):
        p(f"v_cvt_pk_bf16_f32 {v(am+i)}, {v(src+2*i)}, {v(src+2*i+1)}")
    p(f"v_mfma_f32_32x32x16_bf16 {v(ap,16)}, {v(vA1,4)}, {v(am,4)}, 0")
    p(f"v_mfma_f32_32x32x16_bf16 {v(ap,16)}, {v(vA2,4)}, {v(am+4,4)}, {v(ap,16)}")
    if mid is not None: p.extend(mid)
    for i in range(8):
        p(f"v_cvt_pk_bf16_f32 {v(am+i)}, {v(ap+2*i)}, {v(ap+2*i+1)}")
    for i in range(8):
        p(f"v_lshlrev_b32 {v(src+2*i)}, 16, {v(am+i)}")
        p(f"v_and_b32 {v(src+2*i+1)}, {sHM}, {v(am+i)}")
    p(f"v_max3_f32 {v(mn)}, {v(src)}, {v(src+1)}, {v(src+2)}")
    p(f"v_min3_f32 {v(mn+1)}, {v(src)}, {v(src+1)}, {v(src+2)}")
    for i in range(3, 15, 2):
        p(f"v_max3_f32 {v(mn)}, {v(mn)}, {v(src+i)}, {v(src+i+1)}")
        p(f"v_min3_f32 {v(mn+1)}, {v(mn+1)}, {v(src+i)}, {v(src+i+1)}")
    p(f"v_max_f32 {v(mn)}, {v(mn)}, {v(src+15)}")
    p(f"v_min_f32 {v(mn+1)}, {v(mn+1)}, {v(src+15)}")
    p(f"v_pk_mul_f32 {v(mn,2)}, {v(mn,2)}, {sL2E} neg_lo:[1,0]")
    for i in range(8):
        p(f"v_pk_fma_f32 {v(ap+2*i,2)}, {v(src+2*i,2)}, {sL2E}, {v(mn,2)} op_sel:[0,0,0] op_sel_hi:[1,1,0]")
        p(f"v_pk_fma_f32 {v(am+2*i,2)}, {v(src+2*i,2)}, {sL2E}, {v(mn,2)} op_sel:[0,0,1] op_sel_hi:[1,1,1] neg_lo:[1,0,0] neg_hi:[1,0,0]")
    for i in range(16):
        p(f"v_exp_f32 {v(ap+i)}, {v(ap+i)}")
        p(f"v_exp_f32 {v(am+i)}, {v(am+i)}")
    for i in range(4):
        p(f"v_pk_add_f32 {v(src+2*i,2)}, {v(ap+4*i,2)}, {v(ap+4*i+2,2)}")
        p(f"v_pk_add_f32 {v(src+8+2*i,2)}, {v(am+4*i,2)}, {v(am+4*i+2,2)}")
    for b in (0, 8):
        p(f"v_pk_add_f32 {v(src+b,2)}, {v(src+b,2)}, {v(src+b+2,2)}")
        p(f"v_pk_add_f32 {v(src+b+4,2)}, {v(src+b+4,2)}, {v(src+b+6,2)}")
    for b in (0, 8):
        p(f"v_pk_add_f32 {v(src+b,2)}, {v(src+b,2)}, {v(src+b+4,2)}")
    p(f"v_add_f32 {v(mn)}, {v(src)}, {v(src+1)}")
    p(f"v_add_f32 {v(mn+1)}, {v(src+8)}, {v(src+9)}")
    p(f"v_rcp_f32 {v(mn)}, {v(mn)}")
    p(f"v_rcp_f32 {v(mn+1)}, {v(mn+1)}")
    for i in range(8):
        p(f"v_pk_mul_f32 {v(ap+2*i,2)}, {v(ap+2*i,2)}, {v(mn,2)} {LO2}")
        p(f"v_pk_mul_f32 {v(am+2*i,2)}, {v(am+2*i,2)}, {v(mn,2)} {HI2}")
    for i in range(8):
        p(f"v_cvt_pk_bf16_f32 {v(dst+i)}, {v(ap+2*i)}, {v(ap+2*i+1)}")
    for i in range(8):
        p(f"v_cvt_pk_bf16_f32 {v(dst+8+i)}, {v(am+2*i)}, {v(am+2*i+1)}")

vVP = vFR
vPHK = 152
mid = Prog()
for i in range(8):
    mid(f"v_cvt_pk_bf16_f32 {v(vVP+i)}, {v(vVV+2*i)}, {v(vVV+2*i+1)}")
mid(f"ds_write_b128 {v(vVW)}, {v(vVP,4)}")
mid(f"ds_write_b128 {v(vVW)}, {v(vVP+4,4)} offset:1024")
softmax(E, vKT, vPHK, 176, vQT, 168, mid)
dump("phik", [v(vPHK+i) for i in range(16)])
for q in range(4):
    E(f"ds_write_b128 {v(vPhW)}, {v(vPHK+4*q,4)} offset:{16*q}")
vKA, vKB, vONE, vKD, vZD = 96, 112, 172, 128, 132
for i in range(4):
    E(f"v_mov_b32 {v(vONE+i)}, 0x3f803f80")
def strip_check(p, regs):
    for r in regs: p(f"v_bitop3_b32 {v(r)}, {v(r)}, {v(vTAG)}, {sFF} bitop3:0x78")
    p(f"v_or3_b32 {v(vT)}, {v(regs[0])}, {v(regs[1])}, {v(regs[2])}")
    rest = regs[3:]
    while len(rest) >= 2:
        p(f"v_or3_b32 {v(vT)}, {v(vT)}, {v(rest[0])}, {v(rest[1])}"); rest = rest[2:]
    if rest: p(f"v_bitop3_b32 {v(vT)}, {v(vT)}, {v(rest[0])}, {sFF} bitop3:0xa8")
    else: p(f"v_and_b32 {v(vT)}, {sFF}, {v(vT)}")
    p(f"v_cmp_ne_u32 vcc, 0, {v(vT)}")
def e_check(p):
    if OPT["strip"]: return strip_check(p, [vEQ+2*k for k in range(8)])
    p(f"v_xor_b32 {v(vT)}, {v(vTAG)}, {v(vEQ)}")
    for k in range(1, 8):
        p(f"v_bitop3_b32 {v(vT)}, {v(vEQ+2*k)}, {v(vTAG)}, {v(vT)} bitop3:0xbe")
    p(f"v_and_b32 {v(vT)}, {sFF}, {v(vT)}")
    p(f"v_cmp_ne_u32 vcc, 0, {v(vT)}")
E.waitvm("eld")
spin("e", e_loads, e_check)
E.waitlg(None)
stamp("softmax k")
E.waitvm("wq")
E("s_barrier")
for sw in range(4):
    for rd in range(2):
        E(f"ds_read_b64_tr_b16 {v(vKA + 4*sw + 2*rd, 2)}, {v(vPhR)} offset:{sw*8192 + rd*640}")
    E(f"ds_read_b128 {v(vKB + 4*sw, 4)}, {v(vVR)} offset:{sw*8192}")
hq = [240, 242]
CI = Prog()
cur = vEQ + 14
for k in range(6, -1, -1):
    cmul_add(CI, vEQ + 2*k, cur, vMU2, vEQ + 2*k)
    cur = vEQ + 2*k
CI(f"""
v_mov_b32 {v(hq[0])}, {v(cur)}
v_mov_b32 {v(hq[0]+1)}, {v(cur+1)}
v_and_b32 {v(vT)}, 0x30, {v(vL)}
v_permlane32_swap_b32 {v(cur)}, {v(hq[0])}
v_permlane32_swap_b32 {v(cur+1)}, {v(hq[0]+1)}
""")
cmul_add(CI, cur, hq[0], vMU, cur)
E.extend(CI.ins[:8])
KP = Prog()
for sw in range(4):
    KP(f"v_mfma_f32_16x16x32_bf16 {v(vKD,4)}, {v(vKA+4*sw,4)}, {v(vKB+4*sw,4)}, {'0' if sw == 0 else v(vKD,4)}")
    KP(f"v_mfma_f32_16x16x32_bf16 {v(vZD,4)}, {v(vKA+4*sw,4)}, {v(vONE,4)}, {'0' if sw == 0 else v(vZD,4)}")
E.extend(weave(KP, CI.ins[8:], every=1, per=2))
E(f"""
v_bfi_b32 {v(vKD)}, {sFF}, {v(vTAG)}, {v(vKD)}
v_bfi_b32 {v(vZD)}, {sFF}, {v(vTAG)}, {v(vZD)}
buffer_store_dwordx4 {v(vKD,4)}, {v(vL16)}, {SRD_WS}, {sKVP} offen sc1
""")
E.lock()
E(f"""
s_mov_b32 exec_lo, 0x10001
s_mov_b32 exec_hi, 0x10001
buffer_store_dwordx4 {v(vZD,4)}, {v(vT)}, {SRD_WS}, {sZPP} offen sc1
s_mov_b64 exec, -1
""")
E.ins[-2].lines = 1
E.unlock()
stamp("kvpub")
E(f"""
v_pk_fma_f32 {v(vBER,2)}, {v(vALR,2)}, {v(cur,2)}, {v(vBER,2)} {LO}
v_pk_fma_f32 {v(vBEI,2)}, {v(vALI,2)}, {v(cur,2)}, {v(vBEI,2)} {LO}
v_pk_fma_f32 {v(vBER,2)}, {v(vALI,2)}, {v(cur,2)}, {v(vBER,2)} {HI} {NEG1}
v_pk_fma_f32 {v(vBEI,2)}, {v(vALR,2)}, {v(cur,2)}, {v(vBEI,2)} {HI}
""")
hr, hi_ = vBER, vBEI
for m in range(8):
    r, i = vU_RE + 2*m, vU_IM + 2*m
    E(f"v_pk_fma_f32 {v(r,2)}, {v(hr,2)}, {v(vLAM,2)}, {v(r,2)} {LO}")
    E(f"v_pk_fma_f32 {v(i,2)}, {v(hi_,2)}, {v(vLAM,2)}, {v(i,2)} {LO}")
    E(f"v_pk_fma_f32 {v(r,2)}, {v(hi_,2)}, {v(vLAM,2)}, {v(r,2)} {HI} {NEG1}")
    E(f"v_pk_fma_f32 {v(i,2)}, {v(hr,2)}, {v(vLAM,2)}, {v(i,2)} {HI}")
    hr, hi_ = r, i
dump("h", [v(vU_RE+i) for i in range(32)])
vHP = 224
for par in range(2):
    for i in range(4):
        E(f"v_cvt_pk_bf16_f32 {v(vHP + 4*par + i)}, {v(vU_RE + 4*i + par)}, {v(vU_RE + 4*i + 2 + par)}")
E(f"ds_write_b128 {v(vHW)}, {v(vHP,4)}")
E(f"ds_write_b128 {v(vHW)}, {v(vHP+4,4)} offset:16")
for par in range(2):
    for i in range(4):
        E(f"v_cvt_pk_bf16_f32 {v(vHP + 8 + 4*par + i)}, -{v(vU_IM + 4*i + par)}, -{v(vU_IM + 4*i + 2 + par)}")
E(f"ds_write_b128 {v(vHW)}, {v(vHP+8,4)} offset:2560")
E(f"ds_write_b128 {v(vHW)}, {v(vHP+12,4)} offset:2576")
vHF = 240
for k in range(4):
    for rd in range(2):
        E(f"ds_read_b64_tr_b16 {v(vHF + 4*k + 2*rd, 2)}, {v(vHR)} offset:{(16*k + 4*rd)*80}")
vQF = 208
def q_reads(p, n):
    j, k = n >> 2, n & 3
    for rd in range(2):
        off = (j >> 2)*16384 + k*4096 + (j & 3)*1024 + rd*256
        p(f"ds_read_b64_tr_b16 {v(vQF + (n%7)*4 + 2*rd, 2)}, {v(vTRq)} offset:{off}")
AHQ = 5
vSENT = 164
if OPT["osent"] and OPT["sentpos"] == 1:
    for i in range(4): E(f"v_mov_b32 {v(vSENT+i)}, -1")
for n in range(AHQ): q_reads(E, n)
stamp("scan2")
def flag_store(p, base, tok):
    p.waitvm(tok)
    p.lock()
    p(f"""
    s_mov_b64 exec, 1
    v_mov_b32 {v(vT)}, {base}
    buffer_store_dword {v(vTAG)}, {v(vT)}, {SRD_WS}, {sFL} offen sc1
    s_mov_b64 exec, -1
    """)
    p.ins[-2].lines = 1
    p.unlock()
vQT2 = 176
Q = Prog()
for n in range(32):
    Q(f"v_mfma_f32_32x32x16_bf16 {v(vQT2,16)}, {v(vQF + (n%7)*4,4)}, {a(aXF + 4*n, 4)}, {'0' if n == 0 else v(vQT2,16)}")
    if n == OPT["gpos"]: Q.mark("gather_ok")
    if n + AHQ < 32: q_reads(Q, n + AHQ)
    if n < 4:
        Q(f"buffer_store_dwordx4 {v(vHF+4*n,4)}, {v(vL16)}, {SRD_WS}, {sHS} offen offset:{n*1024} sc1", tok="hst")
    if OPT["osent"] and OPT["sentpos"] == 1 and 4 <= n < 6:
        Q(f"buffer_store_dwordx4 {v(vSENT,4)}, {v(vL16)}, {SRD_WS}, {sOS} offen offset:{(n-4)*1024} sc1", tok="hst")
    if n == OPT["fhst"]: flag_store(Q, W_FH, "hst")
vTW, vTZ, vTZ2, vTN, vTD, vOA = 8, 9, 20, 21, 0, 34
vQT_ = 47
QF = Prog()
QF(f"""
s_and_b32 {sT0}, {sW}, 1
v_and_b32 {v(vQT_)}, 31, {v(vL)}
s_lshl_b32 {sT2}, {sCT}, 7
s_lshl_b32 {sT3}, {sT0}, 6
s_add_u32 {sT2}, {sT2}, {sT3}
""")
if TL:
    QF(f"""
    v_and_b32 {v(vDA)}, 7, {v(vL)}
    v_lshl_add_u32 {v(vDA)}, {v(vDA)}, 3, {sT2}
    s_lshl_b32 {sT3}, {sRA0}, 5
    v_lshrrev_b32 {v(vOUT)}, 3, {v(vL)}
    v_add_u32 {v(vOUT)}, {sT3}, {v(vOUT)}
    v_lshl_add_u32 {v(vOUT)}, {v(vOUT)}, 10, {v(vDA)}
    s_mov_b32 s78, 8192
    s_mov_b32 s79, 16384
    s_mov_b32 s80, 24576
    """)
else:
    QF(f"""
    v_lshl_add_u32 {v(vDA)}, {v(vHI)}, 3, {sT2}
    s_lshl_b32 {sT3}, {sRA0}, 5
    v_add_u32 {v(vOUT)}, {sT3}, {v(vQT_)}
    v_lshl_add_u32 {v(vOUT)}, {v(vOUT)}, 10, {v(vDA)}
    """)
QF.mark("xd_ok")
QF(f"""
s_lshl_b32 {sT2}, {sRA0}, 7
s_add_u32 {sT2}, {sT2}, {W_G}
v_lshl_add_u32 {v(vGL[0])}, {v(vQT_)}, 2, {sT2}
v_xor_b32 {v(vGL[1])}, 128, {v(vGL[0])}
""")
QF.mark("gl_ok")
QF(f"""
s_lshr_b32 {sT1}, {sW}, 1
s_mul_i32 {sT2}, {sT0}, 1280
s_lshl_b32 {sT3}, {sT1}, 5
s_add_u32 {sT2}, {sT2}, {sT3}
s_add_u32 {sT2}, {sT2}, {TAB}
v_and_b32 {v(vTZ2)}, 15, {v(vL)}
v_mul_u32_u24 {v(vTW)}, 80, {v(vTZ2)}
v_lshrrev_b32 {v(vT2)}, 4, {v(vL)}
v_lshl_add_u32 {v(vTW)}, {v(vT2)}, 3, {v(vTW)}
v_add_u32 {v(vTW)}, {sT2}, {v(vTW)}
s_mul_i32 {sT2}, {sT0}, 80
s_add_u32 {sT2}, {sT2}, {sT3}
s_add_u32 {sT2}, {sT2}, {TAB + 32*80}
v_and_b32 {v(vTN)}, 3, {v(vL)}
v_lshlrev_b32 {v(vTZ)}, 3, {v(vTN)}
v_bfe_u32 {v(vT2)}, {v(vL)}, 4, 1
v_lshl_or_b32 {v(vTZ)}, {v(vT2)}, 2, {v(vTZ)}
v_lshl_or_b32 {v(vTZ)}, {v(vHI)}, 1, {v(vTZ)}
v_add_u32 {v(vTZ)}, {sT2}, {v(vTZ)}
v_lshlrev_b32 {v(vTZ2)}, 2, {v(vTZ2)}
v_add_u32 {v(vTZ2)}, {TAB + 34*80}, {v(vTZ2)}
v_bfe_u32 {v(vOA)}, {v(vL)}, 3, 2
v_lshl_add_u32 {v(vTN)}, {v(vOA)}, 2, {v(vTN)}
v_lshl_add_u32 {v(vTN)}, {v(vHI)}, 4, {v(vTN)}
v_mul_u32_u24 {v(vTN)}, 80, {v(vTN)}
v_add_u32 {v(vTN)}, {TAB}, {v(vTN)}
v_mul_u32_u24 {v(vTD)}, 80, {v(vHI)}
v_add_u32 {v(vTD)}, {TAB + 32*80}, {v(vTD)}
v_mov_b32 {v(vT2)}, {TAB + 34*80}
s_mov_b32 s76, 0xf0f0f0f0
s_mov_b32 s77, 0x0f0f0f0f
v_cndmask_b32 {v(vTN)}, {v(vTN)}, {v(vT2)}, s[76:77]
v_cndmask_b32 {v(vTD)}, {v(vTD)}, {v(vT2)}, s[76:77]
v_bfe_u32 {v(vT2)}, {v(vL)}, 1, 1
v_lshl_or_b32 {v(vOA)}, {v(vOA)}, 1, {v(vT2)}
v_and_b32 {v(vT2)}, 1, {v(vL)}
v_lshl_or_b32 {v(vOA)}, {v(vT2)}, 3, {v(vOA)}
v_bfe_u32 {v(vT2)}, {v(vL)}, 2, 1
v_lshl_or_b32 {v(vOA)}, {v(vT2)}, 4, {v(vOA)}
v_lshl_or_b32 {v(vOA)}, {v(vHI)}, 5, {v(vOA)}
v_lshlrev_b32 {v(vOA)}, 4, {v(vOA)}
s_lshr_b32 {sT2}, {sRA0}, 3
s_lshl_b32 {sT2}, {sT2}, 19
s_and_b32 {sT3}, {sRA0}, 7
s_lshl_b32 {sT3}, {sT3}, 12
s_add_u32 {sT2}, {sT2}, {sT3}
s_add_u32 {sT2}, {sT2}, {W_H}
""")
if OPT["crot"]:
    QF(f"""
    s_lshr_b32 {sT3}, {sCT}, 2
    s_add_u32 {sT3}, {sT3}, {sCT}
    s_add_u32 {sT3}, {sT3}, {sCG}
    s_and_b32 {sT3}, {sT3}, 1
    s_lshl_b32 {sT3}, {sT3}, 11
    s_add_u32 {sT2}, {sT2}, {sT3}
    """)
QF(f"""
v_add_u32 {v(vAH[0])}, {sT2}, {v(vL16)}
v_xor_b32 {v(vAH[1])}, 4096, {v(vAH[0])}
{"v_xor_b32 %s, 2048, %s" % (v(vAH2[0]), v(vAH[0])) if OPT["crot"] else ""}
{"v_xor_b32 %s, 2048, %s" % (v(vAH2[1]), v(vAH[1])) if OPT["crot"] else ""}
s_lshr_b32 {sT2}, {sRA0}, 4
s_lshl_b32 {sT2}, {sT2}, 19
s_and_b32 {sT3}, {sRA0}, 15
s_lshl_b32 {sT3}, {sT3}, 11
s_add_u32 {sT2}, {sT2}, {sT3}
s_add_u32 {sT2}, {sT2}, {W_O}
v_add_u32 {v(vAO[0])}, {sT2}, {v(vL16)}
v_xor_b32 {v(vAO[1])}, 2048, {v(vAO[0])}
""")
E.extend(weave_locked(Q, QF, ismf, 2))
dump("qT", [v(vQT2+i) for i in range(16)])
stamp("q done")
if OPT["gpos"] >= 32: E.mark("gather_ok")

vPQ = 224
SQ = Prog()
softmax(SQ, vQT2, vPQ, vU_RE, vU_IM, 164)
cut = min(len(SQ.ins), OPT["fold"] * 10)
E.extend(SQ.ins[:cut]); E.mark("fh_ld"); E.extend(SQ.ins[cut:])
dump("phiq", [v(vPQ+i) for i in range(16)])
stamp("softmax q")
tX, tDk = 208, 176
if not TL:
    E.drain("dk3")
    for i in range(8):
        E(f"v_lshlrev_b32 {v(tX+2*i)}, 16, {v(vXD+i)}")
        E(f"v_and_b32 {v(tX+2*i+1)}, {sHM}, {v(vXD+i)}")
        E(f"v_lshlrev_b32 {v(tDk+2*i)}, 16, {v(vDK+i)}")
        E(f"v_and_b32 {v(tDk+2*i+1)}, {sHM}, {v(vDK+i)}")
    for i in range(8):
        E(f"v_pk_mul_f32 {v(tX+2*i,2)}, {v(tX+2*i,2)}, {v(tDk+2*i,2)}")
    for i in range(8):
        E(f"v_cvt_pk_bf16_f32 {v(tDk+i)}, {v(tX+2*i)}, {v(tX+2*i+1)}")
    for i in range(8):
        E(f"v_lshlrev_b32 {v(vACC+2*i)}, 16, {v(tDk+i)}")
        E(f"v_and_b32 {v(vACC+2*i+1)}, {sHM}, {v(tDk+i)}")
    for i in range(8):
        E(f"v_pk_mul_f32 {v(vACC+2*i,2)}, {v(vACC+2*i,2)}, 0.5 op_sel_hi:[1,0]")
    E(f"v_lshlrev_b32 {v(vOUT)}, 1, {v(vOUT)}")

def g_check(p):
    if OPT["strip"]: return strip_check(p, [vGZ] + [vGA+4*r for r in range(16)])
    p(f"v_xor_b32 {v(vT)}, {v(vTAG)}, {v(vGZ)}")
    for r in range(16):
        p(f"v_bitop3_b32 {v(vT)}, {v(vGA+4*r)}, {v(vTAG)}, {v(vT)} bitop3:0xbe")
    p(f"v_and_b32 {v(vT)}, {sFF}, {v(vT)}")
    p(f"v_cmp_ne_u32 vcc, 0, {v(vT)}")
E.drain("fhl")
E.waitvm("gld")
spin("kv", gather_loads, g_check)
def fh_load(p): p(FH_LOAD)
def fl_check(p): p(f"v_cmp_ne_u32 vcc, {sTAG}, {v(vFLG)}")
spin("fh", fh_load, fl_check)
E.mark("fh_ok")
stamp("gather ok")
if not OPT["osent"]: E(f"v_add_u32 {v(vFLA)}, {W_FO - W_FH}, {v(vFLA)}")
st = 32
while st >= 4:
    for b in range(0, st, 4):
        for h in range(2):
            E(f"v_pk_add_f32 {v(vGA+b+2*h,2)}, {v(vGA+b+2*h,2)}, {v(vGA+b+st+2*h,2)}")
    st //= 2
E(f"""
v_permlane32_swap_b32 {v(vGZ)}, {v(vGZ+1)}
v_permlane32_swap_b32 {v(vGZ+2)}, {v(vGZ+3)}
v_cvt_pk_bf16_f32 {v(vGA)}, {v(vGA)}, {v(vGA+1)}
v_cvt_pk_bf16_f32 {v(vGA+1)}, {v(vGA+2)}, {v(vGA+3)}
v_add_f32 {v(vGZ)}, {v(vGZ)}, {v(vGZ+1)}
v_add_f32 {v(vGZ+2)}, {v(vGZ+2)}, {v(vGZ+3)}
ds_write_b64 {v(vTW)}, {v(vGA,2)}
v_mov_b32 {v(vGZ+1)}, 0
v_permlane16_swap_b32 {v(vGZ)}, {v(vGZ+2)}
v_add_f32 {v(vGZ)}, {v(vGZ)}, {v(vGZ+2)}
ds_write_b32 {v(vTZ2)}, {v(vGZ+1)}
v_add_f32_dpp {v(vGZ)}, {v(vGZ)}, {v(vGZ)} row_ror:8 row_mask:0xf bank_mask:0xf
v_add_f32_dpp {v(vGZ)}, {v(vGZ)}, {v(vGZ)} row_ror:4 row_mask:0xf bank_mask:0xf
v_cvt_pk_bf16_f32 {v(vGZ)}, {v(vGZ)}, {v(vGZ)}
ds_write_b16 {v(vTZ)}, {v(vGZ)}
""")
def gg_check(p):
    p(f"v_xor_b32 {v(vT)}, {v(vTAG)}, {v(vGv[0])}")
    p(f"v_bitop3_b32 {v(vT)}, {v(vGv[1])}, {v(vTAG)}, {v(vT)} bitop3:0xbe")
    p(f"v_and_b32 {v(vT)}, {sFFFF}, {v(vT)}")
    p(f"v_cmp_ne_u32 vcc, 0, {v(vT)}")
spin("g", gg_load, gg_check)
E.waitlg(None)
E("s_barrier")
vTA, vTB, vNUM, vDEN = 104, 120, 136, 152
for s_ in range(4):
    E(f"ds_read_b128 {v(vTB+4*s_,4)}, {v(vTD)} offset:{16*s_}")
for s_ in range(4):
    E(f"ds_read_b128 {v(vTA+4*s_,4)}, {v(vTN)} offset:{16*s_}")
GR = Prog()
for ra in range(2):
    g_, r_ = vGv[ra], vRT[ra]
    GR(f"""
    v_and_b32 {v(g_)}, {sHM}, {v(g_)}
    v_sub_f32 {v(r_)}, 1.0, {v(g_)}
    v_max_f32 {v(g_)}, 0x0da24260, {v(g_)}
    v_cvt_pk_bf16_f32 {v(r_)}, {v(r_)}, {v(r_)}
    v_rcp_f32 {v(r_+1)}, {v(g_)}
    v_and_b32 {v(r_)}, {sHM}, {v(r_)}
    v_add_f32 {v(r_)}, {v(r_)}, {v(r_)}
    v_mul_f32 {v(r_)}, {v(r_)}, {v(r_+1)}
    """)
E.extend(GR.ins[:8])
DN = Prog()
for s_ in range(4):
    DN(f"v_mfma_f32_32x32x16_bf16 {v(vDEN,16)}, {v(vTB+4*s_,4)}, {v(vPQ+4*s_,4)}, {'0' if s_ == 0 else v(vDEN,16)}")
for s_ in range(4):
    DN(f"v_mfma_f32_32x32x16_bf16 {v(vNUM,16)}, {v(vTA+4*s_,4)}, {v(vPQ+4*s_,4)}, {'0' if s_ == 0 else v(vNUM,16)}")
E.extend(weave(DN, GR.ins[8:], every=1, per=4))
E.drainaux(8)
E(f"""
v_cvt_pk_bf16_f32 {v(vDEN)}, {v(vDEN)}, {v(vDEN)}
v_and_b32 {v(vDEN)}, {sHM}, {v(vDEN)}
v_add_f32 {v(vDEN)}, 0x358637bd, {v(vDEN)}
v_cvt_pk_bf16_f32 {v(vDEN)}, {v(vDEN)}, {v(vDEN)}
v_and_b32 {v(vDEN)}, {sHM}, {v(vDEN)}
v_rcp_f32 {v(vDEN)}, {v(vDEN)}
""")
for i in range(8):
    E(f"v_cvt_pk_bf16_f32 {v(vTA+i)}, {v(vNUM+2*i)}, {v(vNUM+2*i+1)}")
for i in range(8):
    E(f"v_lshlrev_b32 {v(vNUM+2*i)}, 16, {v(vTA+i)}")
    E(f"v_and_b32 {v(vNUM+2*i+1)}, {sHM}, {v(vTA+i)}")
for i in range(8):
    E(f"v_pk_mul_f32 {v(vNUM+2*i,2)}, {v(vNUM+2*i,2)}, {v(vDEN,2)} {LO2}")
for i in range(8):
    E(f"v_cvt_pk_bf16_f32 {v(vTA+i)}, {v(vNUM+2*i)}, {v(vNUM+2*i+1)}")
for b in range(2):
    E(f"buffer_store_dwordx4 {v(vTA+4*b,4)}, {v(vOA)}, {SRD_WS}, {sOS} offen offset:{b*1024} sc1", tok="ost")
dump("o", [v(vTA+i) for i in range(8)])
stamp("o stored")

def acc(ra, nb): return v(vACC + (ra*2+nb)*16, 16)
def hm(p, c, k, ra, nb):
    first = (c == 0 and k == 0 and ((ra, nb) != (0, 0) or TL))
    p(f"v_mfma_f32_32x32x16_bf16 {acc(ra,nb)}, {a(aCF + ((c*4+k)*2+nb)*4, 4)}, {a(aXF + ((c*4+k)*2+ra)*4, 4)}, {'0' if first else acc(ra,nb)}")
def fo_load(p): p(FH_LOAD)
vRW = [23, 24, 25]; vRR = 10
RA = Prog()
XD = Prog()
vXR_ = [48, 50, 52, 54, 56, 58, 16, 18]
vGQ = [8, 20]; vRQ = [38, 46]; vDU = 22
vWA = [14, 15, 22, 23]; vRA = [26, 27, 28, 29]
if TL:
    XD(f"v_lshrrev_b32 {v(vT2)}, 3, {v(vL)}")
    XD(f"v_lshlrev_b32 {v(vT2)}, 2, {v(vT2)}")
    for q in range(4): XD(f"ds_bpermute_b32 {v(vGQ[q>>1] + (q&1))}, {v(vT2)}, {v(vGv[0])} offset:{32*q}")
    XD.waitvm("xdl")
    for i in range(2):
        XD(f"v_lshlrev_b32 {v(vDU+2*i)}, 16, {v(vDK2+i)}")
        XD(f"v_and_b32 {v(vDU+2*i+1)}, {sHM}, {v(vDK2+i)}")
    for j in range(8):
        XD(f"v_lshlrev_b32 {v(vXR_[j])}, 16, {v(vXD2+j)}")
        XD(f"v_and_b32 {v(vXR_[j]+1)}, {sHM}, {v(vXD2+j)}")
    for j in range(8):
        for h in range(2): XD(f"v_mul_f32 {v(vXR_[j]+h)}, {v(vXR_[j]+h)}, {v(vDU+2*(j&1)+h)}")
    for j in range(8): XD(f"v_cvt_pk_bf16_f32 {v(vXD2+j)}, {v(vXR_[j])}, {v(vXR_[j]+1)}")
    for q in range(4):
        r_ = vRQ[q>>1] + (q&1)
        XD(f"v_sub_f32 {v(r_)}, 1.0, {v(vGQ[q>>1] + (q&1))}")
    for q in range(4):
        r_ = vRQ[q>>1] + (q&1)
        XD(f"v_cvt_pk_bf16_f32 {v(r_)}, {v(r_)}, {v(r_)}")
    for q in range(4):
        r_ = vRQ[q>>1] + (q&1)
        XD(f"v_and_b32 {v(r_)}, {sHM}, {v(r_)}")
    for j in range(8):
        XD(f"v_lshlrev_b32 {v(vXR_[j])}, 16, {v(vXD2+j)}")
        XD(f"v_and_b32 {v(vXR_[j]+1)}, {sHM}, {v(vXD2+j)}")
    for j in range(8):
        q = j >> 1
        for h in range(2): XD(f"v_mul_f32 {v(vXR_[j]+h)}, {v(vXR_[j]+h)}, {v(vRQ[q>>1] + (q&1))}")
    WAP = Prog(); RAP = Prog()
    WAP(f"""
    s_lshl_b32 {sT2}, {sW}, 12
    v_and_b32 {v(vT2)}, 7, {v(vL)}
    v_xor_b32 {v(vWA[0])}, {v(vT2)}, {v(vHI)}
    v_and_b32 {v(vWA[1])}, 31, {v(vL)}
    v_lshl_add_u32 {v(vWA[1])}, {v(vWA[1])}, 7, {sT2}
    v_lshl_or_b32 {v(vWA[0])}, {v(vWA[0])}, 4, {v(vWA[1])}
    v_xor_b32 {v(vWA[1])}, 32, {v(vWA[0])}
    v_xor_b32 {v(vWA[2])}, 64, {v(vWA[0])}
    v_xor_b32 {v(vWA[3])}, 0x60, {v(vWA[0])}
    """)
    RAP(f"""
    v_lshrrev_b32 {v(vRA[2])}, 3, {v(vL)}
    v_xor_b32 {v(vT2)}, {v(vT2)}, {v(vRA[2])}
    v_lshl_add_u32 {v(vRA[1])}, {v(vRA[2])}, 7, {sT2}
    v_lshl_or_b32 {v(vRA[0])}, {v(vT2)}, 4, {v(vRA[1])}
    v_xor_b32 {v(vRA[1])}, 4096, {v(vRA[0])}
    v_xor_b32 {v(vRA[2])}, 8192, {v(vRA[0])}
    v_xor_b32 {v(vRA[3])}, 12288, {v(vRA[0])}
    v_lshlrev_b32 {v(vOUT)}, 1, {v(vOUT)}
    s_mov_b32 s81, 32768
    s_mov_b32 s82, 49152
    s_or_b32 {sT3}, s2, {sW}
    v_mov_b32 {v(vT)}, {W_EPOCH}
    """)
else:
    for a_ in range(1, 4):
        RA(f"s_xor_b32 {sT2}, {sW}, {a_}")
        RA(f"s_mul_i32 {sT2}, {sT2}, 12288")
        RA(f"s_add_u32 {sT2}, {sT2}, {(a_-1)*4096}")
        RA(f"v_add_u32 {v(vRW[a_-1])}, {sT2}, {v(vL16)}")
    RA(f"s_mul_i32 {sT2}, {sW}, 12288")
    RA(f"v_add_u32 {v(vRR)}, {sT2}, {v(vL16)}")
xd_left = list(XD.ins)
def scale(ra, nb):
    p = Prog()
    for i in range(16):
        r = vACC + (ra*2+nb)*16 + i
        p(f"v_mul_f32 {v(r)}, {v(vRT[ra])}, {v(r)}")
    return p
hseq = [(c, k, ra, nb) for c in range(3) for k in range(4) for ra in range(2) for nb in range(2)]
accs = [(0, 0), (0, 1), (1, 0), (1, 1)]
hseq += [(3, k, ra, nb) for ra, nb in accs for k in range(4)]
sc_left = []
for n_, (c, k, ra, nb) in enumerate(hseq):
    if OPT["osent"]:
        if n_ == OPT["old"]: E.mark("fo_ok"); stamp("o ld")
    else:
        if n_ == OPT["fost"]:
            flag_store(E, W_FO, "ost"); stamp("fo flag")
        if n_ == OPT["fost"] + OPT["fogap"]:
            fo_load(E); E.ins[-1].lat = OPT["lm"]; E.ins[-1].lines = 1
        if n_ == OPT["fochk"]:
            spin("fo", fo_load, fl_check); E.mark("fo_ok"); stamp("fo ok")
    E.drain(f"h{c}{k}{ra}")
    hm(E, c, k, ra, nb)
    if n_ >= OPT["xdpos"]:
        k_ = OPT["xdper"] if n_ < 55 else 1000
        while xd_left and k_ > 0:
            c_ = xd_left.pop(0); E.ins.append(c_)
            if c_.kind != "pseudo": k_ -= 1
    if n_ >= 56:
        if n_ % 4 == 0: sc_left = scale(*accs[(n_ - 56) // 4]).ins
        E.extend(sc_left[:4]); sc_left = sc_left[4:]
if OPT["osent"] and OPT["old"] == 64: E.mark("fo_ok"); stamp("o ld")
if OPT["fochk"] == 64 and not OPT["osent"]:
    spin("fo", fo_load, fl_check); E.mark("fo_ok"); stamp("fo ok")
def om(p, c, b, ra, nb):
    p(f"v_mfma_f32_32x32x16_bf16 {acc(ra,nb)}, {v(vWOFR + ((c*2+b)*2+nb)*4, 4)}, {v(vOF + ((c*2+b)*2+ra)*4, 4)}, {acc(ra,nb)}")
stamp("h done")
E.drainaux()
E.extend(RA)
def o_reload(h):
    def f(p):
        for x in o_order[8*h:8*h+8]: p(o_ld(*x))
    return f
def o_check(h):
    def f(p):
        r = [vOF + ((c*2+b)*2+ra)*4 for c, b, ra in o_order[8*h:8*h+8]]
        p(f"v_max3_u32 {v(vT)}, {v(r[0])}, {v(r[1])}, {v(r[2])}")
        p(f"v_max3_u32 {v(vT)}, {v(vT)}, {v(r[3])}, {v(r[4])}")
        p(f"v_max3_u32 {v(vT)}, {v(vT)}, {v(r[5])}, {v(r[6])}")
        p(f"v_max_u32 {v(vT)}, {v(vT)}, {v(r[7])}")
        p(f"v_cmp_eq_u32 vcc, -1, {v(vT)}")
    return f
if OPT["osent"]:
    E.drain("o%d%d%d" % o_order[7])
    spin("o1", o_reload(0), o_check(0)); stamp("o1 ok")
for g_ in range(4):
    p = Prog()
    for c, b, ra in o_order[2*g_:2*g_+2]:
        p.drain(f"o{c}{b}{ra}")
        for nb in range(2): om(p, c, b, ra, nb)
    if g_ < 2: E.extend(weave(p, scale(*accs[2+g_]), pred=ismf, per=4))
    elif g_ == 3 and OPT["osent"]:
        E.drain("o%d%d%d" % o_order[15])
        ck = Prog(); o_check(1)(ck)
        E.extend(weave(p, ck, pred=ismf, per=2))
        spin("o2", o_reload(1), o_check(1), emit=False)
    else: E.extend(p)
def wr(a_):
    p = Prog()
    for q in range(4):
        if TL: p(f"ds_write_b128 {v(vWA[q])}, {v(vACC + 16*a_ + 4*q, 4)} offset:{a_*16384}")
        else: p(f"ds_write_b128 {v(vRW[a_-1])}, {v(vACC + 16*a_ + 4*q, 4)} offset:{q*1024}")
    return p
E.drain("o311")
tail = [(1, 0), (1, 1), (0, 1), (0, 0)]
for n_, (ra, nb) in enumerate(tail):
    if n_ == 2: E.drain("o310")
    p = Prog()
    for c in (2, 3):
        for b in range(2): om(p, c, b, ra, nb)
    if TL:
        W_ = lambda k: wr(tail[k][0]*2 + tail[k][1]).ins
        if n_ == 0: E.extend(p)
        elif n_ == 1: E.extend(weave(p, WAP, pred=ismf, per=3))
        elif n_ == 2: E.extend(weave(p, W_(0), pred=ismf, per=1))
        else:
            m_ = p.ins; R_ = RAP.ins; wb = W_(1); wc = W_(2)
            E.extend(m_[:1] + R_[:3] + wb[:2] + m_[1:2] + wb[2:] + m_[2:3] + R_[3:5] + wc[:2] + m_[3:] + wc[2:] + R_[5:])
    elif n_ < 2: E.extend(p)
    else:
        pa = tail[n_-2]
        E.extend(weave(p, wr(pa[0]*2 + pa[1]), pred=ismf, per=1))
E.extend(wr(0 if TL else 1))
stamp("o done")
E.waitlg(None)
E("s_barrier")
OSC = ["", " sc1", " nt", " sc0 sc1"][OPT["outsc"]]
if TL:
    for q in range(4):
        for a_ in range(4):
            E(f"ds_read_b128 {v(128 + 16*q + 4*a_, 4)}, {v(vRA[a_])} offset:{a_*16384 + q*1024}")
    for q in range(4):
        b_ = 128 + 16*q
        for i in range(2):
            E(f"v_pk_add_f32 {v(b_+2*i,2)}, {v(b_+2*i,2)}, {v(b_+4+2*i,2)}")
            E(f"v_pk_add_f32 {v(b_+8+2*i,2)}, {v(b_+8+2*i,2)}, {v(b_+12+2*i,2)}")
        for i in range(2):
            E(f"v_pk_add_f32 {v(b_+2*i,2)}, {v(b_+2*i,2)}, {v(b_+8+2*i,2)}")
        for i in range(2):
            E(f"v_pk_fma_f32 {v(b_+2*i,2)}, {v(b_+2*i,2)}, {v(vGQ[q>>1],2)}, {v(vXR_[2*q+i],2)} {HI if q & 1 else LO}")
        E(f"buffer_store_dwordx4 {v(b_,4)}, {v(vOUT)}, {SRD_OUT}, {sQ16[q]} offen" + OSC)
else:
  for a_ in range(3):
    for q in range(4):
        E(f"ds_read_b128 {v(128 + 16*a_ + 4*q, 4)}, {v(vRR)} offset:{a_*4096 + q*1024}")
  for q in range(4):
    for a_ in range(3):
        for i in range(2):
            E(f"v_pk_add_f32 {v(vACC+4*q+2*i,2)}, {v(vACC+4*q+2*i,2)}, {v(128+16*a_+4*q+2*i,2)}")
    for i in range(2):
        E(f"v_pk_mul_f32 {v(vACC+4*q+2*i,2)}, {v(vACC+4*q+2*i,2)}, {v(vGv[0],2)} {LO2}")
    E(f"buffer_store_dwordx4 {v(vACC+4*q,4)}, {v(vOUT)}, {SRD_OUT}, 0 offen offset:{32*q}" + OSC)
if STAMPS:
    E.waitvm(None)
    stamp("end")
    E(f"""
    s_lshl_b32 {sT2}, s2, 11
    s_lshl_b32 {sT3}, {sW}, 9
    s_add_u32 {sT2}, {sT2}, {sT3}
    s_add_u32 {sT2}, {sT2}, {W_ST}
    v_lshlrev_b32 {v(vT)}, 3, {v(vL)}
    v_mov_b32 {v(100)}, {v(vDBG)}
    v_mov_b32 {v(101)}, 0
    buffer_store_dwordx2 {v(100,2)}, {v(vT)}, {SRD_WS}, {sT2} offen
    """)
if STAMPS or not TL:
    E(f"s_or_b32 {sT3}, s2, {sW}")
    E(f"v_mov_b32 {v(vT)}, {W_EPOCH}")
E(f"""
s_cmp_lg_u32 {sT3}, 0
s_cbranch_scc1 L_end
s_mov_b64 exec, 1
buffer_store_dword {v(vTAG)}, {v(vT)}, {SRD_WS}, 0 offen sc1
L_end:
s_endpgm
""")

log = []
woven = stream_weave2(main, items, aux, lat=OPT["lat"], stlat=OPT["stlat"], taq=OPT["taq"], log=log, margin=OPT["amargin"], cyc_line=OPT["cl"], capf=OPT["capf"]/100, sthol=OPT["sthol"])
if OPT["log"]:
    for nm, t, ts, it in log:
        if OPT["log"] > 1 or not nm.startswith("  it"): print(f"{nm:14s} t={t:6d} ({t/2200:.2f}us) ts={ts:6d} next={items[it].name if it < len(items) else '-'}")
stats = {}
fine = None
if OPT["fine"]:
    a_, b_ = OPT["fine"].replace("_", " ").split(":")
    fine = dict(start=a_, end=b_, names=[], clk="s_memrealtime" if STAMPS == 1 else "s_memtime", vm=OPT["fvm"], skip=OPT["fskip"])
body = finalize(woven.ins, stats, fine, lgk=OPT["lgk"]) + ["L_code_end:"] + finalize(slow.ins)
if OPT["al"]:
    body, alst = align_pass(body, salu=OPT["al"] > 1)
    print("align: cost %.2f promoted %d of %d" % alst)
if fine: stnames += [""] * (32 - len(stnames)) + fine["names"]
hdr = open("gated_mix__linear_kernel_hedgehog__ssm_conv_s5__prompt.s.ref").read().split("\n")
head = [l for l in hdr if l.startswith(";") and "@launch" not in l and "Override" not in l and "grid=ceil" not in l]
out = head + ["; @launch grid=(256,1,1) block=(256,1,1) lds=163840",
  '.amdgcn_target "amdgcn-amd-amdhsa--gfx950"', ".text", f".globl {KN}", ".p2align 8", f".type {KN},@function", f"{KN}:"]
out += body
out += ['.section .rodata,"a"', ".p2align 6", f".amdhsa_kernel {KN}", "  .amdhsa_next_free_vgpr 512", "  .amdhsa_next_free_sgpr 102",
  "  .amdhsa_accum_offset 256", "  .amdhsa_group_segment_fixed_size 0", "  .amdhsa_kernarg_size 136", "  .amdhsa_user_sgpr_count 2",
  "  .amdhsa_user_sgpr_kernarg_segment_ptr 1", "  .amdhsa_system_sgpr_workgroup_id_x 1", ".end_amdhsa_kernel"]
import json
if STAMPS: out += ["; STNAMES " + json.dumps(stnames), "; OPTS " + " ".join(sys.argv[2:])]
open(sys.argv[1], "w").write("\n".join(out) + "\n")
json.dump(dbg_names, open(sys.argv[1] + ".dbg.json", "w"))
json.dump(stnames, open(sys.argv[1] + ".st.json", "w"))
print("lines", len(body), "nops", stats["nops"], "stamps", nst[0], "dbg slots", dbg_slot[0])
```

```python
import re

TRANS = ("v_exp_f32", "v_log_f32", "v_rcp_f32", "v_rsq_f32", "v_sqrt_f32", "v_sin_f32", "v_cos_f32")

def split_ops(s):
    out, depth, cur = [], 0, ""
    for ch in s:
        if ch in "[(":
            depth += 1
        if ch in "])":
            depth -= 1
        if ch == "," and depth == 0:
            out.append(cur.strip()); cur = ""
        else:
            cur += ch
    if cur.strip():
        out.append(cur.strip())
    return out

REG_RE = re.compile(r"^(?:-|\|)?(?:abs\()?-?([vas])(?:(\d+)|\[(\d+):(\d+)\])\)?\|?$")

def regs_of(op):
    op = op.strip()
    if op in ("vcc", "exec", "m0", "scc"):
        return [(op, 0)]
    if op in ("vcc_lo", "vcc_hi"):
        return [("vcc", 0)]
    if op in ("exec_lo", "exec_hi"):
        return [("exec", 0)]
    m = REG_RE.match(op)
    if not m:
        return []
    t = m.group(1)
    if m.group(2) is not None:
        return [(t, int(m.group(2)))]
    return [(t, i) for i in range(int(m.group(3)), int(m.group(4)) + 1)]

class I:
    def __init__(self, text, tok=None, pseudo=None, arg=None):
        self.text = text; self.tok = tok; self.pseudo = pseudo; self.arg = arg
        self.reads = set(); self.writes = set()
        self.kind = "pseudo" if pseudo else None
        self.dpp = self.perml = self.rdlane = self.opseld = self.wide_store = self.ldsdma = self.dot = False
        self.passes = 0
        self.A = self.B = self.C = self.D = frozenset()
        self.data = frozenset()
        if not pseudo:
            self.parse()

    def parse(self):
        t = self.text.split(";")[0].strip()
        if t.endswith(":"):
            self.kind = "label"; return
        if t.startswith("."):
            self.kind = "directive"; return
        parts = t.split(None, 1)
        op = parts[0]; self.op = op
        rest = parts[1] if len(parts) > 1 else ""
        ops = split_ops(rest)
        mods = ""
        if ops:
            lp = ops[-1].split(None, 1)
            if len(lp) > 1:
                ops[-1] = lp[0]; mods = lp[1]
        self.mods = mods
        R = [regs_of(o) for o in ops]
        def rd(idx):
            for i in idx:
                if i < len(R): self.reads.update(R[i])
        def wr(idx):
            for i in idx:
                if i < len(R): self.writes.update(R[i])
        n = len(ops)
        if op.startswith("v_mfma"):
            self.kind = "mfma"
            self.passes = 8 if "32x32x16" in op else 4 if "16x16x32" in op else None
            assert self.passes, op
            self.D = frozenset(R[0]); self.A = frozenset(R[1]); self.B = frozenset(R[2]); self.C = frozenset(R[3])
            wr([0]); rd([1, 2, 3])
        elif op.startswith("v_"):
            self.kind = "trans" if op.replace("_e32", "").replace("_e64", "") in TRANS else "valu"
            if "permlane" in op and "swap" in op:
                self.perml = True; wr([0, 1]); rd([0, 1])
            elif op.startswith(("v_add_co", "v_sub_co", "v_addc_co", "v_subb_co", "v_subrev_co")):
                wr([0, 1]); rd(range(2, n))
            else:
                wr([0]); rd(range(1, n))
            if op.startswith(("v_fmac", "v_dot2c", "v_pk_fmac", "v_writelane")):
                rd([0])
            if op.startswith(("v_readfirstlane", "v_readlane")):
                self.rdlane = True
            if op.startswith("v_dot"):
                self.dot = True
            if re.search(r"row_|quad_perm|wave_|bcast", mods):
                self.dpp = True; rd([0])
            if "dst_sel" in mods and "dst_sel:DWORD" not in mods:
                self.opseld = True; rd([0])
        elif op.startswith("ds_"):
            self.kind = "ds"
            if op.startswith("ds_read") or op.startswith("ds_bpermute") or op.startswith("ds_swizzle"):
                wr([0]); rd(range(1, n))
            else:
                rd(range(n))
        elif op.startswith("buffer_") or op.startswith("global_"):
            self.kind = "vmem"
            allm = " " + mods + " "
            if op.startswith("buffer_load") and " lds " in allm:
                self.ldsdma = True; rd(range(n)); self.reads.add(("m0", 0))
            elif "_load" in op:
                wr([0]); rd(range(1, n))
                if "d16" in op: self.d16 = True
            elif "_store" in op:
                rd(range(n))
                di = 0 if op.startswith("buffer_") else 1
                self.data = frozenset(R[di])
                self.wide_store = op.endswith(("x3", "x4"))
            else:
                raise ValueError(op)
        elif op.startswith(("s_load", "s_memrealtime", "s_memtime")):
            self.kind = "smem"; wr([0]); rd(range(1, n))
        elif op in ("s_waitcnt", "s_barrier", "s_endpgm", "s_setprio", "s_nop") or op.startswith(("s_branch", "s_cbranch")):
            self.kind = "sopp"
        elif op.startswith("s_"):
            self.kind = "salu"
            if op.startswith(("s_cmp", "s_bitcmp")):
                rd(range(n))
            else:
                wr([0]); rd(range(1, n))
        else:
            raise ValueError("unknown op " + op)

def isv(rs):
    return {r for r in rs if r[0] in "va"}
def iss(rs):
    return {r for r in rs if r[0] in ("s", "vcc")}

def hazard(p, c):
    need = 0
    pk, ck = p.kind, c.kind
    pval = pk in ("valu", "trans"); cval = ck in ("valu", "trans")
    if pval:
        wv = isv(p.writes); ws = iss(p.writes)
        if ck == "mfma" and wv & c.reads: need = max(need, 2)
        if cval:
            if ws & c.reads: need = max(need, 4 if c.op.startswith(("v_readlane", "v_writelane")) else 2)
            if wv & c.reads:
                if c.dpp or c.perml: need = max(need, 2)
                if c.rdlane: need = max(need, 1)
                if pk == "trans" and ck != "trans": need = max(need, 1)
            if p.opseld and wv & (c.reads | c.writes): need = max(need, 1)
            if p.dot and wv & (c.reads | c.writes):
                if not (c.dot and c.op == p.op): need = max(need, 3)
                else: need = max(need, 3)
        if ck == "vmem" and ws & c.reads: need = max(need, 5)
        if p.dot and ck in ("vmem", "ds", "mfma") and wv & (c.reads | c.writes): need = max(need, 3)
    if pk == "mfma":
        big, ovl, war = (12, 10, 7) if p.passes == 8 else (8, 6, 3)
        if ck == "mfma":
            if p.D & c.C and not (p.D == c.C and p.passes == c.passes): need = max(need, ovl)
            if p.D & (c.A | c.B): need = max(need, big)
            if p.D & c.D and not (p.D == c.C and p.passes == c.passes): need = max(need, big)
        elif ck in ("valu", "trans", "vmem", "ds"):
            if p.D & (c.reads | c.writes): need = max(need, big)
            if cval and p.C & c.writes: need = max(need, war)
            if ck in ("vmem", "ds") and p.C & c.writes: need = max(need, war)
    if pk == "salu" and ("m0", 0) in p.writes and c.ldsdma: need = max(need, 1)
    if pk == "vmem" and p.wide_store and p.data & c.writes:
        need = max(need, 2 if cval else 1)
    return need

class Prog:
    def __init__(self):
        self.ins = []
    def __call__(self, text, tok=None):
        for line in text.strip().split("\n"):
            line = line.strip()
            if not line or line.startswith(";"): continue
            self.ins.append(I(line, tok=tok))
        return self
    def waitvm(self, tok):
        self.ins.append(I("", pseudo="waitvm", arg=tok))
    def waitlg(self, tok):
        self.ins.append(I("", pseudo="waitlg", arg=tok))
    def mark(self, name):
        self.ins.append(I("", pseudo="mark", arg=name))
    def extend(self, other):
        self.ins.extend(other.ins if isinstance(other, Prog) else other)

def weave(main, side, every=1, start=0, pred=None, per=1):
    out = []; si = 0; cnt = 0
    side = side.ins if isinstance(side, Prog) else side
    main = main.ins if isinstance(main, Prog) else main
    for m in main:
        out.append(m)
        if pred is None or pred(m):
            cnt += 1
            if cnt > start and (cnt - start) % every == 0:
                k = per
                while k > 0 and si < len(side):
                    out.append(side[si])
                    if side[si].kind != "pseudo": k -= 1
                    si += 1
    out.extend(side[si:])
    p = Prog(); p.ins = out
    return p

def finalize(ins, stats=None, fine=None, lgk=0):
    out = []
    fine_on = False; fine_k = 32
    cyc = 0
    def fstamp(tag):
        nonlocal fine_k, lg_done, smem_out, st
        if not fine_on or fine_k >= 64: return
        if fine.get("skip", 0) > 0: fine["skip"] -= 1; return
        out.append("    " + fine["clk"] + " s[100:101]"); out.append("    s_waitcnt lgkmcnt(0)")
        out.append(f"    v_writelane_b32 v63, s100, {fine_k}")
        fine["names"].append(f"{tag} e{cyc - fine.get('last', cyc)}"); fine["last"] = cyc; fine_k += 1
        lg_done = lg_seq; smem_out = False; pend_sm.clear(); st += 3
    hist = []
    st = 0
    vm_seq = 0; vm_done = 0; lg_seq = 0; lg_done = 0
    smem_out = False
    pend_vm = {}; pend_lg = {}; pend_sm = set()
    vm_tok = {}; lg_tok = {}
    nnop = 0
    lg_at = {}
    def emit_wait(vm_t, lg_t, lg0):
        nonlocal vm_done, lg_done, smem_out, st
        parts = []
        if lgk and lg_t > lg_done:
            while lg_t < lg_seq and lg_at[lg_t + 1] + lgk <= cyc: lg_t += 1
        fs = False
        if vm_t > vm_done:
            fstamp(f"pre L{len(out)}"); fs = True
            n = min(vm_seq - vm_t, 63); parts.append(f"vmcnt({n})"); vm_done = vm_seq - n
        if lg0 or lg_t > lg_done:
            if lg0 or smem_out:
                n = 0; smem_out = False; pend_sm.clear()
            else:
                n = min(lg_seq - lg_t, 15)
            parts.append(f"lgkmcnt({n})"); lg_done = lg_seq - n
        if parts:
            out.append("    s_waitcnt " + " ".join(parts)); st += 1
            if fs: fstamp(f"vm{n} #{vm_t}")
    for c in ins:
        if c.kind == "pseudo":
            if c.pseudo == "waitvm":
                t = vm_seq if c.arg is None else vm_tok[c.arg]
                emit_wait(t, 0, False)
            elif c.pseudo == "waitlg":
                if c.arg is None:
                    if lg_seq > lg_done or smem_out: emit_wait(0, lg_seq, True)
                else:
                    emit_wait(0, lg_tok[c.arg], False)
            elif c.pseudo == "mark":
                out.append(f"    ; ---- {c.arg}")
                if fine and c.arg == fine["start"]: fine_on = True
                if fine and c.arg == fine["end"]: fine_on = False
            continue
        if c.kind in ("label", "directive"):
            out.append(c.text); continue
        vm_t = 0; lg_t = 0; lg0 = False
        for r in c.reads | c.writes:
            if r in pend_vm:
                same = c.kind == "vmem" and r in c.writes and r not in c.reads
                if not same: vm_t = max(vm_t, pend_vm[r])
            if r in pend_lg:
                same = c.kind == "ds" and r in c.writes and r not in c.reads
                if not same: lg_t = max(lg_t, pend_lg[r])
            if r in pend_sm and not (getattr(c, "junk", False) and r not in c.reads): lg0 = True
        if getattr(c, "ghost", False): assert vm_t <= vm_done and lg_t <= lg_done and not lg0, c.text
        emit_wait(vm_t, lg_t, lg0)
        need = 0
        for p, pst in hist:
            d = max(st - pst - 1, 0)
            h = hazard(p, c)
            if h > d: need = max(need, h - d)
        if need:
            assert not getattr(c, "ghost", False), c.text
            nnop += need
            out.append(f"    s_nop {need-1}"); st += need
        if c.text.startswith("s_barrier"): fstamp("pre bar")
        fv = fine and fine.get("vm") and c.kind == "vmem" and not getattr(c, "ghost", False)
        if fv and fine["vm"] == 2:
            fstamp("prev")
            if c.ldsdma: out.append("    s_nop 0")
        out.append("    " + c.text)
        if fv: fstamp("V " + c.op[7:12] + " " + c.text.split(",")[-2].strip()[2:4] + ("L" if c.ldsdma else ""))
        if c.text.startswith("s_barrier"): fstamp("bar")
        if c.text.startswith("s_waitcnt"):
            m = re.search(r"vmcnt\((\d+)\)", c.text)
            if m: vm_done = max(vm_done, vm_seq - int(m.group(1)))
            m = re.search(r"lgkmcnt\((\d+)\)", c.text)
            if m and int(m.group(1)) == 0:
                lg_done = lg_seq; smem_out = False; pend_sm.clear()
        hist.append((c, st))
        if getattr(c, "ghost", False):
            continue
        if c.text.startswith("s_nop"):
            st += int(c.text.split()[1], 0) + 1
        else:
            st += 1
        hist = [(p, s) for p, s in hist if st - s <= 21]
        cyc += 8 if c.kind in ("mfma", "trans") else (16 if c.op.endswith("b128") else 8) if c.kind == "ds" else 4
        if c.kind == "vmem":
            vm_seq += 1
            for r in c.writes: pend_vm[r] = vm_seq
            if c.tok: vm_tok[c.tok] = vm_seq
        elif c.kind == "ds":
            lg_seq += 1; lg_at[lg_seq] = cyc
            for r in c.writes: pend_lg[r] = lg_seq
            if c.tok: lg_tok[c.tok] = lg_seq
        elif c.kind == "smem":
            if not getattr(c, "junk", False): smem_out = True
            pend_sm.update(c.writes)
        pend_vm = {r: s for r, s in pend_vm.items() if s > vm_done}
        pend_lg = {r: s for r, s in pend_lg.items() if s > lg_done}
    if stats is not None:
        stats["nops"] = nnop
    return out

class Item:
    def __init__(self, prog, lines, after=None, name=None, lat=None):
        self.ins = prog.ins if isinstance(prog, Prog) else prog
        self.lines = lines; self.after = after; self.name = name; self.lat = lat

def vm_lines(c):
    if getattr(c, "lines", None) is not None: return c.lines
    op = c.op
    if op.endswith("x4"): return 8
    if op.endswith("x2"): return 4
    return 2

class Aux:
    def __init__(self, tok, prog, rtok, done, after=None):
        self.tok = tok; self.ins = prog.ins; self.rtok = rtok; self.done = done; self.after = after

def stream_weave(main, items, aux=(), thresh=448, thresh_wait=600, cyc_line=8.0, lat=450, t0=0, log=None, margin=64):
    out = []; t = t0; ts = 0.0; marks = set(); locked = 0
    it = 0; last_mfma = -100; mf_len = 32
    tokdone = {}; regdone = {}
    tok_item = {}
    for k, im in enumerate(items):
        for c in im.ins:
            if c.tok: tok_item[c.tok] = k
    ax = 0; timers = []
    pending = []
    def issue(c, ilat=None):
        nonlocal t, ts, last_mfma, mf_len
        out.append(c)
        if c.kind == "pseudo" or c.kind in ("label", "directive"): return
        for r in c.reads | c.writes:
            if r in regdone:
                t = max(t, regdone.pop(r))
        if c.kind == "mfma":
            t = max(t, last_mfma + mf_len); last_mfma = t; mf_len = 32 if c.passes == 8 else 16
            t += 8
        elif c.kind == "trans": t += 8
        elif c.kind == "vmem":
            L = vm_lines(c)
            ts = max(ts, t) + L * cyc_line
            d = max(ts, t + (ilat or lat))
            if c.tok: tokdone[c.tok] = d
            for r in c.writes: regdone[r] = d
            t += 4
        elif c.kind == "sopp" and c.text.startswith("s_nop"):
            t += 4 * (int(c.text.split()[1], 0) + 1)
        elif c.kind == "sopp" and c.text.startswith("s_barrier"): t += 24
        else: t += 4
    def flush_pending():
        nonlocal pending
        for c, il in pending: issue(c, il)
        pending = []
    def put_item(split):
        nonlocal it, pending
        im = items[it]; it += 1
        ins = list(im.ins)
        body = [c for c in ins if c.kind == "vmem"]
        for c in body: c.lines = im.lines / len(body)
        if split and ins[0].kind == "salu" and ("m0", 0) in ins[0].writes:
            issue(ins[0]); pending = [(c, im.lat) for c in ins[1:]]
        else:
            for c in ins: issue(c, im.lat)
    def put_aux():
        nonlocal ax, t
        A = aux[ax]; ax += 1
        while it <= tok_item[A.tok]:
            service_timers(True)
            assert items[it].after is None or items[it].after in marks, (A.tok, items[it].name, items[it].after)
            put_item(False)
        out.append(I("", pseudo="waitvm", arg=A.tok))
        t = max(t, tokdone[A.tok])
        for c in A.ins: issue(c)
        timers.append((t + 96, A))
        if log is not None: log.append(("aux " + A.tok, int(t), int(ts), it))
    def service_timers(force=False):
        while timers and (force or timers[0][0] <= t):
            _, A = timers.pop(0)
            out.append(I("", pseudo="waitlg", arg=A.rtok)); marks.add(A.done)
    def aux_ok():
        if ax >= len(aux) or locked: return False
        A = aux[ax]
        return (A.after is None or A.after in marks) and A.tok in tokdone and tokdone[A.tok] + margin <= t
    def ok(th):
        return it < len(items) and not locked and (items[it].after is None or items[it].after in marks) and ts - t < th
    for c in main.ins if isinstance(main, Prog) else main:
        if c.kind == "pseudo":
            if c.pseudo == "mark":
                marks.add(c.arg)
                if log is not None: log.append((c.arg, int(t), int(ts), it))
            elif c.pseudo == "lock":
                flush_pending(); locked += 1; continue
            elif c.pseudo == "unlock":
                locked -= 1; continue
            elif c.pseudo == "setts":
                ts = max(ts, t + c.arg); continue
            elif c.pseudo == "sett":
                t = max(t, c.arg); continue
            elif c.pseudo == "drainaux":
                flush_pending()
                while ax < len(aux): put_aux()
                service_timers(True)
                continue
            elif c.pseudo == "drain":
                flush_pending()
                k = [i for i, im in enumerate(items) if im.name == c.arg][-1]
                while it <= k:
                    while not (items[it].after is None or items[it].after in marks) and (timers or ax < len(aux)):
                        if timers: service_timers(True)
                        else: put_aux()
                    assert items[it].after is None or items[it].after in marks, (items[it].name, items[it].after)
                    put_item(False)
                continue
            elif c.pseudo == "waitvm":
                flush_pending()
                if c.arg is not None and c.arg in tok_item:
                    while it <= tok_item[c.arg]:
                        assert items[it].after is None or items[it].after in marks, (c.arg, items[it].name, items[it].after)
                        put_item(False)
                if c.arg is not None and tokdone.get(c.arg, 0) > t + 32:
                    while ok(thresh_wait): put_item(False)
                out.append(c)
                if c.arg is None: t = max(t, ts + 100)
                else: t = max(t, tokdone.get(c.arg, 0))
                continue
            out.append(c); continue
        isbr = c.kind == "sopp" and "branch" in c.text
        if c.kind == "label" or isbr:
            flush_pending()
        stall = max([regdone.get(r, 0) for r in c.reads | c.writes] + [0])
        if stall > t + 32:
            flush_pending()
            while ok(thresh_wait): put_item(False)
        issue(c)
        flush_pending()
        if c.kind in ("label", "directive") or (c.kind == "sopp" and "branch" in c.text): continue
        if not locked: service_timers()
        if aux_ok(): put_aux()
        elif ok(thresh): put_item(True)
    flush_pending()
    assert it == len(items), ("items left", [im.name for im in items[it:]])
    if log is not None: log.append(("end", int(t), int(ts), it))
    p = Prog(); p.ins = out
    return p

def _lock(self): self.ins.append(I("", pseudo="lock"))
def _unlock(self): self.ins.append(I("", pseudo="unlock"))
def _drain(self, name): self.ins.append(I("", pseudo="drain", arg=name))
Prog.lock = _lock; Prog.unlock = _unlock; Prog.drain = _drain

def _setts(self, x): self.ins.append(I("", pseudo="setts", arg=x))
def _sett(self, x): self.ins.append(I("", pseudo="sett", arg=x))
Prog.setts = _setts; Prog.sett = _sett

def _drainaux(self): self.ins.append(I("", pseudo="drainaux"))
Prog.drainaux = _drainaux

def stream_weave2(main, items, aux=(), lat=600, stlat=1000, cyc_line=8.0, taq=2, log=None, margin=64, dscost=6, capf=1.0, ahead=100000, qcap=4, sthol=0, ds128=19, ds64=10):
    out = []; t = 0; marks = set(); locked = 0
    ta = 0.0; dprev = 0.0; fl = []
    dvm = [0.0]
    it = 0; last_mfma = -100; mf_len = 32
    tokdone = {}; regdone = {}
    tok_item = {}
    stall = [0, 0]
    for k, im in enumerate(items):
        for c in im.ins:
            if c.tok: tok_item[c.tok] = k
    ax = 0; timers = []
    pending = []
    LCAP = 64 * capf; QCAP = qcap
    def plan(L, at):
        s0 = max(at, ta)
        live = sorted(x for x in fl if x[0] > s0)
        tot = sum(x[1] for x in live)
        for d_, l_, _ in live:
            if tot + min(L, LCAP) <= LCAP + 1e-9: break
            s0 = d_; tot -= l_
        return s0
    def waiting(at): return sum(1 for x in fl if x[2] > at)
    def issue(c, ilat=None):
        nonlocal t, ta, dprev, last_mfma, mf_len, fl
        out.append(c)
        if c.kind == "pseudo" or c.kind in ("label", "directive"): return
        for r in (c.reads if c.kind == "vmem" else c.reads | c.writes):
            if r in regdone:
                d = regdone.pop(r)
                if d > t: stall[1] += d - t; t = d
        if c.kind == "mfma":
            t = max(t, last_mfma + mf_len); last_mfma = t; mf_len = 32 if c.passes == 8 else 16
            t += 8
        elif c.kind == "trans" or c.perml: t += 8
        elif c.kind == "ds": t += (ds128 if c.op.endswith("b128") else ds64) if c.op.startswith("ds_read") else 40 if c.op.endswith("b128") else 8
        elif c.kind == "vmem" and getattr(c, "nomodel", False): pass
        elif c.kind == "vmem":
            L = vm_lines(c)
            st = "_store" in c.op
            t0 = t
            fl = [x for x in fl if x[0] > t]
            while waiting(t) >= QCAP: t = min(x[2] for x in fl if x[2] > t)
            stall[0] += t - t0
            s0 = plan(0 if st else L, t)
            ta = s0 + L * cyc_line * (0.5 if L <= 8 else 0.25)
            il = getattr(c, "lat", None) or ilat or (stlat if st else lat)
            d = max(dprev + (0 if st else L * cyc_line), s0 + il)
            if sthol or not st: dprev = d
            fl.append((d, 0 if st else L, s0))
            d = max(d, dvm[0]); dvm[0] = d
            if c.tok: tokdone[c.tok] = d
            if not getattr(c, "ghost", False):
                for r in c.writes: regdone[r] = d
            t += 4
        elif c.kind == "sopp" and c.text.startswith("s_nop"):
            t += 4 * (int(c.text.split()[1], 0) + 1)
        elif c.kind == "sopp" and c.text.startswith("s_barrier"): t += 24
        else: t += 4
    def flush_pending():
        nonlocal pending
        for c, il in pending: issue(c, il)
        pending = []
    def prep(im):
        body = [c for c in im.ins if c.kind == "vmem"]
        for c in body: c.lines = im.lines / len(body)
        return body
    def put_item(split):
        nonlocal it, pending
        im = items[it]; it += 1
        ins = list(im.ins); prep(im)
        if log is not None: log.append(("  it " + im.name, int(t), int(dprev), it))
        if split and ins[0].kind == "salu" and ("m0", 0) in ins[0].writes:
            issue(ins[0]); pending = [(c, im.lat) for c in ins[1:]]
        else:
            for c in ins: issue(c, im.lat)
    def put_aux():
        nonlocal ax, t
        A = aux[ax]; ax += 1
        while it <= tok_item[A.tok]:
            service_timers(True)
            assert items[it].after is None or items[it].after in marks, (A.tok, items[it].name, items[it].after)
            put_item(False)
        out.append(I("", pseudo="waitvm", arg=A.tok))
        t = max(t, tokdone[A.tok])
        if A.phase_split:
            A.left = list(A.ins); spread.append(A)
        else:
            for c in A.ins: issue(c)
            timers.append((t + 96, A))
        if log is not None: log.append(("aux " + A.tok, int(t), int(dprev), it))
    spread = []
    def service_spread(n):
        while spread and n > 0:
            A = spread[0]
            issue(A.left.pop(0)); n -= 1
            if not A.left:
                spread.pop(0); timers.append((t + 96, A))
    def service_timers(force=False):
        if force: service_spread(1000)
        while timers and (force or timers[0][0] <= t):
            _, A = timers.pop(0)
            out.append(I("", pseudo="waitlg", arg=A.rtok)); marks.add(A.done)
    def aux_ok():
        if ax >= len(aux) or locked or spread: return False
        A = aux[ax]
        return (A.after is None or A.after in marks) and A.tok in tokdone and tokdone[A.tok] + margin <= t
    def ok():
        if it >= len(items) or locked: return False
        im = items[it]
        if not (im.after is None or im.after in marks): return False
        body = prep(im)
        n = sum(1 for c in body if not getattr(c, "nomodel", False))
        return waiting(t) + n <= taq and dprev - t < ahead
    for c in main.ins if isinstance(main, Prog) else main:
        if c.kind == "pseudo":
            if c.pseudo == "mark":
                marks.add(c.arg)
                if log is not None: log.append((c.arg, int(t), int(dprev), it))
            elif c.pseudo == "lock":
                flush_pending(); locked += 1; continue
            elif c.pseudo == "unlock":
                locked -= 1; continue
            elif c.pseudo == "setts": continue
            elif c.pseudo == "sett":
                t = max(t, c.arg); continue
            elif c.pseudo == "drainaux":
                flush_pending()
                n = len(aux) if c.arg is None else c.arg
                while ax < n: service_spread(1000); put_aux()
                service_timers(True)
                continue
            elif c.pseudo == "drain":
                flush_pending()
                k = [i for i, im in enumerate(items) if im.name == c.arg][-1]
                while it <= k:
                    while not (items[it].after is None or items[it].after in marks) and (timers or spread or ax < len(aux)):
                        if timers or spread: service_timers(True)
                        else: put_aux()
                    assert items[it].after is None or items[it].after in marks, (items[it].name, items[it].after)
                    put_item(False)
                continue
            elif c.pseudo == "waitvm":
                flush_pending()
                if c.arg is not None and c.arg in tok_item:
                    while it <= tok_item[c.arg]:
                        assert items[it].after is None or items[it].after in marks, (c.arg, items[it].name, items[it].after)
                        put_item(False)
                while ok(): put_item(False)
                out.append(c)
                d = dvm[0] if c.arg is None else tokdone.get(c.arg, 0)
                if d > t: stall[1] += d - t; t = d
                continue
            out.append(c); continue
        isbr = c.kind == "sopp" and "branch" in c.text
        if c.kind == "label" or isbr:
            flush_pending()
        need = max([regdone.get(r, 0) for r in c.reads | c.writes] + [0])
        if need > t + 32:
            flush_pending()
            while ok(): put_item(False)
        issue(c)
        flush_pending()
        if c.kind in ("label", "directive") or (c.kind == "sopp" and "branch" in c.text): continue
        if not locked:
            service_timers()
            if c.kind == "mfma" or not spread or not spread[0].mf_only: service_spread(spread[0].per if spread else 0)
        if aux_ok(): put_aux()
        elif ok(): put_item(True)
    flush_pending()
    assert it == len(items), ("items left", [im.name for im in items[it:]])
    if log is not None: log.append((f"end stall_issue={int(stall[0])} stall_data={int(stall[1])}", int(t), int(dprev), it))
    p = Prog(); p.ins = out
    return p
Aux.phase_split = False; Aux.per = 1; Aux.mf_only = False
def _drainaux2(self, n=None): self.ins.append(I("", pseudo="drainaux", arg=n))
Prog.drainaux = _drainaux2

import subprocess, os
def _asm_sizes(lines, extra=(), full=False):
    src = ['.amdgcn_target "amdgcn-amd-amdhsa--gfx950"', ".text"] + list(lines) + list(extra)
    open("_al.s", "w").write("\n".join(src) + "\n")
    r = subprocess.run(["clang", "-x", "assembler", "-target", "amdgcn-amd-amdhsa", "-mcpu=gfx950", "-c", "_al.s", "-o", "_al.o"], capture_output=True, text=True)
    assert r.returncode == 0, r.stderr[:2000]
    d = subprocess.run(["llvm-objdump", "-d", "-r", "_al.o"], capture_output=True, text=True).stdout
    assert "R_AMDGPU" not in d
    res = []
    for l in d.split("\n"):
        m = re.match(r"\s+(\S+)(.*)//\s*([0-9A-F]+): (.*)", l)
        if m and full: res.append(re.sub(r"_e(32|64)$", "", m.group(1)) + " " + m.group(2).strip())
        elif m: res.append((m.group(1), len(m.group(4).split()) * 4))
    return res
def align_pass(body, level=1, endlabel="L_code_end:", weight=None):
    isins = lambda l: l.strip() and not l.strip().startswith((";", ".")) and not l.strip().endswith(":")
    idx = [i for i, l in enumerate(body) if isins(l)]
    sz = _asm_sizes(body)
    assert len(sz) == len(idx), (len(sz), len(idx))
    end = body.index(endlabel)
    def promote(i, op, n):
        t = body[i].strip(); w = t.split(None, 1)
        if n == 8:
            if level >= 3 and w[0] == "v_fma_f32":
                o = [x.strip() for x in w[1].split(",")]
                if len(o) == 4 and o[0] == o[3] and re.match(r"v\d+$", o[2]) and re.match(r"[vs]\d+$", o[1]): return f"    v_fmac_f32 {o[0]}, {o[1]}, {o[2]}"
            return None
        bad = ("v_readfirst", "v_nop", "v_fmac", "v_swap") + (("v_permlane",) if level < 3 else ())
        if op.endswith("_e32") and not op.startswith(bad) and not w[0].endswith(("_e32", "_e64")):
            return "    " + w[0] + "_e64 " + w[1]
        if level >= 2 and re.match(r"s_(mov_b32|add_u32|sub_u32|lshl_b32|lshr_b32|and_b32|or_b32|xor_b32|mul_i32|cmp_\w+_u32|cmp_\w+_i32)$", w[0]):
            ops = [x.strip() for x in w[1].split(",")]
            for k in range(len(ops) - 1, 0, -1):
                if re.match(r"^(\d+|0x[0-9a-fA-F]+)$", ops[k]) and int(ops[k], 0) <= 64:
                    ops[k] = f"L_z1-L_z0+{int(ops[k], 0)}"
                    return "    " + w[0] + " " + ", ".join(ops)
        return None
    alt = {}
    for k, i in enumerate(idx):
        if i < end:
            p = promote(i, sz[k][0], sz[k][1])
            if p: alt[k] = p
    defs = ["L_z0:", "L_z1:"]
    test = list(body)
    for k, p in alt.items(): test[idx[k]] = p
    s2 = _asm_sizes(test, defs)
    for k in list(alt):
        if s2[k][1] != 12 - sz[k][1]: del alt[k]
    splits = set()
    if level >= 3:
        for k, i in enumerate(idx):
            w = body[i].split()
            if i < end and w[0] == "s_nop" and int(w[1], 0) >= 1:
                alt[k] = f"    s_nop {int(w[1], 0) - 1}\n    s_nop 0"; splits.add(k)
    INF = 1e18
    n = len(idx)
    cost = [INF] * 16; cost[0] = 0
    back = []
    for k in range(n):
        nc = [INF] * 16; bk = [None] * 16
        wgt = 1.0 if idx[k] < end else 0.0
        if weight: wgt *= weight(idx[k])
        opts = [(sz[k][1], 0, 0.0)] + ([(12 - sz[k][1], 1, 0.01)] if k in alt else [])
        for s in range(16):
            if cost[s] >= INF: continue
            for b, pr, c0 in opts:
                c = cost[s] + c0 + (wgt if s * 4 + b > 64 and not (pr and k in splits) else 0)
                t = (s + b // 4) % 16
                if c < nc[t]: nc[t] = c; bk[t] = (s, pr)
        cost = nc; back.append(bk)
    s = min(range(16), key=lambda x: cost[x]); best = cost[s]
    out = list(body); chk = list(body); npro = 0
    for k in range(n - 1, -1, -1):
        ps, pr = back[k][s]
        if pr:
            out[idx[k]] = alt[k]; npro += 1
            if k not in splits: chk[idx[k]] = alt[k]
        s = ps
    A = _asm_sizes(body, full=True); B = _asm_sizes(chk, defs, full=True)
    assert len(A) == len(B)
    for x, y in zip(A, B):
        if y.startswith("v_fmac_f32") and x == y.replace("v_fmac_f32", "v_fma_f32") + ", " + y.split()[1].rstrip(","): continue
        if x != y and not x.startswith(("s_cbranch", "s_branch", "v_min_u32 v1,")): raise AssertionError((x, y))
    return out + defs, (best, npro, len(alt))
```

```python
import sys
sys.path.insert(0, "dev")
from asmlib import Prog, weave, finalize, I, Item, Aux, stream_weave2, align_pass

OPT = dict(dbg=0, stamps=0, spin=4096, pf=1, outsc=0, early=10, thresh=448, tw=600, lat=500, cold=2000, wl=16, tlb=1,
           glpos=3, margin=64, log=0, cl=8, rot=0, fine='', nt=0,
           wo1=2, wo2=2, cold2=1500, lm=900, stlat=900, taq=2, pfg=0, pfm=1, pflat=1100, p0=1, p1=3, p2=5, p3=7, capf=100, fhst=22, fold=14, fost=28, fogap=12, fochk=56, hpf=0, al=3, epos=24, osent=1, old=32, upf=0, upos=0, ulat=1500, sentpos=1, gpos=16, eaft=1, latc=1300, latc2=600, latw=1000, lgk=100, amargin=300, sthol=1, wpf=0, wpos=1, gfirst=1, crot=0, wopf=0, pro=1, wqpf=0, latw0=500, fvm=0, fskip=0, tl=1, xdpos=20, xdper=4, usp=0, ksp=1, strip=2, ord=0, sord='ABGFCDXH', fhq=-2, flp=44, fcp=99, sk1=30, sk2=30, gp2=-1, map=0, loc=0, mrot=0, crt=0, c3=0, c3w=1, c3o=3, fpf=0, fpp=0, sl=0, slp=1, smp=0, tagl=0, nost=0, hx=0, hsp=2, hs=1, gaft=3, glk=60, hck=4, hcper=2, stl=8, g3f=0, hsd=1, hd1=0, hd2=0, hd3=0, hl=900, mw=0, mwp=0)
for a in sys.argv[2:]:
    k, v = a.split("="); assert k in OPT, k; OPT[k] = v if k in ("fine", "sord") else int(v, 0)
LST = " sc1" if not OPT["loc"] else ""
LLD = [" sc1", "", " sc1", " sc0"][OPT["loc"]]
NT = lambda b: ' nt' if OPT['nt'] >> b & 1 else ''
DBG = OPT["dbg"]; STAMPS = OPT["stamps"]
KN = "gated_mix__linear_kernel_hedgehog__ssm_conv_s5__prompt_kernel"

RB = 98304; S1 = 32768; S2 = 65536; TAB = S2 + 5120; XCH = RB
W_EPOCH = 0; W_G = 0x1000; W_E = 0x4000; W_FH = 0x24000; W_FO = 0x28000; W_KVP = 0x30000; W_ZP = 0x130000
W_H = 0x200000; W_O = 0x600000; W_DBG = 0x1000000; W_ST = 0x900000
P_WPHI = "s[8:9]"; P_LRE = "s[14:15]"; P_LIM = "s[16:17]"; P_LDT = "s[26:27]"; P_DSK = "s[28:29]"; P_GW = "s[30:31]"
SRD_X, SRD_W, SRD_B, SRD_CR, SRD_CI, SRD_WO, SRD_WS, SRD_OUT = [f"s[{i}:{i+3}]" for i in range(40, 72, 4)]
sXo = [f"s{72+j}" for j in range(8)]; sWo = [f"s{80+j}" for j in range(8)]
sRB, sCG, sW, sTAG, sRT, sCT, sRG, sT0, sT1, sFF, sT2, sSPIN = [f"s{i}" for i in range(88, 100)]
sM1, sM2, sM3 = "s[4:5]", "s[6:7]", "s[10:11]"
sHI = "s[12:13]"
sCgC = [f"s{18+c}" for c in range(4)]; sCgW = [f"s{22+c}" for c in range(4)]
sRING, sPW, sHM, sL2E = "s34", "s35", "s32", "s[38:39]"
sFFFF = "s33"; sT3 = "s3"
sRINGB = "s0"
sEP, sKV, sZP, sKVP, sZPP = "s36", "s37", "s9", "s1", "s17"
sFL, sFP, sHS, sOS = "s8", "s14", "s15", "s16"
sGRP = sSPIN
sRA0, sGP = "s26", "s27"
def v(i, n=1): return f"v{i}" if n == 1 else f"v[{i}:{i+n-1}]"
def a(i, n=1): return f"a{i}" if n == 1 else f"a[{i}:{i+n-1}]"
vL, vHI, vT = 1, 2, 3
vX = [4, 5, 6, 7]; vB = [8, 9]; vWq = 11
vXf = [12, 13, 14, 15]; vCf = [16, 17, 18, 19]; vBf = [20, 21, 22, 23]; vTRkv, vTRq = 24, 25
vC = [26, 27, 28, 29]; vWO = [30, 31, 32, 33]; vWOf = [36, 37]
vLAM, vL8, vL16p, vL32, vMU, vMU2, vCOEF = 38, 40, 42, 44, 46, 48, 50
vA1, vA2 = 52, 56
vTAG, vL16, vT2, vDBG = 60, 61, 62, 63
vU_RE, vU_IM = 64, 80
vKT, vVV, vQT = 96, 112, 128
vFR = 144
vWOFR = 192
vALR, vALI, vBER, vBEI = 4, 6, 12, 14
vALR0, vALI0 = 188, 190
vXR, vEL = 0, 10
vXW = 34
vFLA = 35
vPhW, vVW, vPhR, vVR = 8, 9, 20, 21
vHW, vHR = 22, 23
aXF = 128; aCF = 0

main = Prog(); slow = Prog()
E = main
items = []; aux = []
dbg_slot = [0]; dbg_names = []
def dump(name, regs, p=None):
    if not DBG: return
    p = p or main
    for r in regs:
        p(f"s_mov_b32 {sT3}, {W_DBG + dbg_slot[0]*262144}")
        p(f"buffer_store_dword {r}, {v(vDBG)}, {SRD_WS}, {sT3} offen")
        dbg_slot[0] += 1
    dbg_names.append((name, dbg_slot[0] - len(regs), len(regs)))
nst = [0]; stnames = []
def stamp(name, p=None):
    p = p or main
    p.mark(name)
    if not STAMPS or OPT["nost"] and name in ("addr", "xb0 landed"): return
    k = nst[0]; nst[0] += 1; stnames.append(name)
    p(f"s_memrealtime s[100:101]" if STAMPS == 1 else "s_memtime s[100:101]")
    p(f"v_writelane_b32 {v(vDBG)}, s100, {k}")
nspin = [0]
def spin(name, reload_fn, check_fn, emit=True, p=None):
    p = p or main
    if emit: check_fn(p)
    p(f"s_cbranch_vccnz L_slow_{name}")
    p(f"L_back_{name}:")
    slow(f"L_slow_{name}:")
    slow(f"s_mov_b32 {sSPIN}, {OPT['spin']}")
    slow(f"L_loop_{name}:")
    slow("s_nop 4")
    reload_fn(slow)
    slow("s_waitcnt vmcnt(0)")
    check_fn(slow)
    slow("s_nop 4")
    if STAMPS:
        slow(f"s_cbranch_vccnz L_more_{name}")
        slow(f"s_sub_u32 {sSPIN}, {OPT['spin']+1}, {sSPIN}")
        slow(f"s_mul_i32 {sSPIN}, {sSPIN}, 100")
        slow(f"v_readlane_b32 s100, {v(vDBG)}, 0")
        slow("s_nop 4")
        slow(f"s_add_u32 {sSPIN}, {sSPIN}, s100")
        slow(f"v_writelane_b32 {v(vDBG)}, {sSPIN}, {27 + nspin[0]}")
        slow(f"s_branch L_back_{name}")
        slow(f"L_more_{name}:")
    else:
        slow(f"s_cbranch_vccz L_back_{name}")
    slow(f"s_sub_u32 {sSPIN}, {sSPIN}, 1")
    slow(f"s_cbranch_scc0 L_loop_{name}")
    slow(f"s_branch L_back_{name}")
    nspin[0] += 1

def cmul_add(p, d, x, lam, y):
    p(f"v_fma_f32 {v(d)}, {v(lam)}, {v(x)}, {v(y)}")
    p(f"v_fma_f32 {v(d+1)}, {v(lam)}, {v(x+1)}, {v(y+1)}")
    p(f"v_fma_f32 {v(d)}, -{v(lam+1)}, {v(x+1)}, {v(d)}")
    p(f"v_fma_f32 {v(d+1)}, {v(lam+1)}, {v(x)}, {v(d+1)}")
def cmul(p, d, x, y):
    p(f"v_mul_f32 {v(d)}, {v(x)}, {v(y)}")
    p(f"v_mul_f32 {v(d+1)}, {v(x)}, {v(y+1)}")
    p(f"v_fma_f32 {v(d)}, -{v(x+1)}, {v(y+1)}, {v(d)}")
    p(f"v_fma_f32 {v(d+1)}, {v(x+1)}, {v(y)}, {v(d+1)}")
def csq(p, d, x): cmul(p, d, x, x)
LO = "op_sel:[0,0,0] op_sel_hi:[1,0,1]"; HI = "op_sel:[0,1,0] op_sel_hi:[1,1,1]"
LO2 = "op_sel:[0,0] op_sel_hi:[1,0]"; HI2 = "op_sel:[0,1] op_sel_hi:[1,1]"
NEG1 = "neg_lo:[0,1,0] neg_hi:[0,1,0]"
def P(text, tok=None):
    p = Prog(); p(text, tok=tok); return p
ismf = lambda c: c.kind == "mfma"

def it_x(j):
    slot = j if j < 6 else j - 6
    for q in range(4):
        p = Prog()
        if q == 0: p(f"s_add_u32 m0, {sRING}, {slot*16384}")
        p(f"buffer_load_dwordx4 {v(vX[q])}, {SRD_X}, {sXo[j]} offen offset:{q*1024}{NT(0)} lds")
        items.append(Item(p, 8, after=(f"xr{j-6}" if j >= 6 else None), name=f"x{j}_{q}", lat=OPT["cold"] if j < 1 else OPT["cold2"] if j == (4 if OPT["rot"] == 4 else 1) else None))
def it_b(j):
    for q in range(2):
        p = Prog()
        if q == 0: p(f"s_add_u32 m0, {sRINGB}, {j*8192}")
        p(f"buffer_load_dwordx4 {v(vB[q])}, {SRD_B}, {sXo[j]} offen offset:{q*1024}{NT(1)} lds", tok=f"xb{j}")
        items.append(Item(p, 8, name=f"b{j}_{q}", lat=OPT["cold"] if j < 1 else None))
vGX0, vGX1, vGW = 96, 100, 104
def it_g():
    items.append(Item(P(f"buffer_load_dwordx4 {v(vGX0,4)}, {v(vL16)}, {SRD_X}, {sGP} offen"), 8, name="g0", after="addr"))
    items.append(Item(P(f"buffer_load_dwordx4 {v(vGX1,4)}, {v(vL16)}, {SRD_X}, {sGP} offen offset:1024"), 8, name="g1"))
vPFa, vPFb, vJUNK, vK3 = 176, 177, 180, 178
def it_pf(gp):
    p = Prog()
    p(f"s_cmp_lg_u32 {sGRP}, {gp}")
    p(f"s_cbranch_scc1 L_pf{gp}")
    srd_ = [SRD_W, SRD_CR, SRD_CI, SRD_WO][gp]
    p(f"buffer_load_dword {v(vJUNK)}, {v(vPFa)}, {srd_}, 0 offen")
    p(f"buffer_load_dword {v(vJUNK)}, {v(vPFb)}, {srd_}, 0 offen")
    for c in p.ins[-2:]:
        c.ghost = True; c.nomodel = gp != OPT["pfm"]
    p(f"L_pf{gp}:")
    items.append(Item(p, 128, after="addr", name=f"pf{gp}", lat=OPT["pflat"]))
def it_wpf():
    for o_ in ([1024, 2048, 0] if OPT["wpf"] == 1 else [1024, 2048]):
        items.append(Item(P(f"buffer_load_dword {v(vJUNK)}, {v(vWq)}, {SRD_W}, {sWo[0]} offen offset:{o_}"), 16, after="waddr", name="wpf", lat=OPT["cold2"]))
vWP = 144; vSB = 175 if OPT["sl"] & 1 else 201
def small2():
    return [f"global_load_ushort {v(vWP + e)}, {v(vSB)}, {P_WPHI} offset:{(e&3)*32 + (e>>2)*256}" for e in range(8)] + [f"global_load_dwordx4 {v(vGW,4)}, {v(vL16)}, {P_GW}"]
HX = OPT["hx"]; vSN = 180
def it_sent():
    for n in range(6):
        so, o_ = (sHS, n) if n < 4 else (sOS, n - 4)
        items.append(Item(P(f"buffer_store_dwordx4 {v(vSN,4)}, {v(vL16)}, {SRD_WS}, {so} offen offset:{o_*1024} sc1", tok="sent"), OPT["stl"], after="addr", name=f"sn{n}"))
for j in range(8):
    it_x(j)
    if HX and OPT["hs"] and OPT["hsp"] == 2*j: it_sent()
    if OPT["wpf"] and OPT["wpos"] == j: it_wpf()
    it_b(j)
    if HX and OPT["hs"] and OPT["hsp"] == 2*j + 1: it_sent()
    if OPT["sl"] & 1 and j == OPT["slp"]:
        for k_, t_ in enumerate(small2()): items.append(Item(P(t_), 4 if k_ < 8 else 8, after="addr", name=f"sm{k_}", lat=OPT["cold2"] if k_ in (0, 8) else None))
    if j == OPT["glpos"]: it_g()
    if OPT["c3"] & 1 and j == OPT["c3w"]:
        items.append(Item(P(f"buffer_load_dword {v(vJUNK)}, {v(vPFa)}, {SRD_W}, 0 offen"), 24 if OPT["c3"] & 8 else 12, after="addr", name="c3w", lat=OPT["cold2"]))
    if OPT["c3"] & 2 and j == OPT["c3o"]:
        items.append(Item(P(f"buffer_load_dword {v(vJUNK+1)}, {v(vPFb)}, {SRD_WO}, 0 offen offset:384"), 4, after="addr", name="c3o", lat=OPT["cold2"]))
    if OPT["pfg"]:
        for gp in range(4):
            if OPT[f"p{gp}"] == j: it_pf(gp)
def it_upf():
    n = {1: 1, 2: 2, 3: 4}[OPT["upf"]]
    for srd_ in (SRD_CR, SRD_CI, SRD_WO):
        for q in range(n):
            if OPT["upf"] == 3: t = f"buffer_load_dwordx4 {v(vJUNK,4)}, {v(vPFa)}, {srd_}, 0 offen offset:{q*1024}"
            else: t = f"buffer_load_dword {v(vJUNK)}, {v(vPFa)}, {srd_}, 0 offen offset:{q*2048}"
            items.append(Item(P(t), 32 // n, after="addr", name=f"upf{srd_}{q}", lat=OPT["ulat"]))
for pr in range(4):
    if OPT["upf"] and OPT["upos"] == pr: it_upf()
    if HX and OPT["hs"] and OPT["hsp"] == 16 + pr: it_sent()
    for jj in range(2):
        j = 2*pr + jj
        for m in range(2):
            p = Prog()
            if m == 0: p(f"s_add_u32 m0, {sRING}, {(2+pr)*16384 + jj*2048 - 1024}")
            p(f"buffer_load_dwordx4 {v(vWq)}, {SRD_W}, {sWo[j]} offen offset:{1024 + m*1024}{NT(2)} lds", tok=f"w{pr}")
            items.append(Item(p, OPT["wl"], after=f"xr{2+pr}", name=f"w{pr}_{jj}{m}", lat=OPT["latw0"] if j == 0 else None))
        if j == 0 and OPT["wqpf"]:
            items.append(Item(P(f"buffer_load_dword {v(vJUNK)}, {v(vWq)}, {SRD_W}, {sWo[0]} offen"), 16, name="wqpf", lat=OPT["latw0"]))
if OPT["upf"] and OPT["upos"] == 4: it_upf()
for j in range(8):
    p = Prog()
    p(f"s_add_u32 m0, {sRING}, {(j>>2)*16384 + (j&3)*1024}")
    p(f"buffer_load_dwordx4 {v(vWq)}, {SRD_W}, {sWo[j]} offen{NT(2)} lds", tok="wq")
    items.append(Item(p, OPT["wl"], after=f"xr{6 + (j>>2)}", name=f"wq{j}", lat=OPT["latw0"] if j == 0 and not OPT["wqpf"] else None))
if OPT["upf"] and OPT["upos"] == 5: it_upf()
def b2_pos(s): return ((s + 1) & 3) * 4096
def it_b2(s):
    aft = "barA" if s < 3 else "xchdone" if s == 3 else f"b2done{s-4}"
    for q in range(4):
        p = Prog()
        if q == 0: p(f"s_add_u32 m0, {sPW}, {b2_pos(s)}")
        if s < 8:
            Pp, m, nb = s >> 2, (s >> 1) & 1, s & 1
            p(f"buffer_load_dwordx4 {v(vC[q])}, {SRD_CI if m else SRD_CR}, {sCgC[2*Pp+nb]} offen offset:{q*1024}{NT(3)} lds", tok=f"b2_{s}")
        else:
            p(f"buffer_load_dwordx4 {v(vWO[q])}, {SRD_WO}, {sCgW[s-8]} offen offset:{q*1024}{NT(4)} lds", tok=f"b2_{s}")
        items.append(Item(p, 8, after=aft, name=f"b2_{s}_{q}", lat=OPT["latc"] if s < (2 if OPT["crot"] else 4) else OPT["latc2"] if s < 8 else OPT["latw"] if s < 10 and not OPT["wopf"] else None))
def b2_read(p, s):
    pos = b2_pos(s)
    if s < 8:
        Pp, m, nb = s >> 2, (s >> 1) & 1, s & 1
        for k in range(4):
            c, kk = 2*Pp + (k >> 1), k & 1
            p(f"ds_read_b128 {a(aCF + ((c*4 + 2*m + kk)*2 + nb)*4, 4)}, {v(vCf[k])} offset:{pos}", tok=f"b2r_{s}")
    else:
        c = s - 8
        for b in range(2):
            for nb in range(2):
                for rd in range(2):
                    p(f"ds_read_b64_tr_b16 {v(vWOFR + ((c*2+b)*2+nb)*4 + 2*rd, 2)}, {v(vWOf[nb])} offset:{pos + (8*b + 4*rd)*128}", tok=f"b2r_{s}")
vEQ = 224
def e_list(): return [f"buffer_load_dwordx2 {v(vEQ+2*k,2)}, {v(vEL)}, {SRD_WS}, {sEP} offen offset:{256 + 512*k} sc1" for k in range(8)]
def e_loads(p):
    for t in e_list(): p(t)
def it_e():
    for k, t in enumerate(e_list()): items.append(Item(P(t, tok="eld"), 4, after="e_ok", name=f"e{k}", lat=OPT["lm"]))
if OPT["eaft"] < 0: it_e()
vG2 = [34, 0]
def gg2_list(): return [f"buffer_load_dword {v(vG2[ra])}, {v(vFLA)}, {SRD_WS}, {[sFL, sFP][ra]} offen sc1" for ra in range(2)]
for s in range(8):
    it_b2(s)
    p = Prog(); b2_read(p, s)
    aux.append(Aux(f"b2_{s}", p, f"b2r_{s}", f"b2done{s}"))
    if s == OPT["wopf"] - 1:
        items.append(Item(P(f"buffer_load_dword {v(245)}, {v(244)}, {SRD_WO}, {sCgW[0]} offen"), 32, after="wopf_ok", name="wopf", lat=OPT["latc"]))
    if s == OPT["eaft"]: it_e()
    if HX and s == OPT["gaft"]:
        for k, t in enumerate(gg2_list()): items.append(Item(P(t, tok="ggl"), 2, after="gl_ok", name=f"gg{k}", lat=OPT["lm"]))
vXD, vDK = 192, 200
vOUT = 11
vDA = 46
vGL = [38, 39]; vGv = [40, 41]; vRT = [42, 44]
def it_wo(s):
    it_b2(s)
    p = Prog(); b2_read(p, s)
    A_ = Aux(f"b2_{s}", p, f"b2r_{s}", f"b2done{s}", after="o stored"); A_.phase_split = True; A_.per = 1; A_.mf_only = True
    aux.append(A_)
TL = OPT["tl"]
sQ8 = ["0", "s78", "s79", "s80"]; sQ16 = ["0", "s79", "s81", "s82"]
vXD2, vDK2 = 26, 14
def it_xd():
    if TL:
        for q in range(4):
            items.append(Item(P(f"buffer_load_dwordx2 {v(vXD2+2*q,2)}, {v(vOUT)}, {SRD_X}, {sQ8[q]} offen", tok="xdl"), 8, after="xd_ok", name=f"xd{q}"))
        items.append(Item(P(f"global_load_dwordx2 {v(vDK2,2)}, {v(vDA)}, {P_DSK}", tok="xdl"), 1, name="dk3"))
        return
    for q in range(4):
        items.append(Item(P(f"buffer_load_dwordx2 {v(vXD+2*q,2)}, {v(vOUT)}, {SRD_X}, 0 offen offset:{16*q}"), 32, after="xd_ok", name=f"xd{q}"))
    for q in range(4):
        items.append(Item(P(f"global_load_dwordx2 {v(vDK+2*q,2)}, {v(vDA)}, {P_DSK} offset:{16*q}"), 1, name=f"dk{q}"))
assert TL and not OPT["crot"]
def gg_list(): return [f"buffer_load_dword {v(vGv[ra])}, {v(vGL[ra])}, {SRD_WS}, 0 offen sc1" for ra in range(2)]
def gg_load(p):
    for t in (gg2_list() if HX else gg_list()): p(t)
vGA = 96; vGZ = 160
def gather_list():
    L = []
    for r in range(16):
        L.append((r, f"buffer_load_dwordx4 {v(vGA+4*r,4)}, {v(vL16)}, {SRD_WS}, s{72 + (r>>2)} offen offset:{(r&3)*1024} sc1"))
    L.append((16, f"buffer_load_dwordx4 {v(vGZ,4)}, {v(vL16)}, {SRD_WS}, {sZP} offen sc1"))
    return L
def gather_loads(p):
    for r, t in gather_list(): p(t)
def it_gg():
    for k, t in enumerate(gg_list()): items.append(Item(P(t.replace(" sc1", LLD)), 2, after="gl_ok", name=f"gg{k}", lat=OPT["lm"]))
def it_ga():
    GL_ = gather_list(); GL_ = GL_[16:] + GL_[:16]
    for i_, (r, t) in enumerate(GL_):
        items.append(Item(P(t, tok="gld"), 8, after="gather_ok", name=f"ga{r}", lat=OPT["lm"] if i_ < 8 or r == 16 else None))
vAH = [4, 5]; vAO = [6, 7]; vAH2 = [12, 13]
def h_ld(c, k, ra):
    return f"buffer_load_dwordx4 {a(aXF + ((c*4+k)*2+ra)*4, 4)}, {v(vAH[ra])}, {SRD_WS}, {sCgW[c]} offen offset:{k*1024} sc1"
vACC = 64; vOF = 128
vFLG = 22
FH_LOAD = f"buffer_load_dword {v(vFLG)}, {v(vFLA)}, {SRD_WS}, {sFP} offen sc1"
nh = [0]
def it_h(cs):
    for c in cs:
        for k in range(4):
            for ra in range(2):
                items.append(Item(P(h_ld(c, k, ra).replace(" sc1", LLD)),
                                  8, after="fh_ok", name=f"h{c}{k}{ra}", lat=(OPT["hl"] if HX else OPT["lm"]) if nh[0] < 8 else None))
                nh[0] += 1
for ch in OPT["sord"]:
    if ch in "ABCD": it_wo(8 + "ABCD".index(ch))
    elif HX and ch in "gF": pass
    elif HX and ch == "G": it_ga()
    elif ch == "G": it_gg(); it_ga()
    elif ch == "g": it_gg()
    elif ch == "a": it_ga()
    elif ch == "F": items.append(Item(P(FH_LOAD.replace(" sc1", LLD), tok="fhl"), 1, after="fh_ld", name="fhl", lat=OPT["lm"]))
    elif ch == "X": it_xd()
    elif ch == "H": it_h(range(4))
    elif ch in "0123": it_h([int(ch)])
    else: assert 0
o_order = [(c, b, ra) for ra in (0, 1) for c in (0, 1) for b in range(2)] + [(c, b, ra) for ra in (1, 0) for c in (2, 3) for b in range(2)]
def o_ld(c, b, ra): return f"buffer_load_dwordx4 {v(vOF + ((c*2+b)*2+ra)*4, 4)}, {v(vAO[ra])}, {SRD_WS}, {sCgW[c]} offen offset:{b*1024} sc1"
for c, b, ra in o_order:
    items.append(Item(P(o_ld(c, b, ra).replace(" sc1", LLD)),
                      8, after="fo_ok", name=f"o{c}{b}{ra}", lat=OPT["lm"] if (c, b, ra) in o_order[:8] else None))

E.lock()
E("s_cmp_ge_u32 s2, 256")
E("s_cbranch_scc1 L_end")
E("s_load_dwordx16 s[4:19], s[0:1], 0")
E("s_load_dwordx16 s[20:35], s[0:1], 64")
E("s_load_dwordx2 s[36:37], s[0:1], 128")
if OPT["pf"]:
    E(f"""
    s_getpc_b64 s[40:41]
    L_pc:
    s_lshr_b32 s3, s2, 3
    s_and_b32 s3, s3, 7
    s_lshl_b32 s3, s3, 12
    v_and_b32 v1, 31, v0
    v_lshl_add_u32 v1, v1, 7, s3
    v_min_u32 v1, L_code_end-L_pc-4, v1
    global_load_dword v255, v1, s[40:41]
    """)
if STAMPS: E(f"v_mov_b32 {v(vDBG)}, 0")
stamp("start")
if STAMPS:
    for k in range(27, 32): E(f"v_writelane_b32 {v(vDBG)}, s100, {k}")
MAPC = [f"""s_and_b32 {sRB}, {sT0}, 1
s_lshl_b32 {sRT}, {sRB}, 4
s_lshl_b32 {sRB}, {sRB}, 3
s_and_b32 {sCT}, {sT1}, 7
s_or_b32 {sRB}, {sRB}, {sCT}
s_lshr_b32 {sCG}, {sT0}, 1
s_lshl_b32 {sCG}, {sCG}, 2
s_lshr_b32 {sT1}, {sT1}, 3
s_or_b32 {sCG}, {sCG}, {sT1}
s_or_b32 {sRT}, {sRT}, {sCG}""", f"""s_and_b32 {sRB}, {sT1}, 1
s_lshl1_add_u32 {sRB}, {sT0}, {sRB}
s_lshr_b32 {sCG}, {sT1}, 1
s_lshr_b32 {sCT}, {sT1}, 2
s_and_b32 {sRT}, {sCG}, 1
s_lshl1_add_u32 {sRT}, {sRB}, {sRT}""", f"""s_lshr_b32 {sRB}, {sT1}, 4
s_lshl1_add_u32 {sRB}, {sT0}, {sRB}
s_and_b32 {sCG}, {sT1}, 15
s_lshr_b32 {sCT}, {sCG}, 1
s_and_b32 {sRT}, {sCG}, 1
s_lshl1_add_u32 {sRT}, {sRB}, {sRT}"""][OPT["map"]]
E(f"""
s_and_b32 {sT0}, s2, 7
s_lshr_b32 {sT1}, s2, 3
v_lshrrev_b32 {v(vT)}, 6, v0
v_and_b32 {v(vL)}, 63, v0
v_readfirstlane_b32 {sW}, {v(vT)}
{MAPC}
s_lshl_b32 {sRG}, {sRB}, 2
s_or_b32 {sRG}, {sRG}, {sW}
{["s_lshl_b32 %s, %s, 1" % (sT0, sCG), "s_mov_b32 %s, 0" % sT0, "s_mov_b32 %s, 0" % sT0, "s_lshr_b32 %s, %s, 1" % (sT0, sCG), "s_and_b32 %s, %s, 3" % (sT0, sCG)][OPT["rot"]]}
{["s_add_u32 %s, %s, %s" % (sT0, sT0, sRB), "s_add_u32 %s, %s, %s" % (sT0, sT0, sRB), "s_mov_b32 %s, 0" % sT0, "s_add_u32 %s, %s, %s" % (sT0, sT0, sRB), "s_xor_b32 %s, %s, %s" % (sT0, sT0, sCT)][OPT["rot"]]}
{["", "s_lshl2_add_u32 %s, %s, %s" % (sT0, sRB, sCG), "s_lshl2_add_u32 %s, %s, %s" % (sT0, sRB, sCT), "s_add_u32 %s, %s, %s" % (sT0, sRB, sCG), "s_mov_b32 %s, %s" % (sT0, sCG), "s_lshl_b32 %s, %s, 1" % (sT0, sCG), "s_mov_b32 %s, %s" % (sT0, sCT)][OPT["mrot"]]}
v_lshlrev_b32 {v(vL16)}, 4, {v(vL)}
v_lshrrev_b32 {v(vHI)}, 5, {v(vL)}
""")
if DBG:
    E(f"s_lshl_b32 {sT2}, s2, 10")
    E(f"v_lshl_add_u32 {v(vDBG)}, v0, 2, {sT2}")
if OPT["c3"] & 4:
    E(f"s_and_b32 {sT0}, {sT0}, 7")
    E(f"s_cmp_eq_u32 {sT0}, 3")
    E(f"s_addc_u32 {sT0}, {sT0}, 0")
if OPT["rot"] == 4:
    E(f"s_lshl_b32 {sXo[0]}, {sT0}, 7")
    for j in range(1, 8): E(f"s_xor_b32 {sXo[j]}, {sXo[0]}, {j << 7}")
    for j in range(8): E(f"s_mul_i32 {sWo[j]}, {sXo[j]}, 1536")
else:
  for j in range(8):
    E(f"s_add_u32 {sT2}, {sT0}, {j}")
    E(f"s_and_b32 {sT2}, {sT2}, 7")
    E(f"s_lshl_b32 {sXo[j]}, {sT2}, 7")
    E(f"s_mul_i32 {sWo[j]}, {sT2}, 196608")
E(f"""
v_lshrrev_b32 {v(vT)}, 4, {v(vL)}
v_and_b32 {v(vT2)}, 7, {v(vL)}
v_xor_b32 {v(vT2)}, {v(vT2)}, {v(vT)}
v_lshlrev_b32 {v(vT2)}, 4, {v(vT2)}
v_and_b32 {v(vX[0])}, 1, {v(vT)}
v_and_b32 {v(vX[1])}, 8, {v(vL)}
v_or_b32 {v(vX[0])}, {v(vX[0])}, {v(vX[1])}
v_lshl_or_b32 {v(vX[0])}, {v(vHI)}, 4, {v(vX[0])}
s_lshl_b32 {sT2}, {sRG}, 5
v_add_u32 {v(vX[0])}, {sT2}, {v(vX[0])}
v_lshl_or_b32 {v(vX[0])}, {v(vX[0])}, 10, {v(vT2)}
v_xor_b32 {v(vX[1])}, 64, {v(vX[0])}
v_add_u32 {v(vX[1])}, 1024, {v(vX[1])}
v_add_u32 {v(vX[2])}, 2048, {v(vX[0])}
v_add_u32 {v(vX[3])}, 2048, {v(vX[1])}
s_and_b32 {sT2}, {sW}, 1
s_lshl_b32 {sT2}, {sT2}, 4
s_lshl_b32 {sT3}, {sCG}, 5
s_add_u32 {sT2}, {sT2}, {sT3}
v_lshrrev_b32 {v(vT)}, 3, {v(vL)}
v_lshl_or_b32 {v(vC[0])}, {v(vT)}, 10, {v(vT2)}
s_lshl_b32 {sT2}, {sT2}, 10
v_add_u32 {v(vB[0])}, {sT2}, {v(vC[0])}
v_xor_b32 {v(vB[1])}, 64, {v(vB[0])}
v_add_u32 {v(vB[1])}, 7168, {v(vB[1])}
s_lshl_b32 {sT3}, {sW}, 12
s_lshl_b32 {sT1}, {sW}, 11
s_add_u32 {sT1}, {sT1}, {RB}
""")
def srd(dst, lo, size):
    b = int(dst[2:].split(":")[0])
    E(f"s_mov_b32 s{b}, s{lo}")
    E(f"s_and_b32 s{b+1}, s{lo+1}, 0xffff")
    E(f"s_mov_b32 s{b+2}, {size}")
    E(f"s_mov_b32 s{b+3}, 0x20000")
E(f"""
v_lshrrev_b32 {v(vT)}, 2, {v(vL)}
s_lshl_b32 {sT2}, {sW}, 4
v_add_u32 {v(vT)}, {sT2}, {v(vT)}
v_mul_u32_u24 {v(vWq)}, 3072, {v(vT)}
v_and_b32 {v(vT2)}, 3, {v(vL)}
s_lshl_b32 {sT2}, {sCG}, 6
v_lshl_add_u32 {v(vT2)}, {v(vT2)}, 4, {sT2}
v_add_u32 {v(vWq)}, {v(vWq)}, {v(vT2)}
""")
vPR, vPI, vPD = 160, 161, 162
vWP = 144
vSA, vSC, vSD, vSZ = 200, 202, 203, 204
E(f"""
v_and_b32 {v(vXR)}, 31, {v(vL)}
s_lshl_b32 {sT2}, {sCG}, 6
v_lshl_add_u32 {v(vSA)}, {v(vXR)}, 1, {sT2}
v_bfe_u32 {v(vT)}, {v(vL)}, 3, 2
v_and_b32 {v(vT2)}, 3, {v(vL)}
v_lshl_add_u32 {v(vT)}, {v(vT)}, 2, {v(vT2)}
v_lshlrev_b32 {v(vT)}, 1, {v(vT)}
v_lshl_or_b32 {v(vT)}, {v(vHI)}, 7, {v(vT)}
v_bfe_u32 {v(vT2)}, {v(vL)}, 2, 1
v_lshl_or_b32 {v(vT)}, {v(vT2)}, 9, {v(vT)}
s_lshl_b32 {sT2}, {sCG}, 10
v_add_u32 {v(vSB)}, {sT2}, {v(vT)}
v_lshlrev_b32 {v(vSC)}, 21, {v(vL)}
v_and_b32 {v(vSC)}, 0x600000, {v(vSC)}
s_lshl_b32 {sT2}, {sRT}, 17
v_mov_b32 {v(vSD)}, {sT2}
v_mov_b32 {v(vSZ)}, 0
""")
vMW, vMW3 = 205, 206
if OPT["mw"]:
    E(f"""
    s_lshl2_add_u32 {sT2}, s2, {sW}
    v_and_b32 {v(vT2)}, 3, {v(vL)}
    s_lshl_b32 s100, {sT2}, 9
    v_lshl_add_u32 {v(vMW)}, {v(vT2)}, 7, s100
    """)
    if OPT["mw"] & 8:
        E(f"""
        s_mul_i32 s100, {sT2}, 1536
        v_min_u32 {v(vT2)}, 11, {v(vL)}
        v_lshl_add_u32 {v(vMW3)}, {v(vT2)}, 7, s100
        """)
vPFx, vPFB = 182, 183
if OPT["fpf"] & 48:
    assert not OPT["map"]
    E(f"""
    s_and_b32 {sT2}, {sCG}, 3
    s_lshl2_add_u32 {sT2}, {sRG}, {sT2}
    s_lshl_b32 {sT2}, {sT2}, 13
    v_and_b32 {v(vT)}, 7, {v(vL)}
    v_lshl_add_u32 {v(vPFx)}, {v(vT)}, 10, {sT2}
    s_and_b32 {sT2}, {sW}, 1
    s_lshl1_add_u32 {sT2}, {sCG}, {sT2}
    s_lshl3_add_u32 {sT2}, {sT2}, {sCT}
    s_lshl_b32 {sT2}, {sT2}, 11
    v_and_b32 {v(vT)}, 1, {v(vL)}
    v_lshl_add_u32 {v(vPFB)}, {v(vT)}, 10, {sT2}
    """)
if OPT["fpf"] & 15:
    E(f"""
    s_lshr_b32 {sT2}, s2, 3
    s_lshl2_add_u32 {sT2}, {sT2}, {sW}
    v_and_b32 {v(vT)}, 3, {v(vL)}
    v_mul_u32_u24 {v(vPFa)}, 3072, {v(vT)}
    s_mul_i32 s100, {sT2}, 12288
    s_lshl_b32 {sT2}, {sT2}, 12
    v_lshl_add_u32 {v(vPFb)}, {v(vT)}, 10, {sT2}
    """)
    if OPT["map"]:
        E(f"s_add_u32 s100, s100, 384")
        E(f"v_lshrrev_b32 {v(vT2)}, 2, {v(vL)}")
        E(f"v_min_u32 {v(vT2)}, 2, {v(vT2)}")
    else:
        both = OPT["fpf"] & 4
        E(f"s_lshr_b32 {sT2}, {sCG}, 2")
        E(f"s_lshl_b32 {sT2}, {sT2}, 8")
        E(f"s_add_u32 s100, s100, {sT2}")
        if both:
            E(f"v_bfe_u32 {v(vT2)}, {v(vL)}, 2, 1")
            E(f"v_lshl_add_u32 {v(vPFa)}, {v(vT2)}, 7, {v(vPFa)}")
            E(f"v_lshrrev_b32 {v(vT2)}, 3, {v(vL)}")
            if OPT["fpf"] & 8:
                E(f"v_and_b32 {v(vT2)}, 1, {v(vT2)}")
                E(f"v_add_u32 {v(vT2)}, 1, {v(vT2)}")
            else: E(f"v_min_u32 {v(vT2)}, 2, {v(vT2)}")
        else:
            E(f"s_add_u32 s100, s100, 128")
            E(f"v_lshrrev_b32 {v(vT2)}, 2, {v(vL)}")
            E(f"v_min_u32 {v(vT2)}, 2, {v(vT2)}")
    E(f"v_lshl_add_u32 {v(vT2)}, {v(vT2)}, 10, s100")
    E(f"v_add_u32 {v(vPFa)}, {v(vPFa)}, {v(vT2)}")
def first_pf():
    n0 = len(E.ins)
    if OPT["fpf"] & 16: E(f"buffer_load_dword v247, {v(vPFx)}, {SRD_X}, 0 offen offset:384")
    if OPT["fpf"] & 32: E(f"buffer_load_dword v246, {v(vPFB)}, {SRD_B}, 0 offen offset:384")
    if OPT["fpf"] & 1: E(f"global_load_dword v253, {v(vPFa)}, s[6:7]")
    if OPT["fpf"] & 2: E(f"global_load_dword v250, {v(vPFb)}, s[10:11] offset:384")
    for c_ in E.ins[n0:]: c_.lines = 0.0; c_.lat = OPT["cold"]
def tlb_touch():
    n0 = len(E.ins)
    E(f"global_load_dword v248, {v(vSZ if OPT['sl'] else vL16)}, {P_DSK}")
    if OPT["tlb"]:
        E(f"""
        global_load_dword v254, {v(vSC)}, s[36:37] offset:2048
        global_load_dword v252, {v(vMW if OPT["mw"] & 1 else vSZ)}, s[22:23]
        global_load_dword v251, {v(vMW if OPT["mw"] & 2 else vSZ)}, s[24:25]
        {"" if OPT["fpf"] & 2 else "global_load_dword v250, %s, s[10:11]" % v(vMW if OPT["mw"] & 4 else vSZ)}
        global_load_dword v249, {v(vSD)}, s[32:33]
        """)
        if not OPT["wpf"] and not OPT["fpf"] & 1: E(f"global_load_dword v253, {v(vMW3 if OPT['mw'] & 8 else vSZ)}, s[6:7]")
    for c_ in E.ins[n0:]: c_.lines = 0.0; c_.lat = OPT["cold"]
def small_loads():
    n0 = len(E.ins)
    if OPT["fpp"] == 0: first_pf()
    E(f"""
    global_load_ushort {v(vPR)}, {v(vSA)}, {P_LRE}
    global_load_ushort {v(vPI)}, {v(vSA)}, {P_LIM}
    global_load_ushort {v(vPD)}, {v(vSA)}, {P_LDT}
    """)
    if not OPT["sl"] & 1:
        for t_ in small2(): E(t_)
    if not OPT["sl"] & 2: tlb_touch()
    if OPT["fpp"] == 1: first_pf()
    for c_ in E.ins[n0:]: c_.lines = 0.0; c_.lat = OPT["cold"]
E("s_mov_b32 s46, 1572864"); E("s_mov_b32 s47, 0x20000")
E("s_mov_b32 s42, 2097152"); E("s_mov_b32 s43, 0x20000"); E("s_mov_b32 s50, 524288"); E("s_mov_b32 s51, 0x20000")
E.sett(900)
E("s_mov_b32 s40, s4"); E("s_and_b32 s41, s5, 0xffff")
E(f"s_mov_b32 {sRING}, {sT3}")
E(f"s_mov_b32 {sRINGB}, {sT1}")
E.drain("x0_3")
E(f"s_cmp_lt_u32 {sW}, 2")
E("s_cselect_b32 s48, s18, s20")
E("s_cselect_b32 s49, s19, s21")
E("s_and_b32 s49, s49, 0xffff")
if OPT["pro"] == 1:
    E.drain("b0_1")
    small_loads()
E.drain(items[OPT["early"] - 1].name)
if OPT["fpp"] == 2: first_pf()
if OPT["sl"] & 2: tlb_touch()
E("s_mov_b32 s44, s6"); E("s_and_b32 s45, s7, 0xffff")
E.mark("waddr")
stamp("first dma")
E(f"s_load_dword {sTAG}, s[36:37], {W_EPOCH}")
if OPT["tagl"]: E.ins[-1].junk = True
if OPT["smp"]:
    E(f"""
    s_lshr_b32 {sT2}, s2, 3
    s_lshl2_add_u32 {sT2}, {sT2}, {sW}
    s_mul_i32 {sT2}, {sT2}, 12288
    s_lshr_b32 {sT3}, {sCG}, 2
    s_lshl_b32 {sT3}, {sT3}, 8
    s_add_u32 {sT2}, {sT2}, {sT3}
    """)
    prs = {1: (1,), 2: (1, 0), 3: (1, 0), 4: (1,)}[OPT["smp"]]
    pts = {1: (1, 2, 0), 2: (1, 2, 0), 3: (1, 2), 4: (1, 2)}[OPT["smp"]]
    for pt in pts:
        for pr_ in prs:
            for r_ in range(4):
                E(f"s_load_dword {sSPIN}, s[6:7], {sT2} offset:{r_*3072 + pt*1024 + pr_*128}")
                E.ins[-1].junk = True
if OPT["pro"] == 0: small_loads()
if OPT["crot"]:
    E(f"""
    s_lshr_b32 {sT2}, {sCT}, 2
    s_add_u32 {sT2}, {sT2}, {sCT}
    s_add_u32 {sT2}, {sT2}, {sCG}
    s_and_b32 {sT2}, {sT2}, 1
    s_cselect_b32 s52, s24, s22
    s_cselect_b32 s53, s25, s23
    s_cselect_b32 s56, s22, s24
    s_cselect_b32 s57, s23, s25
    s_and_b32 s53, s53, 0xffff
    s_and_b32 s57, s57, 0xffff
    s_mov_b32 s54, 524288
    s_mov_b32 s55, 0x20000
    s_mov_b32 s58, 524288
    s_mov_b32 s59, 0x20000
    """)
else:
    srd(SRD_CR, 22, 524288); srd(SRD_CI, 24, 524288)
srd(SRD_WO, 10, 524288)
srd(SRD_WS, 36, 0x10000000); srd(SRD_OUT, 32, 4194304)
E.setts(OPT["cold"] - 200)
CRT = [f"s_add_u32 {sT2}, {sCG}, {sCT}",
       f"s_lshr_b32 {sT2}, {sRB}, 1\ns_add_u32 {sT2}, {sT2}, {sRT}\ns_add_u32 {sT2}, {sT2}, {sCT}",
       f"s_lshr_b32 {sT2}, {sRB}, 1\ns_add_u32 {sT2}, {sT2}, {sRT}",
       f"s_add_u32 {sT2}, {sRT}, {sCT}"][OPT["crt"]]
E(f"""
s_lshl_b32 {sPW}, {sW}, 14
s_add_u32 {sPW}, {sPW}, {RB}
s_mov_b32 {sHM}, 0xffff0000
s_mov_b32 {sFFFF}, 0xffff
s_mov_b32 {sFF}, 0xff
s_mov_b32 s38, 0x3fb8aa3b
s_mov_b32 s39, 0x3fb8aa3b
s_cmp_ge_u32 {sW}, 1
s_cselect_b64 {sM1}, -1, 0
s_cmp_ge_u32 {sW}, 2
s_cselect_b64 {sM2}, -1, 0
s_cmp_ge_u32 {sW}, 3
s_cselect_b64 {sM3}, -1, 0
s_mov_b32 s12, 0
s_mov_b32 s13, -1
{CRT}
s_and_b32 {sT2}, {sT2}, 3
s_lshl_b32 {sT0}, {sW}, 2
""")
E.unlock()
for c in range(4):
    E(f"s_xor_b32 {sT1}, {sT2}, {c}")
    E(f"s_or_b32 {sT1}, {sT1}, {sT0}")
    E(f"s_lshl_b32 {sCgW[c]}, {sT1}, 15")
E(f"""
s_and_b32 {sT1}, {sT2}, 2
s_or_b32 {sT1}, {sT1}, {sT0}
s_lshl_b32 {sT1}, {sT1}, 6
s_and_b32 {sT3}, {sW}, 1
s_lshl_b32 {sT3}, {sT3}, 15
s_or_b32 {sCgC[0]}, {sT1}, {sT3}
s_xor_b32 {sCgC[1]}, {sCgC[0]}, 32768
s_xor_b32 {sCgC[2]}, {sCgC[0]}, 128
s_xor_b32 {sCgC[3]}, {sCgC[1]}, 128
s_and_b32 {sT2}, {sT2}, 1
s_lshl_b32 {sT2}, {sT2}, 6
s_lshl_b32 {sT3}, {sCT}, 16
v_add_u32 {v(vC[0])}, {sT3}, {v(vC[0])}
v_xor_b32 {v(vC[1])}, 64, {v(vC[0])}
v_add_u32 {v(vC[1])}, 7168, {v(vC[1])}
v_add_u32 {v(vC[2])}, 14336, {v(vC[0])}
v_add_u32 {v(vC[3])}, 14336, {v(vC[1])}
v_bfe_u32 {v(vT)}, {v(vL)}, 1, 3
v_xor_b32 {v(vT)}, {v(vT)}, {v(vHI)}
v_lshlrev_b32 {v(vT)}, 4, {v(vT)}
v_lshl_or_b32 {v(vT)}, {v(vXR)}, 7, {v(vT)}
""")
for k in range(4):
    E(f"v_xor_b32 {v(vT2)}, {k*32}, {v(vT)}")
    E(f"v_add_u32 {v(vBf[k])}, {RB}, {v(vT2)}")
    E(f"v_add_u32 {v(vXf[k])}, {sRING}, {v(vT2)}")
    E(f"v_xor_b32 {v(vT2)}, {sT2}, {v(vT2)}")
    E(f"v_add_u32 {v(vCf[k])}, {sPW}, {v(vT2)}")
E(f"""
v_bfe_u32 {v(vT)}, {v(vL)}, 2, 2
v_lshl_or_b32 {v(vT)}, {v(vHI)}, 3, {v(vT)}
v_lshlrev_b32 {v(vTRq)}, 6, {v(vT)}
v_bfe_u32 {v(vT2)}, {v(vL)}, 4, 1
v_lshl_or_b32 {v(vTRq)}, {v(vT2)}, 5, {v(vTRq)}
v_and_b32 {v(vT)}, 3, {v(vL)}
v_lshl_or_b32 {v(vTRq)}, {v(vT)}, 3, {v(vTRq)}
v_add_u32 {v(vTRkv)}, 32768, {v(vTRq)}
s_and_b32 {sT0}, {sW}, 1
v_xor_b32 {v(vT)}, {sT0}, {v(vT2)}
v_lshlrev_b32 {v(vT)}, 2, {v(vT)}
v_and_b32 {v(vT2)}, 7, {v(vL)}
v_xor_b32 {v(vT)}, {v(vT)}, {v(vT2)}
s_lshl_b32 {sT2}, {sCT}, 7
v_lshl_add_u32 {v(vT)}, {v(vT)}, 4, {sT2}
v_lshrrev_b32 {v(vT2)}, 3, {v(vL)}
v_lshl_add_u32 {v(vWO[0])}, {v(vT2)}, 10, {v(vT)}
v_add_u32 {v(vWO[1])}, 7168, {v(vWO[0])}
v_add_u32 {v(vWO[2])}, 14336, {v(vWO[0])}
v_add_u32 {v(vWO[3])}, 21504, {v(vWO[0])}
v_bfe_u32 {v(vT)}, {v(vL)}, 2, 2
v_lshl_or_b32 {v(vT)}, {v(vHI)}, 4, {v(vT)}
v_lshlrev_b32 {v(vT)}, 7, {v(vT)}
v_bfe_u32 {v(vT2)}, {v(vL)}, 3, 1
v_lshl_or_b32 {v(vT)}, {v(vT2)}, 6, {v(vT)}
v_and_b32 {v(vT2)}, 63, {v(vTRq)}
v_or_b32 {v(vT)}, {v(vT2)}, {v(vT)}
v_add_u32 {v(vWOf[0])}, {sPW}, {v(vT)}
v_xor_b32 {v(vT)}, 64, {v(vT)}
v_add_u32 {v(vWOf[1])}, {sPW}, {v(vT)}
""")
if HX:
    E(f"v_lshlrev_b32 {v(vFLA)}, 2, {v(vXR)}")
    for i in range(4): E(f"v_mov_b32 {v(vSN+i)}, -1")
E(f"""
v_lshlrev_b32 {v(vXR)}, 3, {v(vXR)}
v_lshl_or_b32 {v(vEL)}, {v(vHI)}, 8, {v(vXR)}
v_add_u32 {v(vXR)}, {XCH}, {v(vXR)}
s_lshl_b32 {sT2}, {sW}, 8
v_add_u32 {v(vXW)}, {sT2}, {v(vXR)}
""")
if not HX: E(f"""
v_and_b32 {v(vT)}, 7, {v(vL)}
v_lshlrev_b32 {v(vT)}, 2, {v(vT)}
v_add_u32 {v(vFLA)}, {W_FH}, {v(vT)}
s_lshl_b32 {sFP}, {sRT}, 2
s_add_u32 {sFP}, {sFP}, {sW}
s_lshl_b32 {sFP}, {sFP}, 7
""")
E(f"""
s_lshl_b32 {sT2}, {sCG}, 13
s_lshl_b32 {sT3}, {sRB}, 8
s_sub_u32 {sT2}, {sT2}, {sT3}
s_add_u32 {sEP}, {sT2}, {W_E + 15*256}
s_lshl_b32 {sT2}, {sCG}, 2
s_add_u32 {sT2}, {sT2}, {sW}
s_lshl_b32 {sKV}, {sT2}, 14
s_add_u32 {sKV}, {sKV}, {W_KVP}
s_lshl_b32 {sT2}, {sRB}, 10
s_add_u32 {sKVP}, {sT2}, {sKV}
s_lshr_b32 {sT2}, {sRG}, 3
s_lshl_b32 {sT2}, {sT2}, 19
s_lshl_b32 {sT1}, {sCG}, 15
s_add_u32 {sT2}, {sT2}, {sT1}
s_and_b32 {sT3}, {sRG}, 7
s_lshl_b32 {sT3}, {sT3}, 12
s_add_u32 {sT2}, {sT2}, {sT3}
s_add_u32 {sHS}, {sT2}, {W_H}
s_lshr_b32 {sT2}, {sRG}, 4
s_lshl_b32 {sT2}, {sT2}, 19
s_add_u32 {sT2}, {sT2}, {sT1}
s_and_b32 {sT3}, {sRG}, 15
s_lshl_b32 {sT3}, {sT3}, 11
s_add_u32 {sT2}, {sT2}, {sT3}
s_add_u32 {sOS}, {sT2}, {W_O}
s_lshr_b32 {sT1}, {sW}, 1
s_lshl_b32 {sT2}, {sRT}, 1
s_or_b32 {sRA0}, {sT2}, {sT1}
s_lshl_b32 {sT2}, {sRG}, 5
s_lshl_b32 {sT3}, {sCG}, 1
s_add_u32 {sT2}, {sT2}, {sT3}
s_lshl_b32 {sGP}, {sT2}, 10
""")
if OPT["pfg"]:
    E(f"""
    v_mov_b32 {v(vK3)}, 3072
    v_mov_b32 {v(vK3+1)}, 0
    s_lshl_b32 {sT2}, {sCT}, 2
    s_or_b32 {sT2}, {sT2}, {sW}
    s_mul_i32 {sT3}, {sT2}, 49152
    s_lshr_b32 {sT1}, {sCG}, 2
    s_lshl_b32 {sT1}, {sT1}, 8
    s_add_u32 {sT3}, {sT3}, {sT1}
    v_and_b32 {v(vT2)}, 1, {v(vL)}
    v_lshl_add_u32 {v(vT2)}, {v(vT2)}, 7, {sT3}
    v_lshrrev_b32 {v(vT)}, 2, {v(vL)}
    v_mad_u32_u24 {v(vPFa)}, {v(vT)}, {v(vK3)}, {v(vT2)}
    v_bfe_u32 {v(vT)}, {v(vL)}, 1, 1
    v_lshl_add_u32 {v(vPFa)}, {v(vT)}, 10, {v(vPFa)}
    v_bfe_u32 {v(vT)}, {v(vL)}, 1, 4
    v_mad_u32_u24 {v(vPFb)}, {v(vT)}, {v(vK3)}, {v(vT2)}
    v_add_u32 {v(vPFb)}, 2048, {v(vPFb)}
    s_lshl_b32 {sT2}, {sT2}, 14
    v_lshl_add_u32 {v(vT)}, {v(vL)}, 7, {sT2}
    v_add_u32 {v(vT2)}, 8192, {v(vT)}
    s_and_b32 {sGRP}, {sCG}, 3
    v_cmp_ne_u32 vcc, {sGRP}, {v(vK3+1)}
    v_cndmask_b32 {v(vPFa)}, {v(vPFa)}, {v(vT)}, vcc
    v_cndmask_b32 {v(vPFb)}, {v(vPFb)}, {v(vT2)}, vcc
    """)
if OPT["upf"]:
    E(f"""
    s_lshr_b32 {sT2}, s2, 3
    s_lshl_b32 {sT2}, {sT2}, 2
    s_or_b32 {sT2}, {sT2}, {sW}
    s_lshl_b32 {sT2}, {sT2}, 12
    v_lshl_add_u32 {v(vPFa)}, {v(vL)}, {[0, 6, 5, 4][OPT["upf"]]}, {sT2}
    """)
if OPT["c3"] & 3:
    E(f"""
    s_lshr_b32 {sT2}, s2, 3
    s_lshl2_add_u32 {sT2}, {sT2}, {sW}
    v_and_b32 {v(vT)}, 3, {v(vL)}
    """)
    if OPT["c3"] & 1:
        E(f"s_mul_i32 {sT3}, {sT2}, 12288")
        if OPT["map"]: E(f"s_add_u32 {sT3}, {sT3}, 384")
        else:
            if OPT["c3"] & 8:
                E(f"s_lshr_b32 {sT1}, {sCG}, 2")
                E(f"s_lshl_b32 {sT1}, {sT1}, 8")
            else:
                E(f"s_or_b32 {sT1}, {sCG}, 2")
                E(f"s_lshr_b32 {sT1}, {sT1}, 1")
                E(f"s_lshl_b32 {sT1}, {sT1}, 7")
            E(f"s_add_u32 {sT3}, {sT3}, {sT1}")
        E(f"""
        v_lshrrev_b32 {v(vT2)}, {3 if OPT["c3"] & 8 else 2}, {v(vL)}
        v_min_u32 {v(vT2)}, 2, {v(vT2)}
        v_lshl_add_u32 {v(vT2)}, {v(vT2)}, 10, {sT3}
        v_mul_u32_u24 {v(vPFa)}, 3072, {v(vT)}
        v_add_u32 {v(vPFa)}, {v(vPFa)}, {v(vT2)}
        """)
        if OPT["c3"] & 8:
            E(f"v_bfe_u32 {v(vT2)}, {v(vL)}, 2, 1")
            E(f"v_lshl_add_u32 {v(vPFa)}, {v(vT2)}, 7, {v(vPFa)}")
    if OPT["c3"] & 2:
        E(f"s_lshl_b32 {sT2}, {sT2}, 12")
        E(f"v_lshl_add_u32 {v(vPFb)}, {v(vT)}, 10, {sT2}")
TAGC = f"""
s_add_u32 {sTAG}, {sTAG}, 1
v_mov_b32 {v(vTAG)}, {sTAG}
"""
if not OPT["tagl"]: E(TAGC)
stamp("addr")

LATE = f"""
s_lshl2_add_u32 {sT2}, {sCG}, {sW}
s_lshl_b32 {sZP}, {sT2}, 10
s_add_u32 {sZP}, {sZP}, {W_ZP}
s_lshl_b32 {sT3}, {sRB}, 6
s_add_u32 {sZPP}, {sT3}, {sZP}
""" + (f"""
s_lshl_b32 {sFL}, {sRA0}, 7
s_add_u32 {sFL}, {sFL}, {W_G}
s_xor_b32 {sFP}, {sFL}, 128
""" if HX else f"""
s_lshr_b32 {sFL}, {sRG}, 1
s_lshl_b32 {sFL}, {sFL}, 2
s_lshr_b32 {sT3}, {sCG}, 2
s_add_u32 {sFL}, {sFL}, {sT3}
s_lshl_b32 {sFL}, {sFL}, 7
s_and_b32 {sT3}, {sRG}, 1
s_lshl_b32 {sT3}, {sT3}, 4
s_add_u32 {sFL}, {sFL}, {sT3}
s_and_b32 {sT3}, {sCG}, 3
s_lshl_b32 {sT3}, {sT3}, 2
s_add_u32 {sFL}, {sFL}, {sT3}
""")
t0, t1, t2, t3 = 164, 166, 168, 170
F = [Prog() for _ in range(8)]
F[0](f"""
v_lshlrev_b32 {v(vPR)}, 16, {v(vPR)}
v_lshlrev_b32 {v(vPI)}, 16, {v(vPI)}
v_lshlrev_b32 {v(vPD)}, 16, {v(vPD)}
v_mul_f32 {v(vPD)}, s38, {v(vPD)}
v_exp_f32 {v(vPD)}, {v(vPD)}
v_mul_f32 {v(t2)}, {v(vPR)}, {v(vPR)}
v_fma_f32 {v(t2)}, {v(vPI)}, {v(vPI)}, {v(t2)}
v_cvt_pk_bf16_f32 {v(vPD)}, {v(vPD)}, {v(vPD)}
v_and_b32 {v(vPD)}, {sHM}, {v(vPD)}
v_mul_f32 {v(t0)}, {v(vPD)}, {v(vPR)}
v_mul_f32 {v(t0+1)}, {v(vPD)}, {v(vPI)}
v_mul_f32 {v(t0)}, s38, {v(t0)}
v_mul_f32 {v(t0+1)}, 0.15915494, {v(t0+1)}
v_exp_f32 {v(t0)}, {v(t0)}
v_cos_f32 {v(t1)}, {v(t0+1)}
v_sin_f32 {v(t1+1)}, {v(t0+1)}
v_rcp_f32 {v(t3)}, {v(t2)}
v_mul_f32 {v(vLAM)}, {v(t0)}, {v(t1)}
v_mul_f32 {v(vLAM+1)}, {v(t0)}, {v(t1+1)}
v_add_f32 {v(t1)}, -1.0, {v(vLAM)}
v_mul_f32 {v(t2)}, {v(t1)}, {v(vPR)}
v_fma_f32 {v(t2)}, {v(vLAM+1)}, {v(vPI)}, {v(t2)}
v_mul_f32 {v(t2+1)}, {v(vLAM+1)}, {v(vPR)}
v_fma_f32 {v(t2+1)}, -{v(t1)}, {v(vPI)}, {v(t2+1)}
v_mul_f32 {v(vCOEF)}, {v(t2)}, {v(t3)}
v_mul_f32 {v(vCOEF+1)}, {v(t2+1)}, {v(t3)}
""")
csq(F[1], t0, vLAM); csq(F[1], t1, t0); csq(F[1], vL8, t1); csq(F[1], vL16p, vL8); csq(F[1], vL32, vL16p)
csq(F[1], t0, vL32); cmul(F[1], t1, t0, vL32)
csq(F[2], vMU, t0); csq(F[2], vMU2, vMU)
F[2](f"""
v_cndmask_b32 {v(t2)}, 1.0, {v(vL32)}, {sM1}
v_cndmask_b32 {v(t2+1)}, 0, {v(vL32+1)}, {sM1}
v_cndmask_b32 {v(t2)}, {v(t2)}, {v(t0)}, {sM2}
v_cndmask_b32 {v(t2+1)}, {v(t2+1)}, {v(t0+1)}, {sM2}
v_cndmask_b32 {v(t2)}, {v(t2)}, {v(t1)}, {sM3}
v_cndmask_b32 {v(t2+1)}, {v(t2+1)}, {v(t1+1)}, {sM3}
""")
cmul(F[2], t3, t2, vL16p)
F[2](f"v_cndmask_b32 {v(vALR0)}, {v(t2)}, {v(t3)}, {sHI}")
F[2](f"v_cndmask_b32 {v(vALI0)}, {v(t2+1)}, {v(t3+1)}, {sHI}")
F[2](f"""
v_mul_f32 {v(vALR0+1)}, {v(vALR0)}, {v(vL8)}
v_mul_f32 {v(vALI0+1)}, {v(vALR0)}, {v(vL8+1)}
v_fma_f32 {v(vALR0+1)}, -{v(vALI0)}, {v(vL8+1)}, {v(vALR0+1)}
v_fma_f32 {v(vALI0+1)}, {v(vALI0)}, {v(vL8)}, {v(vALI0+1)}
""")
F[4](LATE)
F[3]("s_mov_b32 s100, 0xf0f0f0f0")
F[3]("s_mov_b32 s101, 0xf0f0f0f0")
for i in range(4):
    F[3](f"v_lshl_or_b32 {v(vA1+i)}, {v(vWP+2*i+1)}, 16, {v(vWP+2*i)}")
for i in range(4):
    F[3](f"v_cndmask_b32 {v(vA2+i)}, 0, {v(vA1+i)}, s[100:101]")
    F[3](f"v_cndmask_b32 {v(vA1+i)}, {v(vA1+i)}, 0, s[100:101]")
dump("lam", [v(vLAM), v(vLAM+1), v(vCOEF), v(vCOEF+1), v(vMU2), v(vMU2+1)], F[3])
gW, gP, gR = 108, 116, 124
gS0, gS1 = 128, 130
G1, G2 = F[OPT["glpos"] + 2], F[OPT["glpos"] + 3]
for i in range(4):
    G1(f"v_lshlrev_b32 {v(gW+2*i)}, 16, {v(vGW+i)}")
    G1(f"v_and_b32 {v(gW+2*i+1)}, {sHM}, {v(vGW+i)}")
for row, src, dst, G in ((0, vGX0, gS0, G1), (1, vGX1, gS1, G2)):
    for i in range(4):
        G(f"v_lshlrev_b32 {v(gP+2*i)}, 16, {v(src+i)}")
        G(f"v_and_b32 {v(gP+2*i+1)}, {sHM}, {v(src+i)}")
    for i in range(4):
        G(f"v_pk_mul_f32 {v(gP+2*i,2)}, {v(gP+2*i,2)}, {v(gW+2*i,2)}")
    for i in range(4):
        G(f"v_cvt_pk_bf16_f32 {v(gR+i)}, {v(gP+2*i)}, {v(gP+2*i+1)}")
    for i in range(4):
        G(f"v_lshlrev_b32 {v(gP+2*i)}, 16, {v(gR+i)}")
        G(f"v_and_b32 {v(gP+2*i+1)}, {sHM}, {v(gR+i)}")
    G(f"v_pk_add_f32 {v(gP,2)}, {v(gP,2)}, {v(gP+2,2)}")
    G(f"v_pk_add_f32 {v(gP+4,2)}, {v(gP+4,2)}, {v(gP+6,2)}")
    G(f"v_pk_add_f32 {v(gP,2)}, {v(gP,2)}, {v(gP+4,2)}")
    G(f"v_add_f32 {v(dst)}, {v(gP)}, {v(gP+1)}")
G3 = Prog()
G3(f"""
v_permlane32_swap_b32 {v(gS0)}, {v(gS1)}
v_add_f32 {v(gS0)}, {v(gS0)}, {v(gS1)}
v_mov_b32 {v(gS1)}, {v(gS0)}
s_lshr_b32 {sT2}, {sGP}, 8
v_permlane16_swap_b32 {v(gS0)}, {v(gS1)}
v_add_f32 {v(gS0)}, {v(gS0)}, {v(gS1)}
""")
for r in (8, 4, 2, 1):
    G3(f"v_add_f32_dpp {v(gS0)}, {v(gS0)}, {v(gS0)} row_ror:{r} row_mask:0xf bank_mask:0xf")
G3(f"""
v_cvt_pk_bf16_f32 {v(gS0)}, {v(gS0)}, {v(gS0)}
v_and_b32 {v(gS0)}, {sHM}, {v(gS0)}
v_mul_f32 {v(gS0)}, 0xbfb8aa3b, {v(gS0)}
v_exp_f32 {v(gS0)}, {v(gS0)}
v_lshlrev_b32 {v(gS1)}, 2, {v(vHI)}
v_add_f32 {v(gS0)}, 1.0, {v(gS0)}
v_rcp_f32 {v(gS0)}, {v(gS0)}
s_add_u32 {sT2}, {sT2}, {W_G}
v_cvt_pk_bf16_f32 {v(gS0)}, {v(gS0)}, {v(gS0)}
v_bfi_b32 {v(gS0)}, {sFFFF}, {v(vTAG)}, {v(gS0)}
""")
if HX and OPT["hs"]: G3.waitvm("sent")
G3.lock()
G3(f"""
s_mov_b32 exec_lo, 1
s_mov_b32 exec_hi, 1
buffer_store_dword {v(gS0)}, {v(gS1)}, {SRD_WS}, {sT2} offen{LST}
s_mov_b64 exec, -1
""")
G3.unlock()

vBB = [192, 224]
def u_reads(j):
    p = Prog()
    slot = j if j < 6 else j - 6
    for k in range(4):
        p(f"ds_read_b128 {a(aXF + 16*j + 4*k, 4)}, {v(vXf[k])} offset:{(slot & 3)*16384}")
        p(f"ds_read_b128 {v(vBB[j&1] + 8*k, 4)}, {v(vBf[k])} offset:{j*8192}")
        p(f"ds_read_b128 {v(vBB[j&1] + 8*k + 4, 4)}, {v(vBf[k])} offset:{j*8192 + 4096}")
    return p
def u_mm(j, ks):
    p = Prog()
    for k in ks:
        c_re = "0" if (j == 0 and k == 0) else v(vU_RE, 16)
        c_im = "0" if (j == 0 and k == 0) else v(vU_IM, 16)
        p(f"v_mfma_f32_32x32x16_bf16 {v(vU_RE,16)}, {a(aXF + 16*j + 4*k, 4)}, {v(vBB[j&1] + 8*k, 4)}, {c_re}")
        p(f"v_mfma_f32_32x32x16_bf16 {v(vU_IM,16)}, {a(aXF + 16*j + 4*k, 4)}, {v(vBB[j&1] + 8*k + 4, 4)}, {c_im}")
    return p
if HX and OPT["hs"] and OPT["hsp"] == 2 and OPT["hsd"]: E.drain("sn5")
E.waitvm("xb0")
E("s_barrier")
stamp("xb0 landed")
E.extend(u_reads(0))
def weave2(mainp, s1, n1, s2, n2):
    out = []; s1 = list(s1.ins); s2 = list(s2.ins); i = 0
    for m in mainp.ins:
        out.append(m)
        out += s1[:n1[i]]; s1 = s1[n1[i]:]
        out += s2[:n2]; s2 = s2[n2:]
        i += 1
    p = Prog(); p.ins = out + s1 + s2
    return p
for j in range(8):
    E.mark(f"U chunk {j}")
    if OPT["usp"] and j >= OPT["usp"] - 1:
        if j in (3, 5):
            for k in range(4): E(f"v_add_u32 {v(vXf[k])}, {65536 if j == 3 else -65536}, {v(vXf[k])}")
        mm = u_mm(j, (0, 1, 2, 3))
        if j < 7:
            E.extend(mm.ins[:1]); mm.ins = mm.ins[1:]
            E.waitvm(f"xb{j+1}")
            E("s_barrier")
            E.mark(f"xr{j-1}b")
            if j in (1, 3, 5): stamp(f"xb{j+1} landed")
            rd = u_reads(j+1)
            E.extend(rd.ins[:2]); rd.ins = rd.ins[2:]
            E.extend(weave2(mm, rd, [2, 1, 2, 1, 2, 1, 1], F[j], (len(F[j].ins) + 6) // 7))
        else:
            E.extend(weave(mm, F[j], every=1, per=4))
        E.mark(f"xr{j}")
        continue
    if j in (3, 5):
        for k in range(4): F[j](f"v_add_u32 {v(vXf[k])}, {65536 if j == 3 else -65536}, {v(vXf[k])}")
    E.extend(weave(u_mm(j, (0, 1)), F[j], every=1, per=4))
    if j < 7:
        E.waitvm(f"xb{j+1}")
        E("s_barrier")
        if j in (1, 3, 5): stamp(f"xb{j+1} landed")
        E.extend(weave(u_mm(j, (2, 3)), u_reads(j+1), every=1, per=3))
    else:
        E.extend(u_mm(j, (2, 3)))
    E.mark(f"xr{j}")
stamp("U done")
dump("U", [v(vU_RE+i) for i in range(32)])

tA, tB, tC, tD = 192, 194, 196, 198
for m in range(8):
    r, i = vU_RE + 2*m, vU_IM + 2*m
    E(f"v_pk_mul_f32 {v(tA+4*(m&1),2)}, {v(r,2)}, {v(vCOEF,2)} {HI2}")
    E(f"v_pk_mul_f32 {v(r,2)}, {v(r,2)}, {v(vCOEF,2)} {LO2}")
    E(f"v_pk_fma_f32 {v(r,2)}, {v(i,2)}, {v(vCOEF,2)}, {v(r,2)} {HI} {NEG1}")
    E(f"v_pk_fma_f32 {v(i,2)}, {v(i,2)}, {v(vCOEF,2)}, {v(tA+4*(m&1),2)} {LO}")
er, ei = vU_RE, vU_IM
pp = [(tA, tB), (tC, tD)]
for m in range(1, 8):
    nr, ni = pp[m & 1]
    E(f"v_pk_fma_f32 {v(nr,2)}, {v(er,2)}, {v(vLAM,2)}, {v(vU_RE+2*m,2)} {LO}")
    E(f"v_pk_fma_f32 {v(ni,2)}, {v(ei,2)}, {v(vLAM,2)}, {v(vU_IM+2*m,2)} {LO}")
    E(f"v_pk_fma_f32 {v(nr,2)}, {v(ei,2)}, {v(vLAM,2)}, {v(nr,2)} {HI} {NEG1}")
    E(f"v_pk_fma_f32 {v(ni,2)}, {v(er,2)}, {v(vLAM,2)}, {v(ni,2)} {HI}")
    er, ei = nr, ni
eA, e16, e16h, e32 = 200, 202, 204, 206
E(f"""
v_fma_f32 {v(e16)}, {v(vL8)}, {v(er)}, {v(er+1)}
v_fma_f32 {v(e16+1)}, {v(vL8)}, {v(ei)}, {v(ei+1)}
v_fma_f32 {v(e16)}, -{v(vL8+1)}, {v(ei)}, {v(e16)}
v_fma_f32 {v(e16+1)}, {v(vL8+1)}, {v(er)}, {v(e16+1)}
v_mov_b32 {v(eA)}, {v(er)}
v_mov_b32 {v(e16h)}, {v(e16)}
v_mov_b32 {v(e16h+1)}, {v(e16+1)}
v_mov_b32 {v(eA+1)}, {v(ei)}
v_permlane32_swap_b32 {v(e16)}, {v(e16h)}
v_permlane32_swap_b32 {v(e16+1)}, {v(e16h+1)}
""")
cmul_add(E, e32, e16, vL16p, e16h)
E(f"ds_write_b64 {v(vXW)}, {v(e32,2)}")
E.waitlg(None)
if OPT["tagl"]: E(TAGC)
stamp("scan1")
E.waitvm("w0")
E("s_barrier")
E.mark("barA")
stamp("barA")
K = Prog()
eW = [208, 210, 212, 214]
for w in range(4):
    K(f"ds_read_b64 {v(eW[w],2)}, {v(vXR)} offset:{w*256}")
K(f"""
v_mov_b32 {v(vALR)}, {v(vALR0)}
v_mov_b32 {v(vALR+1)}, {v(vALR0+1)}
v_mov_b32 {v(vALI)}, {v(vALI0)}
v_mov_b32 {v(vALI+1)}, {v(vALI0+1)}
v_lshl_or_b32 {v(vT2)}, {v(vHI)}, 12, {v(vEL)}
v_and_b32 {v(vT2)}, 0x10ff, {v(vT2)}
""")
p2, p3, e128 = 216, 218, 220
cmul_add(K, p2, eW[0], vL32, eW[1])
cmul_add(K, p3, p2, vL32, eW[2])
cmul_add(K, e128, p3, vL32, eW[3])
K(f"""
v_cndmask_b32 {v(e128)}, {v(e128)}, 0, {sHI}
v_cndmask_b32 {v(e128+1)}, {v(e128+1)}, 0, {sHI}
v_bfi_b32 {v(e128)}, {sFF}, {v(vTAG)}, {v(e128)}
buffer_store_dwordx2 {v(e128,2)}, {v(vT2)}, {SRD_WS}, {sEP} offen sc1
""")
pw, pb = 222, 224
K(f"""
v_cndmask_b32 {v(pw)}, 0, {v(eW[0])}, {sM1}
v_cndmask_b32 {v(pw+1)}, 0, {v(eW[0]+1)}, {sM1}
v_cndmask_b32 {v(pw)}, {v(pw)}, {v(p2)}, {sM2}
v_cndmask_b32 {v(pw+1)}, {v(pw+1)}, {v(p2+1)}, {sM2}
v_cndmask_b32 {v(pw)}, {v(pw)}, {v(p3)}, {sM3}
v_cndmask_b32 {v(pw+1)}, {v(pw+1)}, {v(p3+1)}, {sM3}
""")
cmul_add(K, pb, pw, vL16p, e16)
K(f"v_cndmask_b32 {v(vBER)}, {v(pw)}, {v(pb)}, {sHI}")
K(f"v_cndmask_b32 {v(vBEI)}, {v(pw+1)}, {v(pb+1)}, {sHI}")
K(f"""
v_fma_f32 {v(vBER+1)}, {v(vL8)}, {v(vBER)}, {v(eA)}
v_fma_f32 {v(vBEI+1)}, {v(vL8)}, {v(vBEI)}, {v(eA+1)}
v_fma_f32 {v(vBER+1)}, -{v(vL8+1)}, {v(vBEI)}, {v(vBER+1)}
v_fma_f32 {v(vBEI+1)}, {v(vL8+1)}, {v(vBER)}, {v(vBEI+1)}
""")
if OPT["osent"] and OPT["sentpos"] == 0:
    for i in range(4): K(f"v_mov_b32 {v(184+i)}, -1")
    for b in range(2): K(f"buffer_store_dwordx4 {v(184,4)}, {v(vL16)}, {SRD_WS}, {sOS} offen offset:{b*1024} sc1")
if OPT["wopf"]:
    K(f"""
    v_lshrrev_b32 {v(244)}, 1, {v(vL)}
    v_and_b32 {v(245)}, 1, {v(vL)}
    v_lshlrev_b32 {v(245)}, 6, {v(245)}
    s_lshl_b32 {sT2}, {sCT}, 7
    v_lshl_or_b32 {v(244)}, {v(244)}, 10, {v(245)}
    v_add_u32 {v(244)}, {sT2}, {v(244)}
    """)
    K.mark("wopf_ok")
K.extend(G3)
if OPT["strip"] > 1: K(f"s_and_b32 s30, {sTAG}, {sFF}")
K(f"""
s_lshl_b32 {sT2}, {sW}, 13
s_add_u32 {sT2}, {sT2}, {S1}
v_mul_u32_u24 {v(vT)}, 80, {v(vL)}
v_add_u32 {v(vPhW)}, {sT2}, {v(vT)}
s_add_u32 {sT3}, {sT2}, 5120
v_add_u32 {v(vVW)}, {sT3}, {v(vL16)}
s_add_u32 {sT2}, {sT2}, {0 if OPT["ord"] else S2 - S1}
v_and_b32 {v(vT)}, 31, {v(vL)}
v_mul_u32_u24 {v(vT)}, 80, {v(vT)}
v_lshl_add_u32 {v(vT)}, {v(vHI)}, 5, {v(vT)}
v_add_u32 {v(vHW)}, {sT2}, {v(vT)}
v_bfe_u32 {v(vT)}, {v(vL)}, 2, 2
v_lshl_or_b32 {v(vT)}, {v(vHI)}, 3, {v(vT)}
v_mul_u32_u24 {v(vT)}, 80, {v(vT)}
v_and_b32 {v(vT2)}, 63, {v(vTRq)}
v_add3_u32 {v(vHR)}, {sT2}, {v(vT)}, {v(vT2)}
v_bfe_u32 {v(vT)}, {v(vL)}, 2, 3
v_lshl_or_b32 {v(vT)}, {v(vHI)}, 4, {v(vT)}
v_mul_u32_u24 {v(vT)}, 80, {v(vT)}
v_and_b32 {v(vT2)}, 3, {v(vL)}
v_lshl_add_u32 {v(vT)}, {v(vT2)}, 3, {v(vT)}
s_and_b32 {sT0}, {sW}, 1
s_lshr_b32 {sT1}, {sW}, 1
s_mul_i32 {sT2}, {sT0}, 2560
s_lshl_b32 {sT3}, {sT1}, 5
s_add_u32 {sT2}, {sT2}, {sT3}
s_add_u32 {sT2}, {sT2}, {S1}
v_add_u32 {v(vPhR)}, {sT2}, {v(vT)}
v_and_b32 {v(vT)}, 15, {v(vL)}
v_bfe_u32 {v(vT2)}, {v(vL)}, 4, 1
v_lshl_or_b32 {v(vT)}, {v(vT2)}, 5, {v(vT)}
v_lshlrev_b32 {v(vT)}, 4, {v(vT)}
v_lshl_or_b32 {v(vT)}, {v(vHI)}, 10, {v(vT)}
s_lshl_b32 {sT2}, {sT0}, 8
s_add_u32 {sT2}, {sT2}, {S1 + 5120}
v_add_u32 {v(vVR)}, {sT2}, {v(vT)}
s_and_b32 {sT2}, {sRB}, 3
s_lshl_b32 {sT2}, {sT2}, 12
s_add_u32 s72, {sKV}, {sT2}
s_xor_b32 s73, s72, 4096
s_xor_b32 s74, s72, 8192
s_xor_b32 s75, s72, 12288
""")

def kv_reads(p, n):
    j, k = n >> 2, n & 3
    for m in range(2):
        for rd in range(2):
            off = (j >> 1)*16384 + k*4096 + (j & 1)*2048 + m*1024 + rd*256
            p(f"ds_read_b64_tr_b16 {v(vFR + (n&3)*8 + 4*m + 2*rd, 2)}, {v(vTRkv)} offset:{off}")
AH = 3
KV = Prog()
for n in range(AH): kv_reads(KV, n)
for n in range(32):
    xf = a(aXF + 4*n, 4)
    fr = vFR + (n & 3)*8
    KV(f"v_mfma_f32_32x32x16_bf16 {v(vKT,16)}, {v(fr,4)}, {xf}, {'0' if n == 0 else v(vKT,16)}")
    nn = n + AH
    if nn < 32 and nn % 8 == 0:
        KV.waitvm(f"w{nn//8}")
        KV("s_barrier")
        if nn == 8: KV.mark("xchdone")
    rr = Prog()
    if nn < 32: kv_reads(rr, nn)
    if OPT["ksp"]: KV.extend(rr.ins[:2]); rr.ins = rr.ins[2:]
    KV(f"v_mfma_f32_32x32x16_bf16 {v(vVV,16)}, {xf}, {v(fr+4,4)}, {'0' if n == 0 else v(vVV,16)}")
    KV.extend(rr)
    if n == OPT["epos"]: KV.mark("e_ok")
cnt = [0]
def kpred(c):
    if c.kind != "mfma": return False
    cnt[0] += 1
    return cnt[0] % 2 == 1
def weave_locked(mainp, side, pred, per):
    out = []; si = 0; S = side.ins
    for m in mainp.ins:
        out.append(m)
        if pred(m):
            k = per
            while k > 0 and si < len(S):
                if S[si].kind == "pseudo" and S[si].pseudo == "lock":
                    while not (S[si].kind == "pseudo" and S[si].pseudo == "unlock"):
                        out.append(S[si]); si += 1
                    out.append(S[si]); si += 1; k = 0
                else:
                    out.append(S[si])
                    if S[si].kind != "pseudo": k -= 1
                    si += 1
    out.extend(S[si:])
    p = Prog(); p.ins = out
    return p
E.extend(weave_locked(KV, K, ismf, 2) if OPT["ksp"] else weave_locked(KV, K, kpred, 4))
dump("kT", [v(vKT+i) for i in range(16)])
dump("v", [v(vVV+i) for i in range(16)])
stamp("kv done")

def softmax(p, src, dst, ap, am, mn, mid=None):
    for i in range(8):
        p(f"v_cvt_pk_bf16_f32 {v(am+i)}, {v(src+2*i)}, {v(src+2*i+1)}")
    p(f"v_mfma_f32_32x32x16_bf16 {v(ap,16)}, {v(vA1,4)}, {v(am,4)}, 0")
    p(f"v_mfma_f32_32x32x16_bf16 {v(ap,16)}, {v(vA2,4)}, {v(am+4,4)}, {v(ap,16)}")
    if mid is not None: p.extend(mid)
    for i in range(8):
        p(f"v_cvt_pk_bf16_f32 {v(am+i)}, {v(ap+2*i)}, {v(ap+2*i+1)}")
    for i in range(8):
        p(f"v_lshlrev_b32 {v(src+2*i)}, 16, {v(am+i)}")
        p(f"v_and_b32 {v(src+2*i+1)}, {sHM}, {v(am+i)}")
    p(f"v_max3_f32 {v(mn)}, {v(src)}, {v(src+1)}, {v(src+2)}")
    p(f"v_min3_f32 {v(mn+1)}, {v(src)}, {v(src+1)}, {v(src+2)}")
    for i in range(3, 15, 2):
        p(f"v_max3_f32 {v(mn)}, {v(mn)}, {v(src+i)}, {v(src+i+1)}")
        p(f"v_min3_f32 {v(mn+1)}, {v(mn+1)}, {v(src+i)}, {v(src+i+1)}")
    p(f"v_max_f32 {v(mn)}, {v(mn)}, {v(src+15)}")
    p(f"v_min_f32 {v(mn+1)}, {v(mn+1)}, {v(src+15)}")
    p(f"v_pk_mul_f32 {v(mn,2)}, {v(mn,2)}, {sL2E} neg_lo:[1,0]")
    for i in range(8):
        p(f"v_pk_fma_f32 {v(ap+2*i,2)}, {v(src+2*i,2)}, {sL2E}, {v(mn,2)} op_sel:[0,0,0] op_sel_hi:[1,1,0]")
        p(f"v_pk_fma_f32 {v(am+2*i,2)}, {v(src+2*i,2)}, {sL2E}, {v(mn,2)} op_sel:[0,0,1] op_sel_hi:[1,1,1] neg_lo:[1,0,0] neg_hi:[1,0,0]")
    for i in range(16):
        p(f"v_exp_f32 {v(ap+i)}, {v(ap+i)}")
        p(f"v_exp_f32 {v(am+i)}, {v(am+i)}")
    for i in range(4):
        p(f"v_pk_add_f32 {v(src+2*i,2)}, {v(ap+4*i,2)}, {v(ap+4*i+2,2)}")
        p(f"v_pk_add_f32 {v(src+8+2*i,2)}, {v(am+4*i,2)}, {v(am+4*i+2,2)}")
    for b in (0, 8):
        p(f"v_pk_add_f32 {v(src+b,2)}, {v(src+b,2)}, {v(src+b+2,2)}")
        p(f"v_pk_add_f32 {v(src+b+4,2)}, {v(src+b+4,2)}, {v(src+b+6,2)}")
    for b in (0, 8):
        p(f"v_pk_add_f32 {v(src+b,2)}, {v(src+b,2)}, {v(src+b+4,2)}")
    p(f"v_add_f32 {v(mn)}, {v(src)}, {v(src+1)}")
    p(f"v_add_f32 {v(mn+1)}, {v(src+8)}, {v(src+9)}")
    p(f"v_rcp_f32 {v(mn)}, {v(mn)}")
    p(f"v_rcp_f32 {v(mn+1)}, {v(mn+1)}")
    for i in range(8):
        p(f"v_pk_mul_f32 {v(ap+2*i,2)}, {v(ap+2*i,2)}, {v(mn,2)} {LO2}")
        p(f"v_pk_mul_f32 {v(am+2*i,2)}, {v(am+2*i,2)}, {v(mn,2)} {HI2}")
    for i in range(8):
        p(f"v_cvt_pk_bf16_f32 {v(dst+i)}, {v(ap+2*i)}, {v(ap+2*i+1)}")
    for i in range(8):
        p(f"v_cvt_pk_bf16_f32 {v(dst+8+i)}, {v(am+2*i)}, {v(am+2*i+1)}")

vVP = vFR
vPHK = 152
mid = Prog()
for i in range(8):
    mid(f"v_cvt_pk_bf16_f32 {v(vVP+i)}, {v(vVV+2*i)}, {v(vVV+2*i+1)}")
mid(f"ds_write_b128 {v(vVW)}, {v(vVP,4)}")
mid(f"ds_write_b128 {v(vVW)}, {v(vVP+4,4)} offset:1024")
ORD = OPT["ord"]
vKA, vKB, vONE, vKD, vZD = 96, 112, 172, 128, 132
def strip_check(p, regs):
    for r in regs: p(f"v_xor_b32 {v(r)}, s30, {v(r)}" if OPT["strip"] > 1 else f"v_bitop3_b32 {v(r)}, {v(r)}, {v(vTAG)}, {sFF} bitop3:0x78")
    p(f"v_or3_b32 {v(vT)}, {v(regs[0])}, {v(regs[1])}, {v(regs[2])}")
    rest = regs[3:]
    while len(rest) >= 2:
        p(f"v_or3_b32 {v(vT)}, {v(vT)}, {v(rest[0])}, {v(rest[1])}"); rest = rest[2:]
    if rest: p(f"v_bitop3_b32 {v(vT)}, {v(vT)}, {v(rest[0])}, {sFF} bitop3:0xa8")
    else: p(f"v_and_b32 {v(vT)}, {sFF}, {v(vT)}")
    p(f"v_cmp_ne_u32 vcc, 0, {v(vT)}")
def e_check(p): strip_check(p, [vEQ+2*k for k in range(8)])
def flag_store(p, base, tok):
    p.waitvm(tok)
    p.lock()
    p(f"""
    s_mov_b64 exec, 1
    v_mov_b32 {v(vT)}, {base}
    buffer_store_dword {v(vTAG)}, {v(vT)}, {SRD_WS}, {sFL} offen{LST}
    s_mov_b64 exec, -1
    """)
    p.ins[-2].lines = 1
    p.unlock()
hq = [240, 242]
CI = Prog()
cur = vEQ + 14
for k in range(6, -1, -1):
    cmul_add(CI, vEQ + 2*k, cur, vMU2, vEQ + 2*k)
    cur = vEQ + 2*k
CI(f"""
v_mov_b32 {v(hq[0])}, {v(cur)}
v_mov_b32 {v(hq[0]+1)}, {v(cur+1)}
{"" if ORD else "v_and_b32 %s, 0x30, %s" % (v(vT), v(vL))}
v_permlane32_swap_b32 {v(cur)}, {v(hq[0])}
v_permlane32_swap_b32 {v(cur+1)}, {v(hq[0]+1)}
""")
cmul_add(CI, cur, hq[0], vMU, cur)
S2P = Prog()
S2P(f"""
v_pk_fma_f32 {v(vBER,2)}, {v(vALR,2)}, {v(cur,2)}, {v(vBER,2)} {LO}
v_pk_fma_f32 {v(vBEI,2)}, {v(vALI,2)}, {v(cur,2)}, {v(vBEI,2)} {LO}
v_pk_fma_f32 {v(vBER,2)}, {v(vALI,2)}, {v(cur,2)}, {v(vBER,2)} {HI} {NEG1}
v_pk_fma_f32 {v(vBEI,2)}, {v(vALR,2)}, {v(cur,2)}, {v(vBEI,2)} {HI}
""")
hr, hi_ = vBER, vBEI
for m in range(8):
    r, i = vU_RE + 2*m, vU_IM + 2*m
    S2P(f"v_pk_fma_f32 {v(r,2)}, {v(hr,2)}, {v(vLAM,2)}, {v(r,2)} {LO}")
    S2P(f"v_pk_fma_f32 {v(i,2)}, {v(hi_,2)}, {v(vLAM,2)}, {v(i,2)} {LO}")
    S2P(f"v_pk_fma_f32 {v(r,2)}, {v(hi_,2)}, {v(vLAM,2)}, {v(r,2)} {HI} {NEG1}")
    S2P(f"v_pk_fma_f32 {v(i,2)}, {v(hr,2)}, {v(vLAM,2)}, {v(i,2)} {HI}")
    hr, hi_ = r, i
dump("h", [v(vU_RE+i) for i in range(32)], S2P)
vHP = 224
for par in range(2):
    for i in range(4):
        S2P(f"v_cvt_pk_bf16_f32 {v(vHP + 4*par + i)}, {v(vU_RE + 4*i + par)}, {v(vU_RE + 4*i + 2 + par)}")
S2P(f"ds_write_b128 {v(vHW)}, {v(vHP,4)}")
S2P(f"ds_write_b128 {v(vHW)}, {v(vHP+4,4)} offset:16")
for par in range(2):
    for i in range(4):
        S2P(f"v_cvt_pk_bf16_f32 {v(vHP + 8 + 4*par + i)}, -{v(vU_IM + 4*i + par)}, -{v(vU_IM + 4*i + 2 + par)}")
S2P(f"ds_write_b128 {v(vHW)}, {v(vHP+8,4)} offset:2560")
S2P(f"ds_write_b128 {v(vHW)}, {v(vHP+12,4)} offset:2576")
vHF = 240
HR = Prog()
for k in range(4):
    for rd in range(2):
        HR(f"ds_read_b64_tr_b16 {v(vHF + 4*k + 2*rd, 2)}, {v(vHR)} offset:{(16*k + 4*rd)*80}")
vQF = 208
def q_reads(p, n):
    j, k = n >> 2, n & 3
    for rd in range(2):
        off = (j >> 2)*16384 + k*4096 + (j & 3)*1024 + rd*256
        p(f"ds_read_b64_tr_b16 {v(vQF + (n%7)*4 + 2*rd, 2)}, {v(vTRq)} offset:{off}")
AHQ = 5
vSENT = 192 if ORD else 164
def h_store(p, n): p(f"buffer_store_dwordx4 {v(vHF+4*n,4)}, {v(vL16)}, {SRD_WS}, {sHS} offen offset:{n*1024}{LST}", tok="hst")
def s_store(p, n): p(f"buffer_store_dwordx4 {v(vSENT,4)}, {v(vL16)}, {SRD_WS}, {sOS} offen offset:{n*1024}{LST}", tok="hst")
SK = Prog()
softmax(SK, vKT, vPHK, 176, vQT, 168, mid)
dump("phik", [v(vPHK+i) for i in range(16)], SK)
for q in range(4):
    SK(f"ds_write_b128 {v(vPhW)}, {v(vPHK+4*q,4)} offset:{16*q}")
for i in range(4):
    SK(f"v_mov_b32 {v(vONE+i)}, 0x3f803f80")
if ORD:
    sk = list(SK.ins)
    E.extend(sk[:20]); sk = sk[20:]
    for i in range(4): E(f"v_mov_b32 {v(vSENT+i)}, -1")
    for n in range(2): s_store(E, n)
    E.waitvm("eld")
    spin("e", e_loads, e_check)
    stamp("e ok")
    E.extend(CI); E.extend(S2P)
    E.extend(sk[:OPT["sk1"]]); sk = sk[OPT["sk1"]:]
    E.extend(HR)
    E.extend(sk[:OPT["sk2"]]); sk = sk[OPT["sk2"]:]
    for n in range(4):
        h_store(E, n); E.extend(sk[:3]); sk = sk[3:]
    stamp("scan2")
    E.extend(sk)
    if OPT["fhq"] == -2: flag_store(E, W_FH, "hst")
else:
    E.extend(SK.ins[:OPT["glk"]])
    if HX: E.mark("gl_ok")
    E.extend(SK.ins[OPT["glk"]:])
    E.waitvm("eld")
    spin("e", e_loads, e_check)
E.waitlg(None)
stamp("softmax k")
E.waitvm("wq")
E("s_barrier")
for sw in range(4):
    for rd in range(2):
        E(f"ds_read_b64_tr_b16 {v(vKA + 4*sw + 2*rd, 2)}, {v(vPhR)} offset:{sw*8192 + rd*640}")
    E(f"ds_read_b128 {v(vKB + 4*sw, 4)}, {v(vVR)} offset:{sw*8192}")
KP = Prog()
for sw in range(4):
    KP(f"v_mfma_f32_16x16x32_bf16 {v(vKD,4)}, {v(vKA+4*sw,4)}, {v(vKB+4*sw,4)}, {'0' if sw == 0 else v(vKD,4)}")
    KP(f"v_mfma_f32_16x16x32_bf16 {v(vZD,4)}, {v(vKA+4*sw,4)}, {v(vONE,4)}, {'0' if sw == 0 else v(vZD,4)}")
if ORD:
    QR = Prog()
    QR(f"v_and_b32 {v(vT)}, 0x30, {v(vL)}")
    for n in range(AHQ): q_reads(QR, n)
    E.extend(weave(KP, QR.ins, every=1, per=2))
else:
    E.extend(CI.ins[:8])
    E.extend(weave(KP, CI.ins[8:], every=1, per=2))
if HX: E.drain("gg1")
E(f"""
v_bfi_b32 {v(vKD)}, {sFF}, {v(vTAG)}, {v(vKD)}
v_bfi_b32 {v(vZD)}, {sFF}, {v(vTAG)}, {v(vZD)}
buffer_store_dwordx4 {v(vKD,4)}, {v(vL16)}, {SRD_WS}, {sKVP} offen sc1
""")
E.lock()
E(f"""
s_mov_b32 exec_lo, 0x10001
s_mov_b32 exec_hi, 0x10001
buffer_store_dwordx4 {v(vZD,4)}, {v(vT)}, {SRD_WS}, {sZPP} offen sc1
s_mov_b64 exec, -1
""")
E.ins[-2].lines = 1
E.unlock()
if ORD and OPT["fhq"] == -1: flag_store(E, W_FH, "hst")
stamp("kvpub")
if not ORD:
    E.extend(S2P); E.extend(HR)
    if not HX or not OPT["hs"]:
        for i in range(4): E(f"v_mov_b32 {v(vSENT+i)}, -1")
    for n in range(AHQ): q_reads(E, n)
    stamp("scan2")
vQT2 = 176
Q = Prog()
for n in range(32):
    Q(f"v_mfma_f32_32x32x16_bf16 {v(vQT2,16)}, {v(vQF + (n%7)*4,4)}, {a(aXF + 4*n, 4)}, {'0' if n == 0 else v(vQT2,16)}")
    if n == OPT["gpos"] and OPT["gp2"] < 0: Q.mark("gather_ok")
    if n + AHQ < 32: q_reads(Q, n + AHQ)
    if not ORD:
        if n < 4: h_store(Q, n)
        if 4 <= n < 6 and not (HX and OPT["hs"]): s_store(Q, n - 4)
        if n == OPT["fhst"] and not HX: flag_store(Q, W_FH, "hst")
    else:
        if n == OPT["fhq"]: flag_store(Q, W_FH, "hst")
        if n == OPT["flp"]: Q.mark("fh_ld")
vTW, vTZ, vTZ2, vTN, vTD, vOA = 8, 9, 20, 21, 0, 34
vQT_ = 47
QF = Prog()
QF(f"""
s_and_b32 {sT0}, {sW}, 1
v_and_b32 {v(vQT_)}, 31, {v(vL)}
s_lshl_b32 {sT2}, {sCT}, 7
s_lshl_b32 {sT3}, {sT0}, 6
s_add_u32 {sT2}, {sT2}, {sT3}
""")
if TL:
    QF(f"""
    v_and_b32 {v(vDA)}, 7, {v(vL)}
    v_lshl_add_u32 {v(vDA)}, {v(vDA)}, 3, {sT2}
    s_lshl_b32 {sT3}, {sRA0}, 5
    v_lshrrev_b32 {v(vOUT)}, 3, {v(vL)}
    v_add_u32 {v(vOUT)}, {sT3}, {v(vOUT)}
    v_lshl_add_u32 {v(vOUT)}, {v(vOUT)}, 10, {v(vDA)}
    s_mov_b32 s78, 8192
    s_mov_b32 s79, 16384
    s_mov_b32 s80, 24576
    """)
else:
    QF(f"""
    v_lshl_add_u32 {v(vDA)}, {v(vHI)}, 3, {sT2}
    s_lshl_b32 {sT3}, {sRA0}, 5
    v_add_u32 {v(vOUT)}, {sT3}, {v(vQT_)}
    v_lshl_add_u32 {v(vOUT)}, {v(vOUT)}, 10, {v(vDA)}
    """)
QF.mark("xd_ok")
def gg_check(p):
    g_ = vG2 if HX else vGv
    p(f"v_xor_b32 {v(vT)}, {v(vTAG)}, {v(g_[0])}")
    p(f"v_bitop3_b32 {v(vT)}, {v(g_[1])}, {v(vTAG)}, {v(vT)} bitop3:0xbe")
    p(f"v_and_b32 {v(vT)}, {sFFFF}, {v(vT)}")
    p(f"v_cmp_ne_u32 vcc, 0, {v(vT)}")
if HX:
    spin("g", gg_load, gg_check, p=QF)
    for ra in range(2): QF(f"v_mov_b32 {v(vGv[ra])}, {v(vG2[ra])}")
else:
    QF(f"""
    s_lshl_b32 {sT2}, {sRA0}, 7
    s_add_u32 {sT2}, {sT2}, {W_G}
    v_lshl_add_u32 {v(vGL[0])}, {v(vQT_)}, 2, {sT2}
    v_xor_b32 {v(vGL[1])}, 128, {v(vGL[0])}
    """)
    QF.mark("gl_ok")
QF(f"""
s_lshr_b32 {sT1}, {sW}, 1
s_mul_i32 {sT2}, {sT0}, 1280
s_lshl_b32 {sT3}, {sT1}, 5
s_add_u32 {sT2}, {sT2}, {sT3}
s_add_u32 {sT2}, {sT2}, {TAB}
v_and_b32 {v(vTZ2)}, 15, {v(vL)}
v_mul_u32_u24 {v(vTW)}, 80, {v(vTZ2)}
v_lshrrev_b32 {v(vT2)}, 4, {v(vL)}
v_lshl_add_u32 {v(vTW)}, {v(vT2)}, 3, {v(vTW)}
v_add_u32 {v(vTW)}, {sT2}, {v(vTW)}
s_mul_i32 {sT2}, {sT0}, 80
s_add_u32 {sT2}, {sT2}, {sT3}
s_add_u32 {sT2}, {sT2}, {TAB + 32*80}
v_and_b32 {v(vTN)}, 3, {v(vL)}
v_lshlrev_b32 {v(vTZ)}, 3, {v(vTN)}
v_bfe_u32 {v(vT2)}, {v(vL)}, 4, 1
v_lshl_or_b32 {v(vTZ)}, {v(vT2)}, 2, {v(vTZ)}
v_lshl_or_b32 {v(vTZ)}, {v(vHI)}, 1, {v(vTZ)}
v_add_u32 {v(vTZ)}, {sT2}, {v(vTZ)}
v_lshlrev_b32 {v(vTZ2)}, 2, {v(vTZ2)}
v_add_u32 {v(vTZ2)}, {TAB + 34*80}, {v(vTZ2)}
v_bfe_u32 {v(vOA)}, {v(vL)}, 3, 2
v_lshl_add_u32 {v(vTN)}, {v(vOA)}, 2, {v(vTN)}
v_lshl_add_u32 {v(vTN)}, {v(vHI)}, 4, {v(vTN)}
v_mul_u32_u24 {v(vTN)}, 80, {v(vTN)}
v_add_u32 {v(vTN)}, {TAB}, {v(vTN)}
v_mul_u32_u24 {v(vTD)}, 80, {v(vHI)}
v_add_u32 {v(vTD)}, {TAB + 32*80}, {v(vTD)}
v_mov_b32 {v(vT2)}, {TAB + 34*80}
s_mov_b32 s76, 0xf0f0f0f0
s_mov_b32 s77, 0x0f0f0f0f
v_cndmask_b32 {v(vTN)}, {v(vTN)}, {v(vT2)}, s[76:77]
v_cndmask_b32 {v(vTD)}, {v(vTD)}, {v(vT2)}, s[76:77]
v_bfe_u32 {v(vT2)}, {v(vL)}, 1, 1
v_lshl_or_b32 {v(vOA)}, {v(vOA)}, 1, {v(vT2)}
v_and_b32 {v(vT2)}, 1, {v(vL)}
v_lshl_or_b32 {v(vOA)}, {v(vT2)}, 3, {v(vOA)}
v_bfe_u32 {v(vT2)}, {v(vL)}, 2, 1
v_lshl_or_b32 {v(vOA)}, {v(vT2)}, 4, {v(vOA)}
v_lshl_or_b32 {v(vOA)}, {v(vHI)}, 5, {v(vOA)}
v_lshlrev_b32 {v(vOA)}, 4, {v(vOA)}
s_lshr_b32 {sT2}, {sRA0}, 3
s_lshl_b32 {sT2}, {sT2}, 19
s_and_b32 {sT3}, {sRA0}, 7
s_lshl_b32 {sT3}, {sT3}, 12
s_add_u32 {sT2}, {sT2}, {sT3}
s_add_u32 {sT2}, {sT2}, {W_H}
""")
if OPT["crot"]:
    QF(f"""
    s_lshr_b32 {sT3}, {sCT}, 2
    s_add_u32 {sT3}, {sT3}, {sCT}
    s_add_u32 {sT3}, {sT3}, {sCG}
    s_and_b32 {sT3}, {sT3}, 1
    s_lshl_b32 {sT3}, {sT3}, 11
    s_add_u32 {sT2}, {sT2}, {sT3}
    """)
QF(f"""
v_add_u32 {v(vAH[0])}, {sT2}, {v(vL16)}
v_xor_b32 {v(vAH[1])}, 4096, {v(vAH[0])}
{"v_xor_b32 %s, 2048, %s" % (v(vAH2[0]), v(vAH[0])) if OPT["crot"] else ""}
{"v_xor_b32 %s, 2048, %s" % (v(vAH2[1]), v(vAH[1])) if OPT["crot"] else ""}
s_lshr_b32 {sT2}, {sRA0}, 4
s_lshl_b32 {sT2}, {sT2}, 19
s_and_b32 {sT3}, {sRA0}, 15
s_lshl_b32 {sT3}, {sT3}, 11
s_add_u32 {sT2}, {sT2}, {sT3}
s_add_u32 {sT2}, {sT2}, {W_O}
v_add_u32 {v(vAO[0])}, {sT2}, {v(vL16)}
v_xor_b32 {v(vAO[1])}, 2048, {v(vAO[0])}
""")
E.extend(weave_locked(Q, QF, ismf, 2))
dump("qT", [v(vQT2+i) for i in range(16)])
stamp("q done")
if HX: E.mark("fh_ok")
if OPT["gpos"] >= 32 and OPT["gp2"] < 0: E.mark("gather_ok")

vPQ = 224
SQ = Prog()
softmax(SQ, vQT2, vPQ, vU_RE, vU_IM, 164)
def fh_load(p): p(FH_LOAD)
def fl_check(p): p(f"v_cmp_ne_u32 vcc, {sTAG}, {v(vFLG)}")
def fh_check():
    E.drain("fhl")
    spin("fh", fh_load, fl_check)
    E.mark("fh_ok")
if ORD:
    ev = []
    if OPT["flp"] >= 32: ev.append(((OPT["flp"] - 32) * 10, 0, lambda: E.mark("fh_ld")))
    if OPT["gp2"] >= 0: ev.append((OPT["gp2"] * 10, 1, lambda: E.mark("gather_ok")))
    if OPT["fcp"] < 99: ev.append((OPT["fcp"] * 10, 2, fh_check))
    pos = 0
    for at, _, fn in sorted(ev, key=lambda x: x[:2]):
        at = min(at, len(SQ.ins))
        E.extend(SQ.ins[pos:at]); pos = at; fn()
    E.extend(SQ.ins[pos:])
else:
    cut = min(len(SQ.ins), OPT["fold"] * 10)
    E.extend(SQ.ins[:cut]); E.mark("fh_ld"); E.extend(SQ.ins[cut:])
dump("phiq", [v(vPQ+i) for i in range(16)])
stamp("softmax q")
tX, tDk = 208, 176
if not TL:
    E.drain("dk3")
    for i in range(8):
        E(f"v_lshlrev_b32 {v(tX+2*i)}, 16, {v(vXD+i)}")
        E(f"v_and_b32 {v(tX+2*i+1)}, {sHM}, {v(vXD+i)}")
        E(f"v_lshlrev_b32 {v(tDk+2*i)}, 16, {v(vDK+i)}")
        E(f"v_and_b32 {v(tDk+2*i+1)}, {sHM}, {v(vDK+i)}")
    for i in range(8):
        E(f"v_pk_mul_f32 {v(tX+2*i,2)}, {v(tX+2*i,2)}, {v(tDk+2*i,2)}")
    for i in range(8):
        E(f"v_cvt_pk_bf16_f32 {v(tDk+i)}, {v(tX+2*i)}, {v(tX+2*i+1)}")
    for i in range(8):
        E(f"v_lshlrev_b32 {v(vACC+2*i)}, 16, {v(tDk+i)}")
        E(f"v_and_b32 {v(vACC+2*i+1)}, {sHM}, {v(tDk+i)}")
    for i in range(8):
        E(f"v_pk_mul_f32 {v(vACC+2*i,2)}, {v(vACC+2*i,2)}, 0.5 op_sel_hi:[1,0]")
    E(f"v_lshlrev_b32 {v(vOUT)}, 1, {v(vOUT)}")

def g_check(p):
    if OPT["strip"]: return strip_check(p, [vGZ] + [vGA+4*r for r in range(16)])
    p(f"v_xor_b32 {v(vT)}, {v(vTAG)}, {v(vGZ)}")
    for r in range(16):
        p(f"v_bitop3_b32 {v(vT)}, {v(vGA+4*r)}, {v(vTAG)}, {v(vT)} bitop3:0xbe")
    p(f"v_and_b32 {v(vT)}, {sFF}, {v(vT)}")
    p(f"v_cmp_ne_u32 vcc, 0, {v(vT)}")
late_fh = (not ORD or OPT["fcp"] >= 99) and not HX
if late_fh: E.drain("fhl")
HN = [f"h{c}{k}{ra}" for c in range(4) for k in range(4) for ra in range(2)]
if HX and OPT["hd1"]: E.drain(HN[OPT["hd1"] - 1])
E.waitvm("gld")
spin("kv", gather_loads, g_check)
if late_fh: fh_check()
stamp("gather ok")
if not OPT["osent"]: E(f"v_add_u32 {v(vFLA)}, {W_FO - W_FH}, {v(vFLA)}")
st = 32
while st >= 4:
    for b in range(0, st, 4):
        for h in range(2):
            E(f"v_pk_add_f32 {v(vGA+b+2*h,2)}, {v(vGA+b+2*h,2)}, {v(vGA+b+st+2*h,2)}")
    st //= 2
E(f"""
v_permlane32_swap_b32 {v(vGZ)}, {v(vGZ+1)}
v_permlane32_swap_b32 {v(vGZ+2)}, {v(vGZ+3)}
v_cvt_pk_bf16_f32 {v(vGA)}, {v(vGA)}, {v(vGA+1)}
v_cvt_pk_bf16_f32 {v(vGA+1)}, {v(vGA+2)}, {v(vGA+3)}
v_add_f32 {v(vGZ)}, {v(vGZ)}, {v(vGZ+1)}
v_add_f32 {v(vGZ+2)}, {v(vGZ+2)}, {v(vGZ+3)}
ds_write_b64 {v(vTW)}, {v(vGA,2)}
v_mov_b32 {v(vGZ+1)}, 0
v_permlane16_swap_b32 {v(vGZ)}, {v(vGZ+2)}
v_add_f32 {v(vGZ)}, {v(vGZ)}, {v(vGZ+2)}
ds_write_b32 {v(vTZ2)}, {v(vGZ+1)}
v_add_f32_dpp {v(vGZ)}, {v(vGZ)}, {v(vGZ)} row_ror:8 row_mask:0xf bank_mask:0xf
v_add_f32_dpp {v(vGZ)}, {v(vGZ)}, {v(vGZ)} row_ror:4 row_mask:0xf bank_mask:0xf
v_cvt_pk_bf16_f32 {v(vGZ)}, {v(vGZ)}, {v(vGZ)}
ds_write_b16 {v(vTZ)}, {v(vGZ)}
""")
if not HX: spin("g", gg_load, gg_check)
if HX and OPT["hd2"]: E.drain(HN[OPT["hd2"] - 1])
E.waitlg(None)
E("s_barrier")
vTA, vTB, vNUM, vDEN = 104, 120, 136, 152
for s_ in range(4):
    E(f"ds_read_b128 {v(vTB+4*s_,4)}, {v(vTD)} offset:{16*s_}")
for s_ in range(4):
    E(f"ds_read_b128 {v(vTA+4*s_,4)}, {v(vTN)} offset:{16*s_}")
GR = Prog()
for ra in range(2):
    g_, r_ = vGv[ra], vRT[ra]
    GR(f"""
    v_and_b32 {v(g_)}, {sHM}, {v(g_)}
    v_sub_f32 {v(r_)}, 1.0, {v(g_)}
    v_max_f32 {v(g_)}, 0x0da24260, {v(g_)}
    v_cvt_pk_bf16_f32 {v(r_)}, {v(r_)}, {v(r_)}
    v_rcp_f32 {v(r_+1)}, {v(g_)}
    v_and_b32 {v(r_)}, {sHM}, {v(r_)}
    v_add_f32 {v(r_)}, {v(r_)}, {v(r_)}
    v_mul_f32 {v(r_)}, {v(r_)}, {v(r_+1)}
    """)
E.extend(GR.ins[:8])
DN = Prog()
for s_ in range(4):
    DN(f"v_mfma_f32_32x32x16_bf16 {v(vDEN,16)}, {v(vTB+4*s_,4)}, {v(vPQ+4*s_,4)}, {'0' if s_ == 0 else v(vDEN,16)}")
for s_ in range(4):
    DN(f"v_mfma_f32_32x32x16_bf16 {v(vNUM,16)}, {v(vTA+4*s_,4)}, {v(vPQ+4*s_,4)}, {'0' if s_ == 0 else v(vNUM,16)}")
vHC = [10, 12, 13]
def h_reload(c):
    def f(p):
        for k in range(4):
            for ra in range(2): p(h_ld(c, k, ra))
    return f
def h_check(c):
    def f(p):
        r = [aXF + ((c*4+k)*2+ra)*4 for k in range(4) for ra in range(2)]
        for i in range(3): p(f"v_accvgpr_read_b32 {v(vHC[i])}, {a(r[i])}")
        p(f"v_max3_u32 {v(vHC[0])}, {v(vHC[0])}, {v(vHC[1])}, {v(vHC[2])}")
        for i in (3, 5):
            for j in range(2): p(f"v_accvgpr_read_b32 {v(vHC[1+j])}, {a(r[i+j])}")
            p(f"v_max3_u32 {v(vHC[0])}, {v(vHC[0])}, {v(vHC[1])}, {v(vHC[2])}")
        p(f"v_accvgpr_read_b32 {v(vHC[1])}, {a(r[7])}")
        p(f"v_max_u32 {v(vHC[0])}, {v(vHC[0])}, {v(vHC[1])}")
        p(f"v_cmp_eq_u32 vcc, -1, {v(vHC[0])}")
    return f
def h_ck(c):
    p = Prog(); p.drain(f"h{c}31")
    spin(f"h{c}", h_reload(c), h_check(c), p=p)
    return list(p.ins)
E.extend(weave(DN, GR.ins[8:] + (h_ck(0) if HX == 2 else []), every=1, per=4))
E.drainaux(8)
E(f"""
v_cvt_pk_bf16_f32 {v(vDEN)}, {v(vDEN)}, {v(vDEN)}
v_and_b32 {v(vDEN)}, {sHM}, {v(vDEN)}
v_add_f32 {v(vDEN)}, 0x358637bd, {v(vDEN)}
v_cvt_pk_bf16_f32 {v(vDEN)}, {v(vDEN)}, {v(vDEN)}
v_and_b32 {v(vDEN)}, {sHM}, {v(vDEN)}
v_rcp_f32 {v(vDEN)}, {v(vDEN)}
""")
for i in range(8):
    E(f"v_cvt_pk_bf16_f32 {v(vTA+i)}, {v(vNUM+2*i)}, {v(vNUM+2*i+1)}")
for i in range(8):
    E(f"v_lshlrev_b32 {v(vNUM+2*i)}, 16, {v(vTA+i)}")
    E(f"v_and_b32 {v(vNUM+2*i+1)}, {sHM}, {v(vTA+i)}")
for i in range(8):
    E(f"v_pk_mul_f32 {v(vNUM+2*i,2)}, {v(vNUM+2*i,2)}, {v(vDEN,2)} {LO2}")
for i in range(8):
    E(f"v_cvt_pk_bf16_f32 {v(vTA+i)}, {v(vNUM+2*i)}, {v(vNUM+2*i+1)}")
for b in range(2):
    E(f"buffer_store_dwordx4 {v(vTA+4*b,4)}, {v(vOA)}, {SRD_WS}, {sOS} offen offset:{b*1024}{LST}", tok="ost")
dump("o", [v(vTA+i) for i in range(8)])
stamp("o stored")
if HX and OPT["hd3"]: E.drain(HN[OPT["hd3"] - 1])

def acc(ra, nb): return v(vACC + (ra*2+nb)*16, 16)
def hm(p, c, k, ra, nb):
    first = (c == 0 and k == 0 and ((ra, nb) != (0, 0) or TL))
    p(f"v_mfma_f32_32x32x16_bf16 {acc(ra,nb)}, {a(aCF + ((c*4+k)*2+nb)*4, 4)}, {a(aXF + ((c*4+k)*2+ra)*4, 4)}, {'0' if first else acc(ra,nb)}")
def fo_load(p): p(FH_LOAD)
vRW = [23, 24, 25]; vRR = 10
RA = Prog()
XD = Prog()
vXR_ = [48, 50, 52, 54, 56, 58, 16, 18]
vGQ = [8, 20]; vRQ = [38, 46]; vDU = 22
vWA = [14, 15, 22, 23]; vRA = [26, 27, 28, 29]
if TL:
    XD(f"v_lshrrev_b32 {v(vT2)}, 3, {v(vL)}")
    XD(f"v_lshlrev_b32 {v(vT2)}, 2, {v(vT2)}")
    for q in range(4): XD(f"ds_bpermute_b32 {v(vGQ[q>>1] + (q&1))}, {v(vT2)}, {v(vGv[0])} offset:{32*q}")
    XD.waitvm("xdl")
    for i in range(2):
        XD(f"v_lshlrev_b32 {v(vDU+2*i)}, 16, {v(vDK2+i)}")
        XD(f"v_and_b32 {v(vDU+2*i+1)}, {sHM}, {v(vDK2+i)}")
    for j in range(8):
        XD(f"v_lshlrev_b32 {v(vXR_[j])}, 16, {v(vXD2+j)}")
        XD(f"v_and_b32 {v(vXR_[j]+1)}, {sHM}, {v(vXD2+j)}")
    for j in range(8):
        for h in range(2): XD(f"v_mul_f32 {v(vXR_[j]+h)}, {v(vXR_[j]+h)}, {v(vDU+2*(j&1)+h)}")
    for j in range(8): XD(f"v_cvt_pk_bf16_f32 {v(vXD2+j)}, {v(vXR_[j])}, {v(vXR_[j]+1)}")
    for q in range(4):
        r_ = vRQ[q>>1] + (q&1)
        XD(f"v_sub_f32 {v(r_)}, 1.0, {v(vGQ[q>>1] + (q&1))}")
    for q in range(4):
        r_ = vRQ[q>>1] + (q&1)
        XD(f"v_cvt_pk_bf16_f32 {v(r_)}, {v(r_)}, {v(r_)}")
    for q in range(4):
        r_ = vRQ[q>>1] + (q&1)
        XD(f"v_and_b32 {v(r_)}, {sHM}, {v(r_)}")
    for j in range(8):
        XD(f"v_lshlrev_b32 {v(vXR_[j])}, 16, {v(vXD2+j)}")
        XD(f"v_and_b32 {v(vXR_[j]+1)}, {sHM}, {v(vXD2+j)}")
    for j in range(8):
        q = j >> 1
        for h in range(2): XD(f"v_mul_f32 {v(vXR_[j]+h)}, {v(vXR_[j]+h)}, {v(vRQ[q>>1] + (q&1))}")
    WAP = Prog(); RAP = Prog()
    WAP(f"""
    s_lshl_b32 {sT2}, {sW}, 12
    v_and_b32 {v(vT2)}, 7, {v(vL)}
    v_xor_b32 {v(vWA[0])}, {v(vT2)}, {v(vHI)}
    v_and_b32 {v(vWA[1])}, 31, {v(vL)}
    v_lshl_add_u32 {v(vWA[1])}, {v(vWA[1])}, 7, {sT2}
    v_lshl_or_b32 {v(vWA[0])}, {v(vWA[0])}, 4, {v(vWA[1])}
    v_xor_b32 {v(vWA[1])}, 32, {v(vWA[0])}
    v_xor_b32 {v(vWA[2])}, 64, {v(vWA[0])}
    v_xor_b32 {v(vWA[3])}, 0x60, {v(vWA[0])}
    """)
    RAP(f"""
    v_lshrrev_b32 {v(vRA[2])}, 3, {v(vL)}
    v_xor_b32 {v(vT2)}, {v(vT2)}, {v(vRA[2])}
    v_lshl_add_u32 {v(vRA[1])}, {v(vRA[2])}, 7, {sT2}
    v_lshl_or_b32 {v(vRA[0])}, {v(vT2)}, 4, {v(vRA[1])}
    v_xor_b32 {v(vRA[1])}, 4096, {v(vRA[0])}
    v_xor_b32 {v(vRA[2])}, 8192, {v(vRA[0])}
    v_xor_b32 {v(vRA[3])}, 12288, {v(vRA[0])}
    v_lshlrev_b32 {v(vOUT)}, 1, {v(vOUT)}
    s_mov_b32 s81, 32768
    s_mov_b32 s82, 49152
    s_or_b32 {sT3}, s2, {sW}
    v_mov_b32 {v(vT)}, {W_EPOCH}
    """)
else:
    for a_ in range(1, 4):
        RA(f"s_xor_b32 {sT2}, {sW}, {a_}")
        RA(f"s_mul_i32 {sT2}, {sT2}, 12288")
        RA(f"s_add_u32 {sT2}, {sT2}, {(a_-1)*4096}")
        RA(f"v_add_u32 {v(vRW[a_-1])}, {sT2}, {v(vL16)}")
    RA(f"s_mul_i32 {sT2}, {sW}, 12288")
    RA(f"v_add_u32 {v(vRR)}, {sT2}, {v(vL16)}")
xd_left = list(XD.ins)
def scale(ra, nb):
    p = Prog()
    for i in range(16):
        r = vACC + (ra*2+nb)*16 + i
        p(f"v_mul_f32 {v(r)}, {v(vRT[ra])}, {v(r)}")
    return p
hseq = [(c, k, ra, nb) for c in range(3) for k in range(4) for ra in range(2) for nb in range(2)]
accs = [(0, 0), (0, 1), (1, 0), (1, 1)]
hseq += [(3, k, ra, nb) for ra, nb in accs for k in range(4)]
sc_left = []; hc_left = []
for n_, (c, k, ra, nb) in enumerate(hseq):
    if OPT["osent"]:
        if n_ == OPT["old"]: E.mark("fo_ok"); stamp("o ld")
    else:
        if n_ == OPT["fost"]:
            flag_store(E, W_FO, "ost"); stamp("fo flag")
        if n_ == OPT["fost"] + OPT["fogap"]:
            fo_load(E); E.ins[-1].lat = OPT["lm"]; E.ins[-1].lines = 1
        if n_ == OPT["fochk"]:
            spin("fo", fo_load, fl_check); E.mark("fo_ok"); stamp("fo ok")
    E.drain(f"h{c}{k}{ra}")
    hm(E, c, k, ra, nb)
    if HX == 2 and n_ < 48:
        if n_ % 16 == OPT["hck"]: hc_left = h_ck(n_ // 16 + 1)
        k_ = OPT["hcper"] if n_ % 16 < 15 else 1000
        while hc_left and k_ > 0:
            c_ = hc_left.pop(0); E.ins.append(c_)
            if c_.kind not in ("pseudo", "label"): k_ -= 1
    if n_ >= OPT["xdpos"]:
        k_ = OPT["xdper"] if n_ < 55 else 1000
        while xd_left and k_ > 0:
            c_ = xd_left.pop(0); E.ins.append(c_)
            if c_.kind != "pseudo": k_ -= 1
    if n_ >= 56:
        if n_ % 4 == 0: sc_left = scale(*accs[(n_ - 56) // 4]).ins
        E.extend(sc_left[:4]); sc_left = sc_left[4:]
if OPT["osent"] and OPT["old"] == 64: E.mark("fo_ok"); stamp("o ld")
if OPT["fochk"] == 64 and not OPT["osent"]:
    spin("fo", fo_load, fl_check); E.mark("fo_ok"); stamp("fo ok")
def om(p, c, b, ra, nb):
    p(f"v_mfma_f32_32x32x16_bf16 {acc(ra,nb)}, {v(vWOFR + ((c*2+b)*2+nb)*4, 4)}, {v(vOF + ((c*2+b)*2+ra)*4, 4)}, {acc(ra,nb)}")
stamp("h done")
E.drainaux()
E.extend(RA)
def o_reload(h):
    def f(p):
        for x in o_order[8*h:8*h+8]: p(o_ld(*x))
    return f
def o_check(h):
    def f(p):
        r = [vOF + ((c*2+b)*2+ra)*4 for c, b, ra in o_order[8*h:8*h+8]]
        p(f"v_max3_u32 {v(vT)}, {v(r[0])}, {v(r[1])}, {v(r[2])}")
        p(f"v_max3_u32 {v(vT)}, {v(vT)}, {v(r[3])}, {v(r[4])}")
        p(f"v_max3_u32 {v(vT)}, {v(vT)}, {v(r[5])}, {v(r[6])}")
        p(f"v_max_u32 {v(vT)}, {v(vT)}, {v(r[7])}")
        p(f"v_cmp_eq_u32 vcc, -1, {v(vT)}")
    return f
if OPT["osent"]:
    E.drain("o%d%d%d" % o_order[7])
    spin("o1", o_reload(0), o_check(0)); stamp("o1 ok")
for g_ in range(4):
    p = Prog()
    for c, b, ra in o_order[2*g_:2*g_+2]:
        p.drain(f"o{c}{b}{ra}")
        for nb in range(2): om(p, c, b, ra, nb)
    if g_ < 2: E.extend(weave(p, scale(*accs[2+g_]), pred=ismf, per=4))
    elif g_ == 3 and OPT["osent"]:
        E.drain("o%d%d%d" % o_order[15])
        ck = Prog(); o_check(1)(ck)
        E.extend(weave(p, ck, pred=ismf, per=2))
        spin("o2", o_reload(1), o_check(1), emit=False)
    else: E.extend(p)
def wr(a_):
    p = Prog()
    for q in range(4):
        if TL: p(f"ds_write_b128 {v(vWA[q])}, {v(vACC + 16*a_ + 4*q, 4)} offset:{a_*16384}")
        else: p(f"ds_write_b128 {v(vRW[a_-1])}, {v(vACC + 16*a_ + 4*q, 4)} offset:{q*1024}")
    return p
E.drain("o311")
tail = [(1, 0), (1, 1), (0, 1), (0, 0)]
for n_, (ra, nb) in enumerate(tail):
    if n_ == 2: E.drain("o310")
    p = Prog()
    for c in (2, 3):
        for b in range(2): om(p, c, b, ra, nb)
    if TL:
        W_ = lambda k: wr(tail[k][0]*2 + tail[k][1]).ins
        if n_ == 0: E.extend(p)
        elif n_ == 1: E.extend(weave(p, WAP, pred=ismf, per=3))
        elif n_ == 2: E.extend(weave(p, W_(0), pred=ismf, per=1))
        else:
            m_ = p.ins; R_ = RAP.ins; wb = W_(1); wc = W_(2)
            E.extend(m_[:1] + R_[:3] + wb[:2] + m_[1:2] + wb[2:] + m_[2:3] + R_[3:5] + wc[:2] + m_[3:] + wc[2:] + R_[5:])
    elif n_ < 2: E.extend(p)
    else:
        pa = tail[n_-2]
        E.extend(weave(p, wr(pa[0]*2 + pa[1]), pred=ismf, per=1))
E.extend(wr(0 if TL else 1))
stamp("o done")
E.waitlg(None)
E("s_barrier")
OSC = ["", " sc1", " nt", " sc0 sc1"][OPT["outsc"]]
if TL:
    for q in range(4):
        for a_ in range(4):
            E(f"ds_read_b128 {v(128 + 16*q + 4*a_, 4)}, {v(vRA[a_])} offset:{a_*16384 + q*1024}")
    for q in range(4):
        b_ = 128 + 16*q
        for i in range(2):
            E(f"v_pk_add_f32 {v(b_+2*i,2)}, {v(b_+2*i,2)}, {v(b_+4+2*i,2)}")
            E(f"v_pk_add_f32 {v(b_+8+2*i,2)}, {v(b_+8+2*i,2)}, {v(b_+12+2*i,2)}")
        for i in range(2):
            E(f"v_pk_add_f32 {v(b_+2*i,2)}, {v(b_+2*i,2)}, {v(b_+8+2*i,2)}")
        for i in range(2):
            E(f"v_pk_fma_f32 {v(b_+2*i,2)}, {v(b_+2*i,2)}, {v(vGQ[q>>1],2)}, {v(vXR_[2*q+i],2)} {HI if q & 1 else LO}")
        E(f"buffer_store_dwordx4 {v(b_,4)}, {v(vOUT)}, {SRD_OUT}, {sQ16[q]} offen" + OSC)
else:
  for a_ in range(3):
    for q in range(4):
        E(f"ds_read_b128 {v(128 + 16*a_ + 4*q, 4)}, {v(vRR)} offset:{a_*4096 + q*1024}")
  for q in range(4):
    for a_ in range(3):
        for i in range(2):
            E(f"v_pk_add_f32 {v(vACC+4*q+2*i,2)}, {v(vACC+4*q+2*i,2)}, {v(128+16*a_+4*q+2*i,2)}")
    for i in range(2):
        E(f"v_pk_mul_f32 {v(vACC+4*q+2*i,2)}, {v(vACC+4*q+2*i,2)}, {v(vGv[0],2)} {LO2}")
    E(f"buffer_store_dwordx4 {v(vACC+4*q,4)}, {v(vOUT)}, {SRD_OUT}, 0 offen offset:{32*q}" + OSC)
if STAMPS:
    E.waitvm(None)
    stamp("end")
    E(f"""
    s_lshl_b32 {sT2}, s2, 11
    s_lshl_b32 {sT3}, {sW}, 9
    s_add_u32 {sT2}, {sT2}, {sT3}
    s_add_u32 {sT2}, {sT2}, {W_ST}
    v_lshlrev_b32 {v(vT)}, 3, {v(vL)}
    v_mov_b32 {v(100)}, {v(vDBG)}
    v_mov_b32 {v(101)}, 0
    buffer_store_dwordx2 {v(100,2)}, {v(vT)}, {SRD_WS}, {sT2} offen
    """)
if STAMPS or not TL:
    E(f"s_or_b32 {sT3}, s2, {sW}")
    E(f"v_mov_b32 {v(vT)}, {W_EPOCH}")
E(f"""
s_cmp_lg_u32 {sT3}, 0
s_cbranch_scc1 L_end
s_mov_b64 exec, 1
buffer_store_dword {v(vTAG)}, {v(vT)}, {SRD_WS}, 0 offen sc1
L_end:
s_endpgm
""")

for c in [c for c in main.ins if c.kind == "label" and c.text.startswith("L_back_")]:
    main.ins.remove(c)
    k = [i for i, b in enumerate(main.ins) if b.kind == "sopp" and b.text.split()[-1] == "L_slow_" + c.text[7:].rstrip(":")]
    assert len(k) == 1
    main.ins.insert(k[0] + 1, c)
log = []
woven = stream_weave2(main, items, aux, lat=OPT["lat"], stlat=OPT["stlat"], taq=OPT["taq"], log=log, margin=OPT["amargin"], cyc_line=OPT["cl"], capf=OPT["capf"]/100, sthol=OPT["sthol"])
if OPT["log"]:
    for nm, t, ts, it in log:
        if OPT["log"] > 1 or not nm.startswith("  it"): print(f"{nm:14s} t={t:6d} ({t/2200:.2f}us) ts={ts:6d} next={items[it].name if it < len(items) else '-'}")
stats = {}
fine = None
if OPT["fine"]:
    a_, b_ = OPT["fine"].replace("_", " ").split(":")
    fine = dict(start=a_, end=b_, names=[], clk="s_memrealtime" if STAMPS == 1 else "s_memtime", vm=OPT["fvm"], skip=OPT["fskip"])
body = finalize(woven.ins, stats, fine, lgk=OPT["lgk"]) + ["L_code_end:"] + finalize(slow.ins)
if OPT["al"]:
    body, alst = align_pass(body, level=OPT["al"])
    print("align: cost %.2f promoted %d of %d" % alst)
if fine: stnames += [""] * (32 - len(stnames)) + fine["names"]
hdr = open("gated_mix__linear_kernel_hedgehog__ssm_conv_s5__prompt.s.ref").read().split("\n")
head = [l for l in hdr if l.startswith(";") and "@launch" not in l and "Override" not in l and "grid=ceil" not in l]
out = head + ["; @launch grid=(256,1,1) block=(256,1,1) lds=163840",
  '.amdgcn_target "amdgcn-amd-amdhsa--gfx950"', ".text", f".globl {KN}", ".p2align 8", f".type {KN},@function", f"{KN}:"]
out += body
out += ['.section .rodata,"a"', ".p2align 6", f".amdhsa_kernel {KN}", "  .amdhsa_next_free_vgpr 512", "  .amdhsa_next_free_sgpr 102",
  "  .amdhsa_accum_offset 256", "  .amdhsa_group_segment_fixed_size 0", "  .amdhsa_kernarg_size 136", "  .amdhsa_user_sgpr_count 2",
  "  .amdhsa_user_sgpr_kernarg_segment_ptr 1", "  .amdhsa_system_sgpr_workgroup_id_x 1", ".end_amdhsa_kernel"]
import json
if STAMPS: out += ["; STNAMES " + json.dumps(stnames), "; OPTS " + " ".join(sys.argv[2:])]
open(sys.argv[1], "w").write("\n".join(out) + "\n")
json.dump(dbg_names, open(sys.argv[1] + ".dbg.json", "w"))
json.dump(stnames, open(sys.argv[1] + ".st.json", "w"))
print("lines", len(body), "nops", stats["nops"], "stamps", nst[0], "dbg slots", dbg_slot[0])
```

```python
import sys
sys.path.insert(0, "dev")
from asmlib import Prog, weave, finalize, I, Item, Aux, stream_weave2, align_pass

OPT = dict(dbg=0, stamps=0, spin=4096, pf=1, outsc=0, early=10, thresh=448, tw=600, lat=500, cold=2000, wl=16, tlb=1,
           glpos=3, margin=64, log=0, cl=8, rot=0, fine='', nt=0,
           wo1=2, wo2=2, cold2=1500, lm=900, stlat=900, taq=2, pfg=0, pfm=1, pflat=1100, p0=1, p1=3, p2=5, p3=7, capf=100, fhst=22, fold=14, fost=28, fogap=12, fochk=56, hpf=0, al=3, epos=24, osent=1, old=32, upf=0, upos=0, ulat=1500, sentpos=1, gpos=16, eaft=1, latc=1300, latc2=600, latw=1000, lgk=100, amargin=300, sthol=1, wpf=0, wpos=1, gfirst=1, crot=0, wopf=0, pro=1, wqpf=0, latw0=500, fvm=0, fskip=0, tl=1, xdpos=20, xdper=4, usp=0, ksp=1, strip=2, ord=0, sord='ABGFCDXH', fhq=-2, flp=44, fcp=99, sk1=30, sk2=30, gp2=-1, map=0, loc=0, mrot=0, crt=0, c3=0, c3w=1, c3o=3, fpf=0, fpp=0, sl=0, slp=1, smp=0, tagl=0, nost=0, hx=0, hsp=2, hs=1, gaft=3, glk=60, hck=4, hcper=2, stl=8, g3f=0, hsd=1, hd1=0, hd2=0, hd3=0, hl=900, mw=0, mv=0, mvp=0, mvl=1200)
for a in sys.argv[2:]:
    k, v = a.split("="); assert k in OPT, k; OPT[k] = v if k in ("fine", "sord") else int(v, 0)
LST = " sc1" if not OPT["loc"] else ""
LLD = [" sc1", "", " sc1", " sc0"][OPT["loc"]]
NT = lambda b: ' nt' if OPT['nt'] >> b & 1 else ''
DBG = OPT["dbg"]; STAMPS = OPT["stamps"]
KN = "gated_mix__linear_kernel_hedgehog__ssm_conv_s5__prompt_kernel"

RB = 98304; S1 = 32768; S2 = 65536; TAB = S2 + 5120; XCH = RB
W_EPOCH = 0; W_G = 0x1000; W_E = 0x4000; W_FH = 0x24000; W_FO = 0x28000; W_KVP = 0x30000; W_ZP = 0x130000
W_H = 0x200000; W_O = 0x600000; W_DBG = 0x1000000; W_ST = 0x900000
P_WPHI = "s[8:9]"; P_LRE = "s[14:15]"; P_LIM = "s[16:17]"; P_LDT = "s[26:27]"; P_DSK = "s[28:29]"; P_GW = "s[30:31]"
SRD_X, SRD_W, SRD_B, SRD_CR, SRD_CI, SRD_WO, SRD_WS, SRD_OUT = [f"s[{i}:{i+3}]" for i in range(40, 72, 4)]
sXo = [f"s{72+j}" for j in range(8)]; sWo = [f"s{80+j}" for j in range(8)]
sRB, sCG, sW, sTAG, sRT, sCT, sRG, sT0, sT1, sFF, sT2, sSPIN = [f"s{i}" for i in range(88, 100)]
sM1, sM2, sM3 = "s[4:5]", "s[6:7]", "s[10:11]"
sHI = "s[12:13]"
sCgC = [f"s{18+c}" for c in range(4)]; sCgW = [f"s{22+c}" for c in range(4)]
sRING, sPW, sHM, sL2E = "s34", "s35", "s32", "s[38:39]"
sFFFF = "s33"; sT3 = "s3"
sRINGB = "s0"
sEP, sKV, sZP, sKVP, sZPP = "s36", "s37", "s9", "s1", "s17"
sFL, sFP, sHS, sOS = "s8", "s14", "s15", "s16"
sGRP = sSPIN
sRA0, sGP = "s26", "s27"
def v(i, n=1): return f"v{i}" if n == 1 else f"v[{i}:{i+n-1}]"
def a(i, n=1): return f"a{i}" if n == 1 else f"a[{i}:{i+n-1}]"
vL, vHI, vT = 1, 2, 3
vX = [4, 5, 6, 7]; vB = [8, 9]; vWq = 11
vXf = [12, 13, 14, 15]; vCf = [16, 17, 18, 19]; vBf = [20, 21, 22, 23]; vTRkv, vTRq = 24, 25
vC = [26, 27, 28, 29]; vWO = [30, 31, 32, 33]; vWOf = [36, 37]
vLAM, vL8, vL16p, vL32, vMU, vMU2, vCOEF = 38, 40, 42, 44, 46, 48, 50
vA1, vA2 = 52, 56
vTAG, vL16, vT2, vDBG = 60, 61, 62, 63
vU_RE, vU_IM = 64, 80
vKT, vVV, vQT = 96, 112, 128
vFR = 144
vWOFR = 192
vALR, vALI, vBER, vBEI = 4, 6, 12, 14
vALR0, vALI0 = 188, 190
vXR, vEL = 0, 10
vXW = 34
vFLA = 35
vPhW, vVW, vPhR, vVR = 8, 9, 20, 21
vHW, vHR = 22, 23
aXF = 128; aCF = 0

main = Prog(); slow = Prog()
E = main
items = []; aux = []
dbg_slot = [0]; dbg_names = []
def dump(name, regs, p=None):
    if not DBG: return
    p = p or main
    for r in regs:
        p(f"s_mov_b32 {sT3}, {W_DBG + dbg_slot[0]*262144}")
        p(f"buffer_store_dword {r}, {v(vDBG)}, {SRD_WS}, {sT3} offen")
        dbg_slot[0] += 1
    dbg_names.append((name, dbg_slot[0] - len(regs), len(regs)))
nst = [0]; stnames = []
def stamp(name, p=None):
    p = p or main
    p.mark(name)
    if not STAMPS or OPT["nost"] and name in ("addr", "xb0 landed"): return
    k = nst[0]; nst[0] += 1; stnames.append(name)
    p(f"s_memrealtime s[100:101]" if STAMPS == 1 else "s_memtime s[100:101]")
    p(f"v_writelane_b32 {v(vDBG)}, s100, {k}")
nspin = [0]
def spin(name, reload_fn, check_fn, emit=True, p=None):
    p = p or main
    if emit: check_fn(p)
    p(f"s_cbranch_vccnz L_slow_{name}")
    p(f"L_back_{name}:")
    slow(f"L_slow_{name}:")
    slow(f"s_mov_b32 {sSPIN}, {OPT['spin']}")
    slow(f"L_loop_{name}:")
    slow("s_nop 4")
    reload_fn(slow)
    slow("s_waitcnt vmcnt(0)")
    check_fn(slow)
    slow("s_nop 4")
    if STAMPS:
        slow(f"s_cbranch_vccnz L_more_{name}")
        slow(f"s_sub_u32 {sSPIN}, {OPT['spin']+1}, {sSPIN}")
        slow(f"s_mul_i32 {sSPIN}, {sSPIN}, 100")
        slow(f"v_readlane_b32 s100, {v(vDBG)}, 0")
        slow("s_nop 4")
        slow(f"s_add_u32 {sSPIN}, {sSPIN}, s100")
        slow(f"v_writelane_b32 {v(vDBG)}, {sSPIN}, {27 + nspin[0]}")
        slow(f"s_branch L_back_{name}")
        slow(f"L_more_{name}:")
    else:
        slow(f"s_cbranch_vccz L_back_{name}")
    slow(f"s_sub_u32 {sSPIN}, {sSPIN}, 1")
    slow(f"s_cbranch_scc0 L_loop_{name}")
    slow(f"s_branch L_back_{name}")
    nspin[0] += 1

def cmul_add(p, d, x, lam, y):
    p(f"v_fma_f32 {v(d)}, {v(lam)}, {v(x)}, {v(y)}")
    p(f"v_fma_f32 {v(d+1)}, {v(lam)}, {v(x+1)}, {v(y+1)}")
    p(f"v_fma_f32 {v(d)}, -{v(lam+1)}, {v(x+1)}, {v(d)}")
    p(f"v_fma_f32 {v(d+1)}, {v(lam+1)}, {v(x)}, {v(d+1)}")
def cmul(p, d, x, y):
    p(f"v_mul_f32 {v(d)}, {v(x)}, {v(y)}")
    p(f"v_mul_f32 {v(d+1)}, {v(x)}, {v(y+1)}")
    p(f"v_fma_f32 {v(d)}, -{v(x+1)}, {v(y+1)}, {v(d)}")
    p(f"v_fma_f32 {v(d+1)}, {v(x+1)}, {v(y)}, {v(d+1)}")
def csq(p, d, x): cmul(p, d, x, x)
LO = "op_sel:[0,0,0] op_sel_hi:[1,0,1]"; HI = "op_sel:[0,1,0] op_sel_hi:[1,1,1]"
LO2 = "op_sel:[0,0] op_sel_hi:[1,0]"; HI2 = "op_sel:[0,1] op_sel_hi:[1,1]"
NEG1 = "neg_lo:[0,1,0] neg_hi:[0,1,0]"
def P(text, tok=None):
    p = Prog(); p(text, tok=tok); return p
ismf = lambda c: c.kind == "mfma"

def it_x(j):
    slot = j if j < 6 else j - 6
    for q in range(4):
        p = Prog()
        if q == 0: p(f"s_add_u32 m0, {sRING}, {slot*16384}")
        p(f"buffer_load_dwordx4 {v(vX[q])}, {SRD_X}, {sXo[j]} offen offset:{q*1024}{NT(0)} lds")
        items.append(Item(p, 8, after=(f"xr{j-6}" if j >= 6 else None), name=f"x{j}_{q}", lat=OPT["cold"] if j < 1 else OPT["cold2"] if j == (4 if OPT["rot"] == 4 else 1) else None))
def it_b(j):
    for q in range(2):
        p = Prog()
        if q == 0: p(f"s_add_u32 m0, {sRINGB}, {j*8192}")
        p(f"buffer_load_dwordx4 {v(vB[q])}, {SRD_B}, {sXo[j]} offen offset:{q*1024}{NT(1)} lds", tok=f"xb{j}")
        items.append(Item(p, 8, name=f"b{j}_{q}", lat=OPT["cold"] if j < 1 else None))
vGX0, vGX1, vGW = 96, 100, 104
def it_g():
    items.append(Item(P(f"buffer_load_dwordx4 {v(vGX0,4)}, {v(vL16)}, {SRD_X}, {sGP} offen"), 8, name="g0", after="addr"))
    items.append(Item(P(f"buffer_load_dwordx4 {v(vGX1,4)}, {v(vL16)}, {SRD_X}, {sGP} offen offset:1024"), 8, name="g1"))
vPFa, vPFb, vJUNK, vK3 = 176, 177, 180, 178
def it_pf(gp):
    p = Prog()
    p(f"s_cmp_lg_u32 {sGRP}, {gp}")
    p(f"s_cbranch_scc1 L_pf{gp}")
    srd_ = [SRD_W, SRD_CR, SRD_CI, SRD_WO][gp]
    p(f"buffer_load_dword {v(vJUNK)}, {v(vPFa)}, {srd_}, 0 offen")
    p(f"buffer_load_dword {v(vJUNK)}, {v(vPFb)}, {srd_}, 0 offen")
    for c in p.ins[-2:]:
        c.ghost = True; c.nomodel = gp != OPT["pfm"]
    p(f"L_pf{gp}:")
    items.append(Item(p, 128, after="addr", name=f"pf{gp}", lat=OPT["pflat"]))
def it_wpf():
    for o_ in ([1024, 2048, 0] if OPT["wpf"] == 1 else [1024, 2048]):
        items.append(Item(P(f"buffer_load_dword {v(vJUNK)}, {v(vWq)}, {SRD_W}, {sWo[0]} offen offset:{o_}"), 16, after="waddr", name="wpf", lat=OPT["cold2"]))
vWP = 144; vSB = 175 if OPT["sl"] & 1 else 201
def small2():
    return [f"global_load_ushort {v(vWP + e)}, {v(vSB)}, {P_WPHI} offset:{(e&3)*32 + (e>>2)*256}" for e in range(8)] + [f"global_load_dwordx4 {v(vGW,4)}, {v(vL16)}, {P_GW}"]
def it_mv():
    for b_, srd_ in enumerate((SRD_CR, SRD_CI, SRD_WO)):
        if OPT["mv"] >> b_ & 1:
            items.append(Item(P(f"buffer_load_dword v{181 + b_}, v176, {srd_}, 0 offen"), 4, after="addr", name=f"mv{b_}", lat=OPT["mvl"]))
HX = OPT["hx"]; vSN = 180
def it_sent():
    for n in range(6):
        so, o_ = (sHS, n) if n < 4 else (sOS, n - 4)
        items.append(Item(P(f"buffer_store_dwordx4 {v(vSN,4)}, {v(vL16)}, {SRD_WS}, {so} offen offset:{o_*1024} sc1", tok="sent"), OPT["stl"], after="addr", name=f"sn{n}"))
for j in range(8):
    it_x(j)
    if HX and OPT["hs"] and OPT["hsp"] == 2*j: it_sent()
    if OPT["wpf"] and OPT["wpos"] == j: it_wpf()
    it_b(j)
    if HX and OPT["hs"] and OPT["hsp"] == 2*j + 1: it_sent()
    if OPT["sl"] & 1 and j == OPT["slp"]:
        for k_, t_ in enumerate(small2()): items.append(Item(P(t_), 4 if k_ < 8 else 8, after="addr", name=f"sm{k_}", lat=OPT["cold2"] if k_ in (0, 8) else None))
    if j == OPT["glpos"]: it_g()
    if OPT["mvp"] == 10 + j: it_mv()
    if OPT["c3"] & 1 and j == OPT["c3w"]:
        items.append(Item(P(f"buffer_load_dword {v(vJUNK)}, {v(vPFa)}, {SRD_W}, 0 offen"), 24 if OPT["c3"] & 8 else 12, after="addr", name="c3w", lat=OPT["cold2"]))
    if OPT["c3"] & 2 and j == OPT["c3o"]:
        items.append(Item(P(f"buffer_load_dword {v(vJUNK+1)}, {v(vPFb)}, {SRD_WO}, 0 offen offset:384"), 4, after="addr", name="c3o", lat=OPT["cold2"]))
    if OPT["pfg"]:
        for gp in range(4):
            if OPT[f"p{gp}"] == j: it_pf(gp)
def it_upf():
    n = {1: 1, 2: 2, 3: 4}[OPT["upf"]]
    for srd_ in (SRD_CR, SRD_CI, SRD_WO):
        for q in range(n):
            if OPT["upf"] == 3: t = f"buffer_load_dwordx4 {v(vJUNK,4)}, {v(vPFa)}, {srd_}, 0 offen offset:{q*1024}"
            else: t = f"buffer_load_dword {v(vJUNK)}, {v(vPFa)}, {srd_}, 0 offen offset:{q*2048}"
            items.append(Item(P(t), 32 // n, after="addr", name=f"upf{srd_}{q}", lat=OPT["ulat"]))
for pr in range(4):
    if OPT["mvp"] == 2*pr: it_mv()
    if OPT["upf"] and OPT["upos"] == pr: it_upf()
    if HX and OPT["hs"] and OPT["hsp"] == 16 + pr: it_sent()
    for jj in range(2):
        j = 2*pr + jj
        for m in range(2):
            p = Prog()
            if m == 0: p(f"s_add_u32 m0, {sRING}, {(2+pr)*16384 + jj*2048 - 1024}")
            p(f"buffer_load_dwordx4 {v(vWq)}, {SRD_W}, {sWo[j]} offen offset:{1024 + m*1024}{NT(2)} lds", tok=f"w{pr}")
            items.append(Item(p, OPT["wl"], after=f"xr{2+pr}", name=f"w{pr}_{jj}{m}", lat=OPT["latw0"] if j == 0 else None))
        if j == 0 and OPT["wqpf"]:
            items.append(Item(P(f"buffer_load_dword {v(vJUNK)}, {v(vWq)}, {SRD_W}, {sWo[0]} offen"), 16, name="wqpf", lat=OPT["latw0"]))
        if jj == 0 and OPT["mvp"] == 2*pr + 1: it_mv()
if OPT["upf"] and OPT["upos"] == 4: it_upf()
for j in range(8):
    p = Prog()
    p(f"s_add_u32 m0, {sRING}, {(j>>2)*16384 + (j&3)*1024}")
    p(f"buffer_load_dwordx4 {v(vWq)}, {SRD_W}, {sWo[j]} offen{NT(2)} lds", tok="wq")
    items.append(Item(p, OPT["wl"], after=f"xr{6 + (j>>2)}", name=f"wq{j}", lat=OPT["latw0"] if j == 0 and not OPT["wqpf"] else None))
if OPT["upf"] and OPT["upos"] == 5: it_upf()
def b2_pos(s): return ((s + 1) & 3) * 4096
def it_b2(s):
    aft = "barA" if s < 3 else "xchdone" if s == 3 else f"b2done{s-4}"
    for q in range(4):
        p = Prog()
        if q == 0: p(f"s_add_u32 m0, {sPW}, {b2_pos(s)}")
        if s < 8:
            Pp, m, nb = s >> 2, (s >> 1) & 1, s & 1
            p(f"buffer_load_dwordx4 {v(vC[q])}, {SRD_CI if m else SRD_CR}, {sCgC[2*Pp+nb]} offen offset:{q*1024}{NT(3)} lds", tok=f"b2_{s}")
        else:
            p(f"buffer_load_dwordx4 {v(vWO[q])}, {SRD_WO}, {sCgW[s-8]} offen offset:{q*1024}{NT(4)} lds", tok=f"b2_{s}")
        items.append(Item(p, 8, after=aft, name=f"b2_{s}_{q}", lat=OPT["latc"] if s < (2 if OPT["crot"] else 4) else OPT["latc2"] if s < 8 else OPT["latw"] if s < 10 and not OPT["wopf"] else None))
def b2_read(p, s):
    pos = b2_pos(s)
    if s < 8:
        Pp, m, nb = s >> 2, (s >> 1) & 1, s & 1
        for k in range(4):
            c, kk = 2*Pp + (k >> 1), k & 1
            p(f"ds_read_b128 {a(aCF + ((c*4 + 2*m + kk)*2 + nb)*4, 4)}, {v(vCf[k])} offset:{pos}", tok=f"b2r_{s}")
    else:
        c = s - 8
        for b in range(2):
            for nb in range(2):
                for rd in range(2):
                    p(f"ds_read_b64_tr_b16 {v(vWOFR + ((c*2+b)*2+nb)*4 + 2*rd, 2)}, {v(vWOf[nb])} offset:{pos + (8*b + 4*rd)*128}", tok=f"b2r_{s}")
vEQ = 224
def e_list(): return [f"buffer_load_dwordx2 {v(vEQ+2*k,2)}, {v(vEL)}, {SRD_WS}, {sEP} offen offset:{256 + 512*k} sc1" for k in range(8)]
def e_loads(p):
    for t in e_list(): p(t)
def it_e():
    for k, t in enumerate(e_list()): items.append(Item(P(t, tok="eld"), 4, after="e_ok", name=f"e{k}", lat=OPT["lm"]))
if OPT["eaft"] < 0: it_e()
vG2 = [34, 0]
def gg2_list(): return [f"buffer_load_dword {v(vG2[ra])}, {v(vFLA)}, {SRD_WS}, {[sFL, sFP][ra]} offen sc1" for ra in range(2)]
for s in range(8):
    it_b2(s)
    p = Prog(); b2_read(p, s)
    aux.append(Aux(f"b2_{s}", p, f"b2r_{s}", f"b2done{s}"))
    if s == OPT["wopf"] - 1:
        items.append(Item(P(f"buffer_load_dword {v(245)}, {v(244)}, {SRD_WO}, {sCgW[0]} offen"), 32, after="wopf_ok", name="wopf", lat=OPT["latc"]))
    if s == OPT["eaft"]: it_e()
    if HX and s == OPT["gaft"]:
        for k, t in enumerate(gg2_list()): items.append(Item(P(t, tok="ggl"), 2, after="gl_ok", name=f"gg{k}", lat=OPT["lm"]))
vXD, vDK = 192, 200
vOUT = 11
vDA = 46
vGL = [38, 39]; vGv = [40, 41]; vRT = [42, 44]
def it_wo(s):
    it_b2(s)
    p = Prog(); b2_read(p, s)
    A_ = Aux(f"b2_{s}", p, f"b2r_{s}", f"b2done{s}", after="o stored"); A_.phase_split = True; A_.per = 1; A_.mf_only = True
    aux.append(A_)
TL = OPT["tl"]
sQ8 = ["0", "s78", "s79", "s80"]; sQ16 = ["0", "s79", "s81", "s82"]
vXD2, vDK2 = 26, 14
def it_xd():
    if TL:
        for q in range(4):
            items.append(Item(P(f"buffer_load_dwordx2 {v(vXD2+2*q,2)}, {v(vOUT)}, {SRD_X}, {sQ8[q]} offen", tok="xdl"), 8, after="xd_ok", name=f"xd{q}"))
        items.append(Item(P(f"global_load_dwordx2 {v(vDK2,2)}, {v(vDA)}, {P_DSK}", tok="xdl"), 1, name="dk3"))
        return
    for q in range(4):
        items.append(Item(P(f"buffer_load_dwordx2 {v(vXD+2*q,2)}, {v(vOUT)}, {SRD_X}, 0 offen offset:{16*q}"), 32, after="xd_ok", name=f"xd{q}"))
    for q in range(4):
        items.append(Item(P(f"global_load_dwordx2 {v(vDK+2*q,2)}, {v(vDA)}, {P_DSK} offset:{16*q}"), 1, name=f"dk{q}"))
assert TL and not OPT["crot"]
def gg_list(): return [f"buffer_load_dword {v(vGv[ra])}, {v(vGL[ra])}, {SRD_WS}, 0 offen sc1" for ra in range(2)]
def gg_load(p):
    for t in (gg2_list() if HX else gg_list()): p(t)
vGA = 96; vGZ = 160
def gather_list():
    L = []
    for r in range(16):
        L.append((r, f"buffer_load_dwordx4 {v(vGA+4*r,4)}, {v(vL16)}, {SRD_WS}, s{72 + (r>>2)} offen offset:{(r&3)*1024} sc1"))
    L.append((16, f"buffer_load_dwordx4 {v(vGZ,4)}, {v(vL16)}, {SRD_WS}, {sZP} offen sc1"))
    return L
def gather_loads(p):
    for r, t in gather_list(): p(t)
def it_gg():
    for k, t in enumerate(gg_list()): items.append(Item(P(t.replace(" sc1", LLD)), 2, after="gl_ok", name=f"gg{k}", lat=OPT["lm"]))
def it_ga():
    GL_ = gather_list(); GL_ = GL_[16:] + GL_[:16]
    for i_, (r, t) in enumerate(GL_):
        items.append(Item(P(t, tok="gld"), 8, after="gather_ok", name=f"ga{r}", lat=OPT["lm"] if i_ < 8 or r == 16 else None))
vAH = [4, 5]; vAO = [6, 7]; vAH2 = [12, 13]
def h_ld(c, k, ra):
    return f"buffer_load_dwordx4 {a(aXF + ((c*4+k)*2+ra)*4, 4)}, {v(vAH[ra])}, {SRD_WS}, {sCgW[c]} offen offset:{k*1024} sc1"
vACC = 64; vOF = 128
vFLG = 22
FH_LOAD = f"buffer_load_dword {v(vFLG)}, {v(vFLA)}, {SRD_WS}, {sFP} offen sc1"
nh = [0]
def it_h(cs):
    for c in cs:
        for k in range(4):
            for ra in range(2):
                items.append(Item(P(h_ld(c, k, ra).replace(" sc1", LLD)),
                                  8, after="fh_ok", name=f"h{c}{k}{ra}", lat=(OPT["hl"] if HX else OPT["lm"]) if nh[0] < 8 else None))
                nh[0] += 1
for ch in OPT["sord"]:
    if ch in "ABCD": it_wo(8 + "ABCD".index(ch))
    elif HX and ch in "gF": pass
    elif HX and ch == "G": it_ga()
    elif ch == "G": it_gg(); it_ga()
    elif ch == "g": it_gg()
    elif ch == "a": it_ga()
    elif ch == "F": items.append(Item(P(FH_LOAD.replace(" sc1", LLD), tok="fhl"), 1, after="fh_ld", name="fhl", lat=OPT["lm"]))
    elif ch == "X": it_xd()
    elif ch == "H": it_h(range(4))
    elif ch in "0123": it_h([int(ch)])
    else: assert 0
o_order = [(c, b, ra) for ra in (0, 1) for c in (0, 1) for b in range(2)] + [(c, b, ra) for ra in (1, 0) for c in (2, 3) for b in range(2)]
def o_ld(c, b, ra): return f"buffer_load_dwordx4 {v(vOF + ((c*2+b)*2+ra)*4, 4)}, {v(vAO[ra])}, {SRD_WS}, {sCgW[c]} offen offset:{b*1024} sc1"
for c, b, ra in o_order:
    items.append(Item(P(o_ld(c, b, ra).replace(" sc1", LLD)),
                      8, after="fo_ok", name=f"o{c}{b}{ra}", lat=OPT["lm"] if (c, b, ra) in o_order[:8] else None))

E.lock()
E("s_cmp_ge_u32 s2, 256")
E("s_cbranch_scc1 L_end")
E("s_load_dwordx16 s[4:19], s[0:1], 0")
E("s_load_dwordx16 s[20:35], s[0:1], 64")
E("s_load_dwordx2 s[36:37], s[0:1], 128")
if OPT["pf"]:
    E(f"""
    s_getpc_b64 s[40:41]
    L_pc:
    s_lshr_b32 s3, s2, 3
    s_and_b32 s3, s3, 7
    s_lshl_b32 s3, s3, 12
    v_and_b32 v1, 31, v0
    v_lshl_add_u32 v1, v1, 7, s3
    v_min_u32 v1, L_code_end-L_pc-4, v1
    global_load_dword v255, v1, s[40:41]
    """)
if STAMPS: E(f"v_mov_b32 {v(vDBG)}, 0")
stamp("start")
if STAMPS:
    for k in range(27, 32): E(f"v_writelane_b32 {v(vDBG)}, s100, {k}")
MAPC = [f"""s_and_b32 {sRB}, {sT0}, 1
s_lshl_b32 {sRT}, {sRB}, 4
s_lshl_b32 {sRB}, {sRB}, 3
s_and_b32 {sCT}, {sT1}, 7
s_or_b32 {sRB}, {sRB}, {sCT}
s_lshr_b32 {sCG}, {sT0}, 1
s_lshl_b32 {sCG}, {sCG}, 2
s_lshr_b32 {sT1}, {sT1}, 3
s_or_b32 {sCG}, {sCG}, {sT1}
s_or_b32 {sRT}, {sRT}, {sCG}""", f"""s_and_b32 {sRB}, {sT1}, 1
s_lshl1_add_u32 {sRB}, {sT0}, {sRB}
s_lshr_b32 {sCG}, {sT1}, 1
s_lshr_b32 {sCT}, {sT1}, 2
s_and_b32 {sRT}, {sCG}, 1
s_lshl1_add_u32 {sRT}, {sRB}, {sRT}""", f"""s_lshr_b32 {sRB}, {sT1}, 4
s_lshl1_add_u32 {sRB}, {sT0}, {sRB}
s_and_b32 {sCG}, {sT1}, 15
s_lshr_b32 {sCT}, {sCG}, 1
s_and_b32 {sRT}, {sCG}, 1
s_lshl1_add_u32 {sRT}, {sRB}, {sRT}"""][OPT["map"]]
E(f"""
s_and_b32 {sT0}, s2, 7
s_lshr_b32 {sT1}, s2, 3
v_lshrrev_b32 {v(vT)}, 6, v0
v_and_b32 {v(vL)}, 63, v0
v_readfirstlane_b32 {sW}, {v(vT)}
{MAPC}
s_lshl_b32 {sRG}, {sRB}, 2
s_or_b32 {sRG}, {sRG}, {sW}
{["s_lshl_b32 %s, %s, 1" % (sT0, sCG), "s_mov_b32 %s, 0" % sT0, "s_mov_b32 %s, 0" % sT0, "s_lshr_b32 %s, %s, 1" % (sT0, sCG), "s_and_b32 %s, %s, 3" % (sT0, sCG)][OPT["rot"]]}
{["s_add_u32 %s, %s, %s" % (sT0, sT0, sRB), "s_add_u32 %s, %s, %s" % (sT0, sT0, sRB), "s_mov_b32 %s, 0" % sT0, "s_add_u32 %s, %s, %s" % (sT0, sT0, sRB), "s_xor_b32 %s, %s, %s" % (sT0, sT0, sCT)][OPT["rot"]]}
{["", "s_lshl2_add_u32 %s, %s, %s" % (sT0, sRB, sCG), "s_lshl2_add_u32 %s, %s, %s" % (sT0, sRB, sCT), "s_add_u32 %s, %s, %s" % (sT0, sRB, sCG), "s_mov_b32 %s, %s" % (sT0, sCG), "s_lshl_b32 %s, %s, 1" % (sT0, sCG), "s_mov_b32 %s, %s" % (sT0, sCT)][OPT["mrot"]]}
v_lshlrev_b32 {v(vL16)}, 4, {v(vL)}
v_lshrrev_b32 {v(vHI)}, 5, {v(vL)}
""")
if DBG:
    E(f"s_lshl_b32 {sT2}, s2, 10")
    E(f"v_lshl_add_u32 {v(vDBG)}, v0, 2, {sT2}")
if OPT["c3"] & 4:
    E(f"s_and_b32 {sT0}, {sT0}, 7")
    E(f"s_cmp_eq_u32 {sT0}, 3")
    E(f"s_addc_u32 {sT0}, {sT0}, 0")
if OPT["rot"] == 4:
    E(f"s_lshl_b32 {sXo[0]}, {sT0}, 7")
    for j in range(1, 8): E(f"s_xor_b32 {sXo[j]}, {sXo[0]}, {j << 7}")
    for j in range(8): E(f"s_mul_i32 {sWo[j]}, {sXo[j]}, 1536")
else:
  for j in range(8):
    E(f"s_add_u32 {sT2}, {sT0}, {j}")
    E(f"s_and_b32 {sT2}, {sT2}, 7")
    E(f"s_lshl_b32 {sXo[j]}, {sT2}, 7")
    E(f"s_mul_i32 {sWo[j]}, {sT2}, 196608")
E(f"""
v_lshrrev_b32 {v(vT)}, 4, {v(vL)}
v_and_b32 {v(vT2)}, 7, {v(vL)}
v_xor_b32 {v(vT2)}, {v(vT2)}, {v(vT)}
v_lshlrev_b32 {v(vT2)}, 4, {v(vT2)}
v_and_b32 {v(vX[0])}, 1, {v(vT)}
v_and_b32 {v(vX[1])}, 8, {v(vL)}
v_or_b32 {v(vX[0])}, {v(vX[0])}, {v(vX[1])}
v_lshl_or_b32 {v(vX[0])}, {v(vHI)}, 4, {v(vX[0])}
s_lshl_b32 {sT2}, {sRG}, 5
v_add_u32 {v(vX[0])}, {sT2}, {v(vX[0])}
v_lshl_or_b32 {v(vX[0])}, {v(vX[0])}, 10, {v(vT2)}
v_xor_b32 {v(vX[1])}, 64, {v(vX[0])}
v_add_u32 {v(vX[1])}, 1024, {v(vX[1])}
v_add_u32 {v(vX[2])}, 2048, {v(vX[0])}
v_add_u32 {v(vX[3])}, 2048, {v(vX[1])}
s_and_b32 {sT2}, {sW}, 1
s_lshl_b32 {sT2}, {sT2}, 4
s_lshl_b32 {sT3}, {sCG}, 5
s_add_u32 {sT2}, {sT2}, {sT3}
v_lshrrev_b32 {v(vT)}, 3, {v(vL)}
v_lshl_or_b32 {v(vC[0])}, {v(vT)}, 10, {v(vT2)}
s_lshl_b32 {sT2}, {sT2}, 10
v_add_u32 {v(vB[0])}, {sT2}, {v(vC[0])}
v_xor_b32 {v(vB[1])}, 64, {v(vB[0])}
v_add_u32 {v(vB[1])}, 7168, {v(vB[1])}
s_lshl_b32 {sT3}, {sW}, 12
s_lshl_b32 {sT1}, {sW}, 11
s_add_u32 {sT1}, {sT1}, {RB}
""")
def srd(dst, lo, size):
    b = int(dst[2:].split(":")[0])
    E(f"s_mov_b32 s{b}, s{lo}")
    E(f"s_and_b32 s{b+1}, s{lo+1}, 0xffff")
    E(f"s_mov_b32 s{b+2}, {size}")
    E(f"s_mov_b32 s{b+3}, 0x20000")
E(f"""
v_lshrrev_b32 {v(vT)}, 2, {v(vL)}
s_lshl_b32 {sT2}, {sW}, 4
v_add_u32 {v(vT)}, {sT2}, {v(vT)}
v_mul_u32_u24 {v(vWq)}, 3072, {v(vT)}
v_and_b32 {v(vT2)}, 3, {v(vL)}
s_lshl_b32 {sT2}, {sCG}, 6
v_lshl_add_u32 {v(vT2)}, {v(vT2)}, 4, {sT2}
v_add_u32 {v(vWq)}, {v(vWq)}, {v(vT2)}
""")
vPR, vPI, vPD = 160, 161, 162
vWP = 144
vSA, vSC, vSD, vSZ = 200, 202, 203, 204
E(f"""
v_and_b32 {v(vXR)}, 31, {v(vL)}
s_lshl_b32 {sT2}, {sCG}, 6
v_lshl_add_u32 {v(vSA)}, {v(vXR)}, 1, {sT2}
v_bfe_u32 {v(vT)}, {v(vL)}, 3, 2
v_and_b32 {v(vT2)}, 3, {v(vL)}
v_lshl_add_u32 {v(vT)}, {v(vT)}, 2, {v(vT2)}
v_lshlrev_b32 {v(vT)}, 1, {v(vT)}
v_lshl_or_b32 {v(vT)}, {v(vHI)}, 7, {v(vT)}
v_bfe_u32 {v(vT2)}, {v(vL)}, 2, 1
v_lshl_or_b32 {v(vT)}, {v(vT2)}, 9, {v(vT)}
s_lshl_b32 {sT2}, {sCG}, 10
v_add_u32 {v(vSB)}, {sT2}, {v(vT)}
v_lshlrev_b32 {v(vSC)}, 21, {v(vL)}
v_and_b32 {v(vSC)}, 0x600000, {v(vSC)}
s_lshl_b32 {sT2}, {sRT}, 17
v_mov_b32 {v(vSD)}, {sT2}
v_mov_b32 {v(vSZ)}, 0
""")
vMW, vMW3 = 176, 206
if OPT["mw"] or OPT["mv"]:
    E(f"""
    s_lshl2_add_u32 {sT2}, s2, {sW}
    v_and_b32 {v(vT2)}, 3, {v(vL)}
    s_lshl_b32 s100, {sT2}, 9
    v_lshl_add_u32 {v(vMW)}, {v(vT2)}, 7, s100
    """)
    if OPT["mw"] & 8:
        E(f"""
        s_mul_i32 s100, {sT2}, 1536
        v_min_u32 {v(vT2)}, 11, {v(vL)}
        v_lshl_add_u32 {v(vMW3)}, {v(vT2)}, 7, s100
        """)
vPFx, vPFB = 182, 183
if OPT["fpf"] & 48:
    assert not OPT["map"]
    E(f"""
    s_and_b32 {sT2}, {sCG}, 3
    s_lshl2_add_u32 {sT2}, {sRG}, {sT2}
    s_lshl_b32 {sT2}, {sT2}, 13
    v_and_b32 {v(vT)}, 7, {v(vL)}
    v_lshl_add_u32 {v(vPFx)}, {v(vT)}, 10, {sT2}
    s_and_b32 {sT2}, {sW}, 1
    s_lshl1_add_u32 {sT2}, {sCG}, {sT2}
    s_lshl3_add_u32 {sT2}, {sT2}, {sCT}
    s_lshl_b32 {sT2}, {sT2}, 11
    v_and_b32 {v(vT)}, 1, {v(vL)}
    v_lshl_add_u32 {v(vPFB)}, {v(vT)}, 10, {sT2}
    """)
if OPT["fpf"] & 15:
    E(f"""
    s_lshr_b32 {sT2}, s2, 3
    s_lshl2_add_u32 {sT2}, {sT2}, {sW}
    v_and_b32 {v(vT)}, 3, {v(vL)}
    v_mul_u32_u24 {v(vPFa)}, 3072, {v(vT)}
    s_mul_i32 s100, {sT2}, 12288
    s_lshl_b32 {sT2}, {sT2}, 12
    v_lshl_add_u32 {v(vPFb)}, {v(vT)}, 10, {sT2}
    """)
    if OPT["map"]:
        E(f"s_add_u32 s100, s100, 384")
        E(f"v_lshrrev_b32 {v(vT2)}, 2, {v(vL)}")
        E(f"v_min_u32 {v(vT2)}, 2, {v(vT2)}")
    else:
        both = OPT["fpf"] & 4
        E(f"s_lshr_b32 {sT2}, {sCG}, 2")
        E(f"s_lshl_b32 {sT2}, {sT2}, 8")
        E(f"s_add_u32 s100, s100, {sT2}")
        if both:
            E(f"v_bfe_u32 {v(vT2)}, {v(vL)}, 2, 1")
            E(f"v_lshl_add_u32 {v(vPFa)}, {v(vT2)}, 7, {v(vPFa)}")
            E(f"v_lshrrev_b32 {v(vT2)}, 3, {v(vL)}")
            if OPT["fpf"] & 8:
                E(f"v_and_b32 {v(vT2)}, 1, {v(vT2)}")
                E(f"v_add_u32 {v(vT2)}, 1, {v(vT2)}")
            else: E(f"v_min_u32 {v(vT2)}, 2, {v(vT2)}")
        else:
            E(f"s_add_u32 s100, s100, 128")
            E(f"v_lshrrev_b32 {v(vT2)}, 2, {v(vL)}")
            E(f"v_min_u32 {v(vT2)}, 2, {v(vT2)}")
    E(f"v_lshl_add_u32 {v(vT2)}, {v(vT2)}, 10, s100")
    E(f"v_add_u32 {v(vPFa)}, {v(vPFa)}, {v(vT2)}")
def first_pf():
    n0 = len(E.ins)
    if OPT["fpf"] & 16: E(f"buffer_load_dword v247, {v(vPFx)}, {SRD_X}, 0 offen offset:384")
    if OPT["fpf"] & 32: E(f"buffer_load_dword v246, {v(vPFB)}, {SRD_B}, 0 offen offset:384")
    if OPT["fpf"] & 1: E(f"global_load_dword v253, {v(vPFa)}, s[6:7]")
    if OPT["fpf"] & 2: E(f"global_load_dword v250, {v(vPFb)}, s[10:11] offset:384")
    for c_ in E.ins[n0:]: c_.lines = 0.0; c_.lat = OPT["cold"]
def tlb_touch():
    n0 = len(E.ins)
    E(f"global_load_dword v248, {v(vSZ if OPT['sl'] else vL16)}, {P_DSK}")
    if OPT["tlb"]:
        E(f"""
        global_load_dword v254, {v(vSC)}, s[36:37] offset:2048
        global_load_dword v252, {v(vMW if OPT["mw"] & 1 else vSZ)}, s[22:23]
        global_load_dword v251, {v(vMW if OPT["mw"] & 2 else vSZ)}, s[24:25]
        {"" if OPT["fpf"] & 2 else "global_load_dword v250, %s, s[10:11]" % v(vMW if OPT["mw"] & 4 else vSZ)}
        global_load_dword v249, {v(vSD)}, s[32:33]
        """)
        if not OPT["wpf"] and not OPT["fpf"] & 1: E(f"global_load_dword v253, {v(vMW3 if OPT['mw'] & 8 else vSZ)}, s[6:7]")
    for c_ in E.ins[n0:]: c_.lines = 0.0; c_.lat = OPT["cold"]
def small_loads():
    n0 = len(E.ins)
    if OPT["fpp"] == 0: first_pf()
    E(f"""
    global_load_ushort {v(vPR)}, {v(vSA)}, {P_LRE}
    global_load_ushort {v(vPI)}, {v(vSA)}, {P_LIM}
    global_load_ushort {v(vPD)}, {v(vSA)}, {P_LDT}
    """)
    if not OPT["sl"] & 1:
        for t_ in small2(): E(t_)
    if not OPT["sl"] & 2: tlb_touch()
    if OPT["fpp"] == 1: first_pf()
    for c_ in E.ins[n0:]: c_.lines = 0.0; c_.lat = OPT["cold"]
E("s_mov_b32 s46, 1572864"); E("s_mov_b32 s47, 0x20000")
E("s_mov_b32 s42, 2097152"); E("s_mov_b32 s43, 0x20000"); E("s_mov_b32 s50, 524288"); E("s_mov_b32 s51, 0x20000")
E.sett(900)
E("s_mov_b32 s40, s4"); E("s_and_b32 s41, s5, 0xffff")
E(f"s_mov_b32 {sRING}, {sT3}")
E(f"s_mov_b32 {sRINGB}, {sT1}")
E.drain("x0_3")
E(f"s_cmp_lt_u32 {sW}, 2")
E("s_cselect_b32 s48, s18, s20")
E("s_cselect_b32 s49, s19, s21")
E("s_and_b32 s49, s49, 0xffff")
if OPT["pro"] == 1:
    E.drain("b0_1")
    small_loads()
E.drain(items[OPT["early"] - 1].name)
if OPT["fpp"] == 2: first_pf()
if OPT["sl"] & 2: tlb_touch()
E("s_mov_b32 s44, s6"); E("s_and_b32 s45, s7, 0xffff")
E.mark("waddr")
stamp("first dma")
E(f"s_load_dword {sTAG}, s[36:37], {W_EPOCH}")
if OPT["tagl"]: E.ins[-1].junk = True
if OPT["smp"]:
    E(f"""
    s_lshr_b32 {sT2}, s2, 3
    s_lshl2_add_u32 {sT2}, {sT2}, {sW}
    s_mul_i32 {sT2}, {sT2}, 12288
    s_lshr_b32 {sT3}, {sCG}, 2
    s_lshl_b32 {sT3}, {sT3}, 8
    s_add_u32 {sT2}, {sT2}, {sT3}
    """)
    prs = {1: (1,), 2: (1, 0), 3: (1, 0), 4: (1,)}[OPT["smp"]]
    pts = {1: (1, 2, 0), 2: (1, 2, 0), 3: (1, 2), 4: (1, 2)}[OPT["smp"]]
    for pt in pts:
        for pr_ in prs:
            for r_ in range(4):
                E(f"s_load_dword {sSPIN}, s[6:7], {sT2} offset:{r_*3072 + pt*1024 + pr_*128}")
                E.ins[-1].junk = True
if OPT["pro"] == 0: small_loads()
if OPT["crot"]:
    E(f"""
    s_lshr_b32 {sT2}, {sCT}, 2
    s_add_u32 {sT2}, {sT2}, {sCT}
    s_add_u32 {sT2}, {sT2}, {sCG}
    s_and_b32 {sT2}, {sT2}, 1
    s_cselect_b32 s52, s24, s22
    s_cselect_b32 s53, s25, s23
    s_cselect_b32 s56, s22, s24
    s_cselect_b32 s57, s23, s25
    s_and_b32 s53, s53, 0xffff
    s_and_b32 s57, s57, 0xffff
    s_mov_b32 s54, 524288
    s_mov_b32 s55, 0x20000
    s_mov_b32 s58, 524288
    s_mov_b32 s59, 0x20000
    """)
else:
    srd(SRD_CR, 22, 524288); srd(SRD_CI, 24, 524288)
srd(SRD_WO, 10, 524288)
srd(SRD_WS, 36, 0x10000000); srd(SRD_OUT, 32, 4194304)
E.setts(OPT["cold"] - 200)
CRT = [f"s_add_u32 {sT2}, {sCG}, {sCT}",
       f"s_lshr_b32 {sT2}, {sRB}, 1\ns_add_u32 {sT2}, {sT2}, {sRT}\ns_add_u32 {sT2}, {sT2}, {sCT}",
       f"s_lshr_b32 {sT2}, {sRB}, 1\ns_add_u32 {sT2}, {sT2}, {sRT}",
       f"s_add_u32 {sT2}, {sRT}, {sCT}"][OPT["crt"]]
E(f"""
s_lshl_b32 {sPW}, {sW}, 14
s_add_u32 {sPW}, {sPW}, {RB}
s_mov_b32 {sHM}, 0xffff0000
s_mov_b32 {sFFFF}, 0xffff
s_mov_b32 {sFF}, 0xff
s_mov_b32 s38, 0x3fb8aa3b
s_mov_b32 s39, 0x3fb8aa3b
s_cmp_ge_u32 {sW}, 1
s_cselect_b64 {sM1}, -1, 0
s_cmp_ge_u32 {sW}, 2
s_cselect_b64 {sM2}, -1, 0
s_cmp_ge_u32 {sW}, 3
s_cselect_b64 {sM3}, -1, 0
s_mov_b32 s12, 0
s_mov_b32 s13, -1
{CRT}
s_and_b32 {sT2}, {sT2}, 3
s_lshl_b32 {sT0}, {sW}, 2
""")
E.unlock()
for c in range(4):
    E(f"s_xor_b32 {sT1}, {sT2}, {c}")
    E(f"s_or_b32 {sT1}, {sT1}, {sT0}")
    E(f"s_lshl_b32 {sCgW[c]}, {sT1}, 15")
E(f"""
s_and_b32 {sT1}, {sT2}, 2
s_or_b32 {sT1}, {sT1}, {sT0}
s_lshl_b32 {sT1}, {sT1}, 6
s_and_b32 {sT3}, {sW}, 1
s_lshl_b32 {sT3}, {sT3}, 15
s_or_b32 {sCgC[0]}, {sT1}, {sT3}
s_xor_b32 {sCgC[1]}, {sCgC[0]}, 32768
s_xor_b32 {sCgC[2]}, {sCgC[0]}, 128
s_xor_b32 {sCgC[3]}, {sCgC[1]}, 128
s_and_b32 {sT2}, {sT2}, 1
s_lshl_b32 {sT2}, {sT2}, 6
s_lshl_b32 {sT3}, {sCT}, 16
v_add_u32 {v(vC[0])}, {sT3}, {v(vC[0])}
v_xor_b32 {v(vC[1])}, 64, {v(vC[0])}
v_add_u32 {v(vC[1])}, 7168, {v(vC[1])}
v_add_u32 {v(vC[2])}, 14336, {v(vC[0])}
v_add_u32 {v(vC[3])}, 14336, {v(vC[1])}
v_bfe_u32 {v(vT)}, {v(vL)}, 1, 3
v_xor_b32 {v(vT)}, {v(vT)}, {v(vHI)}
v_lshlrev_b32 {v(vT)}, 4, {v(vT)}
v_lshl_or_b32 {v(vT)}, {v(vXR)}, 7, {v(vT)}
""")
for k in range(4):
    E(f"v_xor_b32 {v(vT2)}, {k*32}, {v(vT)}")
    E(f"v_add_u32 {v(vBf[k])}, {RB}, {v(vT2)}")
    E(f"v_add_u32 {v(vXf[k])}, {sRING}, {v(vT2)}")
    E(f"v_xor_b32 {v(vT2)}, {sT2}, {v(vT2)}")
    E(f"v_add_u32 {v(vCf[k])}, {sPW}, {v(vT2)}")
E(f"""
v_bfe_u32 {v(vT)}, {v(vL)}, 2, 2
v_lshl_or_b32 {v(vT)}, {v(vHI)}, 3, {v(vT)}
v_lshlrev_b32 {v(vTRq)}, 6, {v(vT)}
v_bfe_u32 {v(vT2)}, {v(vL)}, 4, 1
v_lshl_or_b32 {v(vTRq)}, {v(vT2)}, 5, {v(vTRq)}
v_and_b32 {v(vT)}, 3, {v(vL)}
v_lshl_or_b32 {v(vTRq)}, {v(vT)}, 3, {v(vTRq)}
v_add_u32 {v(vTRkv)}, 32768, {v(vTRq)}
s_and_b32 {sT0}, {sW}, 1
v_xor_b32 {v(vT)}, {sT0}, {v(vT2)}
v_lshlrev_b32 {v(vT)}, 2, {v(vT)}
v_and_b32 {v(vT2)}, 7, {v(vL)}
v_xor_b32 {v(vT)}, {v(vT)}, {v(vT2)}
s_lshl_b32 {sT2}, {sCT}, 7
v_lshl_add_u32 {v(vT)}, {v(vT)}, 4, {sT2}
v_lshrrev_b32 {v(vT2)}, 3, {v(vL)}
v_lshl_add_u32 {v(vWO[0])}, {v(vT2)}, 10, {v(vT)}
v_add_u32 {v(vWO[1])}, 7168, {v(vWO[0])}
v_add_u32 {v(vWO[2])}, 14336, {v(vWO[0])}
v_add_u32 {v(vWO[3])}, 21504, {v(vWO[0])}
v_bfe_u32 {v(vT)}, {v(vL)}, 2, 2
v_lshl_or_b32 {v(vT)}, {v(vHI)}, 4, {v(vT)}
v_lshlrev_b32 {v(vT)}, 7, {v(vT)}
v_bfe_u32 {v(vT2)}, {v(vL)}, 3, 1
v_lshl_or_b32 {v(vT)}, {v(vT2)}, 6, {v(vT)}
v_and_b32 {v(vT2)}, 63, {v(vTRq)}
v_or_b32 {v(vT)}, {v(vT2)}, {v(vT)}
v_add_u32 {v(vWOf[0])}, {sPW}, {v(vT)}
v_xor_b32 {v(vT)}, 64, {v(vT)}
v_add_u32 {v(vWOf[1])}, {sPW}, {v(vT)}
""")
if HX:
    E(f"v_lshlrev_b32 {v(vFLA)}, 2, {v(vXR)}")
    for i in range(4): E(f"v_mov_b32 {v(vSN+i)}, -1")
E(f"""
v_lshlrev_b32 {v(vXR)}, 3, {v(vXR)}
v_lshl_or_b32 {v(vEL)}, {v(vHI)}, 8, {v(vXR)}
v_add_u32 {v(vXR)}, {XCH}, {v(vXR)}
s_lshl_b32 {sT2}, {sW}, 8
v_add_u32 {v(vXW)}, {sT2}, {v(vXR)}
""")
if not HX: E(f"""
v_and_b32 {v(vT)}, 7, {v(vL)}
v_lshlrev_b32 {v(vT)}, 2, {v(vT)}
v_add_u32 {v(vFLA)}, {W_FH}, {v(vT)}
s_lshl_b32 {sFP}, {sRT}, 2
s_add_u32 {sFP}, {sFP}, {sW}
s_lshl_b32 {sFP}, {sFP}, 7
""")
E(f"""
s_lshl_b32 {sT2}, {sCG}, 13
s_lshl_b32 {sT3}, {sRB}, 8
s_sub_u32 {sT2}, {sT2}, {sT3}
s_add_u32 {sEP}, {sT2}, {W_E + 15*256}
s_lshl_b32 {sT2}, {sCG}, 2
s_add_u32 {sT2}, {sT2}, {sW}
s_lshl_b32 {sKV}, {sT2}, 14
s_add_u32 {sKV}, {sKV}, {W_KVP}
s_lshl_b32 {sT2}, {sRB}, 10
s_add_u32 {sKVP}, {sT2}, {sKV}
s_lshr_b32 {sT2}, {sRG}, 3
s_lshl_b32 {sT2}, {sT2}, 19
s_lshl_b32 {sT1}, {sCG}, 15
s_add_u32 {sT2}, {sT2}, {sT1}
s_and_b32 {sT3}, {sRG}, 7
s_lshl_b32 {sT3}, {sT3}, 12
s_add_u32 {sT2}, {sT2}, {sT3}
s_add_u32 {sHS}, {sT2}, {W_H}
s_lshr_b32 {sT2}, {sRG}, 4
s_lshl_b32 {sT2}, {sT2}, 19
s_add_u32 {sT2}, {sT2}, {sT1}
s_and_b32 {sT3}, {sRG}, 15
s_lshl_b32 {sT3}, {sT3}, 11
s_add_u32 {sT2}, {sT2}, {sT3}
s_add_u32 {sOS}, {sT2}, {W_O}
s_lshr_b32 {sT1}, {sW}, 1
s_lshl_b32 {sT2}, {sRT}, 1
s_or_b32 {sRA0}, {sT2}, {sT1}
s_lshl_b32 {sT2}, {sRG}, 5
s_lshl_b32 {sT3}, {sCG}, 1
s_add_u32 {sT2}, {sT2}, {sT3}
s_lshl_b32 {sGP}, {sT2}, 10
""")
if OPT["pfg"]:
    E(f"""
    v_mov_b32 {v(vK3)}, 3072
    v_mov_b32 {v(vK3+1)}, 0
    s_lshl_b32 {sT2}, {sCT}, 2
    s_or_b32 {sT2}, {sT2}, {sW}
    s_mul_i32 {sT3}, {sT2}, 49152
    s_lshr_b32 {sT1}, {sCG}, 2
    s_lshl_b32 {sT1}, {sT1}, 8
    s_add_u32 {sT3}, {sT3}, {sT1}
    v_and_b32 {v(vT2)}, 1, {v(vL)}
    v_lshl_add_u32 {v(vT2)}, {v(vT2)}, 7, {sT3}
    v_lshrrev_b32 {v(vT)}, 2, {v(vL)}
    v_mad_u32_u24 {v(vPFa)}, {v(vT)}, {v(vK3)}, {v(vT2)}
    v_bfe_u32 {v(vT)}, {v(vL)}, 1, 1
    v_lshl_add_u32 {v(vPFa)}, {v(vT)}, 10, {v(vPFa)}
    v_bfe_u32 {v(vT)}, {v(vL)}, 1, 4
    v_mad_u32_u24 {v(vPFb)}, {v(vT)}, {v(vK3)}, {v(vT2)}
    v_add_u32 {v(vPFb)}, 2048, {v(vPFb)}
    s_lshl_b32 {sT2}, {sT2}, 14
    v_lshl_add_u32 {v(vT)}, {v(vL)}, 7, {sT2}
    v_add_u32 {v(vT2)}, 8192, {v(vT)}
    s_and_b32 {sGRP}, {sCG}, 3
    v_cmp_ne_u32 vcc, {sGRP}, {v(vK3+1)}
    v_cndmask_b32 {v(vPFa)}, {v(vPFa)}, {v(vT)}, vcc
    v_cndmask_b32 {v(vPFb)}, {v(vPFb)}, {v(vT2)}, vcc
    """)
if OPT["upf"]:
    E(f"""
    s_lshr_b32 {sT2}, s2, 3
    s_lshl_b32 {sT2}, {sT2}, 2
    s_or_b32 {sT2}, {sT2}, {sW}
    s_lshl_b32 {sT2}, {sT2}, 12
    v_lshl_add_u32 {v(vPFa)}, {v(vL)}, {[0, 6, 5, 4][OPT["upf"]]}, {sT2}
    """)
if OPT["c3"] & 3:
    E(f"""
    s_lshr_b32 {sT2}, s2, 3
    s_lshl2_add_u32 {sT2}, {sT2}, {sW}
    v_and_b32 {v(vT)}, 3, {v(vL)}
    """)
    if OPT["c3"] & 1:
        E(f"s_mul_i32 {sT3}, {sT2}, 12288")
        if OPT["map"]: E(f"s_add_u32 {sT3}, {sT3}, 384")
        else:
            if OPT["c3"] & 8:
                E(f"s_lshr_b32 {sT1}, {sCG}, 2")
                E(f"s_lshl_b32 {sT1}, {sT1}, 8")
            else:
                E(f"s_or_b32 {sT1}, {sCG}, 2")
                E(f"s_lshr_b32 {sT1}, {sT1}, 1")
                E(f"s_lshl_b32 {sT1}, {sT1}, 7")
            E(f"s_add_u32 {sT3}, {sT3}, {sT1}")
        E(f"""
        v_lshrrev_b32 {v(vT2)}, {3 if OPT["c3"] & 8 else 2}, {v(vL)}
        v_min_u32 {v(vT2)}, 2, {v(vT2)}
        v_lshl_add_u32 {v(vT2)}, {v(vT2)}, 10, {sT3}
        v_mul_u32_u24 {v(vPFa)}, 3072, {v(vT)}
        v_add_u32 {v(vPFa)}, {v(vPFa)}, {v(vT2)}
        """)
        if OPT["c3"] & 8:
            E(f"v_bfe_u32 {v(vT2)}, {v(vL)}, 2, 1")
            E(f"v_lshl_add_u32 {v(vPFa)}, {v(vT2)}, 7, {v(vPFa)}")
    if OPT["c3"] & 2:
        E(f"s_lshl_b32 {sT2}, {sT2}, 12")
        E(f"v_lshl_add_u32 {v(vPFb)}, {v(vT)}, 10, {sT2}")
TAGC = f"""
s_add_u32 {sTAG}, {sTAG}, 1
v_mov_b32 {v(vTAG)}, {sTAG}
"""
if not OPT["tagl"]: E(TAGC)
stamp("addr")

LATE = f"""
s_lshl2_add_u32 {sT2}, {sCG}, {sW}
s_lshl_b32 {sZP}, {sT2}, 10
s_add_u32 {sZP}, {sZP}, {W_ZP}
s_lshl_b32 {sT3}, {sRB}, 6
s_add_u32 {sZPP}, {sT3}, {sZP}
""" + (f"""
s_lshl_b32 {sFL}, {sRA0}, 7
s_add_u32 {sFL}, {sFL}, {W_G}
s_xor_b32 {sFP}, {sFL}, 128
""" if HX else f"""
s_lshr_b32 {sFL}, {sRG}, 1
s_lshl_b32 {sFL}, {sFL}, 2
s_lshr_b32 {sT3}, {sCG}, 2
s_add_u32 {sFL}, {sFL}, {sT3}
s_lshl_b32 {sFL}, {sFL}, 7
s_and_b32 {sT3}, {sRG}, 1
s_lshl_b32 {sT3}, {sT3}, 4
s_add_u32 {sFL}, {sFL}, {sT3}
s_and_b32 {sT3}, {sCG}, 3
s_lshl_b32 {sT3}, {sT3}, 2
s_add_u32 {sFL}, {sFL}, {sT3}
""")
t0, t1, t2, t3 = 164, 166, 168, 170
F = [Prog() for _ in range(8)]
F[0](f"""
v_lshlrev_b32 {v(vPR)}, 16, {v(vPR)}
v_lshlrev_b32 {v(vPI)}, 16, {v(vPI)}
v_lshlrev_b32 {v(vPD)}, 16, {v(vPD)}
v_mul_f32 {v(vPD)}, s38, {v(vPD)}
v_exp_f32 {v(vPD)}, {v(vPD)}
v_mul_f32 {v(t2)}, {v(vPR)}, {v(vPR)}
v_fma_f32 {v(t2)}, {v(vPI)}, {v(vPI)}, {v(t2)}
v_cvt_pk_bf16_f32 {v(vPD)}, {v(vPD)}, {v(vPD)}
v_and_b32 {v(vPD)}, {sHM}, {v(vPD)}
v_mul_f32 {v(t0)}, {v(vPD)}, {v(vPR)}
v_mul_f32 {v(t0+1)}, {v(vPD)}, {v(vPI)}
v_mul_f32 {v(t0)}, s38, {v(t0)}
v_mul_f32 {v(t0+1)}, 0.15915494, {v(t0+1)}
v_exp_f32 {v(t0)}, {v(t0)}
v_cos_f32 {v(t1)}, {v(t0+1)}
v_sin_f32 {v(t1+1)}, {v(t0+1)}
v_rcp_f32 {v(t3)}, {v(t2)}
v_mul_f32 {v(vLAM)}, {v(t0)}, {v(t1)}
v_mul_f32 {v(vLAM+1)}, {v(t0)}, {v(t1+1)}
v_add_f32 {v(t1)}, -1.0, {v(vLAM)}
v_mul_f32 {v(t2)}, {v(t1)}, {v(vPR)}
v_fma_f32 {v(t2)}, {v(vLAM+1)}, {v(vPI)}, {v(t2)}
v_mul_f32 {v(t2+1)}, {v(vLAM+1)}, {v(vPR)}
v_fma_f32 {v(t2+1)}, -{v(t1)}, {v(vPI)}, {v(t2+1)}
v_mul_f32 {v(vCOEF)}, {v(t2)}, {v(t3)}
v_mul_f32 {v(vCOEF+1)}, {v(t2+1)}, {v(t3)}
""")
csq(F[1], t0, vLAM); csq(F[1], t1, t0); csq(F[1], vL8, t1); csq(F[1], vL16p, vL8); csq(F[1], vL32, vL16p)
csq(F[1], t0, vL32); cmul(F[1], t1, t0, vL32)
csq(F[2], vMU, t0); csq(F[2], vMU2, vMU)
F[2](f"""
v_cndmask_b32 {v(t2)}, 1.0, {v(vL32)}, {sM1}
v_cndmask_b32 {v(t2+1)}, 0, {v(vL32+1)}, {sM1}
v_cndmask_b32 {v(t2)}, {v(t2)}, {v(t0)}, {sM2}
v_cndmask_b32 {v(t2+1)}, {v(t2+1)}, {v(t0+1)}, {sM2}
v_cndmask_b32 {v(t2)}, {v(t2)}, {v(t1)}, {sM3}
v_cndmask_b32 {v(t2+1)}, {v(t2+1)}, {v(t1+1)}, {sM3}
""")
cmul(F[2], t3, t2, vL16p)
F[2](f"v_cndmask_b32 {v(vALR0)}, {v(t2)}, {v(t3)}, {sHI}")
F[2](f"v_cndmask_b32 {v(vALI0)}, {v(t2+1)}, {v(t3+1)}, {sHI}")
F[2](f"""
v_mul_f32 {v(vALR0+1)}, {v(vALR0)}, {v(vL8)}
v_mul_f32 {v(vALI0+1)}, {v(vALR0)}, {v(vL8+1)}
v_fma_f32 {v(vALR0+1)}, -{v(vALI0)}, {v(vL8+1)}, {v(vALR0+1)}
v_fma_f32 {v(vALI0+1)}, {v(vALI0)}, {v(vL8)}, {v(vALI0+1)}
""")
F[4](LATE)
F[3]("s_mov_b32 s100, 0xf0f0f0f0")
F[3]("s_mov_b32 s101, 0xf0f0f0f0")
for i in range(4):
    F[3](f"v_lshl_or_b32 {v(vA1+i)}, {v(vWP+2*i+1)}, 16, {v(vWP+2*i)}")
for i in range(4):
    F[3](f"v_cndmask_b32 {v(vA2+i)}, 0, {v(vA1+i)}, s[100:101]")
    F[3](f"v_cndmask_b32 {v(vA1+i)}, {v(vA1+i)}, 0, s[100:101]")
dump("lam", [v(vLAM), v(vLAM+1), v(vCOEF), v(vCOEF+1), v(vMU2), v(vMU2+1)], F[3])
gW, gP, gR = 108, 116, 124
gS0, gS1 = 128, 130
G1, G2 = F[OPT["glpos"] + 2], F[OPT["glpos"] + 3]
for i in range(4):
    G1(f"v_lshlrev_b32 {v(gW+2*i)}, 16, {v(vGW+i)}")
    G1(f"v_and_b32 {v(gW+2*i+1)}, {sHM}, {v(vGW+i)}")
for row, src, dst, G in ((0, vGX0, gS0, G1), (1, vGX1, gS1, G2)):
    for i in range(4):
        G(f"v_lshlrev_b32 {v(gP+2*i)}, 16, {v(src+i)}")
        G(f"v_and_b32 {v(gP+2*i+1)}, {sHM}, {v(src+i)}")
    for i in range(4):
        G(f"v_pk_mul_f32 {v(gP+2*i,2)}, {v(gP+2*i,2)}, {v(gW+2*i,2)}")
    for i in range(4):
        G(f"v_cvt_pk_bf16_f32 {v(gR+i)}, {v(gP+2*i)}, {v(gP+2*i+1)}")
    for i in range(4):
        G(f"v_lshlrev_b32 {v(gP+2*i)}, 16, {v(gR+i)}")
        G(f"v_and_b32 {v(gP+2*i+1)}, {sHM}, {v(gR+i)}")
    G(f"v_pk_add_f32 {v(gP,2)}, {v(gP,2)}, {v(gP+2,2)}")
    G(f"v_pk_add_f32 {v(gP+4,2)}, {v(gP+4,2)}, {v(gP+6,2)}")
    G(f"v_pk_add_f32 {v(gP,2)}, {v(gP,2)}, {v(gP+4,2)}")
    G(f"v_add_f32 {v(dst)}, {v(gP)}, {v(gP+1)}")
G3 = Prog()
G3(f"""
v_permlane32_swap_b32 {v(gS0)}, {v(gS1)}
v_add_f32 {v(gS0)}, {v(gS0)}, {v(gS1)}
v_mov_b32 {v(gS1)}, {v(gS0)}
s_lshr_b32 {sT2}, {sGP}, 8
v_permlane16_swap_b32 {v(gS0)}, {v(gS1)}
v_add_f32 {v(gS0)}, {v(gS0)}, {v(gS1)}
""")
for r in (8, 4, 2, 1):
    G3(f"v_add_f32_dpp {v(gS0)}, {v(gS0)}, {v(gS0)} row_ror:{r} row_mask:0xf bank_mask:0xf")
G3(f"""
v_cvt_pk_bf16_f32 {v(gS0)}, {v(gS0)}, {v(gS0)}
v_and_b32 {v(gS0)}, {sHM}, {v(gS0)}
v_mul_f32 {v(gS0)}, 0xbfb8aa3b, {v(gS0)}
v_exp_f32 {v(gS0)}, {v(gS0)}
v_lshlrev_b32 {v(gS1)}, 2, {v(vHI)}
v_add_f32 {v(gS0)}, 1.0, {v(gS0)}
v_rcp_f32 {v(gS0)}, {v(gS0)}
s_add_u32 {sT2}, {sT2}, {W_G}
v_cvt_pk_bf16_f32 {v(gS0)}, {v(gS0)}, {v(gS0)}
v_bfi_b32 {v(gS0)}, {sFFFF}, {v(vTAG)}, {v(gS0)}
""")
if HX and OPT["hs"]: G3.waitvm("sent")
G3.lock()
G3(f"""
s_mov_b32 exec_lo, 1
s_mov_b32 exec_hi, 1
buffer_store_dword {v(gS0)}, {v(gS1)}, {SRD_WS}, {sT2} offen{LST}
s_mov_b64 exec, -1
""")
G3.unlock()

vBB = [192, 224]
def u_reads(j):
    p = Prog()
    slot = j if j < 6 else j - 6
    for k in range(4):
        p(f"ds_read_b128 {a(aXF + 16*j + 4*k, 4)}, {v(vXf[k])} offset:{(slot & 3)*16384}")
        p(f"ds_read_b128 {v(vBB[j&1] + 8*k, 4)}, {v(vBf[k])} offset:{j*8192}")
        p(f"ds_read_b128 {v(vBB[j&1] + 8*k + 4, 4)}, {v(vBf[k])} offset:{j*8192 + 4096}")
    return p
def u_mm(j, ks):
    p = Prog()
    for k in ks:
        c_re = "0" if (j == 0 and k == 0) else v(vU_RE, 16)
        c_im = "0" if (j == 0 and k == 0) else v(vU_IM, 16)
        p(f"v_mfma_f32_32x32x16_bf16 {v(vU_RE,16)}, {a(aXF + 16*j + 4*k, 4)}, {v(vBB[j&1] + 8*k, 4)}, {c_re}")
        p(f"v_mfma_f32_32x32x16_bf16 {v(vU_IM,16)}, {a(aXF + 16*j + 4*k, 4)}, {v(vBB[j&1] + 8*k + 4, 4)}, {c_im}")
    return p
if HX and OPT["hs"] and OPT["hsp"] == 2 and OPT["hsd"]: E.drain("sn5")
E.waitvm("xb0")
E("s_barrier")
stamp("xb0 landed")
E.extend(u_reads(0))
def weave2(mainp, s1, n1, s2, n2):
    out = []; s1 = list(s1.ins); s2 = list(s2.ins); i = 0
    for m in mainp.ins:
        out.append(m)
        out += s1[:n1[i]]; s1 = s1[n1[i]:]
        out += s2[:n2]; s2 = s2[n2:]
        i += 1
    p = Prog(); p.ins = out + s1 + s2
    return p
for j in range(8):
    E.mark(f"U chunk {j}")
    if OPT["usp"] and j >= OPT["usp"] - 1:
        if j in (3, 5):
            for k in range(4): E(f"v_add_u32 {v(vXf[k])}, {65536 if j == 3 else -65536}, {v(vXf[k])}")
        mm = u_mm(j, (0, 1, 2, 3))
        if j < 7:
            E.extend(mm.ins[:1]); mm.ins = mm.ins[1:]
            E.waitvm(f"xb{j+1}")
            E("s_barrier")
            E.mark(f"xr{j-1}b")
            if j in (1, 3, 5): stamp(f"xb{j+1} landed")
            rd = u_reads(j+1)
            E.extend(rd.ins[:2]); rd.ins = rd.ins[2:]
            E.extend(weave2(mm, rd, [2, 1, 2, 1, 2, 1, 1], F[j], (len(F[j].ins) + 6) // 7))
        else:
            E.extend(weave(mm, F[j], every=1, per=4))
        E.mark(f"xr{j}")
        continue
    if j in (3, 5):
        for k in range(4): F[j](f"v_add_u32 {v(vXf[k])}, {65536 if j == 3 else -65536}, {v(vXf[k])}")
    E.extend(weave(u_mm(j, (0, 1)), F[j], every=1, per=4))
    if j < 7:
        E.waitvm(f"xb{j+1}")
        E("s_barrier")
        if j in (1, 3, 5): stamp(f"xb{j+1} landed")
        E.extend(weave(u_mm(j, (2, 3)), u_reads(j+1), every=1, per=3))
    else:
        E.extend(u_mm(j, (2, 3)))
    E.mark(f"xr{j}")
stamp("U done")
dump("U", [v(vU_RE+i) for i in range(32)])

tA, tB, tC, tD = 192, 194, 196, 198
for m in range(8):
    r, i = vU_RE + 2*m, vU_IM + 2*m
    E(f"v_pk_mul_f32 {v(tA+4*(m&1),2)}, {v(r,2)}, {v(vCOEF,2)} {HI2}")
    E(f"v_pk_mul_f32 {v(r,2)}, {v(r,2)}, {v(vCOEF,2)} {LO2}")
    E(f"v_pk_fma_f32 {v(r,2)}, {v(i,2)}, {v(vCOEF,2)}, {v(r,2)} {HI} {NEG1}")
    E(f"v_pk_fma_f32 {v(i,2)}, {v(i,2)}, {v(vCOEF,2)}, {v(tA+4*(m&1),2)} {LO}")
er, ei = vU_RE, vU_IM
pp = [(tA, tB), (tC, tD)]
for m in range(1, 8):
    nr, ni = pp[m & 1]
    E(f"v_pk_fma_f32 {v(nr,2)}, {v(er,2)}, {v(vLAM,2)}, {v(vU_RE+2*m,2)} {LO}")
    E(f"v_pk_fma_f32 {v(ni,2)}, {v(ei,2)}, {v(vLAM,2)}, {v(vU_IM+2*m,2)} {LO}")
    E(f"v_pk_fma_f32 {v(nr,2)}, {v(ei,2)}, {v(vLAM,2)}, {v(nr,2)} {HI} {NEG1}")
    E(f"v_pk_fma_f32 {v(ni,2)}, {v(er,2)}, {v(vLAM,2)}, {v(ni,2)} {HI}")
    er, ei = nr, ni
eA, e16, e16h, e32 = 200, 202, 204, 206
E(f"""
v_fma_f32 {v(e16)}, {v(vL8)}, {v(er)}, {v(er+1)}
v_fma_f32 {v(e16+1)}, {v(vL8)}, {v(ei)}, {v(ei+1)}
v_fma_f32 {v(e16)}, -{v(vL8+1)}, {v(ei)}, {v(e16)}
v_fma_f32 {v(e16+1)}, {v(vL8+1)}, {v(er)}, {v(e16+1)}
v_mov_b32 {v(eA)}, {v(er)}
v_mov_b32 {v(e16h)}, {v(e16)}
v_mov_b32 {v(e16h+1)}, {v(e16+1)}
v_mov_b32 {v(eA+1)}, {v(ei)}
v_permlane32_swap_b32 {v(e16)}, {v(e16h)}
v_permlane32_swap_b32 {v(e16+1)}, {v(e16h+1)}
""")
cmul_add(E, e32, e16, vL16p, e16h)
E(f"ds_write_b64 {v(vXW)}, {v(e32,2)}")
E.waitlg(None)
if OPT["tagl"]: E(TAGC)
stamp("scan1")
E.waitvm("w0")
E("s_barrier")
E.mark("barA")
stamp("barA")
K = Prog()
eW = [208, 210, 212, 214]
for w in range(4):
    K(f"ds_read_b64 {v(eW[w],2)}, {v(vXR)} offset:{w*256}")
K(f"""
v_mov_b32 {v(vALR)}, {v(vALR0)}
v_mov_b32 {v(vALR+1)}, {v(vALR0+1)}
v_mov_b32 {v(vALI)}, {v(vALI0)}
v_mov_b32 {v(vALI+1)}, {v(vALI0+1)}
v_lshl_or_b32 {v(vT2)}, {v(vHI)}, 12, {v(vEL)}
v_and_b32 {v(vT2)}, 0x10ff, {v(vT2)}
""")
p2, p3, e128 = 216, 218, 220
cmul_add(K, p2, eW[0], vL32, eW[1])
cmul_add(K, p3, p2, vL32, eW[2])
cmul_add(K, e128, p3, vL32, eW[3])
K(f"""
v_cndmask_b32 {v(e128)}, {v(e128)}, 0, {sHI}
v_cndmask_b32 {v(e128+1)}, {v(e128+1)}, 0, {sHI}
v_bfi_b32 {v(e128)}, {sFF}, {v(vTAG)}, {v(e128)}
buffer_store_dwordx2 {v(e128,2)}, {v(vT2)}, {SRD_WS}, {sEP} offen sc1
""")
pw, pb = 222, 224
K(f"""
v_cndmask_b32 {v(pw)}, 0, {v(eW[0])}, {sM1}
v_cndmask_b32 {v(pw+1)}, 0, {v(eW[0]+1)}, {sM1}
v_cndmask_b32 {v(pw)}, {v(pw)}, {v(p2)}, {sM2}
v_cndmask_b32 {v(pw+1)}, {v(pw+1)}, {v(p2+1)}, {sM2}
v_cndmask_b32 {v(pw)}, {v(pw)}, {v(p3)}, {sM3}
v_cndmask_b32 {v(pw+1)}, {v(pw+1)}, {v(p3+1)}, {sM3}
""")
cmul_add(K, pb, pw, vL16p, e16)
K(f"v_cndmask_b32 {v(vBER)}, {v(pw)}, {v(pb)}, {sHI}")
K(f"v_cndmask_b32 {v(vBEI)}, {v(pw+1)}, {v(pb+1)}, {sHI}")
K(f"""
v_fma_f32 {v(vBER+1)}, {v(vL8)}, {v(vBER)}, {v(eA)}
v_fma_f32 {v(vBEI+1)}, {v(vL8)}, {v(vBEI)}, {v(eA+1)}
v_fma_f32 {v(vBER+1)}, -{v(vL8+1)}, {v(vBEI)}, {v(vBER+1)}
v_fma_f32 {v(vBEI+1)}, {v(vL8+1)}, {v(vBER)}, {v(vBEI+1)}
""")
if OPT["osent"] and OPT["sentpos"] == 0:
    for i in range(4): K(f"v_mov_b32 {v(184+i)}, -1")
    for b in range(2): K(f"buffer_store_dwordx4 {v(184,4)}, {v(vL16)}, {SRD_WS}, {sOS} offen offset:{b*1024} sc1")
if OPT["wopf"]:
    K(f"""
    v_lshrrev_b32 {v(244)}, 1, {v(vL)}
    v_and_b32 {v(245)}, 1, {v(vL)}
    v_lshlrev_b32 {v(245)}, 6, {v(245)}
    s_lshl_b32 {sT2}, {sCT}, 7
    v_lshl_or_b32 {v(244)}, {v(244)}, 10, {v(245)}
    v_add_u32 {v(244)}, {sT2}, {v(244)}
    """)
    K.mark("wopf_ok")
K.extend(G3)
if OPT["strip"] > 1: K(f"s_and_b32 s30, {sTAG}, {sFF}")
K(f"""
s_lshl_b32 {sT2}, {sW}, 13
s_add_u32 {sT2}, {sT2}, {S1}
v_mul_u32_u24 {v(vT)}, 80, {v(vL)}
v_add_u32 {v(vPhW)}, {sT2}, {v(vT)}
s_add_u32 {sT3}, {sT2}, 5120
v_add_u32 {v(vVW)}, {sT3}, {v(vL16)}
s_add_u32 {sT2}, {sT2}, {0 if OPT["ord"] else S2 - S1}
v_and_b32 {v(vT)}, 31, {v(vL)}
v_mul_u32_u24 {v(vT)}, 80, {v(vT)}
v_lshl_add_u32 {v(vT)}, {v(vHI)}, 5, {v(vT)}
v_add_u32 {v(vHW)}, {sT2}, {v(vT)}
v_bfe_u32 {v(vT)}, {v(vL)}, 2, 2
v_lshl_or_b32 {v(vT)}, {v(vHI)}, 3, {v(vT)}
v_mul_u32_u24 {v(vT)}, 80, {v(vT)}
v_and_b32 {v(vT2)}, 63, {v(vTRq)}
v_add3_u32 {v(vHR)}, {sT2}, {v(vT)}, {v(vT2)}
v_bfe_u32 {v(vT)}, {v(vL)}, 2, 3
v_lshl_or_b32 {v(vT)}, {v(vHI)}, 4, {v(vT)}
v_mul_u32_u24 {v(vT)}, 80, {v(vT)}
v_and_b32 {v(vT2)}, 3, {v(vL)}
v_lshl_add_u32 {v(vT)}, {v(vT2)}, 3, {v(vT)}
s_and_b32 {sT0}, {sW}, 1
s_lshr_b32 {sT1}, {sW}, 1
s_mul_i32 {sT2}, {sT0}, 2560
s_lshl_b32 {sT3}, {sT1}, 5
s_add_u32 {sT2}, {sT2}, {sT3}
s_add_u32 {sT2}, {sT2}, {S1}
v_add_u32 {v(vPhR)}, {sT2}, {v(vT)}
v_and_b32 {v(vT)}, 15, {v(vL)}
v_bfe_u32 {v(vT2)}, {v(vL)}, 4, 1
v_lshl_or_b32 {v(vT)}, {v(vT2)}, 5, {v(vT)}
v_lshlrev_b32 {v(vT)}, 4, {v(vT)}
v_lshl_or_b32 {v(vT)}, {v(vHI)}, 10, {v(vT)}
s_lshl_b32 {sT2}, {sT0}, 8
s_add_u32 {sT2}, {sT2}, {S1 + 5120}
v_add_u32 {v(vVR)}, {sT2}, {v(vT)}
s_and_b32 {sT2}, {sRB}, 3
s_lshl_b32 {sT2}, {sT2}, 12
s_add_u32 s72, {sKV}, {sT2}
s_xor_b32 s73, s72, 4096
s_xor_b32 s74, s72, 8192
s_xor_b32 s75, s72, 12288
""")

def kv_reads(p, n):
    j, k = n >> 2, n & 3
    for m in range(2):
        for rd in range(2):
            off = (j >> 1)*16384 + k*4096 + (j & 1)*2048 + m*1024 + rd*256
            p(f"ds_read_b64_tr_b16 {v(vFR + (n&3)*8 + 4*m + 2*rd, 2)}, {v(vTRkv)} offset:{off}")
AH = 3
KV = Prog()
for n in range(AH): kv_reads(KV, n)
for n in range(32):
    xf = a(aXF + 4*n, 4)
    fr = vFR + (n & 3)*8
    KV(f"v_mfma_f32_32x32x16_bf16 {v(vKT,16)}, {v(fr,4)}, {xf}, {'0' if n == 0 else v(vKT,16)}")
    nn = n + AH
    if nn < 32 and nn % 8 == 0:
        KV.waitvm(f"w{nn//8}")
        KV("s_barrier")
        if nn == 8: KV.mark("xchdone")
    rr = Prog()
    if nn < 32: kv_reads(rr, nn)
    if OPT["ksp"]: KV.extend(rr.ins[:2]); rr.ins = rr.ins[2:]
    KV(f"v_mfma_f32_32x32x16_bf16 {v(vVV,16)}, {xf}, {v(fr+4,4)}, {'0' if n == 0 else v(vVV,16)}")
    KV.extend(rr)
    if n == OPT["epos"]: KV.mark("e_ok")
cnt = [0]
def kpred(c):
    if c.kind != "mfma": return False
    cnt[0] += 1
    return cnt[0] % 2 == 1
def weave_locked(mainp, side, pred, per):
    out = []; si = 0; S = side.ins
    for m in mainp.ins:
        out.append(m)
        if pred(m):
            k = per
            while k > 0 and si < len(S):
                if S[si].kind == "pseudo" and S[si].pseudo == "lock":
                    while not (S[si].kind == "pseudo" and S[si].pseudo == "unlock"):
                        out.append(S[si]); si += 1
                    out.append(S[si]); si += 1; k = 0
                else:
                    out.append(S[si])
                    if S[si].kind != "pseudo": k -= 1
                    si += 1
    out.extend(S[si:])
    p = Prog(); p.ins = out
    return p
E.extend(weave_locked(KV, K, ismf, 2) if OPT["ksp"] else weave_locked(KV, K, kpred, 4))
dump("kT", [v(vKT+i) for i in range(16)])
dump("v", [v(vVV+i) for i in range(16)])
stamp("kv done")

def softmax(p, src, dst, ap, am, mn, mid=None):
    for i in range(8):
        p(f"v_cvt_pk_bf16_f32 {v(am+i)}, {v(src+2*i)}, {v(src+2*i+1)}")
    p(f"v_mfma_f32_32x32x16_bf16 {v(ap,16)}, {v(vA1,4)}, {v(am,4)}, 0")
    p(f"v_mfma_f32_32x32x16_bf16 {v(ap,16)}, {v(vA2,4)}, {v(am+4,4)}, {v(ap,16)}")
    if mid is not None: p.extend(mid)
    for i in range(8):
        p(f"v_cvt_pk_bf16_f32 {v(am+i)}, {v(ap+2*i)}, {v(ap+2*i+1)}")
    for i in range(8):
        p(f"v_lshlrev_b32 {v(src+2*i)}, 16, {v(am+i)}")
        p(f"v_and_b32 {v(src+2*i+1)}, {sHM}, {v(am+i)}")
    p(f"v_max3_f32 {v(mn)}, {v(src)}, {v(src+1)}, {v(src+2)}")
    p(f"v_min3_f32 {v(mn+1)}, {v(src)}, {v(src+1)}, {v(src+2)}")
    for i in range(3, 15, 2):
        p(f"v_max3_f32 {v(mn)}, {v(mn)}, {v(src+i)}, {v(src+i+1)}")
        p(f"v_min3_f32 {v(mn+1)}, {v(mn+1)}, {v(src+i)}, {v(src+i+1)}")
    p(f"v_max_f32 {v(mn)}, {v(mn)}, {v(src+15)}")
    p(f"v_min_f32 {v(mn+1)}, {v(mn+1)}, {v(src+15)}")
    p(f"v_pk_mul_f32 {v(mn,2)}, {v(mn,2)}, {sL2E} neg_lo:[1,0]")
    for i in range(8):
        p(f"v_pk_fma_f32 {v(ap+2*i,2)}, {v(src+2*i,2)}, {sL2E}, {v(mn,2)} op_sel:[0,0,0] op_sel_hi:[1,1,0]")
        p(f"v_pk_fma_f32 {v(am+2*i,2)}, {v(src+2*i,2)}, {sL2E}, {v(mn,2)} op_sel:[0,0,1] op_sel_hi:[1,1,1] neg_lo:[1,0,0] neg_hi:[1,0,0]")
    for i in range(16):
        p(f"v_exp_f32 {v(ap+i)}, {v(ap+i)}")
        p(f"v_exp_f32 {v(am+i)}, {v(am+i)}")
    for i in range(4):
        p(f"v_pk_add_f32 {v(src+2*i,2)}, {v(ap+4*i,2)}, {v(ap+4*i+2,2)}")
        p(f"v_pk_add_f32 {v(src+8+2*i,2)}, {v(am+4*i,2)}, {v(am+4*i+2,2)}")
    for b in (0, 8):
        p(f"v_pk_add_f32 {v(src+b,2)}, {v(src+b,2)}, {v(src+b+2,2)}")
        p(f"v_pk_add_f32 {v(src+b+4,2)}, {v(src+b+4,2)}, {v(src+b+6,2)}")
    for b in (0, 8):
        p(f"v_pk_add_f32 {v(src+b,2)}, {v(src+b,2)}, {v(src+b+4,2)}")
    p(f"v_add_f32 {v(mn)}, {v(src)}, {v(src+1)}")
    p(f"v_add_f32 {v(mn+1)}, {v(src+8)}, {v(src+9)}")
    p(f"v_rcp_f32 {v(mn)}, {v(mn)}")
    p(f"v_rcp_f32 {v(mn+1)}, {v(mn+1)}")
    for i in range(8):
        p(f"v_pk_mul_f32 {v(ap+2*i,2)}, {v(ap+2*i,2)}, {v(mn,2)} {LO2}")
        p(f"v_pk_mul_f32 {v(am+2*i,2)}, {v(am+2*i,2)}, {v(mn,2)} {HI2}")
    for i in range(8):
        p(f"v_cvt_pk_bf16_f32 {v(dst+i)}, {v(ap+2*i)}, {v(ap+2*i+1)}")
    for i in range(8):
        p(f"v_cvt_pk_bf16_f32 {v(dst+8+i)}, {v(am+2*i)}, {v(am+2*i+1)}")

vVP = vFR
vPHK = 152
mid = Prog()
for i in range(8):
    mid(f"v_cvt_pk_bf16_f32 {v(vVP+i)}, {v(vVV+2*i)}, {v(vVV+2*i+1)}")
mid(f"ds_write_b128 {v(vVW)}, {v(vVP,4)}")
mid(f"ds_write_b128 {v(vVW)}, {v(vVP+4,4)} offset:1024")
ORD = OPT["ord"]
vKA, vKB, vONE, vKD, vZD = 96, 112, 172, 128, 132
def strip_check(p, regs):
    for r in regs: p(f"v_xor_b32 {v(r)}, s30, {v(r)}" if OPT["strip"] > 1 else f"v_bitop3_b32 {v(r)}, {v(r)}, {v(vTAG)}, {sFF} bitop3:0x78")
    p(f"v_or3_b32 {v(vT)}, {v(regs[0])}, {v(regs[1])}, {v(regs[2])}")
    rest = regs[3:]
    while len(rest) >= 2:
        p(f"v_or3_b32 {v(vT)}, {v(vT)}, {v(rest[0])}, {v(rest[1])}"); rest = rest[2:]
    if rest: p(f"v_bitop3_b32 {v(vT)}, {v(vT)}, {v(rest[0])}, {sFF} bitop3:0xa8")
    else: p(f"v_and_b32 {v(vT)}, {sFF}, {v(vT)}")
    p(f"v_cmp_ne_u32 vcc, 0, {v(vT)}")
def e_check(p): strip_check(p, [vEQ+2*k for k in range(8)])
def flag_store(p, base, tok):
    p.waitvm(tok)
    p.lock()
    p(f"""
    s_mov_b64 exec, 1
    v_mov_b32 {v(vT)}, {base}
    buffer_store_dword {v(vTAG)}, {v(vT)}, {SRD_WS}, {sFL} offen{LST}
    s_mov_b64 exec, -1
    """)
    p.ins[-2].lines = 1
    p.unlock()
hq = [240, 242]
CI = Prog()
cur = vEQ + 14
for k in range(6, -1, -1):
    cmul_add(CI, vEQ + 2*k, cur, vMU2, vEQ + 2*k)
    cur = vEQ + 2*k
CI(f"""
v_mov_b32 {v(hq[0])}, {v(cur)}
v_mov_b32 {v(hq[0]+1)}, {v(cur+1)}
{"" if ORD else "v_and_b32 %s, 0x30, %s" % (v(vT), v(vL))}
v_permlane32_swap_b32 {v(cur)}, {v(hq[0])}
v_permlane32_swap_b32 {v(cur+1)}, {v(hq[0]+1)}
""")
cmul_add(CI, cur, hq[0], vMU, cur)
S2P = Prog()
S2P(f"""
v_pk_fma_f32 {v(vBER,2)}, {v(vALR,2)}, {v(cur,2)}, {v(vBER,2)} {LO}
v_pk_fma_f32 {v(vBEI,2)}, {v(vALI,2)}, {v(cur,2)}, {v(vBEI,2)} {LO}
v_pk_fma_f32 {v(vBER,2)}, {v(vALI,2)}, {v(cur,2)}, {v(vBER,2)} {HI} {NEG1}
v_pk_fma_f32 {v(vBEI,2)}, {v(vALR,2)}, {v(cur,2)}, {v(vBEI,2)} {HI}
""")
hr, hi_ = vBER, vBEI
for m in range(8):
    r, i = vU_RE + 2*m, vU_IM + 2*m
    S2P(f"v_pk_fma_f32 {v(r,2)}, {v(hr,2)}, {v(vLAM,2)}, {v(r,2)} {LO}")
    S2P(f"v_pk_fma_f32 {v(i,2)}, {v(hi_,2)}, {v(vLAM,2)}, {v(i,2)} {LO}")
    S2P(f"v_pk_fma_f32 {v(r,2)}, {v(hi_,2)}, {v(vLAM,2)}, {v(r,2)} {HI} {NEG1}")
    S2P(f"v_pk_fma_f32 {v(i,2)}, {v(hr,2)}, {v(vLAM,2)}, {v(i,2)} {HI}")
    hr, hi_ = r, i
dump("h", [v(vU_RE+i) for i in range(32)], S2P)
vHP = 224
for par in range(2):
    for i in range(4):
        S2P(f"v_cvt_pk_bf16_f32 {v(vHP + 4*par + i)}, {v(vU_RE + 4*i + par)}, {v(vU_RE + 4*i + 2 + par)}")
S2P(f"ds_write_b128 {v(vHW)}, {v(vHP,4)}")
S2P(f"ds_write_b128 {v(vHW)}, {v(vHP+4,4)} offset:16")
for par in range(2):
    for i in range(4):
        S2P(f"v_cvt_pk_bf16_f32 {v(vHP + 8 + 4*par + i)}, -{v(vU_IM + 4*i + par)}, -{v(vU_IM + 4*i + 2 + par)}")
S2P(f"ds_write_b128 {v(vHW)}, {v(vHP+8,4)} offset:2560")
S2P(f"ds_write_b128 {v(vHW)}, {v(vHP+12,4)} offset:2576")
vHF = 240
HR = Prog()
for k in range(4):
    for rd in range(2):
        HR(f"ds_read_b64_tr_b16 {v(vHF + 4*k + 2*rd, 2)}, {v(vHR)} offset:{(16*k + 4*rd)*80}")
vQF = 208
def q_reads(p, n):
    j, k = n >> 2, n & 3
    for rd in range(2):
        off = (j >> 2)*16384 + k*4096 + (j & 3)*1024 + rd*256
        p(f"ds_read_b64_tr_b16 {v(vQF + (n%7)*4 + 2*rd, 2)}, {v(vTRq)} offset:{off}")
AHQ = 5
vSENT = 192 if ORD else 164
def h_store(p, n): p(f"buffer_store_dwordx4 {v(vHF+4*n,4)}, {v(vL16)}, {SRD_WS}, {sHS} offen offset:{n*1024}{LST}", tok="hst")
def s_store(p, n): p(f"buffer_store_dwordx4 {v(vSENT,4)}, {v(vL16)}, {SRD_WS}, {sOS} offen offset:{n*1024}{LST}", tok="hst")
SK = Prog()
softmax(SK, vKT, vPHK, 176, vQT, 168, mid)
dump("phik", [v(vPHK+i) for i in range(16)], SK)
for q in range(4):
    SK(f"ds_write_b128 {v(vPhW)}, {v(vPHK+4*q,4)} offset:{16*q}")
for i in range(4):
    SK(f"v_mov_b32 {v(vONE+i)}, 0x3f803f80")
if ORD:
    sk = list(SK.ins)
    E.extend(sk[:20]); sk = sk[20:]
    for i in range(4): E(f"v_mov_b32 {v(vSENT+i)}, -1")
    for n in range(2): s_store(E, n)
    E.waitvm("eld")
    spin("e", e_loads, e_check)
    stamp("e ok")
    E.extend(CI); E.extend(S2P)
    E.extend(sk[:OPT["sk1"]]); sk = sk[OPT["sk1"]:]
    E.extend(HR)
    E.extend(sk[:OPT["sk2"]]); sk = sk[OPT["sk2"]:]
    for n in range(4):
        h_store(E, n); E.extend(sk[:3]); sk = sk[3:]
    stamp("scan2")
    E.extend(sk)
    if OPT["fhq"] == -2: flag_store(E, W_FH, "hst")
else:
    E.extend(SK.ins[:OPT["glk"]])
    if HX: E.mark("gl_ok")
    E.extend(SK.ins[OPT["glk"]:])
    E.waitvm("eld")
    spin("e", e_loads, e_check)
E.waitlg(None)
stamp("softmax k")
E.waitvm("wq")
E("s_barrier")
for sw in range(4):
    for rd in range(2):
        E(f"ds_read_b64_tr_b16 {v(vKA + 4*sw + 2*rd, 2)}, {v(vPhR)} offset:{sw*8192 + rd*640}")
    E(f"ds_read_b128 {v(vKB + 4*sw, 4)}, {v(vVR)} offset:{sw*8192}")
KP = Prog()
for sw in range(4):
    KP(f"v_mfma_f32_16x16x32_bf16 {v(vKD,4)}, {v(vKA+4*sw,4)}, {v(vKB+4*sw,4)}, {'0' if sw == 0 else v(vKD,4)}")
    KP(f"v_mfma_f32_16x16x32_bf16 {v(vZD,4)}, {v(vKA+4*sw,4)}, {v(vONE,4)}, {'0' if sw == 0 else v(vZD,4)}")
if ORD:
    QR = Prog()
    QR(f"v_and_b32 {v(vT)}, 0x30, {v(vL)}")
    for n in range(AHQ): q_reads(QR, n)
    E.extend(weave(KP, QR.ins, every=1, per=2))
else:
    E.extend(CI.ins[:8])
    E.extend(weave(KP, CI.ins[8:], every=1, per=2))
if HX: E.drain("gg1")
E(f"""
v_bfi_b32 {v(vKD)}, {sFF}, {v(vTAG)}, {v(vKD)}
v_bfi_b32 {v(vZD)}, {sFF}, {v(vTAG)}, {v(vZD)}
buffer_store_dwordx4 {v(vKD,4)}, {v(vL16)}, {SRD_WS}, {sKVP} offen sc1
""")
E.lock()
E(f"""
s_mov_b32 exec_lo, 0x10001
s_mov_b32 exec_hi, 0x10001
buffer_store_dwordx4 {v(vZD,4)}, {v(vT)}, {SRD_WS}, {sZPP} offen sc1
s_mov_b64 exec, -1
""")
E.ins[-2].lines = 1
E.unlock()
if ORD and OPT["fhq"] == -1: flag_store(E, W_FH, "hst")
stamp("kvpub")
if not ORD:
    E.extend(S2P); E.extend(HR)
    if not HX or not OPT["hs"]:
        for i in range(4): E(f"v_mov_b32 {v(vSENT+i)}, -1")
    for n in range(AHQ): q_reads(E, n)
    stamp("scan2")
vQT2 = 176
Q = Prog()
for n in range(32):
    Q(f"v_mfma_f32_32x32x16_bf16 {v(vQT2,16)}, {v(vQF + (n%7)*4,4)}, {a(aXF + 4*n, 4)}, {'0' if n == 0 else v(vQT2,16)}")
    if n == OPT["gpos"] and OPT["gp2"] < 0: Q.mark("gather_ok")
    if n + AHQ < 32: q_reads(Q, n + AHQ)
    if not ORD:
        if n < 4: h_store(Q, n)
        if 4 <= n < 6 and not (HX and OPT["hs"]): s_store(Q, n - 4)
        if n == OPT["fhst"] and not HX: flag_store(Q, W_FH, "hst")
    else:
        if n == OPT["fhq"]: flag_store(Q, W_FH, "hst")
        if n == OPT["flp"]: Q.mark("fh_ld")
vTW, vTZ, vTZ2, vTN, vTD, vOA = 8, 9, 20, 21, 0, 34
vQT_ = 47
QF = Prog()
QF(f"""
s_and_b32 {sT0}, {sW}, 1
v_and_b32 {v(vQT_)}, 31, {v(vL)}
s_lshl_b32 {sT2}, {sCT}, 7
s_lshl_b32 {sT3}, {sT0}, 6
s_add_u32 {sT2}, {sT2}, {sT3}
""")
if TL:
    QF(f"""
    v_and_b32 {v(vDA)}, 7, {v(vL)}
    v_lshl_add_u32 {v(vDA)}, {v(vDA)}, 3, {sT2}
    s_lshl_b32 {sT3}, {sRA0}, 5
    v_lshrrev_b32 {v(vOUT)}, 3, {v(vL)}
    v_add_u32 {v(vOUT)}, {sT3}, {v(vOUT)}
    v_lshl_add_u32 {v(vOUT)}, {v(vOUT)}, 10, {v(vDA)}
    s_mov_b32 s78, 8192
    s_mov_b32 s79, 16384
    s_mov_b32 s80, 24576
    """)
else:
    QF(f"""
    v_lshl_add_u32 {v(vDA)}, {v(vHI)}, 3, {sT2}
    s_lshl_b32 {sT3}, {sRA0}, 5
    v_add_u32 {v(vOUT)}, {sT3}, {v(vQT_)}
    v_lshl_add_u32 {v(vOUT)}, {v(vOUT)}, 10, {v(vDA)}
    """)
QF.mark("xd_ok")
def gg_check(p):
    g_ = vG2 if HX else vGv
    p(f"v_xor_b32 {v(vT)}, {v(vTAG)}, {v(g_[0])}")
    p(f"v_bitop3_b32 {v(vT)}, {v(g_[1])}, {v(vTAG)}, {v(vT)} bitop3:0xbe")
    p(f"v_and_b32 {v(vT)}, {sFFFF}, {v(vT)}")
    p(f"v_cmp_ne_u32 vcc, 0, {v(vT)}")
if HX:
    spin("g", gg_load, gg_check, p=QF)
    for ra in range(2): QF(f"v_mov_b32 {v(vGv[ra])}, {v(vG2[ra])}")
else:
    QF(f"""
    s_lshl_b32 {sT2}, {sRA0}, 7
    s_add_u32 {sT2}, {sT2}, {W_G}
    v_lshl_add_u32 {v(vGL[0])}, {v(vQT_)}, 2, {sT2}
    v_xor_b32 {v(vGL[1])}, 128, {v(vGL[0])}
    """)
    QF.mark("gl_ok")
QF(f"""
s_lshr_b32 {sT1}, {sW}, 1
s_mul_i32 {sT2}, {sT0}, 1280
s_lshl_b32 {sT3}, {sT1}, 5
s_add_u32 {sT2}, {sT2}, {sT3}
s_add_u32 {sT2}, {sT2}, {TAB}
v_and_b32 {v(vTZ2)}, 15, {v(vL)}
v_mul_u32_u24 {v(vTW)}, 80, {v(vTZ2)}
v_lshrrev_b32 {v(vT2)}, 4, {v(vL)}
v_lshl_add_u32 {v(vTW)}, {v(vT2)}, 3, {v(vTW)}
v_add_u32 {v(vTW)}, {sT2}, {v(vTW)}
s_mul_i32 {sT2}, {sT0}, 80
s_add_u32 {sT2}, {sT2}, {sT3}
s_add_u32 {sT2}, {sT2}, {TAB + 32*80}
v_and_b32 {v(vTN)}, 3, {v(vL)}
v_lshlrev_b32 {v(vTZ)}, 3, {v(vTN)}
v_bfe_u32 {v(vT2)}, {v(vL)}, 4, 1
v_lshl_or_b32 {v(vTZ)}, {v(vT2)}, 2, {v(vTZ)}
v_lshl_or_b32 {v(vTZ)}, {v(vHI)}, 1, {v(vTZ)}
v_add_u32 {v(vTZ)}, {sT2}, {v(vTZ)}
v_lshlrev_b32 {v(vTZ2)}, 2, {v(vTZ2)}
v_add_u32 {v(vTZ2)}, {TAB + 34*80}, {v(vTZ2)}
v_bfe_u32 {v(vOA)}, {v(vL)}, 3, 2
v_lshl_add_u32 {v(vTN)}, {v(vOA)}, 2, {v(vTN)}
v_lshl_add_u32 {v(vTN)}, {v(vHI)}, 4, {v(vTN)}
v_mul_u32_u24 {v(vTN)}, 80, {v(vTN)}
v_add_u32 {v(vTN)}, {TAB}, {v(vTN)}
v_mul_u32_u24 {v(vTD)}, 80, {v(vHI)}
v_add_u32 {v(vTD)}, {TAB + 32*80}, {v(vTD)}
v_mov_b32 {v(vT2)}, {TAB + 34*80}
s_mov_b32 s76, 0xf0f0f0f0
s_mov_b32 s77, 0x0f0f0f0f
v_cndmask_b32 {v(vTN)}, {v(vTN)}, {v(vT2)}, s[76:77]
v_cndmask_b32 {v(vTD)}, {v(vTD)}, {v(vT2)}, s[76:77]
v_bfe_u32 {v(vT2)}, {v(vL)}, 1, 1
v_lshl_or_b32 {v(vOA)}, {v(vOA)}, 1, {v(vT2)}
v_and_b32 {v(vT2)}, 1, {v(vL)}
v_lshl_or_b32 {v(vOA)}, {v(vT2)}, 3, {v(vOA)}
v_bfe_u32 {v(vT2)}, {v(vL)}, 2, 1
v_lshl_or_b32 {v(vOA)}, {v(vT2)}, 4, {v(vOA)}
v_lshl_or_b32 {v(vOA)}, {v(vHI)}, 5, {v(vOA)}
v_lshlrev_b32 {v(vOA)}, 4, {v(vOA)}
s_lshr_b32 {sT2}, {sRA0}, 3
s_lshl_b32 {sT2}, {sT2}, 19
s_and_b32 {sT3}, {sRA0}, 7
s_lshl_b32 {sT3}, {sT3}, 12
s_add_u32 {sT2}, {sT2}, {sT3}
s_add_u32 {sT2}, {sT2}, {W_H}
""")
if OPT["crot"]:
    QF(f"""
    s_lshr_b32 {sT3}, {sCT}, 2
    s_add_u32 {sT3}, {sT3}, {sCT}
    s_add_u32 {sT3}, {sT3}, {sCG}
    s_and_b32 {sT3}, {sT3}, 1
    s_lshl_b32 {sT3}, {sT3}, 11
    s_add_u32 {sT2}, {sT2}, {sT3}
    """)
QF(f"""
v_add_u32 {v(vAH[0])}, {sT2}, {v(vL16)}
v_xor_b32 {v(vAH[1])}, 4096, {v(vAH[0])}
{"v_xor_b32 %s, 2048, %s" % (v(vAH2[0]), v(vAH[0])) if OPT["crot"] else ""}
{"v_xor_b32 %s, 2048, %s" % (v(vAH2[1]), v(vAH[1])) if OPT["crot"] else ""}
s_lshr_b32 {sT2}, {sRA0}, 4
s_lshl_b32 {sT2}, {sT2}, 19
s_and_b32 {sT3}, {sRA0}, 15
s_lshl_b32 {sT3}, {sT3}, 11
s_add_u32 {sT2}, {sT2}, {sT3}
s_add_u32 {sT2}, {sT2}, {W_O}
v_add_u32 {v(vAO[0])}, {sT2}, {v(vL16)}
v_xor_b32 {v(vAO[1])}, 2048, {v(vAO[0])}
""")
E.extend(weave_locked(Q, QF, ismf, 2))
dump("qT", [v(vQT2+i) for i in range(16)])
stamp("q done")
if HX: E.mark("fh_ok")
if OPT["gpos"] >= 32 and OPT["gp2"] < 0: E.mark("gather_ok")

vPQ = 224
SQ = Prog()
softmax(SQ, vQT2, vPQ, vU_RE, vU_IM, 164)
def fh_load(p): p(FH_LOAD)
def fl_check(p): p(f"v_cmp_ne_u32 vcc, {sTAG}, {v(vFLG)}")
def fh_check():
    E.drain("fhl")
    spin("fh", fh_load, fl_check)
    E.mark("fh_ok")
if ORD:
    ev = []
    if OPT["flp"] >= 32: ev.append(((OPT["flp"] - 32) * 10, 0, lambda: E.mark("fh_ld")))
    if OPT["gp2"] >= 0: ev.append((OPT["gp2"] * 10, 1, lambda: E.mark("gather_ok")))
    if OPT["fcp"] < 99: ev.append((OPT["fcp"] * 10, 2, fh_check))
    pos = 0
    for at, _, fn in sorted(ev, key=lambda x: x[:2]):
        at = min(at, len(SQ.ins))
        E.extend(SQ.ins[pos:at]); pos = at; fn()
    E.extend(SQ.ins[pos:])
else:
    cut = min(len(SQ.ins), OPT["fold"] * 10)
    E.extend(SQ.ins[:cut]); E.mark("fh_ld"); E.extend(SQ.ins[cut:])
dump("phiq", [v(vPQ+i) for i in range(16)])
stamp("softmax q")
tX, tDk = 208, 176
if not TL:
    E.drain("dk3")
    for i in range(8):
        E(f"v_lshlrev_b32 {v(tX+2*i)}, 16, {v(vXD+i)}")
        E(f"v_and_b32 {v(tX+2*i+1)}, {sHM}, {v(vXD+i)}")
        E(f"v_lshlrev_b32 {v(tDk+2*i)}, 16, {v(vDK+i)}")
        E(f"v_and_b32 {v(tDk+2*i+1)}, {sHM}, {v(vDK+i)}")
    for i in range(8):
        E(f"v_pk_mul_f32 {v(tX+2*i,2)}, {v(tX+2*i,2)}, {v(tDk+2*i,2)}")
    for i in range(8):
        E(f"v_cvt_pk_bf16_f32 {v(tDk+i)}, {v(tX+2*i)}, {v(tX+2*i+1)}")
    for i in range(8):
        E(f"v_lshlrev_b32 {v(vACC+2*i)}, 16, {v(tDk+i)}")
        E(f"v_and_b32 {v(vACC+2*i+1)}, {sHM}, {v(tDk+i)}")
    for i in range(8):
        E(f"v_pk_mul_f32 {v(vACC+2*i,2)}, {v(vACC+2*i,2)}, 0.5 op_sel_hi:[1,0]")
    E(f"v_lshlrev_b32 {v(vOUT)}, 1, {v(vOUT)}")

def g_check(p):
    if OPT["strip"]: return strip_check(p, [vGZ] + [vGA+4*r for r in range(16)])
    p(f"v_xor_b32 {v(vT)}, {v(vTAG)}, {v(vGZ)}")
    for r in range(16):
        p(f"v_bitop3_b32 {v(vT)}, {v(vGA+4*r)}, {v(vTAG)}, {v(vT)} bitop3:0xbe")
    p(f"v_and_b32 {v(vT)}, {sFF}, {v(vT)}")
    p(f"v_cmp_ne_u32 vcc, 0, {v(vT)}")
late_fh = (not ORD or OPT["fcp"] >= 99) and not HX
if late_fh: E.drain("fhl")
HN = [f"h{c}{k}{ra}" for c in range(4) for k in range(4) for ra in range(2)]
if HX and OPT["hd1"]: E.drain(HN[OPT["hd1"] - 1])
E.waitvm("gld")
spin("kv", gather_loads, g_check)
if late_fh: fh_check()
stamp("gather ok")
if not OPT["osent"]: E(f"v_add_u32 {v(vFLA)}, {W_FO - W_FH}, {v(vFLA)}")
st = 32
while st >= 4:
    for b in range(0, st, 4):
        for h in range(2):
            E(f"v_pk_add_f32 {v(vGA+b+2*h,2)}, {v(vGA+b+2*h,2)}, {v(vGA+b+st+2*h,2)}")
    st //= 2
E(f"""
v_permlane32_swap_b32 {v(vGZ)}, {v(vGZ+1)}
v_permlane32_swap_b32 {v(vGZ+2)}, {v(vGZ+3)}
v_cvt_pk_bf16_f32 {v(vGA)}, {v(vGA)}, {v(vGA+1)}
v_cvt_pk_bf16_f32 {v(vGA+1)}, {v(vGA+2)}, {v(vGA+3)}
v_add_f32 {v(vGZ)}, {v(vGZ)}, {v(vGZ+1)}
v_add_f32 {v(vGZ+2)}, {v(vGZ+2)}, {v(vGZ+3)}
ds_write_b64 {v(vTW)}, {v(vGA,2)}
v_mov_b32 {v(vGZ+1)}, 0
v_permlane16_swap_b32 {v(vGZ)}, {v(vGZ+2)}
v_add_f32 {v(vGZ)}, {v(vGZ)}, {v(vGZ+2)}
ds_write_b32 {v(vTZ2)}, {v(vGZ+1)}
v_add_f32_dpp {v(vGZ)}, {v(vGZ)}, {v(vGZ)} row_ror:8 row_mask:0xf bank_mask:0xf
v_add_f32_dpp {v(vGZ)}, {v(vGZ)}, {v(vGZ)} row_ror:4 row_mask:0xf bank_mask:0xf
v_cvt_pk_bf16_f32 {v(vGZ)}, {v(vGZ)}, {v(vGZ)}
ds_write_b16 {v(vTZ)}, {v(vGZ)}
""")
if not HX: spin("g", gg_load, gg_check)
if HX and OPT["hd2"]: E.drain(HN[OPT["hd2"] - 1])
E.waitlg(None)
E("s_barrier")
vTA, vTB, vNUM, vDEN = 104, 120, 136, 152
for s_ in range(4):
    E(f"ds_read_b128 {v(vTB+4*s_,4)}, {v(vTD)} offset:{16*s_}")
for s_ in range(4):
    E(f"ds_read_b128 {v(vTA+4*s_,4)}, {v(vTN)} offset:{16*s_}")
GR = Prog()
for ra in range(2):
    g_, r_ = vGv[ra], vRT[ra]
    GR(f"""
    v_and_b32 {v(g_)}, {sHM}, {v(g_)}
    v_sub_f32 {v(r_)}, 1.0, {v(g_)}
    v_max_f32 {v(g_)}, 0x0da24260, {v(g_)}
    v_cvt_pk_bf16_f32 {v(r_)}, {v(r_)}, {v(r_)}
    v_rcp_f32 {v(r_+1)}, {v(g_)}
    v_and_b32 {v(r_)}, {sHM}, {v(r_)}
    v_add_f32 {v(r_)}, {v(r_)}, {v(r_)}
    v_mul_f32 {v(r_)}, {v(r_)}, {v(r_+1)}
    """)
E.extend(GR.ins[:8])
DN = Prog()
for s_ in range(4):
    DN(f"v_mfma_f32_32x32x16_bf16 {v(vDEN,16)}, {v(vTB+4*s_,4)}, {v(vPQ+4*s_,4)}, {'0' if s_ == 0 else v(vDEN,16)}")
for s_ in range(4):
    DN(f"v_mfma_f32_32x32x16_bf16 {v(vNUM,16)}, {v(vTA+4*s_,4)}, {v(vPQ+4*s_,4)}, {'0' if s_ == 0 else v(vNUM,16)}")
vHC = [10, 12, 13]
def h_reload(c):
    def f(p):
        for k in range(4):
            for ra in range(2): p(h_ld(c, k, ra))
    return f
def h_check(c):
    def f(p):
        r = [aXF + ((c*4+k)*2+ra)*4 for k in range(4) for ra in range(2)]
        for i in range(3): p(f"v_accvgpr_read_b32 {v(vHC[i])}, {a(r[i])}")
        p(f"v_max3_u32 {v(vHC[0])}, {v(vHC[0])}, {v(vHC[1])}, {v(vHC[2])}")
        for i in (3, 5):
            for j in range(2): p(f"v_accvgpr_read_b32 {v(vHC[1+j])}, {a(r[i+j])}")
            p(f"v_max3_u32 {v(vHC[0])}, {v(vHC[0])}, {v(vHC[1])}, {v(vHC[2])}")
        p(f"v_accvgpr_read_b32 {v(vHC[1])}, {a(r[7])}")
        p(f"v_max_u32 {v(vHC[0])}, {v(vHC[0])}, {v(vHC[1])}")
        p(f"v_cmp_eq_u32 vcc, -1, {v(vHC[0])}")
    return f
def h_ck(c):
    p = Prog(); p.drain(f"h{c}31")
    spin(f"h{c}", h_reload(c), h_check(c), p=p)
    return list(p.ins)
E.extend(weave(DN, GR.ins[8:] + (h_ck(0) if HX == 2 else []), every=1, per=4))
E.drainaux(8)
E(f"""
v_cvt_pk_bf16_f32 {v(vDEN)}, {v(vDEN)}, {v(vDEN)}
v_and_b32 {v(vDEN)}, {sHM}, {v(vDEN)}
v_add_f32 {v(vDEN)}, 0x358637bd, {v(vDEN)}
v_cvt_pk_bf16_f32 {v(vDEN)}, {v(vDEN)}, {v(vDEN)}
v_and_b32 {v(vDEN)}, {sHM}, {v(vDEN)}
v_rcp_f32 {v(vDEN)}, {v(vDEN)}
""")
for i in range(8):
    E(f"v_cvt_pk_bf16_f32 {v(vTA+i)}, {v(vNUM+2*i)}, {v(vNUM+2*i+1)}")
for i in range(8):
    E(f"v_lshlrev_b32 {v(vNUM+2*i)}, 16, {v(vTA+i)}")
    E(f"v_and_b32 {v(vNUM+2*i+1)}, {sHM}, {v(vTA+i)}")
for i in range(8):
    E(f"v_pk_mul_f32 {v(vNUM+2*i,2)}, {v(vNUM+2*i,2)}, {v(vDEN,2)} {LO2}")
for i in range(8):
    E(f"v_cvt_pk_bf16_f32 {v(vTA+i)}, {v(vNUM+2*i)}, {v(vNUM+2*i+1)}")
for b in range(2):
    E(f"buffer_store_dwordx4 {v(vTA+4*b,4)}, {v(vOA)}, {SRD_WS}, {sOS} offen offset:{b*1024}{LST}", tok="ost")
dump("o", [v(vTA+i) for i in range(8)])
stamp("o stored")
if HX and OPT["hd3"]: E.drain(HN[OPT["hd3"] - 1])

def acc(ra, nb): return v(vACC + (ra*2+nb)*16, 16)
def hm(p, c, k, ra, nb):
    first = (c == 0 and k == 0 and ((ra, nb) != (0, 0) or TL))
    p(f"v_mfma_f32_32x32x16_bf16 {acc(ra,nb)}, {a(aCF + ((c*4+k)*2+nb)*4, 4)}, {a(aXF + ((c*4+k)*2+ra)*4, 4)}, {'0' if first else acc(ra,nb)}")
def fo_load(p): p(FH_LOAD)
vRW = [23, 24, 25]; vRR = 10
RA = Prog()
XD = Prog()
vXR_ = [48, 50, 52, 54, 56, 58, 16, 18]
vGQ = [8, 20]; vRQ = [38, 46]; vDU = 22
vWA = [14, 15, 22, 23]; vRA = [26, 27, 28, 29]
if TL:
    XD(f"v_lshrrev_b32 {v(vT2)}, 3, {v(vL)}")
    XD(f"v_lshlrev_b32 {v(vT2)}, 2, {v(vT2)}")
    for q in range(4): XD(f"ds_bpermute_b32 {v(vGQ[q>>1] + (q&1))}, {v(vT2)}, {v(vGv[0])} offset:{32*q}")
    XD.waitvm("xdl")
    for i in range(2):
        XD(f"v_lshlrev_b32 {v(vDU+2*i)}, 16, {v(vDK2+i)}")
        XD(f"v_and_b32 {v(vDU+2*i+1)}, {sHM}, {v(vDK2+i)}")
    for j in range(8):
        XD(f"v_lshlrev_b32 {v(vXR_[j])}, 16, {v(vXD2+j)}")
        XD(f"v_and_b32 {v(vXR_[j]+1)}, {sHM}, {v(vXD2+j)}")
    for j in range(8):
        for h in range(2): XD(f"v_mul_f32 {v(vXR_[j]+h)}, {v(vXR_[j]+h)}, {v(vDU+2*(j&1)+h)}")
    for j in range(8): XD(f"v_cvt_pk_bf16_f32 {v(vXD2+j)}, {v(vXR_[j])}, {v(vXR_[j]+1)}")
    for q in range(4):
        r_ = vRQ[q>>1] + (q&1)
        XD(f"v_sub_f32 {v(r_)}, 1.0, {v(vGQ[q>>1] + (q&1))}")
    for q in range(4):
        r_ = vRQ[q>>1] + (q&1)
        XD(f"v_cvt_pk_bf16_f32 {v(r_)}, {v(r_)}, {v(r_)}")
    for q in range(4):
        r_ = vRQ[q>>1] + (q&1)
        XD(f"v_and_b32 {v(r_)}, {sHM}, {v(r_)}")
    for j in range(8):
        XD(f"v_lshlrev_b32 {v(vXR_[j])}, 16, {v(vXD2+j)}")
        XD(f"v_and_b32 {v(vXR_[j]+1)}, {sHM}, {v(vXD2+j)}")
    for j in range(8):
        q = j >> 1
        for h in range(2): XD(f"v_mul_f32 {v(vXR_[j]+h)}, {v(vXR_[j]+h)}, {v(vRQ[q>>1] + (q&1))}")
    WAP = Prog(); RAP = Prog()
    WAP(f"""
    s_lshl_b32 {sT2}, {sW}, 12
    v_and_b32 {v(vT2)}, 7, {v(vL)}
    v_xor_b32 {v(vWA[0])}, {v(vT2)}, {v(vHI)}
    v_and_b32 {v(vWA[1])}, 31, {v(vL)}
    v_lshl_add_u32 {v(vWA[1])}, {v(vWA[1])}, 7, {sT2}
    v_lshl_or_b32 {v(vWA[0])}, {v(vWA[0])}, 4, {v(vWA[1])}
    v_xor_b32 {v(vWA[1])}, 32, {v(vWA[0])}
    v_xor_b32 {v(vWA[2])}, 64, {v(vWA[0])}
    v_xor_b32 {v(vWA[3])}, 0x60, {v(vWA[0])}
    """)
    RAP(f"""
    v_lshrrev_b32 {v(vRA[2])}, 3, {v(vL)}
    v_xor_b32 {v(vT2)}, {v(vT2)}, {v(vRA[2])}
    v_lshl_add_u32 {v(vRA[1])}, {v(vRA[2])}, 7, {sT2}
    v_lshl_or_b32 {v(vRA[0])}, {v(vT2)}, 4, {v(vRA[1])}
    v_xor_b32 {v(vRA[1])}, 4096, {v(vRA[0])}
    v_xor_b32 {v(vRA[2])}, 8192, {v(vRA[0])}
    v_xor_b32 {v(vRA[3])}, 12288, {v(vRA[0])}
    v_lshlrev_b32 {v(vOUT)}, 1, {v(vOUT)}
    s_mov_b32 s81, 32768
    s_mov_b32 s82, 49152
    s_or_b32 {sT3}, s2, {sW}
    v_mov_b32 {v(vT)}, {W_EPOCH}
    """)
else:
    for a_ in range(1, 4):
        RA(f"s_xor_b32 {sT2}, {sW}, {a_}")
        RA(f"s_mul_i32 {sT2}, {sT2}, 12288")
        RA(f"s_add_u32 {sT2}, {sT2}, {(a_-1)*4096}")
        RA(f"v_add_u32 {v(vRW[a_-1])}, {sT2}, {v(vL16)}")
    RA(f"s_mul_i32 {sT2}, {sW}, 12288")
    RA(f"v_add_u32 {v(vRR)}, {sT2}, {v(vL16)}")
xd_left = list(XD.ins)
def scale(ra, nb):
    p = Prog()
    for i in range(16):
        r = vACC + (ra*2+nb)*16 + i
        p(f"v_mul_f32 {v(r)}, {v(vRT[ra])}, {v(r)}")
    return p
hseq = [(c, k, ra, nb) for c in range(3) for k in range(4) for ra in range(2) for nb in range(2)]
accs = [(0, 0), (0, 1), (1, 0), (1, 1)]
hseq += [(3, k, ra, nb) for ra, nb in accs for k in range(4)]
sc_left = []; hc_left = []
for n_, (c, k, ra, nb) in enumerate(hseq):
    if OPT["osent"]:
        if n_ == OPT["old"]: E.mark("fo_ok"); stamp("o ld")
    else:
        if n_ == OPT["fost"]:
            flag_store(E, W_FO, "ost"); stamp("fo flag")
        if n_ == OPT["fost"] + OPT["fogap"]:
            fo_load(E); E.ins[-1].lat = OPT["lm"]; E.ins[-1].lines = 1
        if n_ == OPT["fochk"]:
            spin("fo", fo_load, fl_check); E.mark("fo_ok"); stamp("fo ok")
    E.drain(f"h{c}{k}{ra}")
    hm(E, c, k, ra, nb)
    if HX == 2 and n_ < 48:
        if n_ % 16 == OPT["hck"]: hc_left = h_ck(n_ // 16 + 1)
        k_ = OPT["hcper"] if n_ % 16 < 15 else 1000
        while hc_left and k_ > 0:
            c_ = hc_left.pop(0); E.ins.append(c_)
            if c_.kind not in ("pseudo", "label"): k_ -= 1
    if n_ >= OPT["xdpos"]:
        k_ = OPT["xdper"] if n_ < 55 else 1000
        while xd_left and k_ > 0:
            c_ = xd_left.pop(0); E.ins.append(c_)
            if c_.kind != "pseudo": k_ -= 1
    if n_ >= 56:
        if n_ % 4 == 0: sc_left = scale(*accs[(n_ - 56) // 4]).ins
        E.extend(sc_left[:4]); sc_left = sc_left[4:]
if OPT["osent"] and OPT["old"] == 64: E.mark("fo_ok"); stamp("o ld")
if OPT["fochk"] == 64 and not OPT["osent"]:
    spin("fo", fo_load, fl_check); E.mark("fo_ok"); stamp("fo ok")
def om(p, c, b, ra, nb):
    p(f"v_mfma_f32_32x32x16_bf16 {acc(ra,nb)}, {v(vWOFR + ((c*2+b)*2+nb)*4, 4)}, {v(vOF + ((c*2+b)*2+ra)*4, 4)}, {acc(ra,nb)}")
stamp("h done")
E.drainaux()
E.extend(RA)
def o_reload(h):
    def f(p):
        for x in o_order[8*h:8*h+8]: p(o_ld(*x))
    return f
def o_check(h):
    def f(p):
        r = [vOF + ((c*2+b)*2+ra)*4 for c, b, ra in o_order[8*h:8*h+8]]
        p(f"v_max3_u32 {v(vT)}, {v(r[0])}, {v(r[1])}, {v(r[2])}")
        p(f"v_max3_u32 {v(vT)}, {v(vT)}, {v(r[3])}, {v(r[4])}")
        p(f"v_max3_u32 {v(vT)}, {v(vT)}, {v(r[5])}, {v(r[6])}")
        p(f"v_max_u32 {v(vT)}, {v(vT)}, {v(r[7])}")
        p(f"v_cmp_eq_u32 vcc, -1, {v(vT)}")
    return f
if OPT["osent"]:
    E.drain("o%d%d%d" % o_order[7])
    spin("o1", o_reload(0), o_check(0)); stamp("o1 ok")
for g_ in range(4):
    p = Prog()
    for c, b, ra in o_order[2*g_:2*g_+2]:
        p.drain(f"o{c}{b}{ra}")
        for nb in range(2): om(p, c, b, ra, nb)
    if g_ < 2: E.extend(weave(p, scale(*accs[2+g_]), pred=ismf, per=4))
    elif g_ == 3 and OPT["osent"]:
        E.drain("o%d%d%d" % o_order[15])
        ck = Prog(); o_check(1)(ck)
        E.extend(weave(p, ck, pred=ismf, per=2))
        spin("o2", o_reload(1), o_check(1), emit=False)
    else: E.extend(p)
def wr(a_):
    p = Prog()
    for q in range(4):
        if TL: p(f"ds_write_b128 {v(vWA[q])}, {v(vACC + 16*a_ + 4*q, 4)} offset:{a_*16384}")
        else: p(f"ds_write_b128 {v(vRW[a_-1])}, {v(vACC + 16*a_ + 4*q, 4)} offset:{q*1024}")
    return p
E.drain("o311")
tail = [(1, 0), (1, 1), (0, 1), (0, 0)]
for n_, (ra, nb) in enumerate(tail):
    if n_ == 2: E.drain("o310")
    p = Prog()
    for c in (2, 3):
        for b in range(2): om(p, c, b, ra, nb)
    if TL:
        W_ = lambda k: wr(tail[k][0]*2 + tail[k][1]).ins
        if n_ == 0: E.extend(p)
        elif n_ == 1: E.extend(weave(p, WAP, pred=ismf, per=3))
        elif n_ == 2: E.extend(weave(p, W_(0), pred=ismf, per=1))
        else:
            m_ = p.ins; R_ = RAP.ins; wb = W_(1); wc = W_(2)
            E.extend(m_[:1] + R_[:3] + wb[:2] + m_[1:2] + wb[2:] + m_[2:3] + R_[3:5] + wc[:2] + m_[3:] + wc[2:] + R_[5:])
    elif n_ < 2: E.extend(p)
    else:
        pa = tail[n_-2]
        E.extend(weave(p, wr(pa[0]*2 + pa[1]), pred=ismf, per=1))
E.extend(wr(0 if TL else 1))
stamp("o done")
E.waitlg(None)
E("s_barrier")
OSC = ["", " sc1", " nt", " sc0 sc1"][OPT["outsc"]]
if TL:
    for q in range(4):
        for a_ in range(4):
            E(f"ds_read_b128 {v(128 + 16*q + 4*a_, 4)}, {v(vRA[a_])} offset:{a_*16384 + q*1024}")
    for q in range(4):
        b_ = 128 + 16*q
        for i in range(2):
            E(f"v_pk_add_f32 {v(b_+2*i,2)}, {v(b_+2*i,2)}, {v(b_+4+2*i,2)}")
            E(f"v_pk_add_f32 {v(b_+8+2*i,2)}, {v(b_+8+2*i,2)}, {v(b_+12+2*i,2)}")
        for i in range(2):
            E(f"v_pk_add_f32 {v(b_+2*i,2)}, {v(b_+2*i,2)}, {v(b_+8+2*i,2)}")
        for i in range(2):
            E(f"v_pk_fma_f32 {v(b_+2*i,2)}, {v(b_+2*i,2)}, {v(vGQ[q>>1],2)}, {v(vXR_[2*q+i],2)} {HI if q & 1 else LO}")
        E(f"buffer_store_dwordx4 {v(b_,4)}, {v(vOUT)}, {SRD_OUT}, {sQ16[q]} offen" + OSC)
else:
  for a_ in range(3):
    for q in range(4):
        E(f"ds_read_b128 {v(128 + 16*a_ + 4*q, 4)}, {v(vRR)} offset:{a_*4096 + q*1024}")
  for q in range(4):
    for a_ in range(3):
        for i in range(2):
            E(f"v_pk_add_f32 {v(vACC+4*q+2*i,2)}, {v(vACC+4*q+2*i,2)}, {v(128+16*a_+4*q+2*i,2)}")
    for i in range(2):
        E(f"v_pk_mul_f32 {v(vACC+4*q+2*i,2)}, {v(vACC+4*q+2*i,2)}, {v(vGv[0],2)} {LO2}")
    E(f"buffer_store_dwordx4 {v(vACC+4*q,4)}, {v(vOUT)}, {SRD_OUT}, 0 offen offset:{32*q}" + OSC)
if STAMPS:
    E.waitvm(None)
    stamp("end")
    E(f"""
    s_lshl_b32 {sT2}, s2, 11
    s_lshl_b32 {sT3}, {sW}, 9
    s_add_u32 {sT2}, {sT2}, {sT3}
    s_add_u32 {sT2}, {sT2}, {W_ST}
    v_lshlrev_b32 {v(vT)}, 3, {v(vL)}
    v_mov_b32 {v(100)}, {v(vDBG)}
    v_mov_b32 {v(101)}, 0
    buffer_store_dwordx2 {v(100,2)}, {v(vT)}, {SRD_WS}, {sT2} offen
    """)
if STAMPS or not TL:
    E(f"s_or_b32 {sT3}, s2, {sW}")
    E(f"v_mov_b32 {v(vT)}, {W_EPOCH}")
E(f"""
s_cmp_lg_u32 {sT3}, 0
s_cbranch_scc1 L_end
s_mov_b64 exec, 1
buffer_store_dword {v(vTAG)}, {v(vT)}, {SRD_WS}, 0 offen sc1
L_end:
s_endpgm
""")

for c in [c for c in main.ins if c.kind == "label" and c.text.startswith("L_back_")]:
    main.ins.remove(c)
    k = [i for i, b in enumerate(main.ins) if b.kind == "sopp" and b.text.split()[-1] == "L_slow_" + c.text[7:].rstrip(":")]
    assert len(k) == 1
    main.ins.insert(k[0] + 1, c)
log = []
woven = stream_weave2(main, items, aux, lat=OPT["lat"], stlat=OPT["stlat"], taq=OPT["taq"], log=log, margin=OPT["amargin"], cyc_line=OPT["cl"], capf=OPT["capf"]/100, sthol=OPT["sthol"])
if OPT["log"]:
    for nm, t, ts, it in log:
        if OPT["log"] > 1 or not nm.startswith("  it"): print(f"{nm:14s} t={t:6d} ({t/2200:.2f}us) ts={ts:6d} next={items[it].name if it < len(items) else '-'}")
stats = {}
fine = None
if OPT["fine"]:
    a_, b_ = OPT["fine"].replace("_", " ").split(":")
    fine = dict(start=a_, end=b_, names=[], clk="s_memrealtime" if STAMPS == 1 else "s_memtime", vm=OPT["fvm"], skip=OPT["fskip"])
body = finalize(woven.ins, stats, fine, lgk=OPT["lgk"]) + ["L_code_end:"] + finalize(slow.ins)
if OPT["al"]:
    body, alst = align_pass(body, level=OPT["al"])
    print("align: cost %.2f promoted %d of %d" % alst)
if fine: stnames += [""] * (32 - len(stnames)) + fine["names"]
hdr = open("gated_mix__linear_kernel_hedgehog__ssm_conv_s5__prompt.s.ref").read().split("\n")
head = [l for l in hdr if l.startswith(";") and "@launch" not in l and "Override" not in l and "grid=ceil" not in l]
out = head + ["; @launch grid=(256,1,1) block=(256,1,1) lds=163840",
  '.amdgcn_target "amdgcn-amd-amdhsa--gfx950"', ".text", f".globl {KN}", ".p2align 8", f".type {KN},@function", f"{KN}:"]
out += body
out += ['.section .rodata,"a"', ".p2align 6", f".amdhsa_kernel {KN}", "  .amdhsa_next_free_vgpr 512", "  .amdhsa_next_free_sgpr 102",
  "  .amdhsa_accum_offset 256", "  .amdhsa_group_segment_fixed_size 0", "  .amdhsa_kernarg_size 136", "  .amdhsa_user_sgpr_count 2",
  "  .amdhsa_user_sgpr_kernarg_segment_ptr 1", "  .amdhsa_system_sgpr_workgroup_id_x 1", ".end_amdhsa_kernel"]
import json
if STAMPS: out += ["; STNAMES " + json.dumps(stnames), "; OPTS " + " ".join(sys.argv[2:])]
open(sys.argv[1], "w").write("\n".join(out) + "\n")
json.dump(dbg_names, open(sys.argv[1] + ".dbg.json", "w"))
json.dump(stnames, open(sys.argv[1] + ".st.json", "w"))
print("lines", len(body), "nops", stats["nops"], "stamps", nst[0], "dbg slots", dbg_slot[0])
```

```python
import sys
sys.path.insert(0, "dev")
from asmlib import Prog, weave, finalize, I, Item, Aux, stream_weave2, align_pass

OPT = dict(dbg=0, stamps=0, spin=4096, pf=1, outsc=0, early=10, thresh=448, tw=600, lat=500, cold=2000, wl=16, tlb=1,
           glpos=3, margin=64, log=0, cl=8, rot=0, fine='', nt=0,
           wo1=2, wo2=2, cold2=1500, lm=900, stlat=900, taq=2, pfg=0, pfm=1, pflat=1100, p0=1, p1=3, p2=5, p3=7, capf=100, fhst=22, fold=14, fost=28, fogap=12, fochk=56, hpf=0, al=3, epos=24, osent=1, old=32, upf=0, upos=0, ulat=1500, sentpos=1, gpos=16, eaft=1, latc=1300, latc2=600, latw=1000, lgk=100, amargin=300, sthol=1, wpf=0, wpos=1, gfirst=1, crot=0, wopf=0, pro=1, wqpf=0, latw0=500, fvm=0, fskip=0, tl=1, xdpos=20, xdper=4, usp=0, ksp=1, strip=2, ord=0, sord='ABGFCDXH', fhq=-2, flp=44, fcp=99, sk1=30, sk2=30, gp2=-1, map=0, loc=0, mrot=0, crt=0, c3=0, c3w=1, c3o=3, fpf=0, fpp=0, sl=0, slp=1, smp=0, tagl=0, nost=0, hx=0, hsp=2, hs=1, gaft=3, glk=60, hck=4, hcper=2, stl=8, g3f=0, hsd=1, hd1=0, hd2=0, hd3=0, hl=900, mw=0, mv=0, mvp=0, mvl=1200, olock=0, ol2=0, slock=0, m3b=0, gfly=0, nfirst=0, dsp=0)
for a in sys.argv[2:]:
    k, v = a.split("="); assert k in OPT, k; OPT[k] = v if k in ("fine", "sord") else int(v, 0)
LST = " sc1" if not OPT["loc"] else ""
LLD = [" sc1", "", " sc1", " sc0"][OPT["loc"]]
NT = lambda b: ' nt' if OPT['nt'] >> b & 1 else ''
DBG = OPT["dbg"]; STAMPS = OPT["stamps"]
KN = "gated_mix__linear_kernel_hedgehog__ssm_conv_s5__prompt_kernel"

RB = 98304; S1 = 32768; S2 = 65536; TAB = S2 + 5120; XCH = RB
W_EPOCH = 0; W_G = 0x1000; W_E = 0x4000; W_FH = 0x24000; W_FO = 0x28000; W_KVP = 0x30000; W_ZP = 0x130000
W_H = 0x200000; W_O = 0x600000; W_DBG = 0x1000000; W_ST = 0x900000
P_WPHI = "s[8:9]"; P_LRE = "s[14:15]"; P_LIM = "s[16:17]"; P_LDT = "s[26:27]"; P_DSK = "s[28:29]"; P_GW = "s[30:31]"
SRD_X, SRD_W, SRD_B, SRD_CR, SRD_CI, SRD_WO, SRD_WS, SRD_OUT = [f"s[{i}:{i+3}]" for i in range(40, 72, 4)]
sXo = [f"s{72+j}" for j in range(8)]; sWo = [f"s{80+j}" for j in range(8)]
sRB, sCG, sW, sTAG, sRT, sCT, sRG, sT0, sT1, sFF, sT2, sSPIN = [f"s{i}" for i in range(88, 100)]
sM1, sM2, sM3 = "s[4:5]", "s[6:7]", "s[10:11]"
sHI = "s[12:13]"
sCgC = [f"s{18+c}" for c in range(4)]; sCgW = [f"s{22+c}" for c in range(4)]
sRING, sPW, sHM, sL2E = "s34", "s35", "s32", "s[38:39]"
sFFFF = "s33"; sT3 = "s3"
sRINGB = "s0"
sEP, sKV, sZP, sKVP, sZPP = "s36", "s37", "s9", "s1", "s17"
sFL, sFP, sHS, sOS = "s8", "s14", "s15", "s16"
sGRP = sSPIN
sRA0, sGP = "s26", "s27"
def v(i, n=1): return f"v{i}" if n == 1 else f"v[{i}:{i+n-1}]"
def a(i, n=1): return f"a{i}" if n == 1 else f"a[{i}:{i+n-1}]"
vL, vHI, vT = 1, 2, 3
vX = [4, 5, 6, 7]; vB = [8, 9]; vWq = 11
vXf = [12, 13, 14, 15]; vCf = [16, 17, 18, 19]; vBf = [20, 21, 22, 23]; vTRkv, vTRq = 24, 25
vC = [26, 27, 28, 29]; vWO = [30, 31, 32, 33]; vWOf = [36, 37]
vLAM, vL8, vL16p, vL32, vMU, vMU2, vCOEF = 38, 40, 42, 44, 46, 48, 50
vA1, vA2 = 52, 56
vTAG, vL16, vT2, vDBG = 60, 61, 62, 63
vU_RE, vU_IM = 64, 80
vKT, vVV, vQT = 96, 112, 128
vFR = 144
vWOFR = 192
vALR, vALI, vBER, vBEI = 4, 6, 12, 14
vALR0, vALI0 = 188, 190
vXR, vEL = 0, 10
vXW = 34
vFLA = 35
vPhW, vVW, vPhR, vVR = 8, 9, 20, 21
vHW, vHR = 22, 23
aXF = 128; aCF = 0

main = Prog(); slow = Prog()
E = main
items = []; aux = []
dbg_slot = [0]; dbg_names = []
def dump(name, regs, p=None):
    if not DBG: return
    p = p or main
    for r in regs:
        p(f"s_mov_b32 {sT3}, {W_DBG + dbg_slot[0]*262144}")
        p(f"buffer_store_dword {r}, {v(vDBG)}, {SRD_WS}, {sT3} offen")
        dbg_slot[0] += 1
    dbg_names.append((name, dbg_slot[0] - len(regs), len(regs)))
nst = [0]; stnames = []
def stamp(name, p=None):
    p = p or main
    p.mark(name)
    if not STAMPS or OPT["nost"] and name in ("addr", "xb0 landed"): return
    k = nst[0]; nst[0] += 1; stnames.append(name)
    p(f"s_memrealtime s[100:101]" if STAMPS == 1 else "s_memtime s[100:101]")
    p(f"v_writelane_b32 {v(vDBG)}, s100, {k}")
nspin = [0]
def spin(name, reload_fn, check_fn, emit=True, p=None):
    p = p or main
    if emit: check_fn(p)
    p(f"s_cbranch_vccnz L_slow_{name}")
    p(f"L_back_{name}:")
    slow(f"L_slow_{name}:")
    slow(f"s_mov_b32 {sSPIN}, {OPT['spin']}")
    slow(f"L_loop_{name}:")
    slow("s_nop 4")
    reload_fn(slow)
    slow("s_waitcnt vmcnt(0)")
    check_fn(slow)
    slow("s_nop 4")
    if STAMPS:
        slow(f"s_cbranch_vccnz L_more_{name}")
        slow(f"s_sub_u32 {sSPIN}, {OPT['spin']+1}, {sSPIN}")
        slow(f"s_mul_i32 {sSPIN}, {sSPIN}, 100")
        slow(f"v_readlane_b32 s100, {v(vDBG)}, 0")
        slow("s_nop 4")
        slow(f"s_add_u32 {sSPIN}, {sSPIN}, s100")
        slow(f"v_writelane_b32 {v(vDBG)}, {sSPIN}, {27 + nspin[0]}")
        slow(f"s_branch L_back_{name}")
        slow(f"L_more_{name}:")
    else:
        slow(f"s_cbranch_vccz L_back_{name}")
    slow(f"s_sub_u32 {sSPIN}, {sSPIN}, 1")
    slow(f"s_cbranch_scc0 L_loop_{name}")
    slow(f"s_branch L_back_{name}")
    nspin[0] += 1

def cmul_add(p, d, x, lam, y):
    p(f"v_fma_f32 {v(d)}, {v(lam)}, {v(x)}, {v(y)}")
    p(f"v_fma_f32 {v(d+1)}, {v(lam)}, {v(x+1)}, {v(y+1)}")
    p(f"v_fma_f32 {v(d)}, -{v(lam+1)}, {v(x+1)}, {v(d)}")
    p(f"v_fma_f32 {v(d+1)}, {v(lam+1)}, {v(x)}, {v(d+1)}")
def cmul(p, d, x, y):
    p(f"v_mul_f32 {v(d)}, {v(x)}, {v(y)}")
    p(f"v_mul_f32 {v(d+1)}, {v(x)}, {v(y+1)}")
    p(f"v_fma_f32 {v(d)}, -{v(x+1)}, {v(y+1)}, {v(d)}")
    p(f"v_fma_f32 {v(d+1)}, {v(x+1)}, {v(y)}, {v(d+1)}")
def csq(p, d, x): cmul(p, d, x, x)
LO = "op_sel:[0,0,0] op_sel_hi:[1,0,1]"; HI = "op_sel:[0,1,0] op_sel_hi:[1,1,1]"
LO2 = "op_sel:[0,0] op_sel_hi:[1,0]"; HI2 = "op_sel:[0,1] op_sel_hi:[1,1]"
NEG1 = "neg_lo:[0,1,0] neg_hi:[0,1,0]"
def P(text, tok=None):
    p = Prog(); p(text, tok=tok); return p
ismf = lambda c: c.kind == "mfma"

M3 = int(OPT["map"] == 3)
def it_x(j):
    slot = j if j < 6 else j - 6
    for q in range(4):
        p = Prog()
        if q == 0: p(f"s_add_u32 m0, {sRING}, {slot*16384}")
        p(f"buffer_load_dwordx4 {v(vX[q])}, {SRD_X}, {sXo[j]} offen offset:{q*1024}{NT(0)} lds", tok=f"xb{j}" if M3 else None)
        items.append(Item(p, 8, after=(f"xr{j-6}" if j >= 6 else None), name=f"x{j}_{q}", lat=OPT["cold"] if j < 1 else OPT["cold2"] if j == (4 if OPT["rot"] == 4 else 1) and not M3 else None))
def it_b(j):
    for q in range(2):
        p = Prog()
        if q == 0: p(f"s_add_u32 m0, {sRINGB}, {j*8192}")
        p(f"buffer_load_dwordx4 {v(vB[q])}, {SRD_B}, {sXo[j]} offen offset:{q*1024}{NT(1)} lds", tok=f"xb{j}")
        items.append(Item(p, 8, name=f"b{j}_{q}", lat=OPT["cold"] if j < 1 + M3 else None))
vGX0, vGX1, vGW = 96, 100, 104
def it_g():
    items.append(Item(P(f"buffer_load_dwordx4 {v(vGX0,4)}, {v(vL16)}, {SRD_X}, {sGP} offen"), 8, name="g0", after="addr"))
    items.append(Item(P(f"buffer_load_dwordx4 {v(vGX1,4)}, {v(vL16)}, {SRD_X}, {sGP} offen offset:1024"), 8, name="g1"))
vPFa, vPFb, vJUNK, vK3 = 176, 177, 180, 178
def it_pf(gp):
    p = Prog()
    p(f"s_cmp_lg_u32 {sGRP}, {gp}")
    p(f"s_cbranch_scc1 L_pf{gp}")
    srd_ = [SRD_W, SRD_CR, SRD_CI, SRD_WO][gp]
    p(f"buffer_load_dword {v(vJUNK)}, {v(vPFa)}, {srd_}, 0 offen")
    p(f"buffer_load_dword {v(vJUNK)}, {v(vPFb)}, {srd_}, 0 offen")
    for c in p.ins[-2:]:
        c.ghost = True; c.nomodel = gp != OPT["pfm"]
    p(f"L_pf{gp}:")
    items.append(Item(p, 128, after="addr", name=f"pf{gp}", lat=OPT["pflat"]))
def it_wpf():
    for o_ in ([1024, 2048, 0] if OPT["wpf"] == 1 else [1024, 2048]):
        items.append(Item(P(f"buffer_load_dword {v(vJUNK)}, {v(vWq)}, {SRD_W}, {sWo[0]} offen offset:{o_}"), 16, after="waddr", name="wpf", lat=OPT["cold2"]))
vWP = 144; vSB = 175 if OPT["sl"] & 1 else 201
def small2():
    return [f"global_load_ushort {v(vWP + e)}, {v(vSB)}, {P_WPHI} offset:{(e&3)*32 + (e>>2)*256}" for e in range(8)] + [f"global_load_dwordx4 {v(vGW,4)}, {v(vL16)}, {P_GW}"]
def it_mv():
    for b_, srd_ in enumerate((SRD_CR, SRD_CI, SRD_WO)):
        if OPT["mv"] >> b_ & 1:
            items.append(Item(P(f"buffer_load_dword v{181 + b_}, v176, {srd_}, 0 offen"), 4, after="addr", name=f"mv{b_}", lat=OPT["mvl"]))
HX = OPT["hx"]; vSN = 180
def it_sent():
    for n in range(6):
        so, o_ = (sHS, n) if n < 4 else (sOS, n - 4)
        items.append(Item(P(f"buffer_store_dwordx4 {v(vSN,4)}, {v(vL16)}, {SRD_WS}, {so} offen offset:{o_*1024} sc1", tok="sent"), OPT["stl"], after="addr", name=f"sn{n}"))
for j in range(8):
    if M3 and j == 1: it_b(j)
    it_x(j)
    if HX and OPT["hs"] and OPT["hsp"] == 2*j: it_sent()
    if OPT["wpf"] and OPT["wpos"] == j: it_wpf()
    if not (M3 and j == 1): it_b(j)
    if HX and OPT["hs"] and OPT["hsp"] == 2*j + 1: it_sent()
    if OPT["sl"] & 1 and j == OPT["slp"]:
        for k_, t_ in enumerate(small2()): items.append(Item(P(t_), 4 if k_ < 8 else 8, after="addr", name=f"sm{k_}", lat=OPT["cold2"] if k_ in (0, 8) else None))
    if j == OPT["glpos"]: it_g()
    if OPT["mvp"] == 10 + j: it_mv()
    if OPT["c3"] & 1 and j == OPT["c3w"]:
        items.append(Item(P(f"buffer_load_dword {v(vJUNK)}, {v(vPFa)}, {SRD_W}, 0 offen"), 24 if OPT["c3"] & 8 else 12, after="addr", name="c3w", lat=OPT["cold2"]))
    if OPT["c3"] & 2 and j == OPT["c3o"]:
        items.append(Item(P(f"buffer_load_dword {v(vJUNK+1)}, {v(vPFb)}, {SRD_WO}, 0 offen offset:384"), 4, after="addr", name="c3o", lat=OPT["cold2"]))
    if OPT["pfg"]:
        for gp in range(4):
            if OPT[f"p{gp}"] == j: it_pf(gp)
def it_upf():
    n = {1: 1, 2: 2, 3: 4}[OPT["upf"]]
    for srd_ in (SRD_CR, SRD_CI, SRD_WO):
        for q in range(n):
            if OPT["upf"] == 3: t = f"buffer_load_dwordx4 {v(vJUNK,4)}, {v(vPFa)}, {srd_}, 0 offen offset:{q*1024}"
            else: t = f"buffer_load_dword {v(vJUNK)}, {v(vPFa)}, {srd_}, 0 offen offset:{q*2048}"
            items.append(Item(P(t), 32 // n, after="addr", name=f"upf{srd_}{q}", lat=OPT["ulat"]))
for pr in range(4):
    if OPT["mvp"] == 2*pr: it_mv()
    if OPT["upf"] and OPT["upos"] == pr: it_upf()
    if HX and OPT["hs"] and OPT["hsp"] == 16 + pr: it_sent()
    for jj in range(2):
        j = 2*pr + jj
        for m in range(2):
            p = Prog()
            if m == 0: p(f"s_add_u32 m0, {sRING}, {(2+pr)*16384 + jj*2048 - 1024}")
            p(f"buffer_load_dwordx4 {v(vWq)}, {SRD_W}, {sWo[j]} offen offset:{1024 + m*1024}{NT(2)} lds", tok=f"w{pr}")
            items.append(Item(p, OPT["wl"], after=f"xr{2+pr}", name=f"w{pr}_{jj}{m}", lat=OPT["latw0"] if j <= M3 else None))
        if j == 0 and OPT["wqpf"]:
            items.append(Item(P(f"buffer_load_dword {v(vJUNK)}, {v(vWq)}, {SRD_W}, {sWo[0]} offen"), 16, name="wqpf", lat=OPT["latw0"]))
        if jj == 0 and OPT["mvp"] == 2*pr + 1: it_mv()
if OPT["upf"] and OPT["upos"] == 4: it_upf()
for j in range(8):
    p = Prog()
    p(f"s_add_u32 m0, {sRING}, {(j>>2)*16384 + (j&3)*1024}")
    p(f"buffer_load_dwordx4 {v(vWq)}, {SRD_W}, {sWo[j]} offen{NT(2)} lds", tok="wq")
    items.append(Item(p, OPT["wl"], after=f"xr{6 + (j>>2)}", name=f"wq{j}", lat=OPT["latw0"] if j <= M3 and not OPT["wqpf"] else None))
if OPT["upf"] and OPT["upos"] == 5: it_upf()
def b2_pos(s): return ((s + 1) & 3) * 4096
def it_b2(s):
    aft = "barA" if s < 3 else "xchdone" if s == 3 else f"b2done{s-4}"
    for q in range(4):
        p = Prog()
        if q == 0: p(f"s_add_u32 m0, {sPW}, {b2_pos(s)}")
        if s < 8:
            Pp, m, nb = s >> 2, (s >> 1) & 1, s & 1
            p(f"buffer_load_dwordx4 {v(vC[q])}, {SRD_CI if m else SRD_CR}, {sCgC[2*Pp+nb]} offen offset:{q*1024}{NT(3)} lds", tok=f"b2_{s}")
        else:
            p(f"buffer_load_dwordx4 {v(vWO[q])}, {SRD_WO}, {sCgW[s-8]} offen offset:{q*1024}{NT(4)} lds", tok=f"b2_{s}")
        items.append(Item(p, 8, after=aft, name=f"b2_{s}_{q}", lat=OPT["latc"] if s < (2 if OPT["crot"] else 4) else OPT["latc2"] if s < 8 else OPT["latw"] if s < 10 and not OPT["wopf"] else None))
def b2_read(p, s):
    pos = b2_pos(s)
    if s < 8:
        Pp, m, nb = s >> 2, (s >> 1) & 1, s & 1
        for k in range(4):
            c, kk = 2*Pp + (k >> 1), k & 1
            p(f"ds_read_b128 {a(aCF + ((c*4 + 2*m + kk)*2 + nb)*4, 4)}, {v(vCf[k])} offset:{pos}", tok=f"b2r_{s}")
    else:
        c = s - 8
        for b in range(2):
            for nb in range(2):
                for rd in range(2):
                    p(f"ds_read_b64_tr_b16 {v(vWOFR + ((c*2+b)*2+nb)*4 + 2*rd, 2)}, {v(vWOf[nb])} offset:{pos + (8*b + 4*rd)*128}", tok=f"b2r_{s}")
vEQ = 224
def e_list(): return [f"buffer_load_dwordx2 {v(vEQ+2*k,2)}, {v(vEL)}, {SRD_WS}, {sEP} offen offset:{256 + 512*k} sc1" for k in range(8)]
def e_loads(p):
    for t in e_list(): p(t)
def it_e():
    for k, t in enumerate(e_list()): items.append(Item(P(t, tok="eld"), 4, after="e_ok", name=f"e{k}", lat=OPT["lm"]))
if OPT["eaft"] < 0: it_e()
vG2 = [34, 0]
def gg2_list(): return [f"buffer_load_dword {v(vG2[ra])}, {v(vFLA)}, {SRD_WS}, {[sFL, sFP][ra]} offen sc1" for ra in range(2)]
for s in range(8):
    it_b2(s)
    p = Prog(); b2_read(p, s)
    aux.append(Aux(f"b2_{s}", p, f"b2r_{s}", f"b2done{s}"))
    if s == OPT["wopf"] - 1:
        items.append(Item(P(f"buffer_load_dword {v(245)}, {v(244)}, {SRD_WO}, {sCgW[0]} offen"), 32, after="wopf_ok", name="wopf", lat=OPT["latc"]))
    if s == OPT["eaft"]: it_e()
    if HX and s == OPT["gaft"]:
        for k, t in enumerate(gg2_list()): items.append(Item(P(t, tok="ggl"), 2, after="gl_ok", name=f"gg{k}", lat=OPT["lm"]))
vXD, vDK = 192, 200
vOUT = 11
vDA = 46
vGL = [38, 39]; vGv = [40, 41]; vRT = [42, 44]
def it_wo(s):
    it_b2(s)
    p = Prog(); b2_read(p, s)
    A_ = Aux(f"b2_{s}", p, f"b2r_{s}", f"b2done{s}", after="o stored"); A_.phase_split = True; A_.per = 1; A_.mf_only = True
    aux.append(A_)
TL = OPT["tl"]
sQ8 = ["0", "s78", "s79", "s80"]; sQ16 = ["0", "s79", "s81", "s82"]
vXD2, vDK2 = 26, 14
def it_xd():
    if TL:
        for q in range(4):
            items.append(Item(P(f"buffer_load_dwordx2 {v(vXD2+2*q,2)}, {v(vOUT)}, {SRD_X}, {sQ8[q]} offen", tok="xdl"), 8, after="xd_ok", name=f"xd{q}"))
        items.append(Item(P(f"global_load_dwordx2 {v(vDK2,2)}, {v(vDA)}, {P_DSK}", tok="xdl"), 1, name="dk3"))
        return
    for q in range(4):
        items.append(Item(P(f"buffer_load_dwordx2 {v(vXD+2*q,2)}, {v(vOUT)}, {SRD_X}, 0 offen offset:{16*q}"), 32, after="xd_ok", name=f"xd{q}"))
    for q in range(4):
        items.append(Item(P(f"global_load_dwordx2 {v(vDK+2*q,2)}, {v(vDA)}, {P_DSK} offset:{16*q}"), 1, name=f"dk{q}"))
assert TL and not OPT["crot"]
def gg_list(): return [f"buffer_load_dword {v(vGv[ra])}, {v(vGL[ra])}, {SRD_WS}, 0 offen sc1" for ra in range(2)]
def gg_load(p):
    for t in (gg2_list() if HX else gg_list()): p(t)
vGA = 96; vGZ = 160
def gather_list():
    L = []
    for r in range(16):
        L.append((r, f"buffer_load_dwordx4 {v(vGA+4*r,4)}, {v(vL16)}, {SRD_WS}, s{72 + (r>>2)} offen offset:{(r&3)*1024} sc1"))
    L.append((16, f"buffer_load_dwordx4 {v(vGZ,4)}, {v(vL16)}, {SRD_WS}, {sZP} offen sc1"))
    return L
def gather_loads(p):
    for r, t in gather_list(): p(t)
def it_gg():
    for k, t in enumerate(gg_list()): items.append(Item(P(t.replace(" sc1", LLD)), 2, after="gl_ok", name=f"gg{k}", lat=OPT["lm"]))
def it_ga():
    GL_ = gather_list(); GL_ = GL_[16:] + GL_[:16]
    for i_, (r, t) in enumerate(GL_):
        items.append(Item(P(t, tok="gld"), 8, after="gather_ok", name=f"ga{r}", lat=OPT["lm"] if i_ < 8 or r == 16 else None))
vAH = [4, 5]; vAO = [6, 7]; vAH2 = [12, 13]
def h_ld(c, k, ra):
    return f"buffer_load_dwordx4 {a(aXF + ((c*4+k)*2+ra)*4, 4)}, {v(vAH[ra])}, {SRD_WS}, {sCgW[c]} offen offset:{k*1024} sc1"
vACC = 64; vOF = 128
vFLG = 22
FH_LOAD = f"buffer_load_dword {v(vFLG)}, {v(vFLA)}, {SRD_WS}, {sFP} offen sc1"
nh = [0]
def it_h(cs):
    for c in cs:
        for k in range(4):
            for ra in range(2):
                items.append(Item(P(h_ld(c, k, ra).replace(" sc1", LLD)),
                                  8, after="fh_ok", name=f"h{c}{k}{ra}", lat=(OPT["hl"] if HX else OPT["lm"]) if nh[0] < 8 else None))
                nh[0] += 1
for ch in OPT["sord"]:
    if ch in "ABCD": it_wo(8 + "ABCD".index(ch))
    elif HX and ch in "gF": pass
    elif HX and ch == "G": it_ga()
    elif ch == "G": it_gg(); it_ga()
    elif ch == "g": it_gg()
    elif ch == "a": it_ga()
    elif ch == "F": items.append(Item(P(FH_LOAD.replace(" sc1", LLD), tok="fhl"), 1, after="fh_ld", name="fhl", lat=OPT["lm"]))
    elif ch == "X": it_xd()
    elif ch == "H": it_h(range(4))
    elif ch in "0123": it_h([int(ch)])
    else: assert 0
o_order = [(c, b, ra) for ra in (0, 1) for c in (0, 1) for b in range(2)] + [(c, b, ra) for ra in (1, 0) for c in (2, 3) for b in range(2)]
def o_ld(c, b, ra): return f"buffer_load_dwordx4 {v(vOF + ((c*2+b)*2+ra)*4, 4)}, {v(vAO[ra])}, {SRD_WS}, {sCgW[c]} offen offset:{b*1024} sc1"
for c, b, ra in o_order:
    items.append(Item(P(o_ld(c, b, ra).replace(" sc1", LLD)),
                      8, after="fo_ok", name=f"o{c}{b}{ra}", lat=OPT["lm"] if (c, b, ra) in o_order[:8] else None))

E.lock()
E("s_cmp_ge_u32 s2, 256")
E("s_cbranch_scc1 L_end")
E("s_load_dwordx16 s[4:19], s[0:1], 0")
E("s_load_dwordx16 s[20:35], s[0:1], 64")
E("s_load_dwordx2 s[36:37], s[0:1], 128")
if OPT["pf"]:
    E(f"""
    s_getpc_b64 s[40:41]
    L_pc:
    s_lshr_b32 s3, s2, 3
    s_and_b32 s3, s3, 7
    s_lshl_b32 s3, s3, 12
    v_and_b32 v1, 31, v0
    v_lshl_add_u32 v1, v1, 7, s3
    v_min_u32 v1, L_code_end-L_pc-4, v1
    global_load_dword v255, v1, s[40:41]
    """)
if STAMPS: E(f"v_mov_b32 {v(vDBG)}, 0")
stamp("start")
if STAMPS:
    for k in range(27, 32): E(f"v_writelane_b32 {v(vDBG)}, s100, {k}")
MAPC = [f"""s_and_b32 {sRB}, {sT0}, 1
s_lshl_b32 {sRT}, {sRB}, 4
s_lshl_b32 {sRB}, {sRB}, 3
s_and_b32 {sCT}, {sT1}, 7
s_or_b32 {sRB}, {sRB}, {sCT}
s_lshr_b32 {sCG}, {sT0}, 1
s_lshl_b32 {sCG}, {sCG}, 2
s_lshr_b32 {sT1}, {sT1}, 3
s_or_b32 {sCG}, {sCG}, {sT1}
s_or_b32 {sRT}, {sRT}, {sCG}""", f"""s_and_b32 {sRB}, {sT1}, 1
s_lshl1_add_u32 {sRB}, {sT0}, {sRB}
s_lshr_b32 {sCG}, {sT1}, 1
s_lshr_b32 {sCT}, {sT1}, 2
s_and_b32 {sRT}, {sCG}, 1
s_lshl1_add_u32 {sRT}, {sRB}, {sRT}""", f"""s_lshr_b32 {sRB}, {sT1}, 4
s_lshl1_add_u32 {sRB}, {sT0}, {sRB}
s_and_b32 {sCG}, {sT1}, 15
s_lshr_b32 {sCT}, {sCG}, 1
s_and_b32 {sRT}, {sCG}, 1
s_lshl1_add_u32 {sRT}, {sRB}, {sRT}""", f"""s_and_b32 {sRB}, {sT0}, 3
s_lshr_b32 {sT0}, {sT0}, 2
s_lshl1_add_u32 {sRT}, {sRB}, {sT0}
s_and_b32 {sCT}, {sT1}, 3
s_lshl2_add_u32 {sRB}, {sRB}, {sCT}
s_lshr_b32 {sCG}, {sT1}, 2
s_lshl3_add_u32 {sCG}, {sT0}, {sCG}
s_and_b32 {sCT}, {sT1}, 7
s_lshr_b32 {sT1}, {sT1}, 3
s_lshl2_add_u32 {sRT}, {sRT}, {sT1}"""][OPT["map"]]
E(f"""
s_and_b32 {sT0}, s2, 7
s_lshr_b32 {sT1}, s2, 3
v_lshrrev_b32 {v(vT)}, 6, v0
v_and_b32 {v(vL)}, 63, v0
v_readfirstlane_b32 {sW}, {v(vT)}
{MAPC}
s_lshl_b32 {sRG}, {sRB}, 2
s_or_b32 {sRG}, {sRG}, {sW}
{["s_lshl_b32 %s, %s, 1" % (sT0, sCG), "s_mov_b32 %s, 0" % sT0, "s_mov_b32 %s, 0" % sT0, "s_lshr_b32 %s, %s, 1" % (sT0, sCG), "s_and_b32 %s, %s, 3" % (sT0, sCG)][OPT["rot"]]}
{["s_add_u32 %s, %s, %s" % (sT0, sT0, sRB), "s_add_u32 %s, %s, %s" % (sT0, sT0, sRB), "s_mov_b32 %s, 0" % sT0, "s_add_u32 %s, %s, %s" % (sT0, sT0, sRB), "s_xor_b32 %s, %s, %s" % (sT0, sT0, sCT)][OPT["rot"]]}
{["", "s_lshl2_add_u32 %s, %s, %s" % (sT0, sRB, sCG), "s_lshl2_add_u32 %s, %s, %s" % (sT0, sRB, sCT), "s_add_u32 %s, %s, %s" % (sT0, sRB, sCG), "s_mov_b32 %s, %s" % (sT0, sCG), "s_lshl_b32 %s, %s, 1" % (sT0, sCG), "s_mov_b32 %s, %s" % (sT0, sCT), "s_lshl1_add_u32 %s, %s, %s" % (sT0, sRB, sCG)][OPT["mrot"]]}
v_lshlrev_b32 {v(vL16)}, 4, {v(vL)}
v_lshrrev_b32 {v(vHI)}, 5, {v(vL)}
""")
if DBG:
    E(f"s_lshl_b32 {sT2}, s2, 10")
    E(f"v_lshl_add_u32 {v(vDBG)}, v0, 2, {sT2}")
if OPT["c3"] & 4:
    E(f"s_and_b32 {sT0}, {sT0}, 7")
    E(f"s_cmp_eq_u32 {sT0}, 3")
    E(f"s_addc_u32 {sT0}, {sT0}, 0")
if OPT["rot"] == 4:
    E(f"s_lshl_b32 {sXo[0]}, {sT0}, 7")
    for j in range(1, 8): E(f"s_xor_b32 {sXo[j]}, {sXo[0]}, {j << 7}")
    for j in range(8): E(f"s_mul_i32 {sWo[j]}, {sXo[j]}, 1536")
else:
  for j in range(8):
    E(f"s_add_u32 {sT2}, {sT0}, {j}")
    E(f"s_and_b32 {sT2}, {sT2}, 7")
    E(f"s_lshl_b32 {sXo[j]}, {sT2}, 7")
    E(f"s_mul_i32 {sWo[j]}, {sT2}, 196608")
E(f"""
v_lshrrev_b32 {v(vT)}, 4, {v(vL)}
v_and_b32 {v(vT2)}, 7, {v(vL)}
v_xor_b32 {v(vT2)}, {v(vT2)}, {v(vT)}
v_lshlrev_b32 {v(vT2)}, 4, {v(vT2)}
v_and_b32 {v(vX[0])}, 1, {v(vT)}
v_and_b32 {v(vX[1])}, 8, {v(vL)}
v_or_b32 {v(vX[0])}, {v(vX[0])}, {v(vX[1])}
v_lshl_or_b32 {v(vX[0])}, {v(vHI)}, 4, {v(vX[0])}
s_lshl_b32 {sT2}, {sRG}, 5
v_add_u32 {v(vX[0])}, {sT2}, {v(vX[0])}
v_lshl_or_b32 {v(vX[0])}, {v(vX[0])}, 10, {v(vT2)}
v_xor_b32 {v(vX[1])}, 64, {v(vX[0])}
v_add_u32 {v(vX[1])}, 1024, {v(vX[1])}
v_add_u32 {v(vX[2])}, 2048, {v(vX[0])}
v_add_u32 {v(vX[3])}, 2048, {v(vX[1])}
s_and_b32 {sT2}, {sW}, 1
s_lshl_b32 {sT2}, {sT2}, 4
s_lshl_b32 {sT3}, {sCG}, 5
s_add_u32 {sT2}, {sT2}, {sT3}
v_lshrrev_b32 {v(vT)}, 3, {v(vL)}
v_lshl_or_b32 {v(vC[0])}, {v(vT)}, 10, {v(vT2)}
s_lshl_b32 {sT2}, {sT2}, 10
v_add_u32 {v(vB[0])}, {sT2}, {v(vC[0])}
v_xor_b32 {v(vB[1])}, 64, {v(vB[0])}
v_add_u32 {v(vB[1])}, 7168, {v(vB[1])}
s_lshl_b32 {sT3}, {sW}, 12
s_lshl_b32 {sT1}, {sW}, 11
s_add_u32 {sT1}, {sT1}, {RB}
""")
def srd(dst, lo, size):
    b = int(dst[2:].split(":")[0])
    E(f"s_mov_b32 s{b}, s{lo}")
    E(f"s_and_b32 s{b+1}, s{lo+1}, 0xffff")
    E(f"s_mov_b32 s{b+2}, {size}")
    E(f"s_mov_b32 s{b+3}, 0x20000")
E(f"""
v_lshrrev_b32 {v(vT)}, 2, {v(vL)}
s_lshl_b32 {sT2}, {sW}, 4
v_add_u32 {v(vT)}, {sT2}, {v(vT)}
v_mul_u32_u24 {v(vWq)}, 3072, {v(vT)}
v_and_b32 {v(vT2)}, 3, {v(vL)}
s_lshl_b32 {sT2}, {sCG}, 6
v_lshl_add_u32 {v(vT2)}, {v(vT2)}, 4, {sT2}
v_add_u32 {v(vWq)}, {v(vWq)}, {v(vT2)}
""")
vPR, vPI, vPD = 160, 161, 162
vWP = 144
vSA, vSC, vSD, vSZ = 200, 202, 203, 204
E(f"""
v_and_b32 {v(vXR)}, 31, {v(vL)}
s_lshl_b32 {sT2}, {sCG}, 6
v_lshl_add_u32 {v(vSA)}, {v(vXR)}, 1, {sT2}
v_bfe_u32 {v(vT)}, {v(vL)}, 3, 2
v_and_b32 {v(vT2)}, 3, {v(vL)}
v_lshl_add_u32 {v(vT)}, {v(vT)}, 2, {v(vT2)}
v_lshlrev_b32 {v(vT)}, 1, {v(vT)}
v_lshl_or_b32 {v(vT)}, {v(vHI)}, 7, {v(vT)}
v_bfe_u32 {v(vT2)}, {v(vL)}, 2, 1
v_lshl_or_b32 {v(vT)}, {v(vT2)}, 9, {v(vT)}
s_lshl_b32 {sT2}, {sCG}, 10
v_add_u32 {v(vSB)}, {sT2}, {v(vT)}
v_lshlrev_b32 {v(vSC)}, 21, {v(vL)}
v_and_b32 {v(vSC)}, 0x600000, {v(vSC)}
s_lshl_b32 {sT2}, {sRT}, 17
v_mov_b32 {v(vSD)}, {sT2}
v_mov_b32 {v(vSZ)}, 0
""")
vMW, vMW3 = 176, 206
if OPT["mw"] or OPT["mv"]:
    E(f"""
    s_lshl2_add_u32 {sT2}, s2, {sW}
    v_and_b32 {v(vT2)}, 3, {v(vL)}
    s_lshl_b32 s100, {sT2}, 9
    v_lshl_add_u32 {v(vMW)}, {v(vT2)}, 7, s100
    """)
    if OPT["mw"] & 8:
        E(f"""
        s_mul_i32 s100, {sT2}, 1536
        v_min_u32 {v(vT2)}, 11, {v(vL)}
        v_lshl_add_u32 {v(vMW3)}, {v(vT2)}, 7, s100
        """)
vPFx, vPFB = 182, 183
if OPT["fpf"] & 48:
    assert not OPT["map"]
    E(f"""
    s_and_b32 {sT2}, {sCG}, 3
    s_lshl2_add_u32 {sT2}, {sRG}, {sT2}
    s_lshl_b32 {sT2}, {sT2}, 13
    v_and_b32 {v(vT)}, 7, {v(vL)}
    v_lshl_add_u32 {v(vPFx)}, {v(vT)}, 10, {sT2}
    s_and_b32 {sT2}, {sW}, 1
    s_lshl1_add_u32 {sT2}, {sCG}, {sT2}
    s_lshl3_add_u32 {sT2}, {sT2}, {sCT}
    s_lshl_b32 {sT2}, {sT2}, 11
    v_and_b32 {v(vT)}, 1, {v(vL)}
    v_lshl_add_u32 {v(vPFB)}, {v(vT)}, 10, {sT2}
    """)
if OPT["fpf"] & 15:
    E(f"""
    s_lshr_b32 {sT2}, s2, 3
    s_lshl2_add_u32 {sT2}, {sT2}, {sW}
    v_and_b32 {v(vT)}, 3, {v(vL)}
    v_mul_u32_u24 {v(vPFa)}, 3072, {v(vT)}
    s_mul_i32 s100, {sT2}, 12288
    s_lshl_b32 {sT2}, {sT2}, 12
    v_lshl_add_u32 {v(vPFb)}, {v(vT)}, 10, {sT2}
    """)
    if OPT["map"]:
        E(f"s_add_u32 s100, s100, 384")
        E(f"v_lshrrev_b32 {v(vT2)}, 2, {v(vL)}")
        E(f"v_min_u32 {v(vT2)}, 2, {v(vT2)}")
    else:
        both = OPT["fpf"] & 4
        E(f"s_lshr_b32 {sT2}, {sCG}, 2")
        E(f"s_lshl_b32 {sT2}, {sT2}, 8")
        E(f"s_add_u32 s100, s100, {sT2}")
        if both:
            E(f"v_bfe_u32 {v(vT2)}, {v(vL)}, 2, 1")
            E(f"v_lshl_add_u32 {v(vPFa)}, {v(vT2)}, 7, {v(vPFa)}")
            E(f"v_lshrrev_b32 {v(vT2)}, 3, {v(vL)}")
            if OPT["fpf"] & 8:
                E(f"v_and_b32 {v(vT2)}, 1, {v(vT2)}")
                E(f"v_add_u32 {v(vT2)}, 1, {v(vT2)}")
            else: E(f"v_min_u32 {v(vT2)}, 2, {v(vT2)}")
        else:
            E(f"s_add_u32 s100, s100, 128")
            E(f"v_lshrrev_b32 {v(vT2)}, 2, {v(vL)}")
            E(f"v_min_u32 {v(vT2)}, 2, {v(vT2)}")
    E(f"v_lshl_add_u32 {v(vT2)}, {v(vT2)}, 10, s100")
    E(f"v_add_u32 {v(vPFa)}, {v(vPFa)}, {v(vT2)}")
def first_pf():
    n0 = len(E.ins)
    if OPT["fpf"] & 16: E(f"buffer_load_dword v247, {v(vPFx)}, {SRD_X}, 0 offen offset:384")
    if OPT["fpf"] & 32: E(f"buffer_load_dword v246, {v(vPFB)}, {SRD_B}, 0 offen offset:384")
    if OPT["fpf"] & 1: E(f"global_load_dword v253, {v(vPFa)}, s[6:7]")
    if OPT["fpf"] & 2: E(f"global_load_dword v250, {v(vPFb)}, s[10:11] offset:384")
    for c_ in E.ins[n0:]: c_.lines = 0.0; c_.lat = OPT["cold"]
def tlb_touch():
    n0 = len(E.ins)
    E(f"global_load_dword v248, {v(vSZ if OPT['sl'] else vL16)}, {P_DSK}")
    if OPT["tlb"]:
        E(f"""
        global_load_dword v254, {v(vSC)}, s[36:37] offset:2048
        global_load_dword v252, {v(vMW if OPT["mw"] & 1 else vSZ)}, s[22:23]
        global_load_dword v251, {v(vMW if OPT["mw"] & 2 else vSZ)}, s[24:25]
        {"" if OPT["fpf"] & 2 else "global_load_dword v250, %s, s[10:11]" % v(vMW if OPT["mw"] & 4 else vSZ)}
        global_load_dword v249, {v(vSD)}, s[32:33]
        """)
        if not OPT["wpf"] and not OPT["fpf"] & 1: E(f"global_load_dword v253, {v(vMW3 if OPT['mw'] & 8 else vSZ)}, s[6:7]")
    for c_ in E.ins[n0:]: c_.lines = 0.0; c_.lat = OPT["cold"]
def small_loads():
    n0 = len(E.ins)
    if OPT["fpp"] == 0: first_pf()
    E(f"""
    global_load_ushort {v(vPR)}, {v(vSA)}, {P_LRE}
    global_load_ushort {v(vPI)}, {v(vSA)}, {P_LIM}
    global_load_ushort {v(vPD)}, {v(vSA)}, {P_LDT}
    """)
    if not OPT["sl"] & 1:
        for t_ in small2(): E(t_)
    if not OPT["sl"] & 2: tlb_touch()
    if OPT["fpp"] == 1: first_pf()
    for c_ in E.ins[n0:]: c_.lines = 0.0; c_.lat = OPT["cold"]
E("s_mov_b32 s46, 1572864"); E("s_mov_b32 s47, 0x20000")
E("s_mov_b32 s42, 2097152"); E("s_mov_b32 s43, 0x20000"); E("s_mov_b32 s50, 524288"); E("s_mov_b32 s51, 0x20000")
E.sett(900)
E("s_mov_b32 s40, s4"); E("s_and_b32 s41, s5, 0xffff")
E(f"s_mov_b32 {sRING}, {sT3}")
E(f"s_mov_b32 {sRINGB}, {sT1}")
E.drain("x0_3")
E(f"s_cmp_lt_u32 {sW}, 2")
E("s_cselect_b32 s48, s18, s20")
E("s_cselect_b32 s49, s19, s21")
E("s_and_b32 s49, s49, 0xffff")
if OPT["pro"] == 1:
    E.drain("b1_1" if M3 and OPT["m3b"] else "b0_1")
    small_loads()
E.drain(items[OPT["early"] - 1].name)
if OPT["fpp"] == 2: first_pf()
if OPT["sl"] & 2: tlb_touch()
E("s_mov_b32 s44, s6"); E("s_and_b32 s45, s7, 0xffff")
E.mark("waddr")
stamp("first dma")
E(f"s_load_dword {sTAG}, s[36:37], {W_EPOCH}")
if OPT["tagl"]: E.ins[-1].junk = True
if OPT["smp"]:
    E(f"""
    s_lshr_b32 {sT2}, s2, 3
    s_lshl2_add_u32 {sT2}, {sT2}, {sW}
    s_mul_i32 {sT2}, {sT2}, 12288
    s_lshr_b32 {sT3}, {sCG}, 2
    s_lshl_b32 {sT3}, {sT3}, 8
    s_add_u32 {sT2}, {sT2}, {sT3}
    """)
    prs = {1: (1,), 2: (1, 0), 3: (1, 0), 4: (1,)}[OPT["smp"]]
    pts = {1: (1, 2, 0), 2: (1, 2, 0), 3: (1, 2), 4: (1, 2)}[OPT["smp"]]
    for pt in pts:
        for pr_ in prs:
            for r_ in range(4):
                E(f"s_load_dword {sSPIN}, s[6:7], {sT2} offset:{r_*3072 + pt*1024 + pr_*128}")
                E.ins[-1].junk = True
if OPT["pro"] == 0: small_loads()
if OPT["crot"]:
    E(f"""
    s_lshr_b32 {sT2}, {sCT}, 2
    s_add_u32 {sT2}, {sT2}, {sCT}
    s_add_u32 {sT2}, {sT2}, {sCG}
    s_and_b32 {sT2}, {sT2}, 1
    s_cselect_b32 s52, s24, s22
    s_cselect_b32 s53, s25, s23
    s_cselect_b32 s56, s22, s24
    s_cselect_b32 s57, s23, s25
    s_and_b32 s53, s53, 0xffff
    s_and_b32 s57, s57, 0xffff
    s_mov_b32 s54, 524288
    s_mov_b32 s55, 0x20000
    s_mov_b32 s58, 524288
    s_mov_b32 s59, 0x20000
    """)
else:
    srd(SRD_CR, 22, 524288); srd(SRD_CI, 24, 524288)
srd(SRD_WO, 10, 524288)
srd(SRD_WS, 36, 0x10000000); srd(SRD_OUT, 32, 4194304)
E.setts(OPT["cold"] - 200)
CRT = [f"s_add_u32 {sT2}, {sCG}, {sCT}",
       f"s_lshr_b32 {sT2}, {sRB}, 1\ns_add_u32 {sT2}, {sT2}, {sRT}\ns_add_u32 {sT2}, {sT2}, {sCT}",
       f"s_lshr_b32 {sT2}, {sRB}, 1\ns_add_u32 {sT2}, {sT2}, {sRT}",
       f"s_add_u32 {sT2}, {sRT}, {sCT}"][OPT["crt"]]
E(f"""
s_lshl_b32 {sPW}, {sW}, 14
s_add_u32 {sPW}, {sPW}, {RB}
s_mov_b32 {sHM}, 0xffff0000
s_mov_b32 {sFFFF}, 0xffff
s_mov_b32 {sFF}, 0xff
s_mov_b32 s38, 0x3fb8aa3b
s_mov_b32 s39, 0x3fb8aa3b
s_cmp_ge_u32 {sW}, 1
s_cselect_b64 {sM1}, -1, 0
s_cmp_ge_u32 {sW}, 2
s_cselect_b64 {sM2}, -1, 0
s_cmp_ge_u32 {sW}, 3
s_cselect_b64 {sM3}, -1, 0
s_mov_b32 s12, 0
s_mov_b32 s13, -1
{CRT}
s_and_b32 {sT2}, {sT2}, 3
s_lshl_b32 {sT0}, {sW}, 2
""")
E.unlock()
for c in range(4):
    E(f"s_xor_b32 {sT1}, {sT2}, {c}")
    E(f"s_or_b32 {sT1}, {sT1}, {sT0}")
    E(f"s_lshl_b32 {sCgW[c]}, {sT1}, 15")
E(f"""
s_and_b32 {sT1}, {sT2}, 2
s_or_b32 {sT1}, {sT1}, {sT0}
s_lshl_b32 {sT1}, {sT1}, 6
s_and_b32 {sT3}, {sW}, 1
s_lshl_b32 {sT3}, {sT3}, 15
s_or_b32 {sCgC[0]}, {sT1}, {sT3}
s_xor_b32 {sCgC[1]}, {sCgC[0]}, 32768
s_xor_b32 {sCgC[2]}, {sCgC[0]}, 128
s_xor_b32 {sCgC[3]}, {sCgC[1]}, 128
s_and_b32 {sT2}, {sT2}, 1
s_lshl_b32 {sT2}, {sT2}, 6
s_lshl_b32 {sT3}, {sCT}, 16
v_add_u32 {v(vC[0])}, {sT3}, {v(vC[0])}
v_xor_b32 {v(vC[1])}, 64, {v(vC[0])}
v_add_u32 {v(vC[1])}, 7168, {v(vC[1])}
v_add_u32 {v(vC[2])}, 14336, {v(vC[0])}
v_add_u32 {v(vC[3])}, 14336, {v(vC[1])}
v_bfe_u32 {v(vT)}, {v(vL)}, 1, 3
v_xor_b32 {v(vT)}, {v(vT)}, {v(vHI)}
v_lshlrev_b32 {v(vT)}, 4, {v(vT)}
v_lshl_or_b32 {v(vT)}, {v(vXR)}, 7, {v(vT)}
""")
for k in range(4):
    E(f"v_xor_b32 {v(vT2)}, {k*32}, {v(vT)}")
    E(f"v_add_u32 {v(vBf[k])}, {RB}, {v(vT2)}")
    E(f"v_add_u32 {v(vXf[k])}, {sRING}, {v(vT2)}")
    E(f"v_xor_b32 {v(vT2)}, {sT2}, {v(vT2)}")
    E(f"v_add_u32 {v(vCf[k])}, {sPW}, {v(vT2)}")
E(f"""
v_bfe_u32 {v(vT)}, {v(vL)}, 2, 2
v_lshl_or_b32 {v(vT)}, {v(vHI)}, 3, {v(vT)}
v_lshlrev_b32 {v(vTRq)}, 6, {v(vT)}
v_bfe_u32 {v(vT2)}, {v(vL)}, 4, 1
v_lshl_or_b32 {v(vTRq)}, {v(vT2)}, 5, {v(vTRq)}
v_and_b32 {v(vT)}, 3, {v(vL)}
v_lshl_or_b32 {v(vTRq)}, {v(vT)}, 3, {v(vTRq)}
v_add_u32 {v(vTRkv)}, 32768, {v(vTRq)}
s_and_b32 {sT0}, {sW}, 1
v_xor_b32 {v(vT)}, {sT0}, {v(vT2)}
v_lshlrev_b32 {v(vT)}, 2, {v(vT)}
v_and_b32 {v(vT2)}, 7, {v(vL)}
v_xor_b32 {v(vT)}, {v(vT)}, {v(vT2)}
s_lshl_b32 {sT2}, {sCT}, 7
v_lshl_add_u32 {v(vT)}, {v(vT)}, 4, {sT2}
v_lshrrev_b32 {v(vT2)}, 3, {v(vL)}
v_lshl_add_u32 {v(vWO[0])}, {v(vT2)}, 10, {v(vT)}
v_add_u32 {v(vWO[1])}, 7168, {v(vWO[0])}
v_add_u32 {v(vWO[2])}, 14336, {v(vWO[0])}
v_add_u32 {v(vWO[3])}, 21504, {v(vWO[0])}
v_bfe_u32 {v(vT)}, {v(vL)}, 2, 2
v_lshl_or_b32 {v(vT)}, {v(vHI)}, 4, {v(vT)}
v_lshlrev_b32 {v(vT)}, 7, {v(vT)}
v_bfe_u32 {v(vT2)}, {v(vL)}, 3, 1
v_lshl_or_b32 {v(vT)}, {v(vT2)}, 6, {v(vT)}
v_and_b32 {v(vT2)}, 63, {v(vTRq)}
v_or_b32 {v(vT)}, {v(vT2)}, {v(vT)}
v_add_u32 {v(vWOf[0])}, {sPW}, {v(vT)}
v_xor_b32 {v(vT)}, 64, {v(vT)}
v_add_u32 {v(vWOf[1])}, {sPW}, {v(vT)}
""")
if HX:
    E(f"v_lshlrev_b32 {v(vFLA)}, 2, {v(vXR)}")
    for i in range(4): E(f"v_mov_b32 {v(vSN+i)}, -1")
E(f"""
v_lshlrev_b32 {v(vXR)}, 3, {v(vXR)}
v_lshl_or_b32 {v(vEL)}, {v(vHI)}, 8, {v(vXR)}
v_add_u32 {v(vXR)}, {XCH}, {v(vXR)}
s_lshl_b32 {sT2}, {sW}, 8
v_add_u32 {v(vXW)}, {sT2}, {v(vXR)}
""")
if not HX: E(f"""
v_and_b32 {v(vT)}, 7, {v(vL)}
v_lshlrev_b32 {v(vT)}, 2, {v(vT)}
v_add_u32 {v(vFLA)}, {W_FH}, {v(vT)}
s_lshl_b32 {sFP}, {sRT}, 2
s_add_u32 {sFP}, {sFP}, {sW}
s_lshl_b32 {sFP}, {sFP}, 7
""")
E(f"""
s_lshl_b32 {sT2}, {sCG}, 13
s_lshl_b32 {sT3}, {sRB}, 8
s_sub_u32 {sT2}, {sT2}, {sT3}
s_add_u32 {sEP}, {sT2}, {W_E + 15*256}
s_lshl_b32 {sT2}, {sCG}, 2
s_add_u32 {sT2}, {sT2}, {sW}
s_lshl_b32 {sKV}, {sT2}, 14
s_add_u32 {sKV}, {sKV}, {W_KVP}
s_lshl_b32 {sT2}, {sRB}, 10
s_add_u32 {sKVP}, {sT2}, {sKV}
s_lshr_b32 {sT2}, {sRG}, 3
s_lshl_b32 {sT2}, {sT2}, 19
s_lshl_b32 {sT1}, {sCG}, 15
s_add_u32 {sT2}, {sT2}, {sT1}
s_and_b32 {sT3}, {sRG}, 7
s_lshl_b32 {sT3}, {sT3}, 12
s_add_u32 {sT2}, {sT2}, {sT3}
s_add_u32 {sHS}, {sT2}, {W_H}
s_lshr_b32 {sT2}, {sRG}, 4
s_lshl_b32 {sT2}, {sT2}, 19
s_add_u32 {sT2}, {sT2}, {sT1}
s_and_b32 {sT3}, {sRG}, 15
s_lshl_b32 {sT3}, {sT3}, 11
s_add_u32 {sT2}, {sT2}, {sT3}
s_add_u32 {sOS}, {sT2}, {W_O}
s_lshr_b32 {sT1}, {sW}, 1
s_lshl_b32 {sT2}, {sRT}, 1
s_or_b32 {sRA0}, {sT2}, {sT1}
s_lshl_b32 {sT2}, {sRG}, 5
s_lshl_b32 {sT3}, {sCG}, 1
s_add_u32 {sT2}, {sT2}, {sT3}
s_lshl_b32 {sGP}, {sT2}, 10
""")
if OPT["pfg"]:
    E(f"""
    v_mov_b32 {v(vK3)}, 3072
    v_mov_b32 {v(vK3+1)}, 0
    s_lshl_b32 {sT2}, {sCT}, 2
    s_or_b32 {sT2}, {sT2}, {sW}
    s_mul_i32 {sT3}, {sT2}, 49152
    s_lshr_b32 {sT1}, {sCG}, 2
    s_lshl_b32 {sT1}, {sT1}, 8
    s_add_u32 {sT3}, {sT3}, {sT1}
    v_and_b32 {v(vT2)}, 1, {v(vL)}
    v_lshl_add_u32 {v(vT2)}, {v(vT2)}, 7, {sT3}
    v_lshrrev_b32 {v(vT)}, 2, {v(vL)}
    v_mad_u32_u24 {v(vPFa)}, {v(vT)}, {v(vK3)}, {v(vT2)}
    v_bfe_u32 {v(vT)}, {v(vL)}, 1, 1
    v_lshl_add_u32 {v(vPFa)}, {v(vT)}, 10, {v(vPFa)}
    v_bfe_u32 {v(vT)}, {v(vL)}, 1, 4
    v_mad_u32_u24 {v(vPFb)}, {v(vT)}, {v(vK3)}, {v(vT2)}
    v_add_u32 {v(vPFb)}, 2048, {v(vPFb)}
    s_lshl_b32 {sT2}, {sT2}, 14
    v_lshl_add_u32 {v(vT)}, {v(vL)}, 7, {sT2}
    v_add_u32 {v(vT2)}, 8192, {v(vT)}
    s_and_b32 {sGRP}, {sCG}, 3
    v_cmp_ne_u32 vcc, {sGRP}, {v(vK3+1)}
    v_cndmask_b32 {v(vPFa)}, {v(vPFa)}, {v(vT)}, vcc
    v_cndmask_b32 {v(vPFb)}, {v(vPFb)}, {v(vT2)}, vcc
    """)
if OPT["upf"]:
    E(f"""
    s_lshr_b32 {sT2}, s2, 3
    s_lshl_b32 {sT2}, {sT2}, 2
    s_or_b32 {sT2}, {sT2}, {sW}
    s_lshl_b32 {sT2}, {sT2}, 12
    v_lshl_add_u32 {v(vPFa)}, {v(vL)}, {[0, 6, 5, 4][OPT["upf"]]}, {sT2}
    """)
if OPT["c3"] & 3:
    E(f"""
    s_lshr_b32 {sT2}, s2, 3
    s_lshl2_add_u32 {sT2}, {sT2}, {sW}
    v_and_b32 {v(vT)}, 3, {v(vL)}
    """)
    if OPT["c3"] & 1:
        E(f"s_mul_i32 {sT3}, {sT2}, 12288")
        if OPT["map"]: E(f"s_add_u32 {sT3}, {sT3}, 384")
        else:
            if OPT["c3"] & 8:
                E(f"s_lshr_b32 {sT1}, {sCG}, 2")
                E(f"s_lshl_b32 {sT1}, {sT1}, 8")
            else:
                E(f"s_or_b32 {sT1}, {sCG}, 2")
                E(f"s_lshr_b32 {sT1}, {sT1}, 1")
                E(f"s_lshl_b32 {sT1}, {sT1}, 7")
            E(f"s_add_u32 {sT3}, {sT3}, {sT1}")
        E(f"""
        v_lshrrev_b32 {v(vT2)}, {3 if OPT["c3"] & 8 else 2}, {v(vL)}
        v_min_u32 {v(vT2)}, 2, {v(vT2)}
        v_lshl_add_u32 {v(vT2)}, {v(vT2)}, 10, {sT3}
        v_mul_u32_u24 {v(vPFa)}, 3072, {v(vT)}
        v_add_u32 {v(vPFa)}, {v(vPFa)}, {v(vT2)}
        """)
        if OPT["c3"] & 8:
            E(f"v_bfe_u32 {v(vT2)}, {v(vL)}, 2, 1")
            E(f"v_lshl_add_u32 {v(vPFa)}, {v(vT2)}, 7, {v(vPFa)}")
    if OPT["c3"] & 2:
        E(f"s_lshl_b32 {sT2}, {sT2}, 12")
        E(f"v_lshl_add_u32 {v(vPFb)}, {v(vT)}, 10, {sT2}")
TAGC = f"""
s_add_u32 {sTAG}, {sTAG}, 1
v_mov_b32 {v(vTAG)}, {sTAG}
"""
if not OPT["tagl"]: E(TAGC)
stamp("addr")

LATE = f"""
s_lshl2_add_u32 {sT2}, {sCG}, {sW}
s_lshl_b32 {sZP}, {sT2}, 10
s_add_u32 {sZP}, {sZP}, {W_ZP}
s_lshl_b32 {sT3}, {sRB}, 6
s_add_u32 {sZPP}, {sT3}, {sZP}
""" + (f"""
s_lshl_b32 {sFL}, {sRA0}, 7
s_add_u32 {sFL}, {sFL}, {W_G}
s_xor_b32 {sFP}, {sFL}, 128
""" if HX else f"""
s_lshr_b32 {sFL}, {sRG}, 1
s_lshl_b32 {sFL}, {sFL}, 2
s_lshr_b32 {sT3}, {sCG}, 2
s_add_u32 {sFL}, {sFL}, {sT3}
s_lshl_b32 {sFL}, {sFL}, 7
s_and_b32 {sT3}, {sRG}, 1
s_lshl_b32 {sT3}, {sT3}, 4
s_add_u32 {sFL}, {sFL}, {sT3}
s_and_b32 {sT3}, {sCG}, 3
s_lshl_b32 {sT3}, {sT3}, 2
s_add_u32 {sFL}, {sFL}, {sT3}
""")
t0, t1, t2, t3 = 164, 166, 168, 170
F = [Prog() for _ in range(8)]
F[0](f"""
v_lshlrev_b32 {v(vPR)}, 16, {v(vPR)}
v_lshlrev_b32 {v(vPI)}, 16, {v(vPI)}
v_lshlrev_b32 {v(vPD)}, 16, {v(vPD)}
v_mul_f32 {v(vPD)}, s38, {v(vPD)}
v_exp_f32 {v(vPD)}, {v(vPD)}
v_mul_f32 {v(t2)}, {v(vPR)}, {v(vPR)}
v_fma_f32 {v(t2)}, {v(vPI)}, {v(vPI)}, {v(t2)}
v_cvt_pk_bf16_f32 {v(vPD)}, {v(vPD)}, {v(vPD)}
v_and_b32 {v(vPD)}, {sHM}, {v(vPD)}
v_mul_f32 {v(t0)}, {v(vPD)}, {v(vPR)}
v_mul_f32 {v(t0+1)}, {v(vPD)}, {v(vPI)}
v_mul_f32 {v(t0)}, s38, {v(t0)}
v_mul_f32 {v(t0+1)}, 0.15915494, {v(t0+1)}
v_exp_f32 {v(t0)}, {v(t0)}
v_cos_f32 {v(t1)}, {v(t0+1)}
v_sin_f32 {v(t1+1)}, {v(t0+1)}
v_rcp_f32 {v(t3)}, {v(t2)}
v_mul_f32 {v(vLAM)}, {v(t0)}, {v(t1)}
v_mul_f32 {v(vLAM+1)}, {v(t0)}, {v(t1+1)}
v_add_f32 {v(t1)}, -1.0, {v(vLAM)}
v_mul_f32 {v(t2)}, {v(t1)}, {v(vPR)}
v_fma_f32 {v(t2)}, {v(vLAM+1)}, {v(vPI)}, {v(t2)}
v_mul_f32 {v(t2+1)}, {v(vLAM+1)}, {v(vPR)}
v_fma_f32 {v(t2+1)}, -{v(t1)}, {v(vPI)}, {v(t2+1)}
v_mul_f32 {v(vCOEF)}, {v(t2)}, {v(t3)}
v_mul_f32 {v(vCOEF+1)}, {v(t2+1)}, {v(t3)}
""")
csq(F[1], t0, vLAM); csq(F[1], t1, t0); csq(F[1], vL8, t1); csq(F[1], vL16p, vL8); csq(F[1], vL32, vL16p)
csq(F[1], t0, vL32); cmul(F[1], t1, t0, vL32)
csq(F[2], vMU, t0); csq(F[2], vMU2, vMU)
F[2](f"""
v_cndmask_b32 {v(t2)}, 1.0, {v(vL32)}, {sM1}
v_cndmask_b32 {v(t2+1)}, 0, {v(vL32+1)}, {sM1}
v_cndmask_b32 {v(t2)}, {v(t2)}, {v(t0)}, {sM2}
v_cndmask_b32 {v(t2+1)}, {v(t2+1)}, {v(t0+1)}, {sM2}
v_cndmask_b32 {v(t2)}, {v(t2)}, {v(t1)}, {sM3}
v_cndmask_b32 {v(t2+1)}, {v(t2+1)}, {v(t1+1)}, {sM3}
""")
cmul(F[2], t3, t2, vL16p)
F[2](f"v_cndmask_b32 {v(vALR0)}, {v(t2)}, {v(t3)}, {sHI}")
F[2](f"v_cndmask_b32 {v(vALI0)}, {v(t2+1)}, {v(t3+1)}, {sHI}")
F[2](f"""
v_mul_f32 {v(vALR0+1)}, {v(vALR0)}, {v(vL8)}
v_mul_f32 {v(vALI0+1)}, {v(vALR0)}, {v(vL8+1)}
v_fma_f32 {v(vALR0+1)}, -{v(vALI0)}, {v(vL8+1)}, {v(vALR0+1)}
v_fma_f32 {v(vALI0+1)}, {v(vALI0)}, {v(vL8)}, {v(vALI0+1)}
""")
F[4](LATE)
F[3]("s_mov_b32 s100, 0xf0f0f0f0")
F[3]("s_mov_b32 s101, 0xf0f0f0f0")
for i in range(4):
    F[3](f"v_lshl_or_b32 {v(vA1+i)}, {v(vWP+2*i+1)}, 16, {v(vWP+2*i)}")
for i in range(4):
    F[3](f"v_cndmask_b32 {v(vA2+i)}, 0, {v(vA1+i)}, s[100:101]")
    F[3](f"v_cndmask_b32 {v(vA1+i)}, {v(vA1+i)}, 0, s[100:101]")
dump("lam", [v(vLAM), v(vLAM+1), v(vCOEF), v(vCOEF+1), v(vMU2), v(vMU2+1)], F[3])
gW, gP, gR = 108, 116, 124
gS0, gS1 = 128, 130
G1, G2 = F[OPT["glpos"] + 2], F[OPT["glpos"] + 3]
for i in range(4):
    G1(f"v_lshlrev_b32 {v(gW+2*i)}, 16, {v(vGW+i)}")
    G1(f"v_and_b32 {v(gW+2*i+1)}, {sHM}, {v(vGW+i)}")
for row, src, dst, G in ((0, vGX0, gS0, G1), (1, vGX1, gS1, G2)):
    for i in range(4):
        G(f"v_lshlrev_b32 {v(gP+2*i)}, 16, {v(src+i)}")
        G(f"v_and_b32 {v(gP+2*i+1)}, {sHM}, {v(src+i)}")
    for i in range(4):
        G(f"v_pk_mul_f32 {v(gP+2*i,2)}, {v(gP+2*i,2)}, {v(gW+2*i,2)}")
    for i in range(4):
        G(f"v_cvt_pk_bf16_f32 {v(gR+i)}, {v(gP+2*i)}, {v(gP+2*i+1)}")
    for i in range(4):
        G(f"v_lshlrev_b32 {v(gP+2*i)}, 16, {v(gR+i)}")
        G(f"v_and_b32 {v(gP+2*i+1)}, {sHM}, {v(gR+i)}")
    G(f"v_pk_add_f32 {v(gP,2)}, {v(gP,2)}, {v(gP+2,2)}")
    G(f"v_pk_add_f32 {v(gP+4,2)}, {v(gP+4,2)}, {v(gP+6,2)}")
    G(f"v_pk_add_f32 {v(gP,2)}, {v(gP,2)}, {v(gP+4,2)}")
    G(f"v_add_f32 {v(dst)}, {v(gP)}, {v(gP+1)}")
G3 = Prog()
G3(f"""
v_permlane32_swap_b32 {v(gS0)}, {v(gS1)}
v_add_f32 {v(gS0)}, {v(gS0)}, {v(gS1)}
v_mov_b32 {v(gS1)}, {v(gS0)}
s_lshr_b32 {sT2}, {sGP}, 8
v_permlane16_swap_b32 {v(gS0)}, {v(gS1)}
v_add_f32 {v(gS0)}, {v(gS0)}, {v(gS1)}
""")
for r in (8, 4, 2, 1):
    G3(f"v_add_f32_dpp {v(gS0)}, {v(gS0)}, {v(gS0)} row_ror:{r} row_mask:0xf bank_mask:0xf")
G3(f"""
v_cvt_pk_bf16_f32 {v(gS0)}, {v(gS0)}, {v(gS0)}
v_and_b32 {v(gS0)}, {sHM}, {v(gS0)}
v_mul_f32 {v(gS0)}, 0xbfb8aa3b, {v(gS0)}
v_exp_f32 {v(gS0)}, {v(gS0)}
v_lshlrev_b32 {v(gS1)}, 2, {v(vHI)}
v_add_f32 {v(gS0)}, 1.0, {v(gS0)}
v_rcp_f32 {v(gS0)}, {v(gS0)}
s_add_u32 {sT2}, {sT2}, {W_G}
v_cvt_pk_bf16_f32 {v(gS0)}, {v(gS0)}, {v(gS0)}
v_bfi_b32 {v(gS0)}, {sFFFF}, {v(vTAG)}, {v(gS0)}
""")
if HX and OPT["hs"]: G3.waitvm("sent")
G3.lock()
G3(f"""
s_mov_b32 exec_lo, 1
s_mov_b32 exec_hi, 1
buffer_store_dword {v(gS0)}, {v(gS1)}, {SRD_WS}, {sT2} offen{LST}
s_mov_b64 exec, -1
""")
G3.unlock()

vBB = [192, 224]
def u_reads(j):
    p = Prog()
    slot = j if j < 6 else j - 6
    for k in range(4):
        p(f"ds_read_b128 {a(aXF + 16*j + 4*k, 4)}, {v(vXf[k])} offset:{(slot & 3)*16384}")
        p(f"ds_read_b128 {v(vBB[j&1] + 8*k, 4)}, {v(vBf[k])} offset:{j*8192}")
        p(f"ds_read_b128 {v(vBB[j&1] + 8*k + 4, 4)}, {v(vBf[k])} offset:{j*8192 + 4096}")
    return p
def u_mm(j, ks):
    p = Prog()
    for k in ks:
        c_re = "0" if (j == 0 and k == 0) else v(vU_RE, 16)
        c_im = "0" if (j == 0 and k == 0) else v(vU_IM, 16)
        p(f"v_mfma_f32_32x32x16_bf16 {v(vU_RE,16)}, {a(aXF + 16*j + 4*k, 4)}, {v(vBB[j&1] + 8*k, 4)}, {c_re}")
        p(f"v_mfma_f32_32x32x16_bf16 {v(vU_IM,16)}, {a(aXF + 16*j + 4*k, 4)}, {v(vBB[j&1] + 8*k + 4, 4)}, {c_im}")
    return p
if HX and OPT["hs"] and OPT["hsp"] == 2 and OPT["hsd"]: E.drain("sn5")
E.waitvm("xb0")
E("s_barrier")
stamp("xb0 landed")
E.extend(u_reads(0))
def weave2(mainp, s1, n1, s2, n2):
    out = []; s1 = list(s1.ins); s2 = list(s2.ins); i = 0
    for m in mainp.ins:
        out.append(m)
        out += s1[:n1[i]]; s1 = s1[n1[i]:]
        out += s2[:n2]; s2 = s2[n2:]
        i += 1
    p = Prog(); p.ins = out + s1 + s2
    return p
for j in range(8):
    E.mark(f"U chunk {j}")
    if OPT["usp"] and j >= OPT["usp"] - 1:
        if j in (3, 5):
            for k in range(4): E(f"v_add_u32 {v(vXf[k])}, {65536 if j == 3 else -65536}, {v(vXf[k])}")
        mm = u_mm(j, (0, 1, 2, 3))
        if j < 7:
            E.extend(mm.ins[:1]); mm.ins = mm.ins[1:]
            E.waitvm(f"xb{j+1}")
            E("s_barrier")
            E.mark(f"xr{j-1}b")
            if j in (1, 3, 5): stamp(f"xb{j+1} landed")
            rd = u_reads(j+1)
            E.extend(rd.ins[:2]); rd.ins = rd.ins[2:]
            E.extend(weave2(mm, rd, [2, 1, 2, 1, 2, 1, 1], F[j], (len(F[j].ins) + 6) // 7))
        else:
            E.extend(weave(mm, F[j], every=1, per=4))
        E.mark(f"xr{j}")
        continue
    if j in (3, 5):
        for k in range(4): F[j](f"v_add_u32 {v(vXf[k])}, {65536 if j == 3 else -65536}, {v(vXf[k])}")
    E.extend(weave(u_mm(j, (0, 1)), F[j], every=1, per=4))
    if j < 7:
        E.waitvm(f"xb{j+1}")
        E("s_barrier")
        if j in (1, 3, 5): stamp(f"xb{j+1} landed")
        E.extend(weave(u_mm(j, (2, 3)), u_reads(j+1), every=1, per=3))
    else:
        E.extend(u_mm(j, (2, 3)))
    E.mark(f"xr{j}")
stamp("U done")
dump("U", [v(vU_RE+i) for i in range(32)])

tA, tB, tC, tD = 192, 194, 196, 198
for m in range(8):
    r, i = vU_RE + 2*m, vU_IM + 2*m
    E(f"v_pk_mul_f32 {v(tA+4*(m&1),2)}, {v(r,2)}, {v(vCOEF,2)} {HI2}")
    E(f"v_pk_mul_f32 {v(r,2)}, {v(r,2)}, {v(vCOEF,2)} {LO2}")
    E(f"v_pk_fma_f32 {v(r,2)}, {v(i,2)}, {v(vCOEF,2)}, {v(r,2)} {HI} {NEG1}")
    E(f"v_pk_fma_f32 {v(i,2)}, {v(i,2)}, {v(vCOEF,2)}, {v(tA+4*(m&1),2)} {LO}")
er, ei = vU_RE, vU_IM
pp = [(tA, tB), (tC, tD)]
for m in range(1, 8):
    nr, ni = pp[m & 1]
    E(f"v_pk_fma_f32 {v(nr,2)}, {v(er,2)}, {v(vLAM,2)}, {v(vU_RE+2*m,2)} {LO}")
    E(f"v_pk_fma_f32 {v(ni,2)}, {v(ei,2)}, {v(vLAM,2)}, {v(vU_IM+2*m,2)} {LO}")
    E(f"v_pk_fma_f32 {v(nr,2)}, {v(ei,2)}, {v(vLAM,2)}, {v(nr,2)} {HI} {NEG1}")
    E(f"v_pk_fma_f32 {v(ni,2)}, {v(er,2)}, {v(vLAM,2)}, {v(ni,2)} {HI}")
    er, ei = nr, ni
eA, e16, e16h, e32 = 200, 202, 204, 206
E(f"""
v_fma_f32 {v(e16)}, {v(vL8)}, {v(er)}, {v(er+1)}
v_fma_f32 {v(e16+1)}, {v(vL8)}, {v(ei)}, {v(ei+1)}
v_fma_f32 {v(e16)}, -{v(vL8+1)}, {v(ei)}, {v(e16)}
v_fma_f32 {v(e16+1)}, {v(vL8+1)}, {v(er)}, {v(e16+1)}
v_mov_b32 {v(eA)}, {v(er)}
v_mov_b32 {v(e16h)}, {v(e16)}
v_mov_b32 {v(e16h+1)}, {v(e16+1)}
v_mov_b32 {v(eA+1)}, {v(ei)}
v_permlane32_swap_b32 {v(e16)}, {v(e16h)}
v_permlane32_swap_b32 {v(e16+1)}, {v(e16h+1)}
""")
cmul_add(E, e32, e16, vL16p, e16h)
E(f"ds_write_b64 {v(vXW)}, {v(e32,2)}")
E.waitlg(None)
if OPT["tagl"]: E(TAGC)
stamp("scan1")
E.waitvm("w0")
E("s_barrier")
E.mark("barA")
stamp("barA")
K = Prog()
eW = [208, 210, 212, 214]
for w in range(4):
    K(f"ds_read_b64 {v(eW[w],2)}, {v(vXR)} offset:{w*256}")
K(f"""
v_mov_b32 {v(vALR)}, {v(vALR0)}
v_mov_b32 {v(vALR+1)}, {v(vALR0+1)}
v_mov_b32 {v(vALI)}, {v(vALI0)}
v_mov_b32 {v(vALI+1)}, {v(vALI0+1)}
v_lshl_or_b32 {v(vT2)}, {v(vHI)}, 12, {v(vEL)}
v_and_b32 {v(vT2)}, 0x10ff, {v(vT2)}
""")
p2, p3, e128 = 216, 218, 220
cmul_add(K, p2, eW[0], vL32, eW[1])
cmul_add(K, p3, p2, vL32, eW[2])
cmul_add(K, e128, p3, vL32, eW[3])
K(f"""
v_cndmask_b32 {v(e128)}, {v(e128)}, 0, {sHI}
v_cndmask_b32 {v(e128+1)}, {v(e128+1)}, 0, {sHI}
v_bfi_b32 {v(e128)}, {sFF}, {v(vTAG)}, {v(e128)}
buffer_store_dwordx2 {v(e128,2)}, {v(vT2)}, {SRD_WS}, {sEP} offen sc1
""")
pw, pb = 222, 224
K(f"""
v_cndmask_b32 {v(pw)}, 0, {v(eW[0])}, {sM1}
v_cndmask_b32 {v(pw+1)}, 0, {v(eW[0]+1)}, {sM1}
v_cndmask_b32 {v(pw)}, {v(pw)}, {v(p2)}, {sM2}
v_cndmask_b32 {v(pw+1)}, {v(pw+1)}, {v(p2+1)}, {sM2}
v_cndmask_b32 {v(pw)}, {v(pw)}, {v(p3)}, {sM3}
v_cndmask_b32 {v(pw+1)}, {v(pw+1)}, {v(p3+1)}, {sM3}
""")
cmul_add(K, pb, pw, vL16p, e16)
K(f"v_cndmask_b32 {v(vBER)}, {v(pw)}, {v(pb)}, {sHI}")
K(f"v_cndmask_b32 {v(vBEI)}, {v(pw+1)}, {v(pb+1)}, {sHI}")
K(f"""
v_fma_f32 {v(vBER+1)}, {v(vL8)}, {v(vBER)}, {v(eA)}
v_fma_f32 {v(vBEI+1)}, {v(vL8)}, {v(vBEI)}, {v(eA+1)}
v_fma_f32 {v(vBER+1)}, -{v(vL8+1)}, {v(vBEI)}, {v(vBER+1)}
v_fma_f32 {v(vBEI+1)}, {v(vL8+1)}, {v(vBER)}, {v(vBEI+1)}
""")
if OPT["osent"] and OPT["sentpos"] == 0:
    for i in range(4): K(f"v_mov_b32 {v(184+i)}, -1")
    for b in range(2): K(f"buffer_store_dwordx4 {v(184,4)}, {v(vL16)}, {SRD_WS}, {sOS} offen offset:{b*1024} sc1")
if OPT["wopf"]:
    K(f"""
    v_lshrrev_b32 {v(244)}, 1, {v(vL)}
    v_and_b32 {v(245)}, 1, {v(vL)}
    v_lshlrev_b32 {v(245)}, 6, {v(245)}
    s_lshl_b32 {sT2}, {sCT}, 7
    v_lshl_or_b32 {v(244)}, {v(244)}, 10, {v(245)}
    v_add_u32 {v(244)}, {sT2}, {v(244)}
    """)
    K.mark("wopf_ok")
K.extend(G3)
if OPT["strip"] > 1: K(f"s_and_b32 s30, {sTAG}, {sFF}")
K(f"""
s_lshl_b32 {sT2}, {sW}, 13
s_add_u32 {sT2}, {sT2}, {S1}
v_mul_u32_u24 {v(vT)}, 80, {v(vL)}
v_add_u32 {v(vPhW)}, {sT2}, {v(vT)}
s_add_u32 {sT3}, {sT2}, 5120
v_add_u32 {v(vVW)}, {sT3}, {v(vL16)}
s_add_u32 {sT2}, {sT2}, {0 if OPT["ord"] else S2 - S1}
v_and_b32 {v(vT)}, 31, {v(vL)}
v_mul_u32_u24 {v(vT)}, 80, {v(vT)}
v_lshl_add_u32 {v(vT)}, {v(vHI)}, 5, {v(vT)}
v_add_u32 {v(vHW)}, {sT2}, {v(vT)}
v_bfe_u32 {v(vT)}, {v(vL)}, 2, 2
v_lshl_or_b32 {v(vT)}, {v(vHI)}, 3, {v(vT)}
v_mul_u32_u24 {v(vT)}, 80, {v(vT)}
v_and_b32 {v(vT2)}, 63, {v(vTRq)}
v_add3_u32 {v(vHR)}, {sT2}, {v(vT)}, {v(vT2)}
v_bfe_u32 {v(vT)}, {v(vL)}, 2, 3
v_lshl_or_b32 {v(vT)}, {v(vHI)}, 4, {v(vT)}
v_mul_u32_u24 {v(vT)}, 80, {v(vT)}
v_and_b32 {v(vT2)}, 3, {v(vL)}
v_lshl_add_u32 {v(vT)}, {v(vT2)}, 3, {v(vT)}
s_and_b32 {sT0}, {sW}, 1
s_lshr_b32 {sT1}, {sW}, 1
s_mul_i32 {sT2}, {sT0}, 2560
s_lshl_b32 {sT3}, {sT1}, 5
s_add_u32 {sT2}, {sT2}, {sT3}
s_add_u32 {sT2}, {sT2}, {S1}
v_add_u32 {v(vPhR)}, {sT2}, {v(vT)}
v_and_b32 {v(vT)}, 15, {v(vL)}
v_bfe_u32 {v(vT2)}, {v(vL)}, 4, 1
v_lshl_or_b32 {v(vT)}, {v(vT2)}, 5, {v(vT)}
v_lshlrev_b32 {v(vT)}, 4, {v(vT)}
v_lshl_or_b32 {v(vT)}, {v(vHI)}, 10, {v(vT)}
s_lshl_b32 {sT2}, {sT0}, 8
s_add_u32 {sT2}, {sT2}, {S1 + 5120}
v_add_u32 {v(vVR)}, {sT2}, {v(vT)}
s_and_b32 {sT2}, {sRB}, 3
s_lshl_b32 {sT2}, {sT2}, 12
s_add_u32 s72, {sKV}, {sT2}
s_xor_b32 s73, s72, 4096
s_xor_b32 s74, s72, 8192
s_xor_b32 s75, s72, 12288
""")

def kv_reads(p, n):
    j, k = n >> 2, n & 3
    for m in range(2):
        for rd in range(2):
            off = (j >> 1)*16384 + k*4096 + (j & 1)*2048 + m*1024 + rd*256
            p(f"ds_read_b64_tr_b16 {v(vFR + (n&3)*8 + 4*m + 2*rd, 2)}, {v(vTRkv)} offset:{off}")
AH = 3
KV = Prog()
for n in range(AH): kv_reads(KV, n)
for n in range(32):
    xf = a(aXF + 4*n, 4)
    fr = vFR + (n & 3)*8
    KV(f"v_mfma_f32_32x32x16_bf16 {v(vKT,16)}, {v(fr,4)}, {xf}, {'0' if n == 0 else v(vKT,16)}")
    nn = n + AH
    if nn < 32 and nn % 8 == 0:
        KV.waitvm(f"w{nn//8}")
        KV("s_barrier")
        if nn == 8: KV.mark("xchdone")
    rr = Prog()
    if nn < 32: kv_reads(rr, nn)
    if OPT["ksp"]: KV.extend(rr.ins[:2]); rr.ins = rr.ins[2:]
    KV(f"v_mfma_f32_32x32x16_bf16 {v(vVV,16)}, {xf}, {v(fr+4,4)}, {'0' if n == 0 else v(vVV,16)}")
    KV.extend(rr)
    if n == OPT["epos"]: KV.mark("e_ok")
cnt = [0]
def kpred(c):
    if c.kind != "mfma": return False
    cnt[0] += 1
    return cnt[0] % 2 == 1
def weave_locked(mainp, side, pred, per):
    out = []; si = 0; S = side.ins
    for m in mainp.ins:
        out.append(m)
        if pred(m):
            k = per
            while k > 0 and si < len(S):
                if S[si].kind == "pseudo" and S[si].pseudo == "lock":
                    while not (S[si].kind == "pseudo" and S[si].pseudo == "unlock"):
                        out.append(S[si]); si += 1
                    out.append(S[si]); si += 1; k = 0
                else:
                    out.append(S[si])
                    if S[si].kind != "pseudo": k -= 1
                    si += 1
    out.extend(S[si:])
    p = Prog(); p.ins = out
    return p
E.extend(weave_locked(KV, K, ismf, 2) if OPT["ksp"] else weave_locked(KV, K, kpred, 4))
dump("kT", [v(vKT+i) for i in range(16)])
dump("v", [v(vVV+i) for i in range(16)])
stamp("kv done")

def softmax(p, src, dst, ap, am, mn, mid=None):
    for i in range(8):
        p(f"v_cvt_pk_bf16_f32 {v(am+i)}, {v(src+2*i)}, {v(src+2*i+1)}")
    p(f"v_mfma_f32_32x32x16_bf16 {v(ap,16)}, {v(vA1,4)}, {v(am,4)}, 0")
    p(f"v_mfma_f32_32x32x16_bf16 {v(ap,16)}, {v(vA2,4)}, {v(am+4,4)}, {v(ap,16)}")
    if mid is not None: p.extend(mid)
    for i in range(8):
        p(f"v_cvt_pk_bf16_f32 {v(am+i)}, {v(ap+2*i)}, {v(ap+2*i+1)}")
    for i in range(8):
        p(f"v_lshlrev_b32 {v(src+2*i)}, 16, {v(am+i)}")
        p(f"v_and_b32 {v(src+2*i+1)}, {sHM}, {v(am+i)}")
    p(f"v_max3_f32 {v(mn)}, {v(src)}, {v(src+1)}, {v(src+2)}")
    p(f"v_min3_f32 {v(mn+1)}, {v(src)}, {v(src+1)}, {v(src+2)}")
    for i in range(3, 15, 2):
        p(f"v_max3_f32 {v(mn)}, {v(mn)}, {v(src+i)}, {v(src+i+1)}")
        p(f"v_min3_f32 {v(mn+1)}, {v(mn+1)}, {v(src+i)}, {v(src+i+1)}")
    p(f"v_max_f32 {v(mn)}, {v(mn)}, {v(src+15)}")
    p(f"v_min_f32 {v(mn+1)}, {v(mn+1)}, {v(src+15)}")
    p(f"v_pk_mul_f32 {v(mn,2)}, {v(mn,2)}, {sL2E} neg_lo:[1,0]")
    for i in range(8):
        p(f"v_pk_fma_f32 {v(ap+2*i,2)}, {v(src+2*i,2)}, {sL2E}, {v(mn,2)} op_sel:[0,0,0] op_sel_hi:[1,1,0]")
        p(f"v_pk_fma_f32 {v(am+2*i,2)}, {v(src+2*i,2)}, {sL2E}, {v(mn,2)} op_sel:[0,0,1] op_sel_hi:[1,1,1] neg_lo:[1,0,0] neg_hi:[1,0,0]")
    for i in range(16):
        p(f"v_exp_f32 {v(ap+i)}, {v(ap+i)}")
        p(f"v_exp_f32 {v(am+i)}, {v(am+i)}")
    for i in range(4):
        p(f"v_pk_add_f32 {v(src+2*i,2)}, {v(ap+4*i,2)}, {v(ap+4*i+2,2)}")
        p(f"v_pk_add_f32 {v(src+8+2*i,2)}, {v(am+4*i,2)}, {v(am+4*i+2,2)}")
    for b in (0, 8):
        p(f"v_pk_add_f32 {v(src+b,2)}, {v(src+b,2)}, {v(src+b+2,2)}")
        p(f"v_pk_add_f32 {v(src+b+4,2)}, {v(src+b+4,2)}, {v(src+b+6,2)}")
    for b in (0, 8):
        p(f"v_pk_add_f32 {v(src+b,2)}, {v(src+b,2)}, {v(src+b+4,2)}")
    p(f"v_add_f32 {v(mn)}, {v(src)}, {v(src+1)}")
    p(f"v_add_f32 {v(mn+1)}, {v(src+8)}, {v(src+9)}")
    p(f"v_rcp_f32 {v(mn)}, {v(mn)}")
    p(f"v_rcp_f32 {v(mn+1)}, {v(mn+1)}")
    for i in range(8):
        p(f"v_pk_mul_f32 {v(ap+2*i,2)}, {v(ap+2*i,2)}, {v(mn,2)} {LO2}")
        p(f"v_pk_mul_f32 {v(am+2*i,2)}, {v(am+2*i,2)}, {v(mn,2)} {HI2}")
    for i in range(8):
        p(f"v_cvt_pk_bf16_f32 {v(dst+i)}, {v(ap+2*i)}, {v(ap+2*i+1)}")
    for i in range(8):
        p(f"v_cvt_pk_bf16_f32 {v(dst+8+i)}, {v(am+2*i)}, {v(am+2*i+1)}")

vVP = vFR
vPHK = 152
mid = Prog()
for i in range(8):
    mid(f"v_cvt_pk_bf16_f32 {v(vVP+i)}, {v(vVV+2*i)}, {v(vVV+2*i+1)}")
mid(f"ds_write_b128 {v(vVW)}, {v(vVP,4)}")
mid(f"ds_write_b128 {v(vVW)}, {v(vVP+4,4)} offset:1024")
ORD = OPT["ord"]
vKA, vKB, vONE, vKD, vZD = 96, 112, 172, 128, 132
def strip_check(p, regs):
    for r in regs: p(f"v_xor_b32 {v(r)}, s30, {v(r)}" if OPT["strip"] > 1 else f"v_bitop3_b32 {v(r)}, {v(r)}, {v(vTAG)}, {sFF} bitop3:0x78")
    p(f"v_or3_b32 {v(vT)}, {v(regs[0])}, {v(regs[1])}, {v(regs[2])}")
    rest = regs[3:]
    while len(rest) >= 2:
        p(f"v_or3_b32 {v(vT)}, {v(vT)}, {v(rest[0])}, {v(rest[1])}"); rest = rest[2:]
    if rest: p(f"v_bitop3_b32 {v(vT)}, {v(vT)}, {v(rest[0])}, {sFF} bitop3:0xa8")
    else: p(f"v_and_b32 {v(vT)}, {sFF}, {v(vT)}")
    p(f"v_cmp_ne_u32 vcc, 0, {v(vT)}")
def e_check(p): strip_check(p, [vEQ+2*k for k in range(8)])
def flag_store(p, base, tok):
    p.waitvm(tok)
    p.lock()
    p(f"""
    s_mov_b64 exec, 1
    v_mov_b32 {v(vT)}, {base}
    buffer_store_dword {v(vTAG)}, {v(vT)}, {SRD_WS}, {sFL} offen{LST}
    s_mov_b64 exec, -1
    """)
    p.ins[-2].lines = 1
    p.unlock()
hq = [240, 242]
CI = Prog()
cur = vEQ + 14
for k in range(6, -1, -1):
    cmul_add(CI, vEQ + 2*k, cur, vMU2, vEQ + 2*k)
    cur = vEQ + 2*k
CI(f"""
v_mov_b32 {v(hq[0])}, {v(cur)}
v_mov_b32 {v(hq[0]+1)}, {v(cur+1)}
{"" if ORD else "v_and_b32 %s, 0x30, %s" % (v(vT), v(vL))}
v_permlane32_swap_b32 {v(cur)}, {v(hq[0])}
v_permlane32_swap_b32 {v(cur+1)}, {v(hq[0]+1)}
""")
cmul_add(CI, cur, hq[0], vMU, cur)
S2P = Prog()
S2P(f"""
v_pk_fma_f32 {v(vBER,2)}, {v(vALR,2)}, {v(cur,2)}, {v(vBER,2)} {LO}
v_pk_fma_f32 {v(vBEI,2)}, {v(vALI,2)}, {v(cur,2)}, {v(vBEI,2)} {LO}
v_pk_fma_f32 {v(vBER,2)}, {v(vALI,2)}, {v(cur,2)}, {v(vBER,2)} {HI} {NEG1}
v_pk_fma_f32 {v(vBEI,2)}, {v(vALR,2)}, {v(cur,2)}, {v(vBEI,2)} {HI}
""")
hr, hi_ = vBER, vBEI
for m in range(8):
    r, i = vU_RE + 2*m, vU_IM + 2*m
    S2P(f"v_pk_fma_f32 {v(r,2)}, {v(hr,2)}, {v(vLAM,2)}, {v(r,2)} {LO}")
    S2P(f"v_pk_fma_f32 {v(i,2)}, {v(hi_,2)}, {v(vLAM,2)}, {v(i,2)} {LO}")
    S2P(f"v_pk_fma_f32 {v(r,2)}, {v(hi_,2)}, {v(vLAM,2)}, {v(r,2)} {HI} {NEG1}")
    S2P(f"v_pk_fma_f32 {v(i,2)}, {v(hr,2)}, {v(vLAM,2)}, {v(i,2)} {HI}")
    hr, hi_ = r, i
dump("h", [v(vU_RE+i) for i in range(32)], S2P)
vHP = 224
for par in range(2):
    for i in range(4):
        S2P(f"v_cvt_pk_bf16_f32 {v(vHP + 4*par + i)}, {v(vU_RE + 4*i + par)}, {v(vU_RE + 4*i + 2 + par)}")
    if OPT["dsp"] & 1: S2P(f"ds_write_b128 {v(vHW)}, {v(vHP+4*par,4)} offset:{16*par}")
if not OPT["dsp"] & 1:
    S2P(f"ds_write_b128 {v(vHW)}, {v(vHP,4)}")
    S2P(f"ds_write_b128 {v(vHW)}, {v(vHP+4,4)} offset:16")
for par in range(2):
    for i in range(4):
        S2P(f"v_cvt_pk_bf16_f32 {v(vHP + 8 + 4*par + i)}, -{v(vU_IM + 4*i + par)}, -{v(vU_IM + 4*i + 2 + par)}")
    if OPT["dsp"] & 1: S2P(f"ds_write_b128 {v(vHW)}, {v(vHP+8+4*par,4)} offset:{2560+16*par}")
if not OPT["dsp"] & 1:
    S2P(f"ds_write_b128 {v(vHW)}, {v(vHP+8,4)} offset:2560")
    S2P(f"ds_write_b128 {v(vHW)}, {v(vHP+12,4)} offset:2576")
vHF = 240
HR = Prog()
for k in range(4):
    for rd in range(2):
        HR(f"ds_read_b64_tr_b16 {v(vHF + 4*k + 2*rd, 2)}, {v(vHR)} offset:{(16*k + 4*rd)*80}")
vQF = 208
def q_reads(p, n):
    j, k = n >> 2, n & 3
    for rd in range(2):
        off = (j >> 2)*16384 + k*4096 + (j & 3)*1024 + rd*256
        p(f"ds_read_b64_tr_b16 {v(vQF + (n%7)*4 + 2*rd, 2)}, {v(vTRq)} offset:{off}")
AHQ = 5
vSENT = 192 if ORD else 164
def h_store(p, n): p(f"buffer_store_dwordx4 {v(vHF+4*n,4)}, {v(vL16)}, {SRD_WS}, {sHS} offen offset:{n*1024}{LST}", tok="hst")
def s_store(p, n): p(f"buffer_store_dwordx4 {v(vSENT,4)}, {v(vL16)}, {SRD_WS}, {sOS} offen offset:{n*1024}{LST}", tok="hst")
SK = Prog()
softmax(SK, vKT, vPHK, 176, vQT, 168, mid)
dump("phik", [v(vPHK+i) for i in range(16)], SK)
if OPT["dsp"] & 2:
    tl_ = SK.ins[-32:]; del SK.ins[-32:]
    mul_, cv_ = tl_[:16], tl_[16:]
    for q in range(4):
        SK.ins += [mul_[2*(4*(q & 1) + i) + (q >> 1)] for i in range(4)] + cv_[4*q:4*q+4]
        SK(f"ds_write_b128 {v(vPhW)}, {v(vPHK+4*q,4)} offset:{16*q}")
else:
  for q in range(4):
    SK(f"ds_write_b128 {v(vPhW)}, {v(vPHK+4*q,4)} offset:{16*q}")
for i in range(4):
    SK(f"v_mov_b32 {v(vONE+i)}, 0x3f803f80")
if ORD:
    sk = list(SK.ins)
    E.extend(sk[:20]); sk = sk[20:]
    for i in range(4): E(f"v_mov_b32 {v(vSENT+i)}, -1")
    for n in range(2): s_store(E, n)
    E.waitvm("eld")
    spin("e", e_loads, e_check)
    stamp("e ok")
    E.extend(CI); E.extend(S2P)
    E.extend(sk[:OPT["sk1"]]); sk = sk[OPT["sk1"]:]
    E.extend(HR)
    E.extend(sk[:OPT["sk2"]]); sk = sk[OPT["sk2"]:]
    for n in range(4):
        h_store(E, n); E.extend(sk[:3]); sk = sk[3:]
    stamp("scan2")
    E.extend(sk)
    if OPT["fhq"] == -2: flag_store(E, W_FH, "hst")
else:
    E.extend(SK.ins[:OPT["glk"]])
    if HX: E.mark("gl_ok")
    E.extend(SK.ins[OPT["glk"]:])
    E.waitvm("eld")
    spin("e", e_loads, e_check)
E.waitlg(None)
stamp("softmax k")
E.waitvm("wq")
E("s_barrier")
for sw in range(4):
    for rd in range(2):
        E(f"ds_read_b64_tr_b16 {v(vKA + 4*sw + 2*rd, 2)}, {v(vPhR)} offset:{sw*8192 + rd*640}")
    E(f"ds_read_b128 {v(vKB + 4*sw, 4)}, {v(vVR)} offset:{sw*8192}")
KP = Prog()
for sw in range(4):
    KP(f"v_mfma_f32_16x16x32_bf16 {v(vKD,4)}, {v(vKA+4*sw,4)}, {v(vKB+4*sw,4)}, {'0' if sw == 0 else v(vKD,4)}")
    KP(f"v_mfma_f32_16x16x32_bf16 {v(vZD,4)}, {v(vKA+4*sw,4)}, {v(vONE,4)}, {'0' if sw == 0 else v(vZD,4)}")
if ORD:
    QR = Prog()
    QR(f"v_and_b32 {v(vT)}, 0x30, {v(vL)}")
    for n in range(AHQ): q_reads(QR, n)
    E.extend(weave(KP, QR.ins, every=1, per=2))
else:
    E.extend(CI.ins[:8])
    E.extend(weave(KP, CI.ins[8:], every=1, per=2))
if HX: E.drain("gg1")
E(f"""
v_bfi_b32 {v(vKD)}, {sFF}, {v(vTAG)}, {v(vKD)}
v_bfi_b32 {v(vZD)}, {sFF}, {v(vTAG)}, {v(vZD)}
buffer_store_dwordx4 {v(vKD,4)}, {v(vL16)}, {SRD_WS}, {sKVP} offen sc1
""")
E.lock()
E(f"""
s_mov_b32 exec_lo, 0x10001
s_mov_b32 exec_hi, 0x10001
buffer_store_dwordx4 {v(vZD,4)}, {v(vT)}, {SRD_WS}, {sZPP} offen sc1
s_mov_b64 exec, -1
""")
E.ins[-2].lines = 1
E.unlock()
if ORD and OPT["fhq"] == -1: flag_store(E, W_FH, "hst")
stamp("kvpub")
if not ORD:
    E.extend(S2P); E.extend(HR)
    if not HX or not OPT["hs"]:
        for i in range(4): E(f"v_mov_b32 {v(vSENT+i)}, -1")
    for n in range(AHQ): q_reads(E, n)
    stamp("scan2")
vQT2 = 176
Q = Prog()
for n in range(32):
    Q(f"v_mfma_f32_32x32x16_bf16 {v(vQT2,16)}, {v(vQF + (n%7)*4,4)}, {a(aXF + 4*n, 4)}, {'0' if n == 0 else v(vQT2,16)}")
    if n == OPT["gpos"] and OPT["gp2"] < 0: Q.mark("gather_ok")
    if n + AHQ < 32: q_reads(Q, n + AHQ)
    if not ORD:
        if n < 4: h_store(Q, n)
        if 4 <= n < 6 and not (HX and OPT["hs"]): s_store(Q, n - 4)
        if n == OPT["fhst"] and not HX: flag_store(Q, W_FH, "hst")
    else:
        if n == OPT["fhq"]: flag_store(Q, W_FH, "hst")
        if n == OPT["flp"]: Q.mark("fh_ld")
vTW, vTZ, vTZ2, vTN, vTD, vOA = 8, 9, 20, 21, 0, 34
vQT_ = 47
QF = Prog()
QF(f"""
s_and_b32 {sT0}, {sW}, 1
v_and_b32 {v(vQT_)}, 31, {v(vL)}
s_lshl_b32 {sT2}, {sCT}, 7
s_lshl_b32 {sT3}, {sT0}, 6
s_add_u32 {sT2}, {sT2}, {sT3}
""")
if TL:
    QF(f"""
    v_and_b32 {v(vDA)}, 7, {v(vL)}
    v_lshl_add_u32 {v(vDA)}, {v(vDA)}, 3, {sT2}
    s_lshl_b32 {sT3}, {sRA0}, 5
    v_lshrrev_b32 {v(vOUT)}, 3, {v(vL)}
    v_add_u32 {v(vOUT)}, {sT3}, {v(vOUT)}
    v_lshl_add_u32 {v(vOUT)}, {v(vOUT)}, 10, {v(vDA)}
    s_mov_b32 s78, 8192
    s_mov_b32 s79, 16384
    s_mov_b32 s80, 24576
    """)
else:
    QF(f"""
    v_lshl_add_u32 {v(vDA)}, {v(vHI)}, 3, {sT2}
    s_lshl_b32 {sT3}, {sRA0}, 5
    v_add_u32 {v(vOUT)}, {sT3}, {v(vQT_)}
    v_lshl_add_u32 {v(vOUT)}, {v(vOUT)}, 10, {v(vDA)}
    """)
QF.mark("xd_ok")
def gg_check(p):
    g_ = vG2 if HX else vGv
    p(f"v_xor_b32 {v(vT)}, {v(vTAG)}, {v(g_[0])}")
    p(f"v_bitop3_b32 {v(vT)}, {v(g_[1])}, {v(vTAG)}, {v(vT)} bitop3:0xbe")
    p(f"v_and_b32 {v(vT)}, {sFFFF}, {v(vT)}")
    p(f"v_cmp_ne_u32 vcc, 0, {v(vT)}")
if HX:
    spin("g", gg_load, gg_check, p=QF)
    for ra in range(2): QF(f"v_mov_b32 {v(vGv[ra])}, {v(vG2[ra])}")
else:
    QF(f"""
    s_lshl_b32 {sT2}, {sRA0}, 7
    s_add_u32 {sT2}, {sT2}, {W_G}
    v_lshl_add_u32 {v(vGL[0])}, {v(vQT_)}, 2, {sT2}
    v_xor_b32 {v(vGL[1])}, 128, {v(vGL[0])}
    """)
    QF.mark("gl_ok")
QF(f"""
s_lshr_b32 {sT1}, {sW}, 1
s_mul_i32 {sT2}, {sT0}, 1280
s_lshl_b32 {sT3}, {sT1}, 5
s_add_u32 {sT2}, {sT2}, {sT3}
s_add_u32 {sT2}, {sT2}, {TAB}
v_and_b32 {v(vTZ2)}, 15, {v(vL)}
v_mul_u32_u24 {v(vTW)}, 80, {v(vTZ2)}
v_lshrrev_b32 {v(vT2)}, 4, {v(vL)}
v_lshl_add_u32 {v(vTW)}, {v(vT2)}, 3, {v(vTW)}
v_add_u32 {v(vTW)}, {sT2}, {v(vTW)}
s_mul_i32 {sT2}, {sT0}, 80
s_add_u32 {sT2}, {sT2}, {sT3}
s_add_u32 {sT2}, {sT2}, {TAB + 32*80}
v_and_b32 {v(vTN)}, 3, {v(vL)}
v_lshlrev_b32 {v(vTZ)}, 3, {v(vTN)}
v_bfe_u32 {v(vT2)}, {v(vL)}, 4, 1
v_lshl_or_b32 {v(vTZ)}, {v(vT2)}, 2, {v(vTZ)}
v_lshl_or_b32 {v(vTZ)}, {v(vHI)}, 1, {v(vTZ)}
v_add_u32 {v(vTZ)}, {sT2}, {v(vTZ)}
v_lshlrev_b32 {v(vTZ2)}, 2, {v(vTZ2)}
v_add_u32 {v(vTZ2)}, {TAB + 34*80}, {v(vTZ2)}
v_bfe_u32 {v(vOA)}, {v(vL)}, 3, 2
v_lshl_add_u32 {v(vTN)}, {v(vOA)}, 2, {v(vTN)}
v_lshl_add_u32 {v(vTN)}, {v(vHI)}, 4, {v(vTN)}
v_mul_u32_u24 {v(vTN)}, 80, {v(vTN)}
v_add_u32 {v(vTN)}, {TAB}, {v(vTN)}
v_mul_u32_u24 {v(vTD)}, 80, {v(vHI)}
v_add_u32 {v(vTD)}, {TAB + 32*80}, {v(vTD)}
v_mov_b32 {v(vT2)}, {TAB + 34*80}
s_mov_b32 s76, 0xf0f0f0f0
s_mov_b32 s77, 0x0f0f0f0f
v_cndmask_b32 {v(vTN)}, {v(vTN)}, {v(vT2)}, s[76:77]
v_cndmask_b32 {v(vTD)}, {v(vTD)}, {v(vT2)}, s[76:77]
v_bfe_u32 {v(vT2)}, {v(vL)}, 1, 1
v_lshl_or_b32 {v(vOA)}, {v(vOA)}, 1, {v(vT2)}
v_and_b32 {v(vT2)}, 1, {v(vL)}
v_lshl_or_b32 {v(vOA)}, {v(vT2)}, 3, {v(vOA)}
v_bfe_u32 {v(vT2)}, {v(vL)}, 2, 1
v_lshl_or_b32 {v(vOA)}, {v(vT2)}, 4, {v(vOA)}
v_lshl_or_b32 {v(vOA)}, {v(vHI)}, 5, {v(vOA)}
v_lshlrev_b32 {v(vOA)}, 4, {v(vOA)}
s_lshr_b32 {sT2}, {sRA0}, 3
s_lshl_b32 {sT2}, {sT2}, 19
s_and_b32 {sT3}, {sRA0}, 7
s_lshl_b32 {sT3}, {sT3}, 12
s_add_u32 {sT2}, {sT2}, {sT3}
s_add_u32 {sT2}, {sT2}, {W_H}
""")
if OPT["crot"]:
    QF(f"""
    s_lshr_b32 {sT3}, {sCT}, 2
    s_add_u32 {sT3}, {sT3}, {sCT}
    s_add_u32 {sT3}, {sT3}, {sCG}
    s_and_b32 {sT3}, {sT3}, 1
    s_lshl_b32 {sT3}, {sT3}, 11
    s_add_u32 {sT2}, {sT2}, {sT3}
    """)
QF(f"""
v_add_u32 {v(vAH[0])}, {sT2}, {v(vL16)}
v_xor_b32 {v(vAH[1])}, 4096, {v(vAH[0])}
{"v_xor_b32 %s, 2048, %s" % (v(vAH2[0]), v(vAH[0])) if OPT["crot"] else ""}
{"v_xor_b32 %s, 2048, %s" % (v(vAH2[1]), v(vAH[1])) if OPT["crot"] else ""}
s_lshr_b32 {sT2}, {sRA0}, 4
s_lshl_b32 {sT2}, {sT2}, 19
s_and_b32 {sT3}, {sRA0}, 15
s_lshl_b32 {sT3}, {sT3}, 11
s_add_u32 {sT2}, {sT2}, {sT3}
s_add_u32 {sT2}, {sT2}, {W_O}
v_add_u32 {v(vAO[0])}, {sT2}, {v(vL16)}
v_xor_b32 {v(vAO[1])}, 2048, {v(vAO[0])}
""")
E.extend(weave_locked(Q, QF, ismf, 2))
dump("qT", [v(vQT2+i) for i in range(16)])
stamp("q done")
if HX: E.mark("fh_ok")
if OPT["gpos"] >= 32 and OPT["gp2"] < 0: E.mark("gather_ok")

vPQ = 224
SQ = Prog()
softmax(SQ, vQT2, vPQ, vU_RE, vU_IM, 164)
def fh_load(p): p(FH_LOAD)
def fl_check(p): p(f"v_cmp_ne_u32 vcc, {sTAG}, {v(vFLG)}")
def fh_check():
    E.drain("fhl")
    spin("fh", fh_load, fl_check)
    E.mark("fh_ok")
if ORD:
    ev = []
    if OPT["flp"] >= 32: ev.append(((OPT["flp"] - 32) * 10, 0, lambda: E.mark("fh_ld")))
    if OPT["gp2"] >= 0: ev.append((OPT["gp2"] * 10, 1, lambda: E.mark("gather_ok")))
    if OPT["fcp"] < 99: ev.append((OPT["fcp"] * 10, 2, fh_check))
    pos = 0
    for at, _, fn in sorted(ev, key=lambda x: x[:2]):
        at = min(at, len(SQ.ins))
        E.extend(SQ.ins[pos:at]); pos = at; fn()
    E.extend(SQ.ins[pos:])
else:
    cut = min(len(SQ.ins), OPT["fold"] * 10)
    E.extend(SQ.ins[:cut]); E.mark("fh_ld"); E.extend(SQ.ins[cut:])
dump("phiq", [v(vPQ+i) for i in range(16)])
stamp("softmax q")
tX, tDk = 208, 176
if not TL:
    E.drain("dk3")
    for i in range(8):
        E(f"v_lshlrev_b32 {v(tX+2*i)}, 16, {v(vXD+i)}")
        E(f"v_and_b32 {v(tX+2*i+1)}, {sHM}, {v(vXD+i)}")
        E(f"v_lshlrev_b32 {v(tDk+2*i)}, 16, {v(vDK+i)}")
        E(f"v_and_b32 {v(tDk+2*i+1)}, {sHM}, {v(vDK+i)}")
    for i in range(8):
        E(f"v_pk_mul_f32 {v(tX+2*i,2)}, {v(tX+2*i,2)}, {v(tDk+2*i,2)}")
    for i in range(8):
        E(f"v_cvt_pk_bf16_f32 {v(tDk+i)}, {v(tX+2*i)}, {v(tX+2*i+1)}")
    for i in range(8):
        E(f"v_lshlrev_b32 {v(vACC+2*i)}, 16, {v(tDk+i)}")
        E(f"v_and_b32 {v(vACC+2*i+1)}, {sHM}, {v(tDk+i)}")
    for i in range(8):
        E(f"v_pk_mul_f32 {v(vACC+2*i,2)}, {v(vACC+2*i,2)}, 0.5 op_sel_hi:[1,0]")
    E(f"v_lshlrev_b32 {v(vOUT)}, 1, {v(vOUT)}")

def g_check(p):
    if OPT["strip"]: return strip_check(p, [vGZ] + [vGA+4*r for r in range(16)])
    p(f"v_xor_b32 {v(vT)}, {v(vTAG)}, {v(vGZ)}")
    for r in range(16):
        p(f"v_bitop3_b32 {v(vT)}, {v(vGA+4*r)}, {v(vTAG)}, {v(vT)} bitop3:0xbe")
    p(f"v_and_b32 {v(vT)}, {sFF}, {v(vT)}")
    p(f"v_cmp_ne_u32 vcc, 0, {v(vT)}")
late_fh = (not ORD or OPT["fcp"] >= 99) and not HX
if late_fh: E.drain("fhl")
HN = [f"h{c}{k}{ra}" for c in range(4) for k in range(4) for ra in range(2)]
if HX and OPT["hd1"]: E.drain(HN[OPT["hd1"] - 1])
def g_fly(p):
    st_ = lambda r: p(f"v_xor_b32 {v(r)}, s30, {v(r)}" if OPT["strip"] > 1 else f"v_bitop3_b32 {v(r)}, {v(r)}, {v(vTAG)}, {sFF} bitop3:0x78")
    def add(a_, b_):
        for h in range(2): p(f"v_pk_add_f32 {v(vGA+4*a_+2*h,2)}, {v(vGA+4*a_+2*h,2)}, {v(vGA+4*b_+2*h,2)}")
    st_(vGZ)
    for r in range(0, 16, 2):
        st_(vGA+4*r); st_(vGA+4*r+4)
        p(f"v_or3_b32 {v(vT)}, {v(vGZ if r == 0 else vT)}, {v(vGA+4*r)}, {v(vGA+4*r+4)}")
        if r == 14:
            p(f"v_and_b32 {v(vT)}, {sFF}, {v(vT)}")
            p(f"v_cmp_ne_u32 vcc, 0, {v(vT)}")
        add(r, r+1)
        if r: add(0, r)
if OPT["gfly"]:
    E.drain("ga15")
    spin("kv", gather_loads, g_fly)
else:
    E.waitvm("gld")
    spin("kv", gather_loads, g_check)
if late_fh: fh_check()
stamp("gather ok")
if OPT["olock"]:
    if OPT["olock"] > 0: E.drain(HN[OPT["olock"] - 1])
    E.lock()
if not OPT["osent"]: E(f"v_add_u32 {v(vFLA)}, {W_FO - W_FH}, {v(vFLA)}")
st = 32 if not OPT["gfly"] else 0
while st >= 4:
    for b in range(0, st, 4):
        for h in range(2):
            E(f"v_pk_add_f32 {v(vGA+b+2*h,2)}, {v(vGA+b+2*h,2)}, {v(vGA+b+st+2*h,2)}")
    st //= 2
E(f"""
v_permlane32_swap_b32 {v(vGZ)}, {v(vGZ+1)}
v_permlane32_swap_b32 {v(vGZ+2)}, {v(vGZ+3)}
v_cvt_pk_bf16_f32 {v(vGA)}, {v(vGA)}, {v(vGA+1)}
v_cvt_pk_bf16_f32 {v(vGA+1)}, {v(vGA+2)}, {v(vGA+3)}
v_add_f32 {v(vGZ)}, {v(vGZ)}, {v(vGZ+1)}
v_add_f32 {v(vGZ+2)}, {v(vGZ+2)}, {v(vGZ+3)}
ds_write_b64 {v(vTW)}, {v(vGA,2)}
v_mov_b32 {v(vGZ+1)}, 0
v_permlane16_swap_b32 {v(vGZ)}, {v(vGZ+2)}
v_add_f32 {v(vGZ)}, {v(vGZ)}, {v(vGZ+2)}
ds_write_b32 {v(vTZ2)}, {v(vGZ+1)}
v_add_f32_dpp {v(vGZ)}, {v(vGZ)}, {v(vGZ)} row_ror:8 row_mask:0xf bank_mask:0xf
v_add_f32_dpp {v(vGZ)}, {v(vGZ)}, {v(vGZ)} row_ror:4 row_mask:0xf bank_mask:0xf
v_cvt_pk_bf16_f32 {v(vGZ)}, {v(vGZ)}, {v(vGZ)}
ds_write_b16 {v(vTZ)}, {v(vGZ)}
""")
if not HX: spin("g", gg_load, gg_check)
if HX and OPT["hd2"]: E.drain(HN[OPT["hd2"] - 1])
E.waitlg(None)
if OPT["olock"] and OPT["ol2"]:
    E.unlock(); E.drain(HN[OPT["ol2"] - 1]); E.lock()
E("s_barrier")
vTA, vTB, vNUM, vDEN = 104, 120, 136, 152
for t_ in ((1, 0) if OPT["nfirst"] else (0, 1)):
    for s_ in range(4):
        E(f"ds_read_b128 {v([vTB, vTA][t_]+4*s_,4)}, {v([vTD, vTN][t_])} offset:{16*s_}")
GR = Prog()
for ra in range(2):
    g_, r_ = vGv[ra], vRT[ra]
    GR(f"""
    v_and_b32 {v(g_)}, {sHM}, {v(g_)}
    v_sub_f32 {v(r_)}, 1.0, {v(g_)}
    v_max_f32 {v(g_)}, 0x0da24260, {v(g_)}
    v_cvt_pk_bf16_f32 {v(r_)}, {v(r_)}, {v(r_)}
    v_rcp_f32 {v(r_+1)}, {v(g_)}
    v_and_b32 {v(r_)}, {sHM}, {v(r_)}
    v_add_f32 {v(r_)}, {v(r_)}, {v(r_)}
    v_mul_f32 {v(r_)}, {v(r_)}, {v(r_+1)}
    """)
E.extend(GR.ins[:8])
DN = Prog()
for s_ in range(4):
    DN(f"v_mfma_f32_32x32x16_bf16 {v(vDEN,16)}, {v(vTB+4*s_,4)}, {v(vPQ+4*s_,4)}, {'0' if s_ == 0 else v(vDEN,16)}")
for s_ in range(4):
    DN(f"v_mfma_f32_32x32x16_bf16 {v(vNUM,16)}, {v(vTA+4*s_,4)}, {v(vPQ+4*s_,4)}, {'0' if s_ == 0 else v(vNUM,16)}")
vHC = [10, 12, 13]
def h_reload(c):
    def f(p):
        for k in range(4):
            for ra in range(2): p(h_ld(c, k, ra))
    return f
def h_check(c):
    def f(p):
        r = [aXF + ((c*4+k)*2+ra)*4 for k in range(4) for ra in range(2)]
        for i in range(3): p(f"v_accvgpr_read_b32 {v(vHC[i])}, {a(r[i])}")
        p(f"v_max3_u32 {v(vHC[0])}, {v(vHC[0])}, {v(vHC[1])}, {v(vHC[2])}")
        for i in (3, 5):
            for j in range(2): p(f"v_accvgpr_read_b32 {v(vHC[1+j])}, {a(r[i+j])}")
            p(f"v_max3_u32 {v(vHC[0])}, {v(vHC[0])}, {v(vHC[1])}, {v(vHC[2])}")
        p(f"v_accvgpr_read_b32 {v(vHC[1])}, {a(r[7])}")
        p(f"v_max_u32 {v(vHC[0])}, {v(vHC[0])}, {v(vHC[1])}")
        p(f"v_cmp_eq_u32 vcc, -1, {v(vHC[0])}")
    return f
def h_ck(c):
    p = Prog(); p.drain(f"h{c}31")
    spin(f"h{c}", h_reload(c), h_check(c), p=p)
    return list(p.ins)
NP = Prog()
for i in range(8):
    NP(f"v_cvt_pk_bf16_f32 {v(vTA+i)}, {v(vNUM+2*i)}, {v(vNUM+2*i+1)}")
for i in range(8):
    NP(f"v_lshlrev_b32 {v(vNUM+2*i)}, 16, {v(vTA+i)}")
    NP(f"v_and_b32 {v(vNUM+2*i+1)}, {sHM}, {v(vTA+i)}")
if OPT["nfirst"]:
    m_ = DN.ins[4:] + DN.ins[:4]; g_ = GR.ins[8:]
    E.extend(m_[:5] + g_[:4] + m_[5:6] + g_[4:] + m_[6:7] + NP.ins[:5] + m_[7:] + NP.ins[5:]); NP = Prog()
else:
    E.extend(weave(DN, GR.ins[8:] + (h_ck(0) if HX == 2 else []), every=1, per=4))
if OPT["olock"]: E.unlock()
E.drainaux(8)
if OPT["olock"]: E.lock()
E(f"""
v_cvt_pk_bf16_f32 {v(vDEN)}, {v(vDEN)}, {v(vDEN)}
v_and_b32 {v(vDEN)}, {sHM}, {v(vDEN)}
v_add_f32 {v(vDEN)}, 0x358637bd, {v(vDEN)}
v_cvt_pk_bf16_f32 {v(vDEN)}, {v(vDEN)}, {v(vDEN)}
v_and_b32 {v(vDEN)}, {sHM}, {v(vDEN)}
v_rcp_f32 {v(vDEN)}, {v(vDEN)}
""")
E.extend(NP)
for i in range(8):
    E(f"v_pk_mul_f32 {v(vNUM+2*i,2)}, {v(vNUM+2*i,2)}, {v(vDEN,2)} {LO2}")
for i in range(8):
    E(f"v_cvt_pk_bf16_f32 {v(vTA+i)}, {v(vNUM+2*i)}, {v(vNUM+2*i+1)}")
for b in range(2):
    E(f"buffer_store_dwordx4 {v(vTA+4*b,4)}, {v(vOA)}, {SRD_WS}, {sOS} offen offset:{b*1024}{LST}", tok="ost")
if OPT["olock"]: E.unlock()
dump("o", [v(vTA+i) for i in range(8)])
stamp("o stored")
if HX and OPT["hd3"]: E.drain(HN[OPT["hd3"] - 1])

def acc(ra, nb): return v(vACC + (ra*2+nb)*16, 16)
def hm(p, c, k, ra, nb):
    first = (c == 0 and k == 0 and ((ra, nb) != (0, 0) or TL))
    p(f"v_mfma_f32_32x32x16_bf16 {acc(ra,nb)}, {a(aCF + ((c*4+k)*2+nb)*4, 4)}, {a(aXF + ((c*4+k)*2+ra)*4, 4)}, {'0' if first else acc(ra,nb)}")
def fo_load(p): p(FH_LOAD)
vRW = [23, 24, 25]; vRR = 10
RA = Prog()
XD = Prog()
vXR_ = [48, 50, 52, 54, 56, 58, 16, 18]
vGQ = [8, 20]; vRQ = [38, 46]; vDU = 22
vWA = [14, 15, 22, 23]; vRA = [26, 27, 28, 29]
if TL:
    XD(f"v_lshrrev_b32 {v(vT2)}, 3, {v(vL)}")
    XD(f"v_lshlrev_b32 {v(vT2)}, 2, {v(vT2)}")
    for q in range(4): XD(f"ds_bpermute_b32 {v(vGQ[q>>1] + (q&1))}, {v(vT2)}, {v(vGv[0])} offset:{32*q}")
    XD.waitvm("xdl")
    for i in range(2):
        XD(f"v_lshlrev_b32 {v(vDU+2*i)}, 16, {v(vDK2+i)}")
        XD(f"v_and_b32 {v(vDU+2*i+1)}, {sHM}, {v(vDK2+i)}")
    for j in range(8):
        XD(f"v_lshlrev_b32 {v(vXR_[j])}, 16, {v(vXD2+j)}")
        XD(f"v_and_b32 {v(vXR_[j]+1)}, {sHM}, {v(vXD2+j)}")
    for j in range(8):
        for h in range(2): XD(f"v_mul_f32 {v(vXR_[j]+h)}, {v(vXR_[j]+h)}, {v(vDU+2*(j&1)+h)}")
    for j in range(8): XD(f"v_cvt_pk_bf16_f32 {v(vXD2+j)}, {v(vXR_[j])}, {v(vXR_[j]+1)}")
    for q in range(4):
        r_ = vRQ[q>>1] + (q&1)
        XD(f"v_sub_f32 {v(r_)}, 1.0, {v(vGQ[q>>1] + (q&1))}")
    for q in range(4):
        r_ = vRQ[q>>1] + (q&1)
        XD(f"v_cvt_pk_bf16_f32 {v(r_)}, {v(r_)}, {v(r_)}")
    for q in range(4):
        r_ = vRQ[q>>1] + (q&1)
        XD(f"v_and_b32 {v(r_)}, {sHM}, {v(r_)}")
    for j in range(8):
        XD(f"v_lshlrev_b32 {v(vXR_[j])}, 16, {v(vXD2+j)}")
        XD(f"v_and_b32 {v(vXR_[j]+1)}, {sHM}, {v(vXD2+j)}")
    for j in range(8):
        q = j >> 1
        for h in range(2): XD(f"v_mul_f32 {v(vXR_[j]+h)}, {v(vXR_[j]+h)}, {v(vRQ[q>>1] + (q&1))}")
    WAP = Prog(); RAP = Prog()
    WAP(f"""
    s_lshl_b32 {sT2}, {sW}, 12
    v_and_b32 {v(vT2)}, 7, {v(vL)}
    v_xor_b32 {v(vWA[0])}, {v(vT2)}, {v(vHI)}
    v_and_b32 {v(vWA[1])}, 31, {v(vL)}
    v_lshl_add_u32 {v(vWA[1])}, {v(vWA[1])}, 7, {sT2}
    v_lshl_or_b32 {v(vWA[0])}, {v(vWA[0])}, 4, {v(vWA[1])}
    v_xor_b32 {v(vWA[1])}, 32, {v(vWA[0])}
    v_xor_b32 {v(vWA[2])}, 64, {v(vWA[0])}
    v_xor_b32 {v(vWA[3])}, 0x60, {v(vWA[0])}
    """)
    RAP(f"""
    v_lshrrev_b32 {v(vRA[2])}, 3, {v(vL)}
    v_xor_b32 {v(vT2)}, {v(vT2)}, {v(vRA[2])}
    v_lshl_add_u32 {v(vRA[1])}, {v(vRA[2])}, 7, {sT2}
    v_lshl_or_b32 {v(vRA[0])}, {v(vT2)}, 4, {v(vRA[1])}
    v_xor_b32 {v(vRA[1])}, 4096, {v(vRA[0])}
    v_xor_b32 {v(vRA[2])}, 8192, {v(vRA[0])}
    v_xor_b32 {v(vRA[3])}, 12288, {v(vRA[0])}
    v_lshlrev_b32 {v(vOUT)}, 1, {v(vOUT)}
    s_mov_b32 s81, 32768
    s_mov_b32 s82, 49152
    s_or_b32 {sT3}, s2, {sW}
    v_mov_b32 {v(vT)}, {W_EPOCH}
    """)
else:
    for a_ in range(1, 4):
        RA(f"s_xor_b32 {sT2}, {sW}, {a_}")
        RA(f"s_mul_i32 {sT2}, {sT2}, 12288")
        RA(f"s_add_u32 {sT2}, {sT2}, {(a_-1)*4096}")
        RA(f"v_add_u32 {v(vRW[a_-1])}, {sT2}, {v(vL16)}")
    RA(f"s_mul_i32 {sT2}, {sW}, 12288")
    RA(f"v_add_u32 {v(vRR)}, {sT2}, {v(vL16)}")
xd_left = list(XD.ins)
def scale(ra, nb):
    p = Prog()
    for i in range(16):
        r = vACC + (ra*2+nb)*16 + i
        p(f"v_mul_f32 {v(r)}, {v(vRT[ra])}, {v(r)}")
    return p
hseq = [(c, k, ra, nb) for c in range(3) for k in range(4) for ra in range(2) for nb in range(2)]
accs = [(0, 0), (0, 1), (1, 0), (1, 1)]
hseq += [(3, k, ra, nb) for ra, nb in accs for k in range(4)]
sc_left = []; hc_left = []
for n_, (c, k, ra, nb) in enumerate(hseq):
    if OPT["osent"]:
        if n_ == OPT["old"]: E.mark("fo_ok"); stamp("o ld")
    else:
        if n_ == OPT["fost"]:
            flag_store(E, W_FO, "ost"); stamp("fo flag")
        if n_ == OPT["fost"] + OPT["fogap"]:
            fo_load(E); E.ins[-1].lat = OPT["lm"]; E.ins[-1].lines = 1
        if n_ == OPT["fochk"]:
            spin("fo", fo_load, fl_check); E.mark("fo_ok"); stamp("fo ok")
    E.drain(f"h{c}{k}{ra}")
    hm(E, c, k, ra, nb)
    if HX == 2 and n_ < 48:
        if n_ % 16 == OPT["hck"]: hc_left = h_ck(n_ // 16 + 1)
        k_ = OPT["hcper"] if n_ % 16 < 15 else 1000
        while hc_left and k_ > 0:
            c_ = hc_left.pop(0); E.ins.append(c_)
            if c_.kind not in ("pseudo", "label"): k_ -= 1
    if n_ >= OPT["xdpos"]:
        k_ = OPT["xdper"] if n_ < 55 else 1000
        while xd_left and k_ > 0:
            c_ = xd_left.pop(0); E.ins.append(c_)
            if c_.kind != "pseudo": k_ -= 1
    if n_ >= 56:
        if n_ % 4 == 0: sc_left = scale(*accs[(n_ - 56) // 4]).ins
        E.extend(sc_left[:4]); sc_left = sc_left[4:]
if OPT["osent"] and OPT["old"] == 64: E.mark("fo_ok"); stamp("o ld")
if OPT["fochk"] == 64 and not OPT["osent"]:
    spin("fo", fo_load, fl_check); E.mark("fo_ok"); stamp("fo ok")
def om(p, c, b, ra, nb):
    p(f"v_mfma_f32_32x32x16_bf16 {acc(ra,nb)}, {v(vWOFR + ((c*2+b)*2+nb)*4, 4)}, {v(vOF + ((c*2+b)*2+ra)*4, 4)}, {acc(ra,nb)}")
stamp("h done")
E.drainaux()
E.extend(RA)
def o_reload(h):
    def f(p):
        for x in o_order[8*h:8*h+8]: p(o_ld(*x))
    return f
def o_check(h):
    def f(p):
        r = [vOF + ((c*2+b)*2+ra)*4 for c, b, ra in o_order[8*h:8*h+8]]
        p(f"v_max3_u32 {v(vT)}, {v(r[0])}, {v(r[1])}, {v(r[2])}")
        p(f"v_max3_u32 {v(vT)}, {v(vT)}, {v(r[3])}, {v(r[4])}")
        p(f"v_max3_u32 {v(vT)}, {v(vT)}, {v(r[5])}, {v(r[6])}")
        p(f"v_max_u32 {v(vT)}, {v(vT)}, {v(r[7])}")
        p(f"v_cmp_eq_u32 vcc, -1, {v(vT)}")
    return f
if OPT["osent"]:
    E.drain("o%d%d%d" % o_order[7])
    spin("o1", o_reload(0), o_check(0)); stamp("o1 ok")
for g_ in range(4):
    p = Prog()
    for c, b, ra in o_order[2*g_:2*g_+2]:
        p.drain(f"o{c}{b}{ra}")
        for nb in range(2): om(p, c, b, ra, nb)
    if g_ < 2: E.extend(weave(p, scale(*accs[2+g_]), pred=ismf, per=4))
    elif g_ == 3 and OPT["osent"]:
        E.drain("o%d%d%d" % o_order[15])
        ck = Prog(); o_check(1)(ck)
        E.extend(weave(p, ck, pred=ismf, per=2))
        spin("o2", o_reload(1), o_check(1), emit=False)
    else: E.extend(p)
def wr(a_):
    p = Prog()
    for q in range(4):
        if TL: p(f"ds_write_b128 {v(vWA[q])}, {v(vACC + 16*a_ + 4*q, 4)} offset:{a_*16384}")
        else: p(f"ds_write_b128 {v(vRW[a_-1])}, {v(vACC + 16*a_ + 4*q, 4)} offset:{q*1024}")
    return p
E.drain("o311")
tail = [(1, 0), (1, 1), (0, 1), (0, 0)]
for n_, (ra, nb) in enumerate(tail):
    if n_ == 2: E.drain("o310")
    p = Prog()
    for c in (2, 3):
        for b in range(2): om(p, c, b, ra, nb)
    if TL:
        W_ = lambda k: wr(tail[k][0]*2 + tail[k][1]).ins
        if n_ == 0: E.extend(p)
        elif n_ == 1: E.extend(weave(p, WAP, pred=ismf, per=3))
        elif n_ == 2: E.extend(weave(p, W_(0), pred=ismf, per=1))
        else:
            m_ = p.ins; R_ = RAP.ins; wb = W_(1); wc = W_(2)
            E.extend(m_[:1] + R_[:3] + wb[:2] + m_[1:2] + wb[2:] + m_[2:3] + R_[3:5] + wc[:2] + m_[3:] + wc[2:] + R_[5:])
    elif n_ < 2: E.extend(p)
    else:
        pa = tail[n_-2]
        E.extend(weave(p, wr(pa[0]*2 + pa[1]), pred=ismf, per=1))
E.extend(wr(0 if TL else 1))
stamp("o done")
E.waitlg(None)
E("s_barrier")
OSC = ["", " sc1", " nt", " sc0 sc1", " sc1 nt", " sc0 sc1 nt", " sc0 nt"][OPT["outsc"]]
if TL:
    for q in range(4):
        for a_ in range(4):
            E(f"ds_read_b128 {v(128 + 16*q + 4*a_, 4)}, {v(vRA[a_])} offset:{a_*16384 + q*1024}")
    for q in range(4):
        b_ = 128 + 16*q
        for i in range(2):
            E(f"v_pk_add_f32 {v(b_+2*i,2)}, {v(b_+2*i,2)}, {v(b_+4+2*i,2)}")
            E(f"v_pk_add_f32 {v(b_+8+2*i,2)}, {v(b_+8+2*i,2)}, {v(b_+12+2*i,2)}")
        for i in range(2):
            E(f"v_pk_add_f32 {v(b_+2*i,2)}, {v(b_+2*i,2)}, {v(b_+8+2*i,2)}")
        for i in range(2):
            E(f"v_pk_fma_f32 {v(b_+2*i,2)}, {v(b_+2*i,2)}, {v(vGQ[q>>1],2)}, {v(vXR_[2*q+i],2)} {HI if q & 1 else LO}")
        E(f"buffer_store_dwordx4 {v(b_,4)}, {v(vOUT)}, {SRD_OUT}, {sQ16[q]} offen" + OSC)
else:
  for a_ in range(3):
    for q in range(4):
        E(f"ds_read_b128 {v(128 + 16*a_ + 4*q, 4)}, {v(vRR)} offset:{a_*4096 + q*1024}")
  for q in range(4):
    for a_ in range(3):
        for i in range(2):
            E(f"v_pk_add_f32 {v(vACC+4*q+2*i,2)}, {v(vACC+4*q+2*i,2)}, {v(128+16*a_+4*q+2*i,2)}")
    for i in range(2):
        E(f"v_pk_mul_f32 {v(vACC+4*q+2*i,2)}, {v(vACC+4*q+2*i,2)}, {v(vGv[0],2)} {LO2}")
    E(f"buffer_store_dwordx4 {v(vACC+4*q,4)}, {v(vOUT)}, {SRD_OUT}, 0 offen offset:{32*q}" + OSC)
if STAMPS:
    E.waitvm(None)
    stamp("end")
    E(f"""
    s_lshl_b32 {sT2}, s2, 11
    s_lshl_b32 {sT3}, {sW}, 9
    s_add_u32 {sT2}, {sT2}, {sT3}
    s_add_u32 {sT2}, {sT2}, {W_ST}
    v_lshlrev_b32 {v(vT)}, 3, {v(vL)}
    v_mov_b32 {v(100)}, {v(vDBG)}
    v_mov_b32 {v(101)}, 0
    buffer_store_dwordx2 {v(100,2)}, {v(vT)}, {SRD_WS}, {sT2} offen
    """)
if STAMPS or not TL:
    E(f"s_or_b32 {sT3}, s2, {sW}")
    E(f"v_mov_b32 {v(vT)}, {W_EPOCH}")
E(f"""
s_cmp_lg_u32 {sT3}, 0
s_cbranch_scc1 L_end
s_mov_b64 exec, 1
buffer_store_dword {v(vTAG)}, {v(vT)}, {SRD_WS}, 0 offen sc1
L_end:
s_endpgm
""")

for c in [c for c in main.ins if c.kind == "label" and c.text.startswith("L_back_")]:
    main.ins.remove(c)
    k = [i for i, b in enumerate(main.ins) if b.kind == "sopp" and b.text.split()[-1] == "L_slow_" + c.text[7:].rstrip(":")]
    assert len(k) == 1
    main.ins.insert(k[0] + 1, c)
log = []
woven = stream_weave2(main, items, aux, lat=OPT["lat"], stlat=OPT["stlat"], taq=OPT["taq"], log=log, margin=OPT["amargin"], cyc_line=OPT["cl"], capf=OPT["capf"]/100, sthol=OPT["sthol"])
if OPT["log"]:
    for nm, t, ts, it in log:
        if OPT["log"] > 1 or not nm.startswith("  it"): print(f"{nm:14s} t={t:6d} ({t/2200:.2f}us) ts={ts:6d} next={items[it].name if it < len(items) else '-'}")
stats = {}
fine = None
if OPT["fine"]:
    a_, b_ = OPT["fine"].replace("_", " ").split(":")
    fine = dict(start=a_, end=b_, names=[], clk="s_memrealtime" if STAMPS == 1 else "s_memtime", vm=OPT["fvm"], skip=OPT["fskip"])
body = finalize(woven.ins, stats, fine, lgk=OPT["lgk"]) + ["L_code_end:"] + finalize(slow.ins)
if OPT["al"]:
    body, alst = align_pass(body, level=OPT["al"])
    print("align: cost %.2f promoted %d of %d" % alst)
if fine: stnames += [""] * (32 - len(stnames)) + fine["names"]
hdr = open("gated_mix__linear_kernel_hedgehog__ssm_conv_s5__prompt.s.ref").read().split("\n")
head = [l for l in hdr if l.startswith(";") and "@launch" not in l and "Override" not in l and "grid=ceil" not in l]
out = head + ["; @launch grid=(256,1,1) block=(256,1,1) lds=163840",
  '.amdgcn_target "amdgcn-amd-amdhsa--gfx950"', ".text", f".globl {KN}", ".p2align 8", f".type {KN},@function", f"{KN}:"]
out += body
out += ['.section .rodata,"a"', ".p2align 6", f".amdhsa_kernel {KN}", "  .amdhsa_next_free_vgpr 512", "  .amdhsa_next_free_sgpr 102",
  "  .amdhsa_accum_offset 256", "  .amdhsa_group_segment_fixed_size 0", "  .amdhsa_kernarg_size 136", "  .amdhsa_user_sgpr_count 2",
  "  .amdhsa_user_sgpr_kernarg_segment_ptr 1", "  .amdhsa_system_sgpr_workgroup_id_x 1", ".end_amdhsa_kernel"]
import json
if STAMPS: out += ["; STNAMES " + json.dumps(stnames), "; OPTS " + " ".join(sys.argv[2:])]
open(sys.argv[1], "w").write("\n".join(out) + "\n")
json.dump(dbg_names, open(sys.argv[1] + ".dbg.json", "w"))
json.dump(stnames, open(sys.argv[1] + ".st.json", "w"))
print("lines", len(body), "nops", stats["nops"], "stamps", nst[0], "dbg slots", dbg_slot[0])
```
